```python
import torch

def _softmax(x, axis=-1):
    return torch.softmax(x, dim=axis)
def _gelu(x):
    return torch.nn.functional.gelu(x, approximate="tanh")
def _silu(x):
    return torch.nn.functional.silu(x)
def _sigmoid(x):
    return torch.sigmoid(x)
def _layernorm(x, axis=-1, eps=1e-5):
    m = x.mean(dim=axis, keepdim=True)
    v = x.var(dim=axis, keepdim=True, unbiased=False)
    return (x - m) / torch.sqrt(v + eps)
def _scatter_add(tgt, idx, src, axis=0):
    return tgt.clone().index_add_(axis, idx, src)
def _segment_sum(src, seg, n):
    out = torch.zeros((n,) + src.shape[1:], dtype=src.dtype)
    return out.index_add_(0, seg, src)
def _pad(x, pw):
    flat = tuple(v for pair in reversed(pw) for v in pair)
    return torch.nn.functional.pad(x, flat)

kernel_name = 'recurrent_scan__gqa_block_cached__glu_gated_swiglu__decode'

def setup_inputs():

    _w = (lambda a: (lambda t: t.to(torch.bfloat16) if t.is_floating_point() else t)(torch.as_tensor(a)))
    def _A_setup():
        B, Sq, D = 1, 1, 1024
        Hq, Hkv, Sk, Dh = 32, 4, 65536, 128
        assert Hq % Hkv == 0, (Hq, Hkv)
        return {
            "x": _w((lambda *s: torch.randn(*s, dtype=torch.bfloat16) * 0.4)(B, Sq, D)),
            "k_cache": _w((lambda *s: torch.randn(*s, dtype=torch.bfloat16) * 1.6)(B, Hkv, Sk, Dh)),
            "v_cache": _w((lambda *s: torch.randn(*s, dtype=torch.bfloat16) * 1.6)(B, Hkv, Sk, Dh)),
            "wq": _w((lambda *s: torch.randn(*s, dtype=torch.bfloat16) * 1.6)(D, Hq * Dh) * (D ** -0.5)),
            "wo": _w((lambda *s: torch.randn(*s, dtype=torch.bfloat16) * 1.6)(Hq * Dh, D) * ((Hq * Dh) ** -0.5)),
        }
    _A_in = _A_setup()

    def _B_setup():
        B, S, D, F = 1, 1, 1024, 3584
        return {
            "x": _w((lambda *s: torch.randn(*s, dtype=torch.bfloat16) * 0.4)(B, S, D)),
            "w1": _w((lambda *s: torch.randn(*s, dtype=torch.bfloat16) * 1.6)(D, F) * (2.0 / D) ** 0.5),
            "w3": _w((lambda *s: torch.randn(*s, dtype=torch.bfloat16) * 1.6)(D, F) * (2.0 / D) ** 0.5),
            "w2": _w((lambda *s: torch.randn(*s, dtype=torch.bfloat16) * 1.6)(F, D) * (2.0 / F) ** 0.5),
        }
    _B_in = _B_setup()

    return {
        "A_x": _A_in["x"],
        "A_k_cache": _A_in["k_cache"],
        "A_v_cache": _A_in["v_cache"],
        "A_wq": _A_in["wq"],
        "A_wo": _A_in["wo"],
        "B_x": _B_in["x"],
        "B_w1": _B_in["w1"],
        "B_w3": _B_in["w3"],
        "B_w2": _B_in["w2"],
    }

def reference(A_x, A_k_cache, A_v_cache, A_wq, A_wo, B_x, B_w1, B_w3, B_w2):
    def _A_ref(x, k_cache, v_cache, wq, wo):
        B, Sq, D = x.shape
        Hq, Dh = 32, 128
        Hkv = k_cache.shape[1]
        rep = Hq // Hkv
        q = (lambda x, *d: x.permute(*d))((x @ wq).reshape(B, Sq, Hq, Dh), 0, 2, 1, 3)
        k = (lambda x, n, axis: torch.repeat_interleave(x, n, dim=axis))(k_cache, rep, axis=1)
        v = (lambda x, n, axis: torch.repeat_interleave(x, n, dim=axis))(v_cache, rep, axis=1)
        scores = torch.einsum("bhqd,bhkd->bhqk", q, k) * (Dh ** -0.5)
        p = _softmax(scores, axis=-1)
        o = torch.einsum("bhqk,bhkd->bhqd", p, v)
        return (lambda x, *d: x.permute(*d))(o, 0, 2, 1, 3).reshape(B, Sq, Hq * Dh) @ wo

    def _B_ref(x, w1, w3, w2):
        gate = torch.einsum("bsd,df->bsf", x, w1)
        up = torch.einsum("bsd,df->bsf", x, w3)
        h = _silu(gate) * up
        out = torch.einsum("bsf,fd->bsd", h, w2)
        return out

    x = A_x
    xn = _layernorm(x, axis=-1)
    s = _A_ref(xn, A_k_cache, A_v_cache, A_wq, A_wo)
    g = _silu(_B_ref(xn, B_w1, B_w3, B_w2))
    return x + s * g
```

```python
import re

def parse_regs(tok):
    tok = tok.strip()
    if tok.startswith('-'): tok = tok[1:]
    if tok.startswith('abs(') or tok.startswith('neg('): tok = tok[4:-1]
    tok = tok.strip('|')
    m = re.fullmatch(r'([vas])(\d+)', tok)
    if m: return {(m.group(1), int(m.group(2)))}
    m = re.fullmatch(r'([vas])\[(\d+):(\d+)\]', tok)
    if m: return {(m.group(1), i) for i in range(int(m.group(2)), int(m.group(3)) + 1)}
    if tok in ('vcc',): return {('s', 'vcc_lo'), ('s', 'vcc_hi')}
    if tok in ('vcc_lo', 'vcc_hi'): return {('s', tok)}
    if tok == 'exec': return {('s', 'exec_lo'), ('s', 'exec_hi')}
    if tok in ('exec_lo', 'exec_hi'): return {('s', tok)}
    if tok == 'm0': return {('s', 'm0')}
    return set()

TRANS = ('v_exp_f32', 'v_log_f32', 'v_rcp_f32', 'v_rsq_f32', 'v_sqrt_f32', 'v_sin_f32', 'v_cos_f32')
VCC = {('s', 'vcc_lo'), ('s', 'vcc_hi')}

class Ins:
    def __init__(self, text):
        self.text = text
        t = text.split(';')[0].strip()
        self.is_label = t.endswith(':')
        self.is_dir = t.startswith('.')
        self.empty = (t == '')
        self.op = ''; self.w = set(); self.r = set(); self.cls = 'none'; self.srcc = set(); self.ab = set()
        self.dpp = False; self.nop = 0
        if self.is_label or self.is_dir or self.empty: return
        parts = t.split(None, 1)
        op = parts[0]; self.op = op
        rest = parts[1] if len(parts) > 1 else ''
        ops = [x.strip() for x in re.split(r',(?![^\[]*\])', rest)] if rest else []
        mods = ''
        if ops:
            last = ops[-1].split()
            if last:
                ops[-1] = last[0]; mods = ' '.join(last[1:])
        self.ops = ops; self.mods = mods
        R = [parse_regs(o) for o in ops]
        base = re.sub(r'_(e32|e64|dpp|sdwa)$', '', op)
        self.base = base
        if op.startswith('v_mfma'):
            self.cls = 'mfma'; self.w = R[0]; self.ab = R[1] | R[2]; self.srcc = R[3]; self.r = self.ab | self.srcc
        elif op.startswith('v_cmp'):
            self.cls = 'valu'; self.w = R[0]; self.r = set().union(*R[1:])
        elif base in ('v_readfirstlane_b32', 'v_readlane_b32'):
            self.cls = 'valu'; self.w = R[0]; self.r = set().union(*R[1:]); self.lane_read = True
        elif base.startswith('v_permlane'):
            self.cls = 'valu'; self.w = R[0] | R[1]; self.r = R[0] | R[1]
        elif base.startswith('v_accvgpr'):
            self.cls = 'valu'; self.w = R[0]; self.r = set().union(*R[1:])
        elif op.startswith('v_'):
            self.cls = 'valu'; self.w = set(R[0]); self.r = set().union(*R[1:]) if len(R) > 1 else set()
            if base in ('v_fmac_f32', 'v_dot2c_f32_bf16', 'v_pk_fmac_f16', 'v_mac_f32'): self.r |= R[0]
            if base in ('v_cndmask_b32',) and len(ops) == 3: self.r |= VCC
            if base in ('v_add_co_u32', 'v_sub_co_u32', 'v_addc_co_u32'):
                self.w = R[0] | R[1]; self.r = set().union(*R[2:])
            if 'row_' in rest or 'quad_perm' in rest or op.endswith('_dpp'):
                self.dpp = True
                if 'bound_ctrl' not in rest: self.r |= R[0]
        elif op.startswith('ds_'):
            self.cls = 'ds'
            if op.startswith('ds_read') or op.startswith('ds_bpermute') or op.startswith('ds_swizzle') or op.startswith('ds_permute'):
                self.w = R[0]; self.r = set().union(*R[1:])
            else:
                self.r = set().union(*R)
        elif op.startswith('buffer_') or op.startswith('global_'):
            self.cls = 'vmem'
            if 'load' in op and 'lds' not in (op + ' ' + mods):
                self.w = R[0]; self.r = set().union(*R[1:]); self.load = True
            else:
                self.r = set().union(*R)
                if 'store' in op: self.store_data = R[0] if op.startswith('buffer_') else R[1]; self.wide = ('x4' in op or 'x3' in op)
        elif op == 's_nop':
            self.cls = 'nop'; self.nop = int(ops[0], 0) + 1
        elif op.startswith('s_'):
            self.cls = 'salu'
            if op.startswith('s_cmp') or op.startswith('s_cbranch') or op in ('s_branch', 's_barrier', 's_waitcnt', 's_endpgm', 's_sleep', 's_setprio'):
                self.r = set().union(*R) if R else set()
            elif op.startswith('s_load'):
                self.w = R[0]; self.r = R[1]
            else:
                self.w = R[0] if R else set(); self.r = set().union(*R[1:]) if len(R) > 1 else set()
                if 'saveexec' in op: self.w |= {('s', 'exec_lo'), ('s', 'exec_hi')}
        else:
            raise ValueError("unknown instruction: " + text)
    def states(self):
        if self.cls == 'none': return 0
        if self.cls == 'nop': return self.nop
        return 1

def isv(rs): return {x for x in rs if x[0] in ('v', 'a')}
def iss(rs): return {x for x in rs if x[0] == 's'}

def required(prev, cur):
    need = 0
    pw, pr = prev.w, prev.r
    if prev.cls == 'valu':
        vw = isv(pw); sw = iss(pw)
        if cur.cls == 'mfma' and vw & cur.r: need = max(need, 2)
        if cur.cls == 'valu':
            if cur.dpp and vw & cur.r: need = max(need, 2)
            if cur.base.startswith('v_permlane') and vw & cur.r: need = max(need, 2)
            if getattr(cur, 'lane_read', False) and vw & cur.r: need = max(need, 1)
            if prev.base in TRANS and vw & cur.r and cur.base not in TRANS: need = max(need, 1)
            if prev.base in TRANS and vw & cur.r: need = max(need, 1)
            if sw & cur.r: need = max(need, 4 if getattr(cur, 'lane_read', False) else 2)
        if cur.cls == 'vmem' and sw & cur.r: need = max(need, 5)
        if cur.cls == 'salu' and sw & cur.r: need = max(need, 2)
        if cur.cls == 'salu' and cur.op.startswith('s_cbranch_vcc') and sw & VCC: need = max(need, 2)
    if prev.cls == 'mfma':
        d = prev.w
        if cur.cls == 'mfma':
            if d & cur.ab: need = max(need, 8)
            if d & cur.srcc and d != cur.srcc: need = max(need, 6)
            if d & cur.w and d != cur.w: need = max(need, 8)
        elif cur.cls in ('valu', 'vmem', 'ds'):
            if d & (cur.r | cur.w): need = max(need, 8)
        if cur.cls == 'valu' and prev.srcc & cur.w: need = max(need, 3)
    if prev.cls == 'vmem' and getattr(prev, 'wide', False):
        if cur.cls in ('valu',) and prev.store_data & cur.w: need = max(need, 2)
        if cur.cls in ('ds', 'vmem', 'mfma') and prev.store_data & cur.w: need = max(need, 1)
    if prev.cls == 'ds' and prev.op in ('ds_write_b128', 'ds_write_b96'):
        pass
    if prev.cls == 'salu' and ('s', 'm0') in pw and cur.cls == 'vmem' and 'lds' in cur.mods: need = max(need, 1)
    return need

def insert_nops(lines):
    ins = [Ins(l) for l in lines]
    WINDOW = 10
    for it in range(2000):
        labels = {}
        for k, x in enumerate(ins):
            if x.is_label: labels[x.text.split(';')[0].strip()[:-1]] = k
        branches = {}
        for k, x in enumerate(ins):
            if x.cls == 'salu' and (x.op.startswith('s_cbranch') or x.op == 's_branch'):
                tgt = x.ops[0]
                if tgt in labels: branches.setdefault(labels[tgt], []).append(k)
        def preds(k):
            p = []
            if k in branches: p += branches[k]
            if k > 0:
                pv = ins[k-1]
                if not (pv.cls == 'salu' and pv.op in ('s_branch', 's_endpgm')): p.append(k-1)
            return p
        fixes = {}
        for k, cur in enumerate(ins):
            if cur.cls in ('none', 'nop'): continue
            extra = 0
            stack = [(p, 0) for p in preds(k)]
            seen = {}
            while stack:
                q, dist = stack.pop()
                if dist >= WINDOW: continue
                if q in seen and seen[q] <= dist: continue
                seen[q] = dist
                prev = ins[q]
                if prev.cls not in ('none', 'nop'):
                    need = required(prev, cur)
                    if need > dist: extra = max(extra, need - dist)
                nd = dist + prev.states()
                for p in preds(q): stack.append((p, nd))
            if extra: fixes[k] = extra
        if not fixes: break
        out = []
        last = -100
        for k, x in enumerate(ins):
            if k in fixes and k - last > WINDOW:
                e = fixes[k]
                while e > 0:
                    n = min(e, 8); out.append(Ins("s_nop %d" % (n-1))); e -= n
                last = k
            out.append(x)
        ins = out
    else:
        raise RuntimeError("hazard pass did not converge")
    return [i.text for i in ins]

class Prog:
    uid = 0
    def __init__(self):
        self.lines = []; self.vm = []
        Prog.uid += 1; self.n = Prog.uid * 10000
    def __call__(self, s):
        for l in s.split("\n"):
            self.lines.append(l)
    def label(self, base="L"):
        self.n += 1
        return "%s_%d" % (base, self.n)
    def vmem(self, text, name=None, cond=False):
        self.lines.append(text); self.vm.append((name, cond))
    def count_after(self, name):
        idx = max(i for i, (nm, c) in enumerate(self.vm) if nm == name)
        return sum(1 for nm, c in self.vm[idx + 1:] if not c)
    def wait(self, name, lgkm=False):
        n = min(self.count_after(name), 63)
        self.lines.append("s_waitcnt vmcnt(%d)%s" % (n, " lgkmcnt(0)" if lgkm else ""))
    def text(self):
        return "\n".join(insert_nops(self.lines)) + "\n"
```

```python
import sys, json
from sched import Prog

NAME = "recurrent_scan__gqa_block_cached__glu_gated_swiglu__decode_kernel"

EPOCH   = 0
Q_BASE  = 0x1000
FLAG_BASE = 0x14000
BP_BASE = 0x20000
O_BASE  = 0x80000
O_PITCH = 4224
S_BASE  = 0x200000
BB_BASE = 0x280000
STAMP   = 0x400000
L_XN = 0
L_QP = 4096
L_BP = 6144
L_QL = 10240
L_HL = 12544
L_MX = 12800
L_LW = 13056
L_CP = 13312
L_FP = 13824
L_OP = 16384
LDS_BYTES = 32768

SX, SK, SV, SWQ, SWO, SW1, SW3, SW2, SOUT, SDBG, SWS = [ "s[%d:%d]" % (4*i+4, 4*i+7) for i in range(11)]
sW, sG, sC, sT0, sKV = "s48", "s49", "s50", "s51", "s52"
sSELLO, sSELHI, sE, sTAG, sFF, sLOG2E, sSCALE, sHI = "s53", "s54", "s55", "s56", "s57", "s58", "s59", "s60"
sRETRY = "s61"
sA, sB, sCc, sD = "s62", "s63", "s64", "s65"
sRB, sCH = "s66", "s67"
vTID, vLANE, vOFFK, vL16 = 0, 1, 2, 3
vMASK = 4
vTAG, vMAX, vL0, vL1 = 8, 9, 10, 11
vT = 12
QF, SP, PERM, ACC, RING = 16, 32, 64, 96, 128

def vr(b, n=1): return "v%d" % b if n == 1 else "v[%d:%d]" % (b, b+n-1)
def ar(b, n=1): return "a%d" % b if n == 1 else "a[%d:%d]" % (b, b+n-1)

DPP = " row_mask:0xf bank_mask:0xf"
def allred(p, regs, tmps, op, steps):
    for s in steps:
        if s in (1, 2, 4, 8):
            for r in regs: p("%s_dpp v%d, v%d, v%d row_ror:%d%s" % (op, r, r, r, s, DPP))
        else:
            for r, t in zip(regs, tmps): p("v_mov_b32 v%d, v%d" % (t, r))
            for r, t in zip(regs, tmps): p("v_permlane%d_swap_b32 v%d, v%d" % (s, r, t))
            for r, t in zip(regs, tmps): p("%s v%d, v%d, v%d" % (op, r, r, t))

def build(cfg):
    pat = cfg.get("pat", "lin")
    nt = " nt" if cfg.get("nt", True) else ""
    ntw = " nt" if cfg.get("ntw", True) else ""
    stamps = cfg.get("stamps", False)
    poll_after = cfg.get("poll_after", 6)
    HS = cfg.get("hs", " sc1")
    HL = cfg.get("hl", " sc1")
    RETRIES = cfg.get("retries", 40000)
    stride = {"lin": 1024, "str8": 8192, "w4": 4096, "glob": 262144}[pat]
    p = Prog()
    nst = [0]
    names = []
    def stamp(name):
        if not stamps or name in cfg.get("nostamp", ["x_landed", "q_gemv"]): return
        k = nst[0]; nst[0] += 1; names.append(name)
        assert k < 16
        p("s_memrealtime s[%d:%d]" % (70+2*k, 71+2*k))

    END = p.label("end")
    p("s_cmp_ge_u32 s2, 256")
    p("s_cbranch_scc1 %s" % END)
    stamp("start")
    for i, off in enumerate([0, 8, 16, 24, 32, 48, 56, 64, 72, 80, 88]):
        p("s_load_dwordx2 s[%d:%d], s[0:1], %d" % (4*i+4, 4*i+5, off))
    sizes = [2048, 1<<26, 1<<26, 1<<23, 1<<23, 1024*3584*2, 1024*3584*2, 1024*3584*2, 2048, 256, 1<<28]
    for i, sz in enumerate(sizes):
        p("s_mov_b32 s%d, 0x%x" % (4*i+6, sz)); p("s_mov_b32 s%d, 0x20000" % (4*i+7))
    p("s_cmp_lt_u32 s2, 224")
    p("s_cselect_b32 s26, s26, 0")
    p("s_cselect_b32 s30, s30, 0")
    p("v_lshrrev_b32 v12, 6, v0")
    p("v_and_b32 v1, 63, v0")
    p("v_readfirstlane_b32 %s, v12" % sW)
    p("s_lshr_b32 %s, s2, 6" % sG)
    p("s_and_b32 %s, s2, 63" % sC)
    p("s_mov_b32 %s, 0x05040100" % sSELLO); p("s_mov_b32 %s, 0x07060302" % sSELHI)
    p("s_mov_b32 %s, 0xff" % sFF); p("s_mov_b32 %s, 0x3fb8aa3b" % sLOG2E)
    p("s_mov_b32 %s, 0x3db504f3" % sSCALE); p("s_mov_b32 %s, 0xffff0000" % sHI)
    p("s_lshr_b32 %s, s2, 1" % sRB); p("s_and_b32 %s, s2, 1" % sCH)
    p("v_lshlrev_b32 v3, 4, v1")
    p("v_lshlrev_b32 v13, 5, v1")
    p("s_lshl_b32 %s, %s, 9" % (sA, sW))
    p("v_lshlrev_b32 v14, 3, v1")
    p("v_lshrrev_b32 v15, 3, v1"); p("v_lshlrev_b32 v15, 13, v15")
    p("v_and_b32 v16, 7, v1"); p("v_lshlrev_b32 v16, 4, v16"); p("v_add_u32 v15, v15, v16")
    p("v_lshrrev_b32 v17, 4, v1"); p("v_mul_u32_u24 v17, 7168, v17")
    p("v_and_b32 v18, 15, v1"); p("v_lshlrev_b32 v18, 4, v18"); p("v_add_u32 v17, v17, v18")
    p("s_and_b32 %s, %s, 3" % (sB, sC)); p("s_lshl_b32 %s, %s, 21" % (sB, sB))
    p("s_lshl_b32 %s, %s, 19" % (sCc, sW)); p("s_add_u32 %s, %s, %s" % (sB, sB, sCc))
    p("s_lshl_b32 %s, %s, 11" % (sCc, sG)); p("s_add_u32 %s, %s, %s" % (sB, sB, sCc))
    p("s_lshr_b32 %s, %s, 2" % (sCc, sC)); p("s_lshl_b32 %s, %s, 7" % (sCc, sCc)); p("s_add_u32 %s, %s, %s" % (sB, sB, sCc))
    p("s_and_b32 %s, s2, 7" % sCc); p("s_lshl_b32 %s, %s, 7" % (sCc, sCc))
    p("s_lshl_b32 %s, %s, 5" % (sD, sW)); p("s_add_u32 %s, %s, %s" % (sCc, sCc, sD)); p("s_mul_i32 %s, %s, 7168" % (sCc, sCc))
    p("s_lshr_b32 %s, s2, 3" % sD); p("s_lshl_b32 %s, %s, 8" % (sD, sD)); p("s_add_u32 %s, %s, %s" % (sCc, sCc, sD))
    p("s_waitcnt lgkmcnt(0)")
    p("s_load_dword %s, s[44:45], %d" % (sE, EPOCH))
    p.vmem("buffer_load_dwordx4 v[224:227], v13, %s, 0 offen" % SX, "XA0")
    p.vmem("buffer_load_dwordx4 v[228:231], v13, %s, 0 offen offset:16" % SX, "XA1")
    p.vmem("buffer_load_dwordx2 v[232:233], v14, %s, %s offen" % (SX, sA), "XB")
    for t in range(8):
        p("s_add_u32 %s, %s, %d" % (sT0, sB, t*8*8192))
        p.vmem("buffer_load_dwordx4 %s, v15, %s, %s offen%s" % (vr(128+4*t, 4), SWQ, sT0, ntw), "Q%d" % t)
    for t in range(8):
        p("s_add_u32 %s, %s, %d" % (sT0, sCc, t*4*7168))
        p.vmem("buffer_load_dwordx4 %s, v17, %s, %s offen%s" % (vr(160+4*t, 4), SW1, sT0, ntw), "W1_%d" % t)
    if pat == "lin":
        p("s_lshl_b32 %s, s2, 18" % sKV); p("s_lshl_b32 %s, %s, 16" % (sD, sW)); p("s_add_u32 %s, %s, %s" % (sKV, sKV, sD))
    elif pat == "str8":
        p("s_lshl_b32 %s, %s, 24" % (sKV, sG))
        p("s_lshr_b32 %s, %s, 3" % (sD, sC)); p("s_lshl_b32 %s, %s, 21" % (sD, sD)); p("s_add_u32 %s, %s, %s" % (sKV, sKV, sD))
        p("s_lshl_b32 %s, %s, 19" % (sD, sW)); p("s_add_u32 %s, %s, %s" % (sKV, sKV, sD))
        p("s_and_b32 %s, %s, 7" % (sD, sC)); p("s_lshl_b32 %s, %s, 10" % (sD, sD)); p("s_add_u32 %s, %s, %s" % (sKV, sKV, sD))
    elif pat == "w4":
        p("s_lshl_b32 %s, s2, 18" % sKV); p("s_lshl_b32 %s, %s, 10" % (sD, sW)); p("s_add_u32 %s, %s, %s" % (sKV, sKV, sD))
    elif pat == "glob":
        p("s_lshl_b32 %s, %s, 24" % (sKV, sG))
        p("s_lshl_b32 %s, %s, 12" % (sD, sC)); p("s_add_u32 %s, %s, %s" % (sKV, sKV, sD))
        p("s_lshl_b32 %s, %s, 10" % (sD, sW)); p("s_add_u32 %s, %s, %s" % (sKV, sKV, sD))
    p("v_and_b32 v12, 3, v1"); p("v_lshlrev_b32 v12, %d, v12" % (stride.bit_length()-1))
    p("v_bfe_u32 v2, v1, 2, 2"); p("v_lshlrev_b32 v2, 8, v2"); p("v_add_u32 v2, v2, v12")
    p("v_lshrrev_b32 v12, 4, v1"); p("v_lshlrev_b32 v12, 4, v12"); p("v_add_u32 v2, v2, v12")
    p("v_and_b32 v12, 1, v1"); p("v_lshlrev_b32 v12, 4, v12"); p("v_mov_b32 v13, 0xffff"); p("v_lshlrev_b32 v13, v12, v13")
    p("v_bfe_u32 v12, v1, 1, 2")
    for jj in range(4):
        p("v_cmp_eq_u32 vcc, %d, v12" % jj); p("v_cndmask_b32 v%d, 0, v13, vcc" % (vMASK+jj))
    def loadK(t):
        for h in range(2):
            p("s_add_u32 %s, %s, %d" % (sT0, sKV, (8*t+4*h)*stride))
            for s in range(4):
                p.vmem("buffer_load_dwordx4 %s, v%d, %s, %s offen offset:%d%s" % (ar(32*t+16*h+4*s, 4), vOFFK, SK, sT0, 64*s, nt), "K%d" % t)
    def loadV(t):
        base = RING + 32*(t % 4)
        for i in range(8):
            p("s_add_u32 %s, %s, %d" % (sT0, sKV, (8*t+i)*stride))
            p.vmem("buffer_load_dwordx4 %s, v%d, %s, %s offen%s" % (vr(base+4*i, 4), vL16, SV, sT0, nt), "V%d" % t)

    def tagcheck(regs, acc):
        p("v_xor_b32 v%d, %s, v%d" % (acc, sTAG, regs[0]))
        for r in regs[1:]: p("v_bitop3_b32 v%d, v%d, %s, v%d bitop3:0xbe" % (acc, r, sTAG, acc))
        p("v_and_b32 v%d, 0xff, v%d" % (acc, acc))
        p("v_cmp_ne_u32 vcc, 0, v%d" % acc)
    p.wait("XA1")
    stamp("x_landed")
    for i in range(8):
        p("v_lshlrev_b32 v%d, 16, v%d" % (32+2*i, 224+i)); p("v_and_b32 v%d, 0xffff0000, v%d" % (33+2*i, 224+i))
    for i in range(8): p("v_add_f32 v%d, v%d, v%d" % (48+i, 32+2*i, 33+2*i))
    p("v_add_f32 v48, v48, v49"); p("v_add_f32 v50, v50, v51"); p("v_add_f32 v52, v52, v53"); p("v_add_f32 v54, v54, v55")
    p("v_add_f32 v48, v48, v50"); p("v_add_f32 v52, v52, v54"); p("v_add_f32 v48, v48, v52")
    allred(p, [48], [49], "v_add_f32", [8, 4, 2, 1, 16, 32])
    p("v_mul_f32 v49, 0x3a800000, v48")
    for i in range(16): p("v_sub_f32 v%d, v%d, v49" % (32+i, 32+i))
    for i in range(4): p("v_mul_f32 v%d, v%d, v%d" % (50+i, 32+i, 32+i))
    for i in range(4, 16): p("v_fmac_f32 v%d, v%d, v%d" % (50+(i % 4), 32+i, 32+i))
    p("v_add_f32 v50, v50, v51"); p("v_add_f32 v52, v52, v53"); p("v_add_f32 v50, v50, v52")
    allred(p, [50], [51], "v_add_f32", [8, 4, 2, 1, 16, 32])
    p("v_mul_f32 v50, 0x3a800000, v50")
    p("v_cvt_pk_bf16_f32 v51, v49, v50")
    p("v_lshlrev_b32 v52, 16, v51")
    p("v_and_b32 v53, 0xffff0000, v51")
    p("v_add_f32 v53, 0x3727c5ac, v53")
    p("v_cvt_pk_bf16_f32 v53, v53, v53"); p("v_lshlrev_b32 v53, 16, v53")
    p("v_sqrt_f32 v53, v53")
    p("v_cvt_pk_bf16_f32 v53, v53, v53"); p("v_lshlrev_b32 v53, 16, v53")
    p("v_rcp_f32 v54, v53")
    p.wait("XB")
    p("v_lshlrev_b32 v32, 16, v232"); p("v_and_b32 v33, 0xffff0000, v232")
    p("v_lshlrev_b32 v34, 16, v233"); p("v_and_b32 v35, 0xffff0000, v233")
    for i in range(4): p("v_sub_f32 v%d, v%d, v52" % (32+i, 32+i))
    p("v_cvt_pk_bf16_f32 v36, v32, v33"); p("v_cvt_pk_bf16_f32 v37, v34, v35")
    p("v_lshlrev_b32 v32, 16, v36"); p("v_and_b32 v33, 0xffff0000, v36")
    p("v_lshlrev_b32 v34, 16, v37"); p("v_and_b32 v35, 0xffff0000, v37")
    for i in range(4): p("v_mul_f32 v%d, v%d, v54" % (40+i, 32+i))
    for i in range(4): p("v_fma_f32 v%d, -v%d, v53, v%d" % (44+i, 40+i, 32+i))
    for i in range(4): p("v_fma_f32 v%d, v%d, v54, v%d" % (40+i, 44+i, 40+i))
    for i in range(4): p("v_cvt_pk_bf16_f32 v%d, v%d, v%d" % (36+i, 40+i, 40+i))
    p("v_lshlrev_b32 v12, 4, v0")
    p("ds_write_b128 v12, v[36:39] offset:%d" % L_XN)
    p("s_waitcnt lgkmcnt(0)")
    p("s_barrier")
    stamp("ln_done")
    p("s_add_u32 %s, %s, 1" % (sE, sE)); p("s_and_b32 %s, %s, 0xff" % (sTAG, sE)); p("v_mov_b32 v%d, %s" % (vTAG, sTAG))
    p("s_and_b32 %s, %s, 3" % (sA, sC)); p("s_lshl_b32 %s, %s, 8" % (sA, sA)); p("s_lshl_b32 %s, %s, 6" % (sD, sW)); p("s_add_u32 %s, %s, %s" % (sA, sA, sD))
    p("v_lshrrev_b32 v12, 3, v1"); p("v_add_u32 v12, %s, v12" % sA); p("v_lshlrev_b32 v12, 2, v12")
    p("s_and_b32 %s, s2, 7" % sA); p("s_lshl_b32 %s, %s, 7" % (sA, sA)); p("s_lshl_b32 %s, %s, 5" % (sD, sW)); p("s_add_u32 %s, %s, %s" % (sA, sA, sD))
    p("v_lshrrev_b32 v13, 4, v1"); p("v_add_u32 v13, %s, v13" % sA); p("v_lshlrev_b32 v13, 2, v13")
    for t in range(0, 8, 2):
        p("ds_read2_b32 v[%d:%d], v12 offset0:%d offset1:%d" % (96+t, 97+t, 8*t, 8*t+8))
    for t in range(0, 8, 2):
        p("ds_read2_b32 v[%d:%d], v13 offset0:%d offset1:%d" % (104+t, 105+t, 4*t, 4*t+4))
    for t in range(8):
        p("s_add_u32 %s, %s, %d" % (sT0, sCc, t*4*7168))
        p.vmem("buffer_load_dwordx4 %s, v17, %s, %s offen%s" % (vr(192+4*t, 4), SW3, sT0, ntw), "W3_%d" % t)
    p("s_waitcnt lgkmcnt(0)")
    for t in range(8):
        A = 48 + 4*(t % 2)
        for jj in range(4): p("v_and_b32 v%d, v%d, v%d" % (A+jj, 96+t, vMASK+jj))
        if t == 0: p.wait("Q7")
        p("v_mfma_f32_16x16x32_bf16 v[56:59], %s, %s, %s" % (vr(A, 4), vr(128+4*t, 4), "0" if t == 0 else "v[56:59]"))
    for t in range(8):
        for jj in range(4): p("v_and_b32 v%d, v%d, v%d" % (PERM+4*t+jj, 104+t, vMASK+jj))
    p("v_and_b32 v12, 7, v1"); p("v_lshlrev_b32 v12, 5, v12")
    p("v_bfe_u32 v13, v1, 4, 1"); p("v_lshlrev_b32 v13, 4, v13"); p("v_add_u32 v12, v12, v13")
    p("v_lshrrev_b32 v13, 5, v1"); p("v_lshlrev_b32 v13, 8, v13"); p("v_add_u32 v12, v12, v13")
    p("s_lshl_b32 %s, %s, 9" % (sA, sW)); p("v_add_u32 v12, %s, v12" % sA)
    p("s_mov_b32 exec_lo, 0x00ff00ff"); p("s_mov_b32 exec_hi, 0xff00ff00")
    p("ds_write_b128 v12, v[56:59] offset:%d" % L_QP)
    p("s_mov_b64 exec, -1")
    loadK(0)
    p("s_waitcnt lgkmcnt(0)")
    p("s_barrier")
    stamp("q_gemv")
    SKIP0 = p.label("pubq")
    p("s_cmp_lg_u32 %s, 0" % sW); p("s_cbranch_scc1 %s" % SKIP0)
    p("v_lshlrev_b32 v12, 4, v1")
    for i in range(8): p("ds_read_b128 %s, v12 offset:%d" % (vr(32+4*i, 4) if i < 4 else vr(112+4*(i-4), 4), L_QP + 256*i))
    p("s_lshl_b32 %s, %s, 2" % (sB, sG)); p("s_and_b32 %s, %s, 3" % (sD, sC)); p("s_add_u32 %s, %s, %s" % (sB, sB, sD)); p("s_lshl_b32 %s, %s, 12" % (sB, sB))
    p("s_lshr_b32 %s, %s, 2" % (sD, sC)); p("s_lshl_b32 %s, %s, 8" % (sD, sD)); p("s_add_u32 %s, %s, %s" % (sB, sB, sD))
    p("s_add_u32 %s, %s, %d" % (sB, sB, Q_BASE))
    p("s_waitcnt lgkmcnt(0)")
    for r in range(4):
        p("v_add_f32 v%d, v%d, v%d" % (32+r, 32+r, 36+r)); p("v_add_f32 v%d, v%d, v%d" % (40+r, 40+r, 44+r))
        p("v_add_f32 v%d, v%d, v%d" % (112+r, 112+r, 116+r)); p("v_add_f32 v%d, v%d, v%d" % (120+r, 120+r, 124+r))
    for r in range(4):
        p("v_add_f32 v%d, v%d, v%d" % (32+r, 32+r, 40+r)); p("v_add_f32 v%d, v%d, v%d" % (112+r, 112+r, 120+r))
    for r in range(4): p("v_add_f32 v%d, v%d, v%d" % (32+r, 32+r, 112+r))
    p("s_mov_b32 exec_lo, 0xffff"); p("s_mov_b32 exec_hi, 0")
    p.vmem("buffer_store_dwordx4 v[32:35], v12, %s, %s offen%s" % (SWS, sB, HS), "PUBQ", cond=True)
    p("s_mov_b64 exec, -1")
    p("%s:" % SKIP0)
    p.wait("W1_7")
    stamp("w1_landed")
    for t in range(8):
        p("v_mfma_f32_16x16x32_bf16 v[60:63], %s, %s, %s" % (vr(PERM+4*t, 4), vr(160+4*t, 4), "0" if t == 0 else "v[60:63]"))
    loadK(1)
    p.wait("W3_7")
    stamp("w3_landed")
    for t in range(8):
        p("v_mfma_f32_16x16x32_bf16 v[96:99], %s, %s, %s" % (vr(PERM+4*t, 4), vr(192+4*t, 4), "0" if t == 0 else "v[96:99]"))
    SKIP2 = p.label("flag")
    p("s_cmp_lg_u32 %s, 0" % sW); p("s_cbranch_scc1 %s" % SKIP2)
    p("v_lshlrev_b32 v12, 2, v1"); p("v_mov_b32 v13, %s" % sE)
    p("s_lshl_b32 %s, s2, 7" % sA); p("s_add_u32 %s, %s, %d" % (sA, sA, FLAG_BASE))
    p.wait("PUBQ")
    p("s_mov_b32 exec_hi, 0")
    p.vmem("buffer_store_dword v13, v12, %s, %s offen%s" % (SWS, sA, HS), "FLAG", cond=True)
    p("s_mov_b64 exec, -1")
    p("%s:" % SKIP2)
    stamp("flag")
    p("v_and_b32 v12, 15, v1"); p("v_lshlrev_b32 v12, 5, v12")
    p("v_bfe_u32 v13, v1, 4, 1"); p("v_lshlrev_b32 v13, 4, v13"); p("v_add_u32 v12, v12, v13")
    p("s_lshl_b32 %s, %s, 10" % (sA, sW)); p("v_add_u32 v12, %s, v12" % sA)
    p("s_mov_b32 exec_hi, 0")
    p("ds_write_b128 v12, v[60:63] offset:%d" % L_BP)
    p("ds_write_b128 v12, v[96:99] offset:%d" % (L_BP+512))
    p("s_mov_b64 exec, -1")
    loadK(2)
    p("s_waitcnt lgkmcnt(0)")
    p("s_barrier")
    stamp("b_gemv")
    SKIP1 = p.label("pub1")
    p("s_cmp_lg_u32 %s, 1" % sW); p("s_cbranch_scc1 %s" % SKIP1)
    p("s_cmp_ge_u32 s2, 224"); p("s_cbranch_scc1 %s" % SKIP1)
    p("v_lshlrev_b32 v12, 4, v1")
    for i in range(4): p("ds_read_b128 %s, v12 offset:%d" % (vr(32+4*i, 4), L_BP + 1024*i))
    p("s_and_b32 %s, s2, 7" % sA); p("s_mul_i32 %s, %s, %d" % (sA, sA, 3584*4))
    p("s_lshr_b32 %s, s2, 3" % sD); p("s_lshl_b32 %s, %s, 9" % (sD, sD)); p("s_add_u32 %s, %s, %s" % (sA, sA, sD))
    p("s_add_u32 %s, %s, %d" % (sA, sA, BP_BASE))
    p("v_lshrrev_b32 v13, 5, v1"); p("v_mul_u32_u24 v13, %d, v13" % (8*3584*4))
    p("v_and_b32 v14, 31, v1"); p("v_lshlrev_b32 v14, 4, v14"); p("v_add_u32 v13, v13, v14")
    p("s_waitcnt lgkmcnt(0)")
    for r in range(4):
        p("v_add_f32 v%d, v%d, v%d" % (32+r, 32+r, 36+r)); p("v_add_f32 v%d, v%d, v%d" % (40+r, 40+r, 44+r))
    for r in range(4): p("v_add_f32 v%d, v%d, v%d" % (32+r, 32+r, 40+r))
    for r in range(4): p("v_bfi_b32 v%d, %s, v%d, v%d" % (32+r, sFF, vTAG, 32+r))
    p.vmem("buffer_store_dwordx4 v[32:35], v13, %s, %s offen%s" % (SWS, sA, HS), "PUBB", cond=True)
    p("%s:" % SKIP1)
    for t in range(3, poll_after): loadK(t)
    SKIPP = p.label("nopoll")
    p("v_lshlrev_b32 v14, 7, v1")
    p("s_lshl_b32 %s, %s, 13" % (sB, sG)); p("s_add_u32 %s, %s, %d" % (sB, sB, FLAG_BASE))
    p("s_cmp_lg_u32 %s, 0" % sW); p("s_cbranch_scc1 %s" % SKIPP)
    p.vmem("buffer_load_dword v15, v14, %s, %s offen%s" % (SWS, sB, HL), "POLL", cond=True)
    p("%s:" % SKIPP)
    for t in range(poll_after, 8): loadK(t)
    OKP = p.label("okpoll")
    p("s_cmp_lg_u32 %s, 0" % sW); p("s_cbranch_scc1 %s" % OKP)
    p.wait("POLL")
    p("s_mov_b32 %s, %d" % (sRETRY, RETRIES))
    RP = p.label("rpoll")
    p("%s:" % RP)
    p("v_cmp_ne_u32 vcc, %s, v15" % sE)
    p("s_cbranch_vccz %s" % OKP)
    p("s_sub_u32 %s, %s, 1" % (sRETRY, sRETRY)); p("s_cbranch_scc1 %s" % OKP)
    p("s_sleep %d" % cfg.get("sleep", 8))
    p("buffer_load_dword v15, v14, %s, %s offen%s" % (SWS, sB, HL))
    p("s_waitcnt vmcnt(0)")
    p("s_branch %s" % RP)
    p("%s:" % OKP)
    p("s_barrier")
    stamp("poll_ok")
    p("s_lshl_b32 %s, %s, 14" % (sA, sG)); p("s_lshl_b32 %s, %s, 10" % (sD, sW)); p("s_add_u32 %s, %s, %s" % (sA, sA, sD)); p("s_add_u32 %s, %s, %d" % (sA, sA, Q_BASE))
    for kq in range(4):
        p("s_add_u32 %s, %s, %d" % (sT0, sA, kq*4096))
        p.vmem("buffer_load_dwordx4 %s, v%d, %s, %s offen%s" % (vr(96+4*kq, 4), vL16, SWS, sT0, HL), "QG")
    p("v_lshrrev_b32 v14, 3, v1"); p("v_mul_u32_u24 v14, 14336, v14"); p("v_and_b32 v13, 7, v1"); p("v_min_u32 v13, 6, v13"); p("v_lshlrev_b32 v13, 4, v13"); p("v_add_u32 v14, v14, v13")
    p("s_mul_i32 %s, %s, 112" % (sB, sRB)); p("s_add_u32 %s, %s, %d" % (sB, sB, BP_BASE))
    p.vmem("buffer_load_dwordx4 v[112:115], v14, %s, %s offen%s" % (SWS, sB, HL), "HG")
    p("s_add_u32 %s, %s, %d" % (sCc, sB, 8*14336))
    p.vmem("buffer_load_dwordx4 v[116:119], v14, %s, %s offen%s" % (SWS, sCc, HL), "HG")
    loadV(0); loadV(1)
    p.wait("QG")
    for r in range(4):
        p("v_add_f32 v%d, v%d, v%d" % (96+r, 96+r, 100+r)); p("v_add_f32 v%d, v%d, v%d" % (104+r, 104+r, 108+r))
    for r in range(4): p("v_add_f32 v%d, v%d, v%d" % (96+r, 96+r, 104+r))
    p("v_cvt_pk_bf16_f32 v96, v96, v97"); p("v_cvt_pk_bf16_f32 v97, v98, v99")
    p("v_lshrrev_b32 v12, 5, v1"); p("s_lshl_b32 %s, %s, 1" % (sA, sW)); p("v_add_u32 v12, %s, v12" % sA); p("v_mul_u32_u24 v12, 272, v12")
    p("v_and_b32 v13, 31, v1"); p("v_lshlrev_b32 v13, 3, v13"); p("v_add_u32 v12, v12, v13")
    p("ds_write_b64 v12, v[96:97] offset:%d" % L_QL)
    p.wait("HG")
    p("s_mov_b32 %s, %d" % (sRETRY, RETRIES))
    RH = p.label("rh"); OKH = p.label("okh")
    p("%s:" % RH)
    tagcheck(list(range(112, 120)), 15)
    p("s_cbranch_vccz %s" % OKH)
    p("s_sub_u32 %s, %s, 1" % (sRETRY, sRETRY)); p("s_cbranch_scc1 %s" % OKH)
    p("s_sleep %d" % cfg.get("sleep", 8))
    p("buffer_load_dwordx4 v[112:115], v14, %s, %s offen%s" % (SWS, sB, HL))
    p("buffer_load_dwordx4 v[116:119], v14, %s, %s offen%s" % (SWS, sCc, HL))
    p("s_waitcnt vmcnt(0)")
    p("s_branch %s" % RH)
    p("%s:" % OKH)
    hr = list(range(112, 120))
    allred(p, hr, list(range(120, 128)), "v_add_f32", [8, 16, 32])
    p("v_cvt_pk_bf16_f32 v120, v112, v113"); p("v_cvt_pk_bf16_f32 v121, v114, v115")
    p("v_cvt_pk_bf16_f32 v122, v116, v117"); p("v_cvt_pk_bf16_f32 v123, v118, v119")
    for i in range(2):
        p("v_lshlrev_b32 v%d, 16, v%d" % (112+2*i, 120+i)); p("v_and_b32 v%d, 0xffff0000, v%d" % (113+2*i, 120+i))
        p("v_lshlrev_b32 v%d, 16, v%d" % (116+2*i, 122+i)); p("v_and_b32 v%d, 0xffff0000, v%d" % (117+2*i, 122+i))
    def silu(src, dst, tmp, n):
        for r in range(n): p("v_mul_f32 v%d, %s, v%d" % (tmp+r, sLOG2E, src+r))
        for r in range(n): p("v_exp_f32 v%d, -v%d" % (tmp+r, tmp+r))
        for r in range(n): p("v_add_f32 v%d, 1.0, v%d" % (tmp+r, tmp+r))
        for r in range(n): p("v_rcp_f32 v%d, v%d" % (tmp+r, tmp+r))
        for r in range(n): p("v_mul_f32 v%d, v%d, v%d" % (dst+r, src+r, tmp+r))
    silu(112, 112, 120, 4)
    p("v_cvt_pk_bf16_f32 v120, v112, v113"); p("v_cvt_pk_bf16_f32 v121, v114, v115")
    for i in range(2):
        p("v_lshlrev_b32 v%d, 16, v%d" % (112+2*i, 120+i)); p("v_and_b32 v%d, 0xffff0000, v%d" % (113+2*i, 120+i))
    for r in range(4): p("v_mul_f32 v%d, v%d, v%d" % (112+r, 112+r, 116+r))
    for r in range(4): p("v_cvt_pk_bf16_f32 v%d, v%d, v%d" % (112+r, 112+r, 112+r))
    p("v_and_b32 v13, 7, v1"); p("v_lshlrev_b32 v13, 2, v13")
    for r in range(4): p("ds_write_b32 v13, v%d offset:%d" % (112+r, L_HL + 32*r))
    p("s_waitcnt lgkmcnt(0)")
    p("s_barrier")
    stamp("q_ready")
    p("v_and_b32 v12, 7, v1"); p("v_mul_u32_u24 v12, 272, v12"); p("v_lshrrev_b32 v13, 4, v1"); p("v_lshlrev_b32 v13, 4, v13"); p("v_add_u32 v12, v12, v13")
    for s in range(4): p("ds_read_b128 %s, v12 offset:%d" % (vr(QF+4*s, 4), L_QL + 64*s))
    p("v_mov_b32 v%d, 0xff800000" % vMAX)
    p("s_waitcnt lgkmcnt(0)")
    def qk_mfma(t):
        D = PERM + 8*(t % 2)
        for s in range(4):
            for h in range(2):
                p("v_mfma_f32_16x16x32_bf16 %s, %s, %s, %s" % (vr(D+4*h, 4), ar(32*t+16*h+4*s, 4), vr(QF+4*s, 4), "0" if s == 0 else vr(D+4*h, 4)))
    def qk_post(t):
        D = PERM + 8*(t % 2); T = PERM + 16
        for i in range(4): p("v_cvt_pk_bf16_f32 v%d, v%d, v%d" % (T+8+i, D+2*i, D+2*i+1))
        for i in range(4):
            p("v_lshlrev_b32 v%d, 16, v%d" % (T+2*i, T+8+i)); p("v_and_b32 v%d, 0xffff0000, v%d" % (T+2*i+1, T+8+i))
        for i in range(8): p("v_mul_f32 v%d, %s, v%d" % (T+i, sSCALE, T+i))
        for i in range(4):
            p("v_cvt_pk_bf16_f32 v%d, v%d, v%d" % (SP+4*t+i, T+2*i, T+2*i+1))
            p("v_max3_f32 v%d, v%d, v%d, v%d" % (vMAX, vMAX, T+2*i, T+2*i+1))
    qk_mfma(0)
    for t in range(1, 8):
        qk_mfma(t)
        if t == 2: loadV(2)
        if t == 5: loadV(3)
        qk_post(t-1)
    qk_post(7)
    allred(p, [vMAX], [12], "v_max_f32", [16, 32])
    p("v_and_b32 v12, 15, v1"); p("v_lshlrev_b32 v12, 2, v12"); p("s_lshl_b32 %s, %s, 6" % (sA, sW)); p("v_add_u32 v13, %s, v12" % sA)
    p("ds_write_b32 v13, v%d offset:%d" % (vMAX, L_MX))
    p("s_waitcnt lgkmcnt(0)")
    p("s_barrier")
    p("ds_read_b32 v14, v12 offset:%d" % L_MX)
    p("ds_read_b32 v15, v12 offset:%d" % (L_MX+64))
    p("ds_read_b32 v16, v12 offset:%d" % (L_MX+128))
    p("ds_read_b32 v17, v12 offset:%d" % (L_MX+192))
    p("s_waitcnt lgkmcnt(0)")
    p("v_max3_f32 v14, v14, v15, v16"); p("v_max_f32 v14, v14, v17")
    p("v_cvt_pk_bf16_f32 v14, v14, v14"); p("v_lshlrev_b32 v%d, 16, v14" % vMAX)
    p("v_mul_f32 v16, %s, v%d" % (sLOG2E, vMAX)); p("v_sub_f32 v16, 0, v16")
    stamp("qk_done")
    p("v_mov_b32 v%d, 0" % vL0); p("v_mov_b32 v%d, 0" % vL1)
    for b in range(8):
        T = PERM + 8*(b % 2)
        for i in range(4):
            p("v_lshlrev_b32 v%d, 16, v%d" % (T+2*i, SP+4*b+i)); p("v_and_b32 v%d, 0xffff0000, v%d" % (T+2*i+1, SP+4*b+i))
        for i in range(8): p("v_fma_f32 v%d, v%d, %s, v16" % (T+i, T+i, sLOG2E))
        for i in range(8): p("v_exp_f32 v%d, v%d" % (T+i, T+i))
        for i in range(4):
            p("v_cvt_pk_bf16_f32 v%d, v%d, v%d" % (SP+4*b+i, T+2*i, T+2*i+1))
            p("v_add_f32 v%d, v%d, v%d" % (vL0, vL0, T+2*i)); p("v_add_f32 v%d, v%d, v%d" % (vL1, vL1, T+2*i+1))
    p("v_add_f32 v%d, v%d, v%d" % (vL0, vL0, vL1))
    allred(p, [vL0], [12], "v_add_f32", [16, 32])
    p("v_and_b32 v12, 15, v1"); p("v_lshlrev_b32 v12, 2, v12"); p("s_lshl_b32 %s, %s, 6" % (sA, sW)); p("v_add_u32 v13, %s, v12" % sA)
    p("ds_write_b32 v13, v%d offset:%d" % (vL0, L_LW))
    stamp("p_done")
    def pv(t):
        base = RING + 32*(t % 4)
        p.wait("V%d" % t)
        def perm(j):
            c, h = j >> 1, j & 1
            for tt in range(4):
                p("v_perm_b32 v%d, v%d, v%d, %s" % (PERM+4*j+tt, base+4*(2*tt+1)+c, base+4*(2*tt)+c, sSELHI if h else sSELLO))
        def mm(j):
            p("v_mfma_f32_16x16x32_bf16 %s, %s, %s, %s" % (vr(ACC+4*j, 4), vr(PERM+4*j, 4), vr(SP+4*t, 4), "0" if t == 0 else vr(ACC+4*j, 4)))
        perm(0)
        for j in range(1, 8):
            perm(j); mm(j-1)
        return lambda: mm(7)
    def loadW2():
        p("v_lshrrev_b32 v12, 4, v1"); p("v_lshlrev_b32 v12, 11, v12"); p("v_and_b32 v13, 15, v1"); p("v_lshlrev_b32 v13, 4, v13"); p("v_add_u32 v12, v12, v13")
        p("s_mul_i32 %s, %s, %d" % (sA, sRB, 28*2048)); p("s_lshl_b32 %s, %s, 10" % (sD, sCH)); p("s_add_u32 %s, %s, %s" % (sA, sA, sD))
        p("s_lshl_b32 %s, %s, 8" % (sD, sW)); p("s_add_u32 %s, %s, %s" % (sA, sA, sD))
        for t in range(7):
            p("s_add_u32 %s, %s, %d" % (sT0, sA, t*4*2048))
            p.vmem("buffer_load_dwordx4 %s, v12, %s, %s offen%s" % (ar(4*t, 4), SW2, sT0, ntw), "W2")
    def loadO():
        p("v_lshrrev_b32 v12, 4, v1"); p("v_lshlrev_b32 v12, 14, v12"); p("v_and_b32 v13, 15, v1"); p("v_lshlrev_b32 v13, 4, v13"); p("v_add_u32 v12, v12, v13")
        p("s_lshl_b32 %s, %s, 16" % (sA, sRB)); p("s_lshl_b32 %s, %s, 10" % (sD, sCH)); p("s_add_u32 %s, %s, %s" % (sA, sA, sD))
        p("s_lshl_b32 %s, %s, 8" % (sD, sW)); p("s_add_u32 %s, %s, %s" % (sA, sA, sD))
        for t in range(8):
            p("s_add_u32 %s, %s, %d" % (sT0, sA, t*2048))
            p.vmem("buffer_load_dwordx4 %s, v12, %s, %s offen%s" % (ar(32+4*t, 4), SWO, sT0, ntw), "O")
    for t in range(8):
        fin = pv(t)
        fin()
        if t < 4: loadV(t+4)
        if t == 4: loadW2()
        if t == 5: loadO()
    stamp("pv_done")
    p("v_and_b32 v12, 7, v1"); p("v_lshlrev_b32 v13, 9, v12"); p("v_lshlrev_b32 v12, 4, v12"); p("v_add_u32 v12, v12, v13")
    p("v_lshrrev_b32 v13, 4, v1"); p("v_lshlrev_b32 v13, 7, v13"); p("v_add_u32 v12, v12, v13")
    p("s_lshl_b32 %s, %s, 12" % (sA, sW)); p("s_add_u32 %s, %s, %d" % (sA, sA, L_OP)); p("v_add_u32 v12, %s, v12" % sA)
    p("s_mov_b32 exec_lo, 0x00ff00ff"); p("s_mov_b32 exec_hi, 0x00ff00ff")
    for j in range(8):
        p("v_xor_b32 v%d, %d, v12" % (PERM+j, 16*j))
    for j in range(8):
        p("ds_write_b128 v%d, %s" % (PERM+j, vr(ACC+4*j, 4)))
    p("s_mov_b64 exec, -1")
    p("v_lshrrev_b32 v13, 4, v1"); p("v_lshlrev_b32 v13, 5, v13")
    p("ds_read_b128 v[16:19], v13 offset:%d" % L_HL); p("ds_read_b128 v[20:23], v13 offset:%d" % (L_HL+16))
    p("s_waitcnt lgkmcnt(0)")
    p("s_barrier")
    p("v_lshlrev_b32 v12, 4, v0")
    for i in range(4): p("ds_read_b128 %s, v12 offset:%d" % (vr(PERM+4*i, 4), L_OP + 4096*i))
    p("v_and_b32 v13, 15, v1"); p("v_lshlrev_b32 v13, 2, v13")
    for i in range(4): p("ds_read_b32 v%d, v13 offset:%d" % (PERM+16+i, L_LW + 64*i))
    p("v_lshrrev_b32 v14, 5, v0"); p("v_and_b32 v15, 7, v0"); p("v_xor_b32 v14, v14, v15"); p("v_lshlrev_b32 v14, 4, v14")
    p("v_lshrrev_b32 v15, 3, v0"); p("v_lshlrev_b32 v15, 7, v15"); p("v_add_u32 v14, v14, v15")
    p("s_mul_i32 %s, s2, %d" % (sA, O_PITCH)); p("s_add_u32 %s, %s, %d" % (sA, sA, O_BASE))
    p("s_waitcnt lgkmcnt(0)")
    for r in range(4):
        p("v_add_f32 v%d, v%d, v%d" % (PERM+r, PERM+r, PERM+4+r)); p("v_add_f32 v%d, v%d, v%d" % (PERM+8+r, PERM+8+r, PERM+12+r))
    for r in range(4): p("v_add_f32 v%d, v%d, v%d" % (PERM+r, PERM+r, PERM+8+r))
    for r in range(4): p("v_bfi_b32 v%d, %s, v%d, v%d" % (PERM+r, sFF, vTAG, PERM+r))
    p.vmem("buffer_store_dwordx4 %s, v14, %s, %s offen%s" % (vr(PERM, 4), SWS, sA, HS), "PUBO")
    SKIP4 = p.label("ml")
    p("s_cmp_lg_u32 %s, 0" % sW); p("s_cbranch_scc1 %s" % SKIP4)
    p("v_add_f32 v%d, v%d, v%d" % (PERM+16, PERM+16, PERM+17)); p("v_add_f32 v%d, v%d, v%d" % (PERM+18, PERM+18, PERM+19)); p("v_add_f32 v%d, v%d, v%d" % (PERM+17, PERM+16, PERM+18))
    p("v_bfi_b32 v%d, %s, v%d, v%d" % (PERM+16, sFF, vTAG, vMAX)); p("v_bfi_b32 v%d, %s, v%d, v%d" % (PERM+17, sFF, vTAG, PERM+17))
    p("v_lshlrev_b32 v13, 3, v1")
    p("s_mov_b32 exec_lo, 0xffff"); p("s_mov_b32 exec_hi, 0")
    p("s_add_u32 %s, %s, 4096" % (sD, sA))
    p.vmem("buffer_store_dwordx2 %s, v13, %s, %s offen%s" % (vr(PERM+16, 2), SWS, sD, HS), "PUBML", cond=True)
    p("s_mov_b64 exec, -1")
    p("%s:" % SKIP4)
    stamp("o_pub")
    def diag_mult(src, nt_, breg, D, waitname):
        for t in range(nt_):
            A = PERM + 4*(t % 2) + 8
            for jj in range(4): p("v_and_b32 v%d, v%d, v%d" % (A+jj, src+t, vMASK+jj))
            if t == 0: p.wait(waitname)
            p("v_mfma_f32_16x16x32_bf16 %s, %s, %s, %s" % (vr(D, 4), vr(A, 4), ar(breg+4*t, 4), "0" if t == 0 else vr(D, 4)))
    def pub_cols(D, basec, name):
        p("v_bfe_u32 v12, v1, 2, 2"); p("v_lshlrev_b32 v12, 14, v12")
        p("v_and_b32 v13, 3, v1"); p("v_lshlrev_b32 v13, 5, v13"); p("v_add_u32 v12, v12, v13")
        p("v_bfe_u32 v13, v1, 4, 1"); p("v_lshlrev_b32 v13, 4, v13"); p("v_add_u32 v12, v12, v13")
        p("s_lshl_b32 %s, %s, 18" % (sA, sCH)); p("s_lshl_b32 %s, %s, 16" % (sD, sW)); p("s_add_u32 %s, %s, %s" % (sA, sA, sD))
        p("s_lshl_b32 %s, %s, 7" % (sD, sRB)); p("s_add_u32 %s, %s, %s" % (sA, sA, sD)); p("s_add_u32 %s, %s, %d" % (sA, sA, basec))
        for r in range(4): p("v_bfi_b32 v%d, %s, v%d, v%d" % (D+r, sFF, vTAG, D+r))
        p("s_mov_b32 exec_hi, 0")
        p.vmem("buffer_store_dwordx4 %s, v12, %s, %s offen%s" % (vr(D, 4), SWS, sA, HS), name)
        p("s_mov_b64 exec, -1")
    diag_mult(16, 7, 0, ACC, "W2")
    pub_cols(ACC, BB_BASE, "PUBB2")
    stamp("b_pub")
    p("v_lshrrev_b32 v12, 3, v1"); p("v_mul_u32_u24 v12, %d, v12" % O_PITCH)
    p("v_and_b32 v13, 7, v1"); p("v_lshlrev_b32 v13, 4, v13"); p("v_add_u32 v13, v12, v13")
    p("v_mul_u32_u24 v14, %d, v1" % O_PITCH)
    p("s_lshl_b32 %s, %s, 6" % (sA, sG)); p("s_mul_i32 %s, %s, %d" % (sA, sA, O_PITCH)); p("s_add_u32 %s, %s, %d" % (sA, sA, O_BASE))
    p("s_bfe_u32 %s, s2, 0x30003" % sB)
    p("s_lshl_b32 %s, %s, 3" % (sD, sB)); p("s_add_u32 %s, %s, %s" % (sCc, sA, sD)); p("s_add_u32 %s, %s, 4096" % (sCc, sCc))
    p("s_lshl_b32 %s, %s, 2" % (sB, sB)); p("s_bfe_u32 %s, s2, 0x20001" % sD); p("s_add_u32 %s, %s, %s" % (sB, sB, sD)); p("s_lshl_b32 %s, %s, 7" % (sB, sB))
    p("s_add_u32 %s, %s, %s" % (sB, sB, sA))
    p("s_mul_i32 %s, %s, %d" % (sD, sW, 16*O_PITCH))
    p("s_add_u32 %s, %s, %s" % (sB, sB, sD)); p("s_add_u32 %s, %s, %s" % (sA, sCc, sD))
    def g2_loads(track):
        f = (lambda t: p.vmem(t, "G2")) if track else p
        f("buffer_load_dwordx2 v[104:105], v14, %s, %s offen%s" % (SWS, sCc, HL))
        f("buffer_load_dwordx4 v[96:99], v13, %s, %s offen%s" % (SWS, sB, HL))
        f("buffer_load_dword v106, v12, %s, %s offen%s" % (SWS, sA, HL))
        p("s_add_u32 %s, %s, %d" % (sT0, sB, 8*O_PITCH))
        f("buffer_load_dwordx4 v[100:103], v13, %s, %s offen%s" % (SWS, sT0, HL))
        p("s_add_u32 %s, %s, %d" % (sT0, sA, 8*O_PITCH))
        f("buffer_load_dword v107, v12, %s, %s offen%s" % (SWS, sT0, HL))
    g2_loads(True)
    p.wait("G2")
    p("s_mov_b32 %s, %d" % (sRETRY, RETRIES))
    R2 = p.label("rg2"); OK2 = p.label("okg2")
    p("%s:" % R2)
    tagcheck(list(range(96, 108)), 15)
    p("s_cbranch_vccz %s" % OK2)
    p("s_sub_u32 %s, %s, 1" % (sRETRY, sRETRY)); p("s_cbranch_scc1 %s" % OK2)
    g2_loads(False)
    p("s_waitcnt vmcnt(0)")
    p("s_branch %s" % R2)
    p("%s:" % OK2)
    stamp("g2_ok")
    p("v_and_b32 v104, 0xffffff00, v104"); p("v_and_b32 v106, 0xffffff00, v106"); p("v_and_b32 v107, 0xffffff00, v107")
    p("v_mov_b32 v108, v104")
    allred(p, [108], [109], "v_max_f32", [8, 4, 2, 1, 16, 32])
    p("v_sub_f32 v104, v104, v108"); p("v_sub_f32 v106, v106, v108"); p("v_sub_f32 v107, v107, v108")
    for r in (104, 106, 107): p("v_mul_f32 v%d, %s, v%d" % (r, sLOG2E, r))
    for r in (104, 106, 107): p("v_exp_f32 v%d, v%d" % (r, r))
    p("v_mul_f32 v105, v104, v105")
    for r in range(4): p("v_mul_f32 v%d, v106, v%d" % (96+r, 96+r))
    for r in range(4): p("v_fmac_f32 v%d, v107, v%d" % (96+r, 100+r))
    allred(p, [105, 96, 97, 98, 99], [109, 100, 101, 102, 103], "v_add_f32", [8])
    allred(p, [105], [109], "v_add_f32", [4, 2, 1])
    allred(p, [105, 96, 97, 98, 99], [109, 100, 101, 102, 103], "v_add_f32", [16, 32])
    p("v_and_b32 v13, 7, v1"); p("v_lshlrev_b32 v13, 2, v13"); p("s_lshl_b32 %s, %s, 7" % (sA, sW)); p("v_add_u32 v13, %s, v13" % sA)
    for r in range(4): p("ds_write_b32 v13, v%d offset:%d" % (96+r, L_CP + 32*r))
    p("v_rcp_f32 v105, v105")
    p("s_waitcnt lgkmcnt(0)")
    p("s_barrier")
    p("v_lshrrev_b32 v13, 4, v1"); p("v_lshlrev_b32 v13, 5, v13")
    for w_ in range(4):
        p("ds_read_b128 %s, v13 offset:%d" % (vr(32+8*w_, 4), L_CP + 128*w_)); p("ds_read_b128 %s, v13 offset:%d" % (vr(36+8*w_, 4), L_CP + 128*w_ + 16))
    p("s_waitcnt lgkmcnt(0)")
    for r in range(8):
        p("v_add_f32 v%d, v%d, v%d" % (32+r, 32+r, 40+r)); p("v_add_f32 v%d, v%d, v%d" % (48+r, 48+r, 56+r))
    for r in range(8): p("v_add_f32 v%d, v%d, v%d" % (32+r, 32+r, 48+r))
    for r in range(8): p("v_mul_f32 v%d, v%d, v105" % (32+r, 32+r))
    for r in range(8): p("v_cvt_pk_bf16_f32 v%d, v%d, v%d" % (16+r, 32+r, 32+r))
    diag_mult(16, 8, 32, ACC, "O")
    pub_cols(ACC, S_BASE, "PUBS")
    stamp("s_pub")
    FIN = p.label("fin")
    p("s_cmp_ge_u32 s2, 32"); p("s_cbranch_scc1 %s" % FIN)
    p("s_lshl_b32 %s, s2, 14" % sA); p("s_lshl_b32 %s, %s, 12" % (sD, sW)); p("s_add_u32 %s, %s, %s" % (sA, sA, sD))
    p("s_add_u32 %s, %s, %d" % (sB, sA, S_BASE)); p("s_add_u32 %s, %s, %d" % (sA, sA, BB_BASE))
    p("v_and_b32 v14, 7, v1"); p("v_lshlrev_b32 v14, 3, v14"); p("s_lshl_b32 %s, s2, 6" % sCc)
    def fin_loads(sb, track, nm):
        f = (lambda t: p.vmem(t, nm)) if track else p
        for u in range(4):
            f("buffer_load_dwordx4 %s, v%d, %s, %s offen offset:%d%s" % (vr(96+4*u, 4), vL16, SWS, sb, 1024*u, HL))
    def fin_gather(sb, nm, dst):
        fin_loads(sb, True, nm)
        p.wait(nm)
        p("s_mov_b32 %s, %d" % (sRETRY, RETRIES))
        R = p.label("rf"); OK = p.label("okf")
        p("%s:" % R)
        tagcheck(list(range(96, 112)), 15)
        p("s_cbranch_vccz %s" % OK)
        p("s_sub_u32 %s, %s, 1" % (sRETRY, sRETRY)); p("s_cbranch_scc1 %s" % OK)
        fin_loads(sb, False, nm)
        p("s_waitcnt vmcnt(0)")
        p("s_branch %s" % R)
        p("%s:" % OK)
        for r in range(4):
            p("v_add_f32 v%d, v%d, v%d" % (96+r, 96+r, 100+r)); p("v_add_f32 v%d, v%d, v%d" % (104+r, 104+r, 108+r))
        for r in range(4): p("v_add_f32 v%d, v%d, v%d" % (96+r, 96+r, 104+r))
        allred(p, [96, 97, 98, 99], [100, 101, 102, 103], "v_add_f32", [8, 16, 32])
        p("v_and_b32 v13, 7, v1"); p("v_lshlrev_b32 v13, 4, v13"); p("s_lshl_b32 %s, %s, 7" % (sD, sW)); p("v_add_u32 v12, %s, v13" % sD)
        p("ds_write_b128 v12, v[96:99] offset:%d" % dst)
        p("s_waitcnt lgkmcnt(0)")
        p("s_barrier")
        for w_ in range(4): p("ds_read_b128 %s, v13 offset:%d" % (vr(96+4*w_, 4), dst + 128*w_))
        p("s_waitcnt lgkmcnt(0)")
        for r in range(4):
            p("v_add_f32 v%d, v%d, v%d" % (96+r, 96+r, 100+r)); p("v_add_f32 v%d, v%d, v%d" % (104+r, 104+r, 108+r))
        for r in range(4): p("v_add_f32 v%d, v%d, v%d" % (96+r, 96+r, 104+r))
        p("v_cvt_pk_bf16_f32 v96, v96, v97"); p("v_cvt_pk_bf16_f32 v97, v98, v99")
    p.vmem("buffer_load_dwordx2 v[18:19], v14, %s, %s offen" % (SX, sCc), "XF")
    fin_gather(sA, "FB", L_FP)
    for i in range(2):
        p("v_lshlrev_b32 v%d, 16, v%d" % (32+2*i, 96+i)); p("v_and_b32 v%d, 0xffff0000, v%d" % (33+2*i, 96+i))
    silu(32, 32, 40, 4)
    p("v_cvt_pk_bf16_f32 v36, v32, v33"); p("v_cvt_pk_bf16_f32 v37, v34, v35")
    for i in range(2):
        p("v_lshlrev_b32 v%d, 16, v%d" % (32+2*i, 36+i)); p("v_and_b32 v%d, 0xffff0000, v%d" % (33+2*i, 36+i))
        p("v_lshlrev_b32 v%d, 16, v%d" % (44+2*i, 18+i)); p("v_and_b32 v%d, 0xffff0000, v%d" % (45+2*i, 18+i))
    stamp("g_done")
    fin_gather(sB, "FS", L_FP + 512)
    for i in range(2):
        p("v_lshlrev_b32 v%d, 16, v%d" % (36+2*i, 96+i)); p("v_and_b32 v%d, 0xffff0000, v%d" % (37+2*i, 96+i))
    for r in range(4): p("v_mul_f32 v%d, v%d, v%d" % (36+r, 36+r, 32+r))
    p("v_cvt_pk_bf16_f32 v40, v36, v37"); p("v_cvt_pk_bf16_f32 v41, v38, v39")
    for i in range(2):
        p("v_lshlrev_b32 v%d, 16, v%d" % (36+2*i, 40+i)); p("v_and_b32 v%d, 0xffff0000, v%d" % (37+2*i, 40+i))
    for r in range(4): p("v_add_f32 v%d, v%d, v%d" % (36+r, 36+r, 44+r))
    p("v_cvt_pk_bf16_f32 v40, v36, v37"); p("v_cvt_pk_bf16_f32 v41, v38, v39")
    SKE = p.label("epoch")
    p("s_add_u32 %s, s2, %s" % (sD, sW)); p("s_cmp_lg_u32 %s, 0" % sD); p("s_cbranch_scc1 %s" % SKE)
    p("v_mov_b32 v12, %d" % EPOCH); p("v_mov_b32 v13, %s" % sE)
    p("s_mov_b32 exec_lo, 1"); p("s_mov_b32 exec_hi, 0")
    p.vmem("buffer_store_dword v13, v12, %s, 0 offen%s" % (SWS, HS), "EPO", cond=True)
    p("s_mov_b64 exec, -1")
    p("%s:" % SKE)
    SK5 = p.label("out")
    p("s_cmp_lg_u32 %s, 0" % sW); p("s_cbranch_scc1 %s" % SK5)
    p("s_mov_b32 exec_lo, 0xff"); p("s_mov_b32 exec_hi, 0")
    p.vmem("buffer_store_dwordx2 v[40:41], v14, %s, %s offen" % (SOUT, sCc), "OUT", cond=True)
    p("s_mov_b64 exec, -1")
    p("%s:" % SK5)
    p("%s:" % FIN)
    if stamps:
        stamp("end")
        p("s_getreg_b32 %s, hwreg(HW_REG_XCC_ID)" % sA)
        p("s_waitcnt lgkmcnt(0)")
        for k in range(16):
            p("v_mov_b32 v%d, %s" % (32+k, ("s%d" % (70+2*k)) if k < nst[0] else "0"))
        p("v_mov_b32 v48, %s" % sA)
        p("s_lshl_b32 %s, s2, 2" % sB); p("s_add_u32 %s, %s, %s" % (sB, sB, sW)); p("s_lshl_b32 %s, %s, 7" % (sB, sB)); p("s_add_u32 %s, %s, %d" % (sB, sB, STAMP))
        p("v_mov_b32 v12, 0")
        p("s_mov_b32 exec_lo, 1"); p("s_mov_b32 exec_hi, 0")
        for i in range(4): p("buffer_store_dwordx4 %s, v12, %s, %s offen offset:%d" % (vr(32+4*i, 4), SWS, sB, 16*i))
        p("buffer_store_dword v48, v12, %s, %s offen offset:64" % (SWS, sB))
        p("s_mov_b64 exec, -1")
    p("%s:" % END)
    p("s_endpgm")
    return p, names

HEADER = """; Fused decode step: layernorm -> {GQA attention over a 64K cache -> wo} * silu(SwiGLU FFN) + x.
; @launch grid=(256,1,1) block=(256,1,1) lds=%d
"""
def wrap(body, name=NAME, lds=LDS_BYTES, header=True):
    s = (HEADER % lds) if header else ""
    if header: s += '.amdgcn_target "amdgcn-amd-amdhsa--gfx950"\n'
    s += ".text\n.globl %s\n.p2align 8\n.type %s,@function\n%s:\n" % (name, name, name)
    s += body
    s += '.section .rodata,"a"\n.p2align 6\n.amdhsa_kernel %s\n' % name
    s += "  .amdhsa_next_free_vgpr 512\n  .amdhsa_next_free_sgpr 102\n  .amdhsa_accum_offset 256\n"
    s += "  .amdhsa_group_segment_fixed_size 0\n  .amdhsa_kernarg_size 96\n  .amdhsa_user_sgpr_count 2\n"
    s += "  .amdhsa_user_sgpr_kernarg_segment_ptr 1\n  .amdhsa_system_sgpr_workgroup_id_x 1\n"
    s += "  .amdhsa_float_denorm_mode_32 3\n"
    s += ".end_amdhsa_kernel\n"
    return s

if __name__ == "__main__":
    cfg = json.loads(sys.argv[2]) if len(sys.argv) > 2 else {}
    p, names = build(cfg)
    open(sys.argv[1], "w").write(wrap(p.text()))
    print("wrote", sys.argv[1], "stamps:", names)
```

```python
import sys, json
from sched import Prog

NAME = "recurrent_scan__gqa_block_cached__glu_gated_swiglu__decode_kernel"

EPOCH   = 0
Q_BASE  = 0x1000
FLAG_BASE = 0x14000
BP_BASE = 0x20000
O_BASE  = 0x80000
O_PITCH = 4224
S_BASE  = 0x200000
BB_BASE = 0x280000
STAMP   = 0x400000
L_XN = 0
L_QP = 4096
L_BP = 6144
L_QL = 10240
L_HL = 12544
L_MX = 12800
L_LW = 13056
L_CP = 13312
L_FP = 13824
L_OP = 16384
LDS_BYTES = 32768

SX, SK, SV, SWQ, SWO, SW1, SW3, SW2, SOUT, SDBG, SWS = [ "s[%d:%d]" % (4*i+4, 4*i+7) for i in range(11)]
sW, sG, sC, sT0, sKV = "s48", "s49", "s50", "s51", "s52"
sSELLO, sSELHI, sE, sTAG, sFF, sLOG2E, sSCALE, sHI = "s53", "s54", "s55", "s56", "s57", "s58", "s59", "s60"
sRETRY = "s61"
sA, sB, sCc, sD = "s62", "s63", "s64", "s65"
sRB, sCH = "s66", "s67"
vTID, vLANE, vOFFK, vL16 = 0, 1, 2, 3
vMASK = 4
vTAG, vMAX, vL0, vL1 = 8, 9, 10, 11
vT = 12
QF, SP, PERM, ACC, RING = 16, 32, 64, 96, 128

def vr(b, n=1): return "v%d" % b if n == 1 else "v[%d:%d]" % (b, b+n-1)
def ar(b, n=1): return "a%d" % b if n == 1 else "a[%d:%d]" % (b, b+n-1)

DPP = " row_mask:0xf bank_mask:0xf"
def allred(p, regs, tmps, op, steps):
    for s in steps:
        if s in (1, 2, 4, 8):
            for r in regs: p("%s_dpp v%d, v%d, v%d row_ror:%d%s" % (op, r, r, r, s, DPP))
        else:
            for r, t in zip(regs, tmps): p("v_mov_b32 v%d, v%d" % (t, r))
            for r, t in zip(regs, tmps): p("v_permlane%d_swap_b32 v%d, v%d" % (s, r, t))
            for r, t in zip(regs, tmps): p("%s v%d, v%d, v%d" % (op, r, r, t))

def build(cfg):
    pat = cfg.get("pat", "lin")
    nt = " nt" if cfg.get("nt", True) else ""
    ntw = " nt" if cfg.get("ntw", True) else ""
    stamps = cfg.get("stamps", False)
    poll_after = cfg.get("poll_after", 6)
    HS = cfg.get("hs", " sc1")
    HL = cfg.get("hl", " sc1")
    RETRIES = cfg.get("retries", 40000)
    stride = {"lin": 1024, "str8": 8192, "w4": 4096, "glob": 262144}[pat]
    p = Prog()
    nst = [0]
    names = []
    def stamp(name):
        if not stamps or name in cfg.get("nostamp", ["x_landed", "q_gemv"]): return
        k = nst[0]; nst[0] += 1; names.append(name)
        assert k < 16
        p("s_memrealtime s[%d:%d]" % (70+2*k, 71+2*k))

    END = p.label("end")
    p("s_cmp_ge_u32 s2, 256")
    p("s_cbranch_scc1 %s" % END)
    stamp("start")
    if cfg.get("pf", 0):
        NPF = p.label("nopf")
        p("s_cmp_ge_u32 s2, %d" % cfg["pf"]); p("s_cbranch_scc1 %s" % NPF)
        p("v_cmp_gt_u32 vcc, 64, v0"); p("s_cbranch_vccz %s" % NPF)
        PFB = p.label("pfbase")
        p("s_getpc_b64 s[48:49]")
        p("%s:" % PFB)
        p("v_lshlrev_b32 v12, 7, v0")
        for i in range(cfg.get("pfn", 3)):
            p("v_min_u32 v13, %s-%s-4, v12" % (END, PFB))
            p.vmem("global_load_dword v%d, v13, s[48:49]" % (236+i), "PF", cond=True)
            p("v_add_u32 v12, 0x2000, v12")
        p("%s:" % NPF)
    for i, off in enumerate([0, 8, 16, 24, 32, 48, 56, 64, 72, 80, 88]):
        p("s_load_dwordx2 s[%d:%d], s[0:1], %d" % (4*i+4, 4*i+5, off))
    sizes = [2048, 1<<26, 1<<26, 1<<23, 1<<23, 1024*3584*2, 1024*3584*2, 1024*3584*2, 2048, 256, 1<<28]
    for i, sz in enumerate(sizes):
        p("s_mov_b32 s%d, 0x%x" % (4*i+6, sz)); p("s_mov_b32 s%d, 0x20000" % (4*i+7))
    p("s_cmp_lt_u32 s2, 224")
    p("s_cselect_b32 s26, s26, 0")
    p("s_cselect_b32 s30, s30, 0")
    p("v_lshrrev_b32 v12, 6, v0")
    p("v_and_b32 v1, 63, v0")
    p("v_readfirstlane_b32 %s, v12" % sW)
    p("s_lshr_b32 %s, s2, 6" % sG)
    p("s_and_b32 %s, s2, 63" % sC)
    p("s_mov_b32 %s, 0x05040100" % sSELLO); p("s_mov_b32 %s, 0x07060302" % sSELHI)
    p("s_mov_b32 %s, 0xff" % sFF); p("s_mov_b32 %s, 0x3fb8aa3b" % sLOG2E)
    p("s_mov_b32 %s, 0x3db504f3" % sSCALE); p("s_mov_b32 %s, 0xffff0000" % sHI)
    p("s_lshr_b32 %s, s2, 1" % sRB); p("s_and_b32 %s, s2, 1" % sCH)
    p("v_lshlrev_b32 v3, 4, v1")
    p("v_lshlrev_b32 v13, 5, v1")
    p("s_lshl_b32 %s, %s, 9" % (sA, sW))
    p("v_lshlrev_b32 v14, 3, v1")
    p("v_lshrrev_b32 v15, 3, v1"); p("v_lshlrev_b32 v15, 13, v15")
    p("v_and_b32 v16, 7, v1"); p("v_lshlrev_b32 v16, 4, v16"); p("v_add_u32 v15, v15, v16")
    p("v_lshrrev_b32 v17, 4, v1"); p("v_mul_u32_u24 v17, 7168, v17")
    p("v_and_b32 v18, 15, v1"); p("v_lshlrev_b32 v18, 4, v18"); p("v_add_u32 v17, v17, v18")
    p("s_and_b32 %s, %s, 3" % (sB, sC)); p("s_lshl_b32 %s, %s, 21" % (sB, sB))
    p("s_lshl_b32 %s, %s, 19" % (sCc, sW)); p("s_add_u32 %s, %s, %s" % (sB, sB, sCc))
    p("s_lshl_b32 %s, %s, 11" % (sCc, sG)); p("s_add_u32 %s, %s, %s" % (sB, sB, sCc))
    p("s_lshr_b32 %s, %s, 2" % (sCc, sC)); p("s_lshl_b32 %s, %s, 7" % (sCc, sCc)); p("s_add_u32 %s, %s, %s" % (sB, sB, sCc))
    p("s_and_b32 %s, s2, 7" % sCc); p("s_lshl_b32 %s, %s, 7" % (sCc, sCc))
    p("s_lshl_b32 %s, %s, 5" % (sD, sW)); p("s_add_u32 %s, %s, %s" % (sCc, sCc, sD)); p("s_mul_i32 %s, %s, 7168" % (sCc, sCc))
    p("s_lshr_b32 %s, s2, 3" % sD); p("s_lshl_b32 %s, %s, 8" % (sD, sD)); p("s_add_u32 %s, %s, %s" % (sCc, sCc, sD))
    p("s_waitcnt lgkmcnt(0)")
    p("s_load_dword %s, s[44:45], %d" % (sE, EPOCH))
    ntx = " nt" if cfg.get("ntx", False) else ""
    p.vmem("buffer_load_dwordx4 v[224:227], v13, %s, 0 offen%s" % (SX, ntx), "XA0")
    p.vmem("buffer_load_dwordx4 v[228:231], v13, %s, 0 offen offset:16%s" % (SX, ntx), "XA1")
    p.vmem("buffer_load_dwordx2 v[232:233], v14, %s, %s offen%s" % (SX, sA, ntx), "XB")
    if cfg.get("pbar", 1) >= 1: p("s_barrier")
    for t in range(8):
        p("s_add_u32 %s, %s, %d" % (sT0, sB, t*8*8192))
        p.vmem("buffer_load_dwordx4 %s, v15, %s, %s offen%s" % (vr(128+4*t, 4), SWQ, sT0, ntw), "Q%d" % t)
    if cfg.get("pbar", 1) >= 2: p("s_barrier")
    for t in range(8):
        p("s_add_u32 %s, %s, %d" % (sT0, sCc, t*4*7168))
        p.vmem("buffer_load_dwordx4 %s, v17, %s, %s offen%s" % (vr(160+4*t, 4), SW1, sT0, ntw), "W1_%d" % t)
    if pat == "lin":
        p("s_lshl_b32 %s, s2, 18" % sKV); p("s_lshl_b32 %s, %s, 16" % (sD, sW)); p("s_add_u32 %s, %s, %s" % (sKV, sKV, sD))
    elif pat == "str8":
        p("s_lshl_b32 %s, %s, 24" % (sKV, sG))
        p("s_lshr_b32 %s, %s, 3" % (sD, sC)); p("s_lshl_b32 %s, %s, 21" % (sD, sD)); p("s_add_u32 %s, %s, %s" % (sKV, sKV, sD))
        p("s_lshl_b32 %s, %s, 19" % (sD, sW)); p("s_add_u32 %s, %s, %s" % (sKV, sKV, sD))
        p("s_and_b32 %s, %s, 7" % (sD, sC)); p("s_lshl_b32 %s, %s, 10" % (sD, sD)); p("s_add_u32 %s, %s, %s" % (sKV, sKV, sD))
    elif pat == "w4":
        p("s_lshl_b32 %s, s2, 18" % sKV); p("s_lshl_b32 %s, %s, 10" % (sD, sW)); p("s_add_u32 %s, %s, %s" % (sKV, sKV, sD))
    elif pat == "glob":
        p("s_lshl_b32 %s, %s, 24" % (sKV, sG))
        p("s_lshl_b32 %s, %s, 12" % (sD, sC)); p("s_add_u32 %s, %s, %s" % (sKV, sKV, sD))
        p("s_lshl_b32 %s, %s, 10" % (sD, sW)); p("s_add_u32 %s, %s, %s" % (sKV, sKV, sD))
    p("v_and_b32 v12, 3, v1"); p("v_lshlrev_b32 v12, %d, v12" % (stride.bit_length()-1))
    p("v_bfe_u32 v2, v1, 2, 1"); p("v_lshlrev_b32 v2, 8, v2"); p("v_add_u32 v2, v2, v12")
    p("v_bfe_u32 v12, v1, 3, 1"); p("v_lshlrev_b32 v12, 6, v12"); p("v_add_u32 v2, v2, v12")
    p("v_lshrrev_b32 v12, 4, v1"); p("v_lshlrev_b32 v12, 4, v12"); p("v_add_u32 v2, v2, v12")
    p("v_and_b32 v12, 1, v1"); p("v_lshlrev_b32 v12, 4, v12"); p("v_mov_b32 v13, 0xffff"); p("v_lshlrev_b32 v13, v12, v13")
    p("v_bfe_u32 v12, v1, 1, 2")
    for jj in range(4):
        p("v_cmp_eq_u32 vcc, %d, v12" % jj); p("v_cndmask_b32 v%d, 0, v13, vcc" % (vMASK+jj))
    def loadK(t):
        for h in range(2):
            p("s_add_u32 %s, %s, %d" % (sT0, sKV, (8*t+4*h)*stride))
            for a_ in range(2):
                for lam in range(2):
                    p.vmem("buffer_load_dwordx4 %s, v%d, %s, %s offen offset:%d%s" % (ar(32*t+16*h+8*a_+4*lam, 4), vOFFK, SK, sT0, 512*a_+128*lam, nt), "K%d" % t)
    def loadV(t):
        base = RING + 32*(t % 4)
        for i in range(8):
            p("s_add_u32 %s, %s, %d" % (sT0, sKV, (8*t+i)*stride))
            p.vmem("buffer_load_dwordx4 %s, v%d, %s, %s offen%s" % (vr(base+4*i, 4), vL16, SV, sT0, nt), "V%d" % t)

    def tagcheck(regs, acc):
        p("v_xor_b32 v%d, %s, v%d" % (acc, sTAG, regs[0]))
        for r in regs[1:]: p("v_bitop3_b32 v%d, v%d, %s, v%d bitop3:0xbe" % (acc, r, sTAG, acc))
        p("v_and_b32 v%d, 0xff, v%d" % (acc, acc))
        p("v_cmp_ne_u32 vcc, 0, v%d" % acc)
        if cfg.get("nodep"): p("s_mov_b64 vcc, 0")
    p.wait("XA1")
    stamp("x_landed")
    for i in range(8):
        p("v_lshlrev_b32 v%d, 16, v%d" % (32+2*i, 224+i)); p("v_and_b32 v%d, 0xffff0000, v%d" % (33+2*i, 224+i))
    for i in range(8): p("v_add_f32 v%d, v%d, v%d" % (48+i, 32+2*i, 33+2*i))
    p("v_add_f32 v48, v48, v49"); p("v_add_f32 v50, v50, v51"); p("v_add_f32 v52, v52, v53"); p("v_add_f32 v54, v54, v55")
    p("v_add_f32 v48, v48, v50"); p("v_add_f32 v52, v52, v54"); p("v_add_f32 v48, v48, v52")
    allred(p, [48], [49], "v_add_f32", [8, 4, 2, 1, 16, 32])
    p("v_mul_f32 v49, 0x3a800000, v48")
    for i in range(16): p("v_sub_f32 v%d, v%d, v49" % (32+i, 32+i))
    for i in range(4): p("v_mul_f32 v%d, v%d, v%d" % (50+i, 32+i, 32+i))
    for i in range(4, 16): p("v_fmac_f32 v%d, v%d, v%d" % (50+(i % 4), 32+i, 32+i))
    p("v_add_f32 v50, v50, v51"); p("v_add_f32 v52, v52, v53"); p("v_add_f32 v50, v50, v52")
    allred(p, [50], [51], "v_add_f32", [8, 4, 2, 1, 16, 32])
    p("v_mul_f32 v50, 0x3a800000, v50")
    p("v_cvt_pk_bf16_f32 v51, v49, v50")
    p("v_lshlrev_b32 v52, 16, v51")
    p("v_and_b32 v53, 0xffff0000, v51")
    p("v_add_f32 v53, 0x3727c5ac, v53")
    p("v_cvt_pk_bf16_f32 v53, v53, v53"); p("v_lshlrev_b32 v53, 16, v53")
    p("v_sqrt_f32 v53, v53")
    p("v_cvt_pk_bf16_f32 v53, v53, v53"); p("v_lshlrev_b32 v53, 16, v53")
    p("v_rcp_f32 v54, v53")
    p.wait("XB")
    p("v_lshlrev_b32 v32, 16, v232"); p("v_and_b32 v33, 0xffff0000, v232")
    p("v_lshlrev_b32 v34, 16, v233"); p("v_and_b32 v35, 0xffff0000, v233")
    for i in range(4): p("v_sub_f32 v%d, v%d, v52" % (32+i, 32+i))
    p("v_cvt_pk_bf16_f32 v36, v32, v33"); p("v_cvt_pk_bf16_f32 v37, v34, v35")
    p("v_lshlrev_b32 v32, 16, v36"); p("v_and_b32 v33, 0xffff0000, v36")
    p("v_lshlrev_b32 v34, 16, v37"); p("v_and_b32 v35, 0xffff0000, v37")
    for i in range(4): p("v_mul_f32 v%d, v%d, v54" % (40+i, 32+i))
    for i in range(4): p("v_fma_f32 v%d, -v%d, v53, v%d" % (44+i, 40+i, 32+i))
    for i in range(4): p("v_fma_f32 v%d, v%d, v54, v%d" % (40+i, 44+i, 40+i))
    for i in range(4): p("v_cvt_pk_bf16_f32 v%d, v%d, v%d" % (36+i, 40+i, 40+i))
    p("v_lshlrev_b32 v12, 4, v0")
    p("ds_write_b128 v12, v[36:39] offset:%d" % L_XN)
    p("s_waitcnt lgkmcnt(0)")
    p("s_barrier")
    stamp("ln_done")
    p("s_add_u32 %s, %s, 1" % (sE, sE)); p("s_and_b32 %s, %s, 0xff" % (sTAG, sE)); p("v_mov_b32 v%d, %s" % (vTAG, sTAG))
    p("s_and_b32 %s, %s, 3" % (sA, sC)); p("s_lshl_b32 %s, %s, 8" % (sA, sA)); p("s_lshl_b32 %s, %s, 6" % (sD, sW)); p("s_add_u32 %s, %s, %s" % (sA, sA, sD))
    p("v_lshrrev_b32 v12, 3, v1"); p("v_add_u32 v12, %s, v12" % sA); p("v_lshlrev_b32 v12, 2, v12")
    p("s_and_b32 %s, s2, 7" % sA); p("s_lshl_b32 %s, %s, 7" % (sA, sA)); p("s_lshl_b32 %s, %s, 5" % (sD, sW)); p("s_add_u32 %s, %s, %s" % (sA, sA, sD))
    p("v_lshrrev_b32 v13, 4, v1"); p("v_add_u32 v13, %s, v13" % sA); p("v_lshlrev_b32 v13, 2, v13")
    for t in range(0, 8, 2):
        p("ds_read2_b32 v[%d:%d], v12 offset0:%d offset1:%d" % (96+t, 97+t, 8*t, 8*t+8))
    for t in range(0, 8, 2):
        p("ds_read2_b32 v[%d:%d], v13 offset0:%d offset1:%d" % (104+t, 105+t, 4*t, 4*t+4))
    for t in range(8):
        p("s_add_u32 %s, %s, %d" % (sT0, sCc, t*4*7168))
        p.vmem("buffer_load_dwordx4 %s, v17, %s, %s offen%s" % (vr(192+4*t, 4), SW3, sT0, ntw), "W3_%d" % t)
    p("s_waitcnt lgkmcnt(0)")
    for t in range(8):
        A = 48 + 4*(t % 2)
        for jj in range(4): p("v_and_b32 v%d, v%d, v%d" % (A+jj, 96+t, vMASK+jj))
        if t == 0: p.wait("Q7")
        p("v_mfma_f32_16x16x32_bf16 v[56:59], %s, %s, %s" % (vr(A, 4), vr(128+4*t, 4), "0" if t == 0 else "v[56:59]"))
    for t in range(8):
        for jj in range(4): p("v_and_b32 v%d, v%d, v%d" % (PERM+4*t+jj, 104+t, vMASK+jj))
    p("v_and_b32 v12, 7, v1"); p("v_lshlrev_b32 v12, 5, v12")
    p("v_bfe_u32 v13, v1, 4, 1"); p("v_lshlrev_b32 v13, 4, v13"); p("v_add_u32 v12, v12, v13")
    p("v_lshrrev_b32 v13, 5, v1"); p("v_lshlrev_b32 v13, 8, v13"); p("v_add_u32 v12, v12, v13")
    p("s_lshl_b32 %s, %s, 9" % (sA, sW)); p("v_add_u32 v12, %s, v12" % sA)
    p("s_mov_b32 exec_lo, 0x00ff00ff"); p("s_mov_b32 exec_hi, 0xff00ff00")
    p("ds_write_b128 v12, v[56:59] offset:%d" % L_QP)
    p("s_mov_b64 exec, -1")
    p("s_waitcnt lgkmcnt(0)")
    p("s_barrier")
    stamp("q_gemv")
    SKIP0 = p.label("pubq")
    p("s_cmp_lg_u32 %s, 0" % sW); p("s_cbranch_scc1 %s" % SKIP0)
    p("v_lshlrev_b32 v12, 4, v1")
    for i in range(8): p("ds_read_b128 %s, v12 offset:%d" % (vr(32+4*i, 4) if i < 4 else vr(112+4*(i-4), 4), L_QP + 256*i))
    p("s_lshl_b32 %s, %s, 2" % (sB, sG)); p("s_and_b32 %s, %s, 3" % (sD, sC)); p("s_add_u32 %s, %s, %s" % (sB, sB, sD)); p("s_lshl_b32 %s, %s, 12" % (sB, sB))
    p("s_lshr_b32 %s, %s, 2" % (sD, sC)); p("s_lshl_b32 %s, %s, 8" % (sD, sD)); p("s_add_u32 %s, %s, %s" % (sB, sB, sD))
    p("s_add_u32 %s, %s, %d" % (sB, sB, Q_BASE))
    p("s_waitcnt lgkmcnt(0)")
    for r in range(4):
        p("v_add_f32 v%d, v%d, v%d" % (32+r, 32+r, 36+r)); p("v_add_f32 v%d, v%d, v%d" % (40+r, 40+r, 44+r))
        p("v_add_f32 v%d, v%d, v%d" % (112+r, 112+r, 116+r)); p("v_add_f32 v%d, v%d, v%d" % (120+r, 120+r, 124+r))
    for r in range(4):
        p("v_add_f32 v%d, v%d, v%d" % (32+r, 32+r, 40+r)); p("v_add_f32 v%d, v%d, v%d" % (112+r, 112+r, 120+r))
    for r in range(4): p("v_add_f32 v%d, v%d, v%d" % (32+r, 32+r, 112+r))
    p("s_mov_b32 exec_lo, 0xffff"); p("s_mov_b32 exec_hi, 0")
    p.vmem("buffer_store_dwordx4 v[32:35], v12, %s, %s offen%s" % (SWS, sB, HS), "PUBQ", cond=True)
    p("s_mov_b64 exec, -1")
    p("%s:" % SKIP0)
    loadK(0)
    p.wait("W1_7")
    stamp("w1_landed")
    for t in range(8):
        p("v_mfma_f32_16x16x32_bf16 v[60:63], %s, %s, %s" % (vr(PERM+4*t, 4), vr(160+4*t, 4), "0" if t == 0 else "v[60:63]"))
    loadK(1)
    p.wait("W3_7")
    stamp("w3_landed")
    for t in range(8):
        p("v_mfma_f32_16x16x32_bf16 v[96:99], %s, %s, %s" % (vr(PERM+4*t, 4), vr(192+4*t, 4), "0" if t == 0 else "v[96:99]"))
    SKIP2 = p.label("flag")
    p("s_cmp_lg_u32 %s, 0" % sW); p("s_cbranch_scc1 %s" % SKIP2)
    p("v_lshlrev_b32 v12, 2, v1"); p("v_mov_b32 v13, %s" % sE)
    p("s_lshl_b32 %s, s2, 7" % sA); p("s_add_u32 %s, %s, %d" % (sA, sA, FLAG_BASE))
    p.wait("PUBQ")
    p("s_mov_b32 exec_hi, 0")
    p.vmem("buffer_store_dword v13, v12, %s, %s offen%s" % (SWS, sA, HS), "FLAG", cond=True)
    p("s_mov_b64 exec, -1")
    p("%s:" % SKIP2)
    stamp("flag")
    p("v_and_b32 v12, 15, v1"); p("v_lshlrev_b32 v12, 5, v12")
    p("v_bfe_u32 v13, v1, 4, 1"); p("v_lshlrev_b32 v13, 4, v13"); p("v_add_u32 v12, v12, v13")
    p("s_lshl_b32 %s, %s, 10" % (sA, sW)); p("v_add_u32 v12, %s, v12" % sA)
    p("s_mov_b32 exec_hi, 0")
    p("ds_write_b128 v12, v[60:63] offset:%d" % L_BP)
    p("ds_write_b128 v12, v[96:99] offset:%d" % (L_BP+512))
    p("s_mov_b64 exec, -1")
    loadK(2)
    p("s_waitcnt lgkmcnt(0)")
    p("s_barrier")
    stamp("b_gemv")
    SKIP1 = p.label("pub1")
    p("s_cmp_lg_u32 %s, 1" % sW); p("s_cbranch_scc1 %s" % SKIP1)
    p("s_cmp_ge_u32 s2, 224"); p("s_cbranch_scc1 %s" % SKIP1)
    p("v_lshlrev_b32 v12, 4, v1")
    for i in range(4): p("ds_read_b128 %s, v12 offset:%d" % (vr(32+4*i, 4), L_BP + 1024*i))
    p("s_and_b32 %s, s2, 7" % sA); p("s_mul_i32 %s, %s, %d" % (sA, sA, 3584*4))
    p("s_lshr_b32 %s, s2, 3" % sD); p("s_lshl_b32 %s, %s, 9" % (sD, sD)); p("s_add_u32 %s, %s, %s" % (sA, sA, sD))
    p("s_add_u32 %s, %s, %d" % (sA, sA, BP_BASE))
    p("v_lshrrev_b32 v13, 5, v1"); p("v_mul_u32_u24 v13, %d, v13" % (8*3584*4))
    p("v_and_b32 v14, 31, v1"); p("v_lshlrev_b32 v14, 4, v14"); p("v_add_u32 v13, v13, v14")
    p("s_waitcnt lgkmcnt(0)")
    for r in range(4):
        p("v_add_f32 v%d, v%d, v%d" % (32+r, 32+r, 36+r)); p("v_add_f32 v%d, v%d, v%d" % (40+r, 40+r, 44+r))
    for r in range(4): p("v_add_f32 v%d, v%d, v%d" % (32+r, 32+r, 40+r))
    for r in range(4): p("v_bfi_b32 v%d, %s, v%d, v%d" % (32+r, sFF, vTAG, 32+r))
    p.vmem("buffer_store_dwordx4 v[32:35], v13, %s, %s offen%s" % (SWS, sA, HS), "PUBB", cond=True)
    p("%s:" % SKIP1)
    for t in range(3, poll_after): loadK(t)
    SKIPP = p.label("nopoll")
    p("v_lshlrev_b32 v14, 7, v1")
    p("s_lshl_b32 %s, %s, 13" % (sB, sG)); p("s_add_u32 %s, %s, %d" % (sB, sB, FLAG_BASE))
    p("s_cmp_lg_u32 %s, 0" % sW); p("s_cbranch_scc1 %s" % SKIPP)
    p.vmem("buffer_load_dword v15, v14, %s, %s offen%s" % (SWS, sB, HL), "POLL", cond=True)
    p("%s:" % SKIPP)
    for t in range(poll_after, 8): loadK(t)
    OKP = p.label("okpoll")
    p("s_cmp_lg_u32 %s, 0" % sW); p("s_cbranch_scc1 %s" % OKP)
    p.wait("POLL")
    p("s_mov_b32 %s, %d" % (sRETRY, RETRIES))
    RP = p.label("rpoll")
    p("%s:" % RP)
    p("v_cmp_ne_u32 vcc, %s, v15" % sE)
    if cfg.get("nodep"): p("s_branch %s" % OKP)
    p("s_cbranch_vccz %s" % OKP)
    p("s_sub_u32 %s, %s, 1" % (sRETRY, sRETRY)); p("s_cbranch_scc1 %s" % OKP)
    p("s_sleep %d" % cfg.get("sleep", 8))
    p("buffer_load_dword v15, v14, %s, %s offen%s" % (SWS, sB, HL))
    p("s_waitcnt vmcnt(0)")
    p("s_branch %s" % RP)
    p("%s:" % OKP)
    p("s_barrier")
    stamp("poll_ok")
    p("s_lshl_b32 %s, %s, 14" % (sA, sG)); p("s_lshl_b32 %s, %s, 10" % (sD, sW)); p("s_add_u32 %s, %s, %s" % (sA, sA, sD)); p("s_add_u32 %s, %s, %d" % (sA, sA, Q_BASE))
    for kq in range(4):
        p("s_add_u32 %s, %s, %d" % (sT0, sA, kq*4096))
        p.vmem("buffer_load_dwordx4 %s, v%d, %s, %s offen%s" % (vr(96+4*kq, 4), vL16, SWS, sT0, HL), "QG")
    p("v_lshrrev_b32 v14, 3, v1"); p("v_mul_u32_u24 v14, 14336, v14"); p("v_and_b32 v13, 7, v1"); p("v_min_u32 v13, 6, v13"); p("v_lshlrev_b32 v13, 4, v13"); p("v_add_u32 v14, v14, v13")
    p("s_mul_i32 %s, %s, 112" % (sB, sRB)); p("s_add_u32 %s, %s, %d" % (sB, sB, BP_BASE))
    p.vmem("buffer_load_dwordx4 v[112:115], v14, %s, %s offen%s" % (SWS, sB, HL), "HG")
    p("s_add_u32 %s, %s, %d" % (sCc, sB, 8*14336))
    p.vmem("buffer_load_dwordx4 v[116:119], v14, %s, %s offen%s" % (SWS, sCc, HL), "HG")
    loadV(0); loadV(1)
    p.wait("QG")
    for r in range(4):
        p("v_add_f32 v%d, v%d, v%d" % (96+r, 96+r, 100+r)); p("v_add_f32 v%d, v%d, v%d" % (104+r, 104+r, 108+r))
    for r in range(4): p("v_add_f32 v%d, v%d, v%d" % (96+r, 96+r, 104+r))
    p("v_cvt_pk_bf16_f32 v96, v96, v97"); p("v_cvt_pk_bf16_f32 v97, v98, v99")
    p("v_lshrrev_b32 v12, 5, v1"); p("s_lshl_b32 %s, %s, 1" % (sA, sW)); p("v_add_u32 v12, %s, v12" % sA); p("v_mul_u32_u24 v12, 272, v12")
    p("v_and_b32 v13, 31, v1"); p("v_lshlrev_b32 v13, 3, v13"); p("v_add_u32 v12, v12, v13")
    p("ds_write_b64 v12, v[96:97] offset:%d" % L_QL)
    p.wait("HG")
    p("s_mov_b32 %s, %d" % (sRETRY, RETRIES))
    RH = p.label("rh"); OKH = p.label("okh")
    p("%s:" % RH)
    tagcheck(list(range(112, 120)), 15)
    p("s_cbranch_vccz %s" % OKH)
    p("s_sub_u32 %s, %s, 1" % (sRETRY, sRETRY)); p("s_cbranch_scc1 %s" % OKH)
    p("s_sleep %d" % cfg.get("sleep", 8))
    p("buffer_load_dwordx4 v[112:115], v14, %s, %s offen%s" % (SWS, sB, HL))
    p("buffer_load_dwordx4 v[116:119], v14, %s, %s offen%s" % (SWS, sCc, HL))
    p("s_waitcnt vmcnt(0)")
    p("s_branch %s" % RH)
    p("%s:" % OKH)
    hr = list(range(112, 120))
    allred(p, hr, list(range(120, 128)), "v_add_f32", [8, 16, 32])
    p("v_cvt_pk_bf16_f32 v120, v112, v113"); p("v_cvt_pk_bf16_f32 v121, v114, v115")
    p("v_cvt_pk_bf16_f32 v122, v116, v117"); p("v_cvt_pk_bf16_f32 v123, v118, v119")
    for i in range(2):
        p("v_lshlrev_b32 v%d, 16, v%d" % (112+2*i, 120+i)); p("v_and_b32 v%d, 0xffff0000, v%d" % (113+2*i, 120+i))
        p("v_lshlrev_b32 v%d, 16, v%d" % (116+2*i, 122+i)); p("v_and_b32 v%d, 0xffff0000, v%d" % (117+2*i, 122+i))
    def silu(src, dst, tmp, n):
        for r in range(n): p("v_mul_f32 v%d, %s, v%d" % (tmp+r, sLOG2E, src+r))
        for r in range(n): p("v_exp_f32 v%d, -v%d" % (tmp+r, tmp+r))
        for r in range(n): p("v_add_f32 v%d, 1.0, v%d" % (tmp+r, tmp+r))
        for r in range(n): p("v_rcp_f32 v%d, v%d" % (tmp+r, tmp+r))
        for r in range(n): p("v_mul_f32 v%d, v%d, v%d" % (dst+r, src+r, tmp+r))
    silu(112, 112, 120, 4)
    p("v_cvt_pk_bf16_f32 v120, v112, v113"); p("v_cvt_pk_bf16_f32 v121, v114, v115")
    for i in range(2):
        p("v_lshlrev_b32 v%d, 16, v%d" % (112+2*i, 120+i)); p("v_and_b32 v%d, 0xffff0000, v%d" % (113+2*i, 120+i))
    for r in range(4): p("v_mul_f32 v%d, v%d, v%d" % (112+r, 112+r, 116+r))
    for r in range(4): p("v_cvt_pk_bf16_f32 v%d, v%d, v%d" % (112+r, 112+r, 112+r))
    p("v_and_b32 v13, 7, v1"); p("v_lshlrev_b32 v13, 2, v13")
    for r in range(4): p("ds_write_b32 v13, v%d offset:%d" % (112+r, L_HL + 32*r))
    p("s_waitcnt lgkmcnt(0)")
    p("s_barrier")
    stamp("q_ready")
    p("v_and_b32 v12, 7, v1"); p("v_mul_u32_u24 v12, 272, v12"); p("v_lshrrev_b32 v13, 4, v1"); p("v_lshlrev_b32 v13, 4, v13"); p("v_add_u32 v12, v12, v13")
    p("v_bfe_u32 v13, v1, 3, 1"); p("v_lshlrev_b32 v13, 6, v13"); p("v_add_u32 v12, v12, v13")
    for lam in range(2): p("ds_read_b128 %s, v12 offset:%d" % (vr(QF+4*lam, 4), L_QL + 128*lam))
    p("v_mov_b32 v%d, 0xff800000" % vMAX)
    p("s_waitcnt lgkmcnt(0)")
    def qk_mfma(t):
        D = PERM + 16*(t % 2)
        for lam in range(2):
            for h in range(2):
                for a_ in range(2):
                    d = D + 8*h + 4*a_
                    p("v_mfma_f32_16x16x32_bf16 %s, %s, %s, %s" % (vr(d, 4), ar(32*t+16*h+8*a_+4*lam, 4), vr(QF+4*lam, 4), "0" if lam == 0 else vr(d, 4)))
    def qk_post(t):
        D = PERM + 16*(t % 2); T = QF + 8
        for h in range(2):
            for r in range(4): p("v_permlane32_swap_b32 v%d, v%d" % (D+8*h+r, D+8*h+4+r))
        for h in range(2):
            for r in range(4): p("v_add_f32_dpp v%d, v%d, v%d row_ror:8%s" % (D+8*h+r, D+8*h+4+r, D+8*h+r, DPP))
        src = [D+0, D+1, D+2, D+3, D+8, D+9, D+10, D+11]
        pk = [D+4, D+5, D+6, D+7]
        for i in range(4): p("v_cvt_pk_bf16_f32 v%d, v%d, v%d" % (pk[i], src[2*i], src[2*i+1]))
        for i in range(4):
            p("v_lshlrev_b32 v%d, 16, v%d" % (T+2*i, pk[i])); p("v_and_b32 v%d, 0xffff0000, v%d" % (T+2*i+1, pk[i]))
        for i in range(8): p("v_mul_f32 v%d, %s, v%d" % (T+i, sSCALE, T+i))
        for i in range(4):
            p("v_cvt_pk_bf16_f32 v%d, v%d, v%d" % (SP+4*t+i, T+2*i, T+2*i+1))
            p("v_max3_f32 v%d, v%d, v%d, v%d" % (vMAX, vMAX, T+2*i, T+2*i+1))
    qk_mfma(0)
    for t in range(1, 8):
        qk_mfma(t)
        if t == 2: loadV(2)
        if t == 5: loadV(3)
        qk_post(t-1)
    qk_post(7)
    allred(p, [vMAX], [12], "v_max_f32", [16, 32])
    p("v_and_b32 v12, 15, v1"); p("v_lshlrev_b32 v12, 2, v12"); p("s_lshl_b32 %s, %s, 6" % (sA, sW)); p("v_add_u32 v13, %s, v12" % sA)
    p("ds_write_b32 v13, v%d offset:%d" % (vMAX, L_MX))
    p("s_waitcnt lgkmcnt(0)")
    p("s_barrier")
    p("ds_read_b32 v14, v12 offset:%d" % L_MX)
    p("ds_read_b32 v15, v12 offset:%d" % (L_MX+64))
    p("ds_read_b32 v16, v12 offset:%d" % (L_MX+128))
    p("ds_read_b32 v17, v12 offset:%d" % (L_MX+192))
    p("s_waitcnt lgkmcnt(0)")
    p("v_max3_f32 v14, v14, v15, v16"); p("v_max_f32 v14, v14, v17")
    p("v_cvt_pk_bf16_f32 v14, v14, v14"); p("v_lshlrev_b32 v%d, 16, v14" % vMAX)
    p("v_mul_f32 v16, %s, v%d" % (sLOG2E, vMAX)); p("v_sub_f32 v16, 0, v16")
    stamp("qk_done")
    p("v_mov_b32 v%d, 0" % vL0); p("v_mov_b32 v%d, 0" % vL1)
    for b in range(8):
        T = PERM + 8*(b % 2)
        for i in range(4):
            p("v_lshlrev_b32 v%d, 16, v%d" % (T+2*i, SP+4*b+i)); p("v_and_b32 v%d, 0xffff0000, v%d" % (T+2*i+1, SP+4*b+i))
        for i in range(8): p("v_fma_f32 v%d, v%d, %s, v16" % (T+i, T+i, sLOG2E))
        for i in range(8): p("v_exp_f32 v%d, v%d" % (T+i, T+i))
        for i in range(4):
            p("v_cvt_pk_bf16_f32 v%d, v%d, v%d" % (SP+4*b+i, T+2*i, T+2*i+1))
            p("v_add_f32 v%d, v%d, v%d" % (vL0, vL0, T+2*i)); p("v_add_f32 v%d, v%d, v%d" % (vL1, vL1, T+2*i+1))
    p("v_add_f32 v%d, v%d, v%d" % (vL0, vL0, vL1))
    allred(p, [vL0], [12], "v_add_f32", [16, 32])
    p("v_and_b32 v12, 15, v1"); p("v_lshlrev_b32 v12, 2, v12"); p("s_lshl_b32 %s, %s, 6" % (sA, sW)); p("v_add_u32 v13, %s, v12" % sA)
    p("ds_write_b32 v13, v%d offset:%d" % (vL0, L_LW))
    stamp("p_done")
    def pv(t):
        base = RING + 32*(t % 4)
        p.wait("V%d" % t)
        def perm(j):
            c, h = j >> 1, j & 1
            for tt in range(4):
                p("v_perm_b32 v%d, v%d, v%d, %s" % (PERM+4*j+tt, base+4*(2*tt+1)+c, base+4*(2*tt)+c, sSELHI if h else sSELLO))
        def mm(j):
            p("v_mfma_f32_16x16x32_bf16 %s, %s, %s, %s" % (vr(ACC+4*j, 4), vr(PERM+4*j, 4), vr(SP+4*t, 4), "0" if t == 0 else vr(ACC+4*j, 4)))
        perm(0)
        for j in range(1, 8):
            perm(j); mm(j-1)
        return lambda: mm(7)
    def loadW2():
        p("v_lshrrev_b32 v12, 4, v1"); p("v_lshlrev_b32 v12, 11, v12"); p("v_and_b32 v13, 15, v1"); p("v_lshlrev_b32 v13, 4, v13"); p("v_add_u32 v12, v12, v13")
        p("s_mul_i32 %s, %s, %d" % (sA, sRB, 28*2048)); p("s_lshl_b32 %s, %s, 10" % (sD, sCH)); p("s_add_u32 %s, %s, %s" % (sA, sA, sD))
        p("s_lshl_b32 %s, %s, 8" % (sD, sW)); p("s_add_u32 %s, %s, %s" % (sA, sA, sD))
        for t in range(7):
            p("s_add_u32 %s, %s, %d" % (sT0, sA, t*4*2048))
            p.vmem("buffer_load_dwordx4 %s, v12, %s, %s offen%s" % (ar(4*t, 4), SW2, sT0, ntw), "W2")
    def loadO():
        p("v_lshrrev_b32 v12, 4, v1"); p("v_lshlrev_b32 v12, 14, v12"); p("v_and_b32 v13, 15, v1"); p("v_lshlrev_b32 v13, 4, v13"); p("v_add_u32 v12, v12, v13")
        p("s_lshl_b32 %s, %s, 16" % (sA, sRB)); p("s_lshl_b32 %s, %s, 10" % (sD, sCH)); p("s_add_u32 %s, %s, %s" % (sA, sA, sD))
        p("s_lshl_b32 %s, %s, 8" % (sD, sW)); p("s_add_u32 %s, %s, %s" % (sA, sA, sD))
        for t in range(8):
            p("s_add_u32 %s, %s, %d" % (sT0, sA, t*2048))
            p.vmem("buffer_load_dwordx4 %s, v12, %s, %s offen%s" % (ar(32+4*t, 4), SWO, sT0, ntw), "O")
    for t in range(8):
        fin = pv(t)
        fin()
        if t < 4: loadV(t+4)
        if t == 4: loadW2()
        if t == 5: loadO()
    stamp("pv_done")
    p("v_and_b32 v12, 7, v1"); p("v_lshlrev_b32 v13, 9, v12"); p("v_lshlrev_b32 v12, 4, v12"); p("v_add_u32 v12, v12, v13")
    p("v_lshrrev_b32 v13, 4, v1"); p("v_lshlrev_b32 v13, 7, v13"); p("v_add_u32 v12, v12, v13")
    p("s_lshl_b32 %s, %s, 12" % (sA, sW)); p("s_add_u32 %s, %s, %d" % (sA, sA, L_OP)); p("v_add_u32 v12, %s, v12" % sA)
    p("s_mov_b32 exec_lo, 0x00ff00ff"); p("s_mov_b32 exec_hi, 0x00ff00ff")
    for j in range(8):
        p("v_xor_b32 v%d, %d, v12" % (PERM+j, 16*j))
    for j in range(8):
        p("ds_write_b128 v%d, %s" % (PERM+j, vr(ACC+4*j, 4)))
    p("s_mov_b64 exec, -1")
    p("v_lshrrev_b32 v13, 4, v1"); p("v_lshlrev_b32 v13, 5, v13")
    p("ds_read_b128 v[16:19], v13 offset:%d" % L_HL); p("ds_read_b128 v[20:23], v13 offset:%d" % (L_HL+16))
    p("s_waitcnt lgkmcnt(0)")
    p("s_barrier")
    p("v_lshlrev_b32 v12, 4, v0")
    for i in range(4): p("ds_read_b128 %s, v12 offset:%d" % (vr(PERM+4*i, 4), L_OP + 4096*i))
    p("v_and_b32 v13, 15, v1"); p("v_lshlrev_b32 v13, 2, v13")
    for i in range(4): p("ds_read_b32 v%d, v13 offset:%d" % (PERM+16+i, L_LW + 64*i))
    p("v_lshrrev_b32 v14, 5, v0"); p("v_and_b32 v15, 7, v0"); p("v_xor_b32 v14, v14, v15"); p("v_lshlrev_b32 v14, 4, v14")
    p("v_lshrrev_b32 v15, 3, v0"); p("v_lshlrev_b32 v15, 7, v15"); p("v_add_u32 v14, v14, v15")
    p("s_mul_i32 %s, s2, %d" % (sA, O_PITCH)); p("s_add_u32 %s, %s, %d" % (sA, sA, O_BASE))
    p("s_waitcnt lgkmcnt(0)")
    for r in range(4):
        p("v_add_f32 v%d, v%d, v%d" % (PERM+r, PERM+r, PERM+4+r)); p("v_add_f32 v%d, v%d, v%d" % (PERM+8+r, PERM+8+r, PERM+12+r))
    for r in range(4): p("v_add_f32 v%d, v%d, v%d" % (PERM+r, PERM+r, PERM+8+r))
    for r in range(4): p("v_bfi_b32 v%d, %s, v%d, v%d" % (PERM+r, sFF, vTAG, PERM+r))
    p.vmem("buffer_store_dwordx4 %s, v14, %s, %s offen%s" % (vr(PERM, 4), SWS, sA, HS), "PUBO")
    SKIP4 = p.label("ml")
    p("s_cmp_lg_u32 %s, 0" % sW); p("s_cbranch_scc1 %s" % SKIP4)
    p("v_add_f32 v%d, v%d, v%d" % (PERM+16, PERM+16, PERM+17)); p("v_add_f32 v%d, v%d, v%d" % (PERM+18, PERM+18, PERM+19)); p("v_add_f32 v%d, v%d, v%d" % (PERM+17, PERM+16, PERM+18))
    p("v_bfi_b32 v%d, %s, v%d, v%d" % (PERM+16, sFF, vTAG, vMAX)); p("v_bfi_b32 v%d, %s, v%d, v%d" % (PERM+17, sFF, vTAG, PERM+17))
    p("v_lshlrev_b32 v13, 3, v1")
    p("s_mov_b32 exec_lo, 0xffff"); p("s_mov_b32 exec_hi, 0")
    p("s_add_u32 %s, %s, 4096" % (sD, sA))
    p.vmem("buffer_store_dwordx2 %s, v13, %s, %s offen%s" % (vr(PERM+16, 2), SWS, sD, HS), "PUBML", cond=True)
    p("s_mov_b64 exec, -1")
    p("%s:" % SKIP4)
    stamp("o_pub")
    def diag_mult(src, nt_, breg, D, waitname):
        for t in range(nt_):
            A = PERM + 4*(t % 2) + 8
            for jj in range(4): p("v_and_b32 v%d, v%d, v%d" % (A+jj, src+t, vMASK+jj))
            if t == 0: p.wait(waitname)
            p("v_mfma_f32_16x16x32_bf16 %s, %s, %s, %s" % (vr(D, 4), vr(A, 4), ar(breg+4*t, 4), "0" if t == 0 else vr(D, 4)))
    def pub_cols(D, basec, name):
        p("v_bfe_u32 v12, v1, 2, 2"); p("v_lshlrev_b32 v12, 14, v12")
        p("v_and_b32 v13, 3, v1"); p("v_lshlrev_b32 v13, 5, v13"); p("v_add_u32 v12, v12, v13")
        p("v_bfe_u32 v13, v1, 4, 1"); p("v_lshlrev_b32 v13, 4, v13"); p("v_add_u32 v12, v12, v13")
        p("s_lshl_b32 %s, %s, 18" % (sA, sCH)); p("s_lshl_b32 %s, %s, 16" % (sD, sW)); p("s_add_u32 %s, %s, %s" % (sA, sA, sD))
        p("s_lshl_b32 %s, %s, 7" % (sD, sRB)); p("s_add_u32 %s, %s, %s" % (sA, sA, sD)); p("s_add_u32 %s, %s, %d" % (sA, sA, basec))
        for r in range(4): p("v_bfi_b32 v%d, %s, v%d, v%d" % (D+r, sFF, vTAG, D+r))
        p("s_mov_b32 exec_hi, 0")
        p.vmem("buffer_store_dwordx4 %s, v12, %s, %s offen%s" % (vr(D, 4), SWS, sA, HS), name)
        p("s_mov_b64 exec, -1")
    diag_mult(16, 7, 0, ACC, "W2")
    pub_cols(ACC, BB_BASE, "PUBB2")
    stamp("b_pub")
    p("v_lshrrev_b32 v12, 3, v1"); p("v_mul_u32_u24 v12, %d, v12" % O_PITCH)
    p("v_and_b32 v13, 7, v1"); p("v_lshlrev_b32 v13, 4, v13"); p("v_add_u32 v13, v12, v13")
    p("v_mul_u32_u24 v14, %d, v1" % O_PITCH)
    p("s_lshl_b32 %s, %s, 6" % (sA, sG)); p("s_mul_i32 %s, %s, %d" % (sA, sA, O_PITCH)); p("s_add_u32 %s, %s, %d" % (sA, sA, O_BASE))
    p("s_bfe_u32 %s, s2, 0x30003" % sB)
    p("s_lshl_b32 %s, %s, 3" % (sD, sB)); p("s_add_u32 %s, %s, %s" % (sCc, sA, sD)); p("s_add_u32 %s, %s, 4096" % (sCc, sCc))
    p("s_lshl_b32 %s, %s, 2" % (sB, sB)); p("s_bfe_u32 %s, s2, 0x20001" % sD); p("s_add_u32 %s, %s, %s" % (sB, sB, sD)); p("s_lshl_b32 %s, %s, 7" % (sB, sB))
    p("s_add_u32 %s, %s, %s" % (sB, sB, sA))
    p("s_mul_i32 %s, %s, %d" % (sD, sW, 16*O_PITCH))
    p("s_add_u32 %s, %s, %s" % (sB, sB, sD)); p("s_add_u32 %s, %s, %s" % (sA, sCc, sD))
    def g2_loads(track):
        f = (lambda t: p.vmem(t, "G2")) if track else p
        f("buffer_load_dwordx2 v[104:105], v14, %s, %s offen%s" % (SWS, sCc, HL))
        f("buffer_load_dwordx4 v[96:99], v13, %s, %s offen%s" % (SWS, sB, HL))
        f("buffer_load_dword v106, v12, %s, %s offen%s" % (SWS, sA, HL))
        p("s_add_u32 %s, %s, %d" % (sT0, sB, 8*O_PITCH))
        f("buffer_load_dwordx4 v[100:103], v13, %s, %s offen%s" % (SWS, sT0, HL))
        p("s_add_u32 %s, %s, %d" % (sT0, sA, 8*O_PITCH))
        f("buffer_load_dword v107, v12, %s, %s offen%s" % (SWS, sT0, HL))
    g2_loads(True)
    p.wait("G2")
    p("s_mov_b32 %s, %d" % (sRETRY, RETRIES))
    R2 = p.label("rg2"); OK2 = p.label("okg2")
    p("%s:" % R2)
    tagcheck(list(range(96, 108)), 15)
    p("s_cbranch_vccz %s" % OK2)
    p("s_sub_u32 %s, %s, 1" % (sRETRY, sRETRY)); p("s_cbranch_scc1 %s" % OK2)
    g2_loads(False)
    p("s_waitcnt vmcnt(0)")
    p("s_branch %s" % R2)
    p("%s:" % OK2)
    stamp("g2_ok")
    p("v_and_b32 v104, 0xffffff00, v104"); p("v_and_b32 v106, 0xffffff00, v106"); p("v_and_b32 v107, 0xffffff00, v107")
    p("v_mov_b32 v108, v104")
    allred(p, [108], [109], "v_max_f32", [8, 4, 2, 1, 16, 32])
    p("v_sub_f32 v104, v104, v108"); p("v_sub_f32 v106, v106, v108"); p("v_sub_f32 v107, v107, v108")
    for r in (104, 106, 107): p("v_mul_f32 v%d, %s, v%d" % (r, sLOG2E, r))
    for r in (104, 106, 107): p("v_exp_f32 v%d, v%d" % (r, r))
    p("v_mul_f32 v105, v104, v105")
    for r in range(4): p("v_mul_f32 v%d, v106, v%d" % (96+r, 96+r))
    for r in range(4): p("v_fmac_f32 v%d, v107, v%d" % (96+r, 100+r))
    allred(p, [105, 96, 97, 98, 99], [109, 100, 101, 102, 103], "v_add_f32", [8])
    allred(p, [105], [109], "v_add_f32", [4, 2, 1])
    allred(p, [105, 96, 97, 98, 99], [109, 100, 101, 102, 103], "v_add_f32", [16, 32])
    p("v_and_b32 v13, 7, v1"); p("v_lshlrev_b32 v13, 2, v13"); p("s_lshl_b32 %s, %s, 7" % (sA, sW)); p("v_add_u32 v13, %s, v13" % sA)
    for r in range(4): p("ds_write_b32 v13, v%d offset:%d" % (96+r, L_CP + 32*r))
    p("v_rcp_f32 v105, v105")
    p("s_waitcnt lgkmcnt(0)")
    p("s_barrier")
    p("v_lshrrev_b32 v13, 4, v1"); p("v_lshlrev_b32 v13, 5, v13")
    for w_ in range(4):
        p("ds_read_b128 %s, v13 offset:%d" % (vr(32+8*w_, 4), L_CP + 128*w_)); p("ds_read_b128 %s, v13 offset:%d" % (vr(36+8*w_, 4), L_CP + 128*w_ + 16))
    p("s_waitcnt lgkmcnt(0)")
    for r in range(8):
        p("v_add_f32 v%d, v%d, v%d" % (32+r, 32+r, 40+r)); p("v_add_f32 v%d, v%d, v%d" % (48+r, 48+r, 56+r))
    for r in range(8): p("v_add_f32 v%d, v%d, v%d" % (32+r, 32+r, 48+r))
    for r in range(8): p("v_mul_f32 v%d, v%d, v105" % (32+r, 32+r))
    for r in range(8): p("v_cvt_pk_bf16_f32 v%d, v%d, v%d" % (16+r, 32+r, 32+r))
    diag_mult(16, 8, 32, ACC, "O")
    pub_cols(ACC, S_BASE, "PUBS")
    stamp("s_pub")
    FIN = p.label("fin")
    p("s_cmp_ge_u32 s2, 32"); p("s_cbranch_scc1 %s" % FIN)
    p("s_lshl_b32 %s, s2, 14" % sA); p("s_lshl_b32 %s, %s, 12" % (sD, sW)); p("s_add_u32 %s, %s, %s" % (sA, sA, sD))
    p("s_add_u32 %s, %s, %d" % (sB, sA, S_BASE)); p("s_add_u32 %s, %s, %d" % (sA, sA, BB_BASE))
    p("v_and_b32 v14, 7, v1"); p("v_lshlrev_b32 v14, 3, v14"); p("s_lshl_b32 %s, s2, 6" % sCc)
    def fin_loads(sb, track, nm):
        f = (lambda t: p.vmem(t, nm)) if track else p
        for u in range(4):
            f("buffer_load_dwordx4 %s, v%d, %s, %s offen offset:%d%s" % (vr(96+4*u, 4), vL16, SWS, sb, 1024*u, HL))
    def fin_gather(sb, nm, dst):
        fin_loads(sb, True, nm)
        p.wait(nm)
        p("s_mov_b32 %s, %d" % (sRETRY, RETRIES))
        R = p.label("rf"); OK = p.label("okf")
        p("%s:" % R)
        tagcheck(list(range(96, 112)), 15)
        p("s_cbranch_vccz %s" % OK)
        p("s_sub_u32 %s, %s, 1" % (sRETRY, sRETRY)); p("s_cbranch_scc1 %s" % OK)
        fin_loads(sb, False, nm)
        p("s_waitcnt vmcnt(0)")
        p("s_branch %s" % R)
        p("%s:" % OK)
        for r in range(4):
            p("v_add_f32 v%d, v%d, v%d" % (96+r, 96+r, 100+r)); p("v_add_f32 v%d, v%d, v%d" % (104+r, 104+r, 108+r))
        for r in range(4): p("v_add_f32 v%d, v%d, v%d" % (96+r, 96+r, 104+r))
        allred(p, [96, 97, 98, 99], [100, 101, 102, 103], "v_add_f32", [8, 16, 32])
        p("v_and_b32 v13, 7, v1"); p("v_lshlrev_b32 v13, 4, v13"); p("s_lshl_b32 %s, %s, 7" % (sD, sW)); p("v_add_u32 v12, %s, v13" % sD)
        p("ds_write_b128 v12, v[96:99] offset:%d" % dst)
        p("s_waitcnt lgkmcnt(0)")
        p("s_barrier")
        for w_ in range(4): p("ds_read_b128 %s, v13 offset:%d" % (vr(96+4*w_, 4), dst + 128*w_))
        p("s_waitcnt lgkmcnt(0)")
        for r in range(4):
            p("v_add_f32 v%d, v%d, v%d" % (96+r, 96+r, 100+r)); p("v_add_f32 v%d, v%d, v%d" % (104+r, 104+r, 108+r))
        for r in range(4): p("v_add_f32 v%d, v%d, v%d" % (96+r, 96+r, 104+r))
        p("v_cvt_pk_bf16_f32 v96, v96, v97"); p("v_cvt_pk_bf16_f32 v97, v98, v99")
    p.vmem("buffer_load_dwordx2 v[18:19], v14, %s, %s offen" % (SX, sCc), "XF")
    fin_gather(sA, "FB", L_FP)
    for i in range(2):
        p("v_lshlrev_b32 v%d, 16, v%d" % (32+2*i, 96+i)); p("v_and_b32 v%d, 0xffff0000, v%d" % (33+2*i, 96+i))
    silu(32, 32, 40, 4)
    p("v_cvt_pk_bf16_f32 v36, v32, v33"); p("v_cvt_pk_bf16_f32 v37, v34, v35")
    for i in range(2):
        p("v_lshlrev_b32 v%d, 16, v%d" % (32+2*i, 36+i)); p("v_and_b32 v%d, 0xffff0000, v%d" % (33+2*i, 36+i))
        p("v_lshlrev_b32 v%d, 16, v%d" % (44+2*i, 18+i)); p("v_and_b32 v%d, 0xffff0000, v%d" % (45+2*i, 18+i))
    stamp("g_done")
    fin_gather(sB, "FS", L_FP + 512)
    for i in range(2):
        p("v_lshlrev_b32 v%d, 16, v%d" % (36+2*i, 96+i)); p("v_and_b32 v%d, 0xffff0000, v%d" % (37+2*i, 96+i))
    for r in range(4): p("v_mul_f32 v%d, v%d, v%d" % (36+r, 36+r, 32+r))
    p("v_cvt_pk_bf16_f32 v40, v36, v37"); p("v_cvt_pk_bf16_f32 v41, v38, v39")
    for i in range(2):
        p("v_lshlrev_b32 v%d, 16, v%d" % (36+2*i, 40+i)); p("v_and_b32 v%d, 0xffff0000, v%d" % (37+2*i, 40+i))
    for r in range(4): p("v_add_f32 v%d, v%d, v%d" % (36+r, 36+r, 44+r))
    p("v_cvt_pk_bf16_f32 v40, v36, v37"); p("v_cvt_pk_bf16_f32 v41, v38, v39")
    SKE = p.label("epoch")
    p("s_add_u32 %s, s2, %s" % (sD, sW)); p("s_cmp_lg_u32 %s, 0" % sD); p("s_cbranch_scc1 %s" % SKE)
    p("v_mov_b32 v12, %d" % EPOCH); p("v_mov_b32 v13, %s" % sE)
    p("s_mov_b32 exec_lo, 1"); p("s_mov_b32 exec_hi, 0")
    p.vmem("buffer_store_dword v13, v12, %s, 0 offen%s" % (SWS, HS), "EPO", cond=True)
    p("s_mov_b64 exec, -1")
    p("%s:" % SKE)
    SK5 = p.label("out")
    p("s_cmp_lg_u32 %s, 0" % sW); p("s_cbranch_scc1 %s" % SK5)
    p("s_mov_b32 exec_lo, 0xff"); p("s_mov_b32 exec_hi, 0")
    p.vmem("buffer_store_dwordx2 v[40:41], v14, %s, %s offen" % (SOUT, sCc), "OUT", cond=True)
    p("s_mov_b64 exec, -1")
    p("%s:" % SK5)
    p("%s:" % FIN)
    if stamps:
        stamp("end")
        p("s_getreg_b32 %s, hwreg(HW_REG_XCC_ID)" % sA)
        p("s_waitcnt lgkmcnt(0)")
        for k in range(16):
            p("v_mov_b32 v%d, %s" % (32+k, ("s%d" % (70+2*k)) if k < nst[0] else "0"))
        p("v_mov_b32 v48, %s" % sA)
        p("s_lshl_b32 %s, s2, 2" % sB); p("s_add_u32 %s, %s, %s" % (sB, sB, sW)); p("s_lshl_b32 %s, %s, 7" % (sB, sB)); p("s_add_u32 %s, %s, %d" % (sB, sB, STAMP))
        p("v_mov_b32 v12, 0")
        p("s_mov_b32 exec_lo, 1"); p("s_mov_b32 exec_hi, 0")
        for i in range(4): p("buffer_store_dwordx4 %s, v12, %s, %s offen offset:%d" % (vr(32+4*i, 4), SWS, sB, 16*i))
        p("buffer_store_dword v48, v12, %s, %s offen offset:64" % (SWS, sB))
        p("s_mov_b64 exec, -1")
    p("%s:" % END)
    p("s_endpgm")
    return p, names

HEADER = """; Fused decode step: layernorm -> {GQA attention over a 64K cache -> wo} * silu(SwiGLU FFN) + x.
; @launch grid=(256,1,1) block=(256,1,1) lds=%d
"""
def wrap(body, name=NAME, lds=LDS_BYTES, header=True):
    s = (HEADER % lds) if header else ""
    if header: s += '.amdgcn_target "amdgcn-amd-amdhsa--gfx950"\n'
    s += ".text\n.globl %s\n.p2align 8\n.type %s,@function\n%s:\n" % (name, name, name)
    s += body
    s += '.section .rodata,"a"\n.p2align 6\n.amdhsa_kernel %s\n' % name
    s += "  .amdhsa_next_free_vgpr 512\n  .amdhsa_next_free_sgpr 102\n  .amdhsa_accum_offset 256\n"
    s += "  .amdhsa_group_segment_fixed_size 0\n  .amdhsa_kernarg_size 96\n  .amdhsa_user_sgpr_count 2\n"
    s += "  .amdhsa_user_sgpr_kernarg_segment_ptr 1\n  .amdhsa_system_sgpr_workgroup_id_x 1\n"
    s += "  .amdhsa_float_denorm_mode_32 3\n"
    s += ".end_amdhsa_kernel\n"
    return s

if __name__ == "__main__":
    cfg = json.loads(sys.argv[2]) if len(sys.argv) > 2 else {}
    p, names = build(cfg)
    open(sys.argv[1], "w").write(wrap(p.text()))
    print("wrote", sys.argv[1], "stamps:", names)
```

```python
import sys, json
from sched import Prog

NAME = "recurrent_scan__gqa_block_cached__glu_gated_swiglu__decode_kernel"

EPOCH   = 0
Q_BASE  = 0x1000
FLAG_BASE = 0x14000
BP_BASE = 0x20000
O_BASE  = 0x80000
O_PITCH = 4224
S_BASE  = 0x200000
BB_BASE = 0x280000
STAMP   = 0x400000
L_XN = 0
L_QP = 4096
L_BP = 6144
L_QL = 10240
L_HL = 12544
L_MX = 12800
L_LW = 13056
L_CP = 13312
L_FP = 13824
L_CM = 14848
L_OP = 16384
LDS_BYTES = 32768

SX, SK, SV, SWQ, SWO, SW1, SW3, SW2, SOUT, SDBG, SWS = [ "s[%d:%d]" % (4*i+4, 4*i+7) for i in range(11)]
sW, sG, sC, sT0, sKV = "s48", "s49", "s50", "s51", "s52"
sSELLO, sSELHI, sE, sTAG, sFF, sLOG2E, sSCALE, sHI = "s53", "s54", "s55", "s56", "s57", "s58", "s59", "s60"
sRETRY = "s61"
sA, sB, sCc, sD = "s62", "s63", "s64", "s65"
sRB, sCH = "s66", "s67"
sKC = "s68"
vTID, vLANE, vOFFK, vL16 = 0, 1, 2, 3
vMASK = 4
vTAG, vMAX, vL0, vL1 = 8, 9, 10, 11
vT = 12
QF, SP, PERM, ACC, RING = 16, 32, 64, 96, 128

def vr(b, n=1): return "v%d" % b if n == 1 else "v[%d:%d]" % (b, b+n-1)
def ar(b, n=1): return "a%d" % b if n == 1 else "a[%d:%d]" % (b, b+n-1)

DPP = " row_mask:0xf bank_mask:0xf"
def allred(p, regs, tmps, op, steps):
    for s in steps:
        if s in (1, 2, 4, 8):
            for r in regs: p("%s_dpp v%d, v%d, v%d row_ror:%d%s" % (op, r, r, r, s, DPP))
        else:
            for r, t in zip(regs, tmps): p("v_mov_b32 v%d, v%d" % (t, r))
            for r, t in zip(regs, tmps): p("v_permlane%d_swap_b32 v%d, v%d" % (s, r, t))
            for r, t in zip(regs, tmps): p("%s v%d, v%d, v%d" % (op, r, r, t))

def red4(p, a):
    p("v_permlane32_swap_b32 v%d, v%d" % (a[0], a[1])); p("v_permlane32_swap_b32 v%d, v%d" % (a[2], a[3]))
    p("v_add_f32 v%d, v%d, v%d" % (a[0], a[0], a[1])); p("v_add_f32 v%d, v%d, v%d" % (a[2], a[2], a[3]))
    p("v_permlane16_swap_b32 v%d, v%d" % (a[0], a[2]))
    p("v_add_f32 v%d, v%d, v%d" % (a[0], a[0], a[2]))
    p("v_add_f32_dpp v%d, v%d, v%d row_ror:8%s" % (a[0], a[0], a[0], DPP))

def build(cfg):
    pat = cfg.get("pat", "lin")
    nt = " nt" if cfg.get("nt", True) else ""
    ntw = " nt" if cfg.get("ntw", True) else ""
    stamps = cfg.get("stamps", False)
    poll_after = cfg.get("poll_after", 6)
    HS = cfg.get("hs", " sc1")
    HL = cfg.get("hl", " sc1")
    RETRIES = cfg.get("retries", 40000)
    stride = {"lin": 1024, "str8": 8192, "w4": 4096, "glob": 262144}[pat]
    p = Prog()
    nst = [0]
    names = []
    def stamp(name):
        if not stamps or name in cfg.get("nostamp", []): return
        k = nst[0]; nst[0] += 1; names.append(name)
        assert k < 12
        p("s_memrealtime s[%d:%d]" % (78+2*k, 79+2*k))

    depth = cfg.get("depth", 0); dstep = cfg.get("dstep", 2); depth0 = cfg.get("depth0", depth)
    cnt = [0]
    def svmem(text, name, early=False):
        d = depth0 if early else depth
        if d and cnt[0] % dstep == 0: p("s_waitcnt vmcnt(%d)" % (d - dstep))
        cnt[0] += 1
        p.vmem(text, name)
    END = p.label("end")
    p("s_cmp_ge_u32 s2, 256")
    p("s_cbranch_scc1 %s" % END)
    stamp("start")
    if cfg.get("pf", 0):
        NPF = p.label("nopf")
        p("s_cmp_ge_u32 s2, %d" % cfg["pf"]); p("s_cbranch_scc1 %s" % NPF)
        p("v_cmp_gt_u32 vcc, 64, v0"); p("s_cbranch_vccz %s" % NPF)
        PFB = p.label("pfbase")
        p("s_getpc_b64 s[48:49]")
        p("%s:" % PFB)
        p("v_lshlrev_b32 v12, 7, v0")
        for i in range(cfg.get("pfn", 3)):
            p("v_min_u32 v13, %s-%s-4, v12" % (END, PFB))
            p.vmem("global_load_dword v%d, v13, s[48:49]" % (236+i), "PF", cond=True)
            p("v_add_u32 v12, 0x2000, v12")
        p("%s:" % NPF)
    for i, off in enumerate([0, 8, 16, 24, 32, 48, 56, 64, 72, 80, 88]):
        p("s_load_dwordx2 s[%d:%d], s[0:1], %d" % (4*i+4, 4*i+5, off))
    sizes = [2048, 1<<26, 1<<26, 1<<23, 1<<23, 1024*3584*2, 1024*3584*2, 1024*3584*2, 2048, 256, 1<<28]
    for i, sz in enumerate(sizes):
        p("s_mov_b32 s%d, 0x%x" % (4*i+6, sz)); p("s_mov_b32 s%d, 0x20000" % (4*i+7))
    p("s_cmp_lt_u32 s2, 224")
    p("s_cselect_b32 s26, s26, 0")
    p("s_cselect_b32 s30, s30, 0")
    p("v_lshrrev_b32 v12, 6, v0")
    p("v_and_b32 v1, 63, v0")
    p("v_readfirstlane_b32 %s, v12" % sW)
    p("s_lshr_b32 %s, s2, 6" % sG)
    p("s_and_b32 %s, s2, 63" % sC)
    p("s_mov_b32 %s, 0x05040100" % sSELLO); p("s_mov_b32 %s, 0x07060302" % sSELHI)
    p("s_mov_b32 %s, 0xff" % sFF); p("s_mov_b32 %s, 0x3fb8aa3b" % sLOG2E)
    p("s_mov_b32 %s, 0x3db504f3" % sSCALE); p("s_mov_b32 %s, 0xffff0000" % sHI)
    p("s_lshr_b32 %s, s2, 1" % sRB); p("s_and_b32 %s, s2, 1" % sCH)
    p("v_lshlrev_b32 v3, 4, v1")
    p("v_lshlrev_b32 v13, 5, v1")
    p("s_lshl_b32 %s, %s, 9" % (sA, sW))
    p("v_lshlrev_b32 v14, 3, v1")
    p("v_lshrrev_b32 v15, 3, v1"); p("v_lshlrev_b32 v15, 13, v15")
    p("v_and_b32 v16, 7, v1"); p("v_lshlrev_b32 v16, 4, v16"); p("v_add_u32 v15, v15, v16")
    p("v_lshrrev_b32 v17, 4, v1"); p("v_mul_u32_u24 v17, 7168, v17")
    p("v_and_b32 v18, 15, v1"); p("v_lshlrev_b32 v18, 4, v18"); p("v_add_u32 v17, v17, v18")
    p("s_and_b32 %s, %s, 3" % (sB, sC)); p("s_lshl_b32 %s, %s, 21" % (sB, sB))
    p("s_lshl_b32 %s, %s, 19" % (sCc, sW)); p("s_add_u32 %s, %s, %s" % (sB, sB, sCc))
    p("s_lshl_b32 %s, %s, 11" % (sCc, sG)); p("s_add_u32 %s, %s, %s" % (sB, sB, sCc))
    p("s_lshr_b32 %s, %s, 2" % (sCc, sC)); p("s_lshl_b32 %s, %s, 7" % (sCc, sCc)); p("s_add_u32 %s, %s, %s" % (sB, sB, sCc))
    p("s_and_b32 %s, s2, 7" % sCc); p("s_lshl_b32 %s, %s, 7" % (sCc, sCc))
    p("s_lshl_b32 %s, %s, 5" % (sD, sW)); p("s_add_u32 %s, %s, %s" % (sCc, sCc, sD)); p("s_mul_i32 %s, %s, 7168" % (sCc, sCc))
    p("s_lshr_b32 %s, s2, 3" % sD); p("s_lshl_b32 %s, %s, 8" % (sD, sD)); p("s_add_u32 %s, %s, %s" % (sCc, sCc, sD))
    p("s_waitcnt lgkmcnt(0)")
    stamp("karg")
    p("s_load_dword %s, s[44:45], %d" % (sE, EPOCH))
    ntx = " nt" if cfg.get("ntx", False) else ""
    p.vmem("buffer_load_dwordx4 v[224:227], v13, %s, 0 offen%s" % (SX, ntx), "XA0")
    p.vmem("buffer_load_dwordx4 v[228:231], v13, %s, 0 offen offset:16%s" % (SX, ntx), "XA1")
    p.vmem("buffer_load_dwordx2 v[232:233], v14, %s, %s offen%s" % (SX, sA, ntx), "XB")
    if cfg.get("pbar", 1) >= 1: p("s_barrier")
    for t in range(8):
        p("s_add_u32 %s, %s, %d" % (sT0, sB, t*8*8192))
        svmem("buffer_load_dwordx4 %s, v15, %s, %s offen%s" % (vr(128+4*t, 4), SWQ, sT0, ntw), "Q%d" % t, True)
    if cfg.get("pbar", 1) >= 2: p("s_barrier")
    for t in range(8):
        p("s_add_u32 %s, %s, %d" % (sT0, sCc, t*4*7168))
        svmem("buffer_load_dwordx4 %s, v17, %s, %s offen%s" % (vr(160+4*t, 4), SW1, sT0, ntw), "W1_%d" % t, True)
    stamp("w1_issued")
    if pat == "lin":
        p("s_lshl_b32 %s, s2, 18" % sKV); p("s_lshl_b32 %s, %s, 16" % (sD, sW)); p("s_add_u32 %s, %s, %s" % (sKV, sKV, sD))
    elif pat == "str8":
        p("s_lshl_b32 %s, %s, 24" % (sKV, sG))
        p("s_lshr_b32 %s, %s, 3" % (sD, sC)); p("s_lshl_b32 %s, %s, 21" % (sD, sD)); p("s_add_u32 %s, %s, %s" % (sKV, sKV, sD))
        p("s_lshl_b32 %s, %s, 19" % (sD, sW)); p("s_add_u32 %s, %s, %s" % (sKV, sKV, sD))
        p("s_and_b32 %s, %s, 7" % (sD, sC)); p("s_lshl_b32 %s, %s, 10" % (sD, sD)); p("s_add_u32 %s, %s, %s" % (sKV, sKV, sD))
    elif pat == "w4":
        p("s_lshl_b32 %s, s2, 18" % sKV); p("s_lshl_b32 %s, %s, 10" % (sD, sW)); p("s_add_u32 %s, %s, %s" % (sKV, sKV, sD))
    elif pat == "glob":
        p("s_lshl_b32 %s, %s, 24" % (sKV, sG))
        p("s_lshl_b32 %s, %s, 12" % (sD, sC)); p("s_add_u32 %s, %s, %s" % (sKV, sKV, sD))
        p("s_lshl_b32 %s, %s, 10" % (sD, sW)); p("s_add_u32 %s, %s, %s" % (sKV, sKV, sD))
    p("v_and_b32 v12, 3, v1"); p("v_lshlrev_b32 v12, %d, v12" % (stride.bit_length()-1))
    p("v_bfe_u32 v2, v1, 2, 1"); p("v_lshlrev_b32 v2, 8, v2"); p("v_add_u32 v2, v2, v12")
    p("v_bfe_u32 v12, v1, 3, 1"); p("v_lshlrev_b32 v12, 6, v12"); p("v_add_u32 v2, v2, v12")
    p("v_lshrrev_b32 v12, 4, v1"); p("v_lshlrev_b32 v12, 4, v12"); p("v_add_u32 v2, v2, v12")
    p("v_and_b32 v12, 1, v1"); p("v_lshlrev_b32 v12, 4, v12"); p("v_mov_b32 v13, 0xffff"); p("v_lshlrev_b32 v13, v12, v13")
    p("v_bfe_u32 v12, v1, 1, 2")
    for jj in range(4):
        p("v_cmp_eq_u32 vcc, %d, v12" % jj); p("v_cndmask_b32 v%d, 0, v13, vcc" % (vMASK+jj))
    def K_loads(t):
        L = []
        for h in range(2):
            for a_ in range(2):
                for lam in range(2):
                    def f(h=h, a_=a_, lam=lam):
                        if a_ == 0 and lam == 0: p("s_add_u32 %s, %s, %d" % (sKC, sKV, (8*t+4*h)*stride))
                        svmem("buffer_load_dwordx4 %s, v%d, %s, %s offen offset:%d%s" % (ar(32*t+16*h+8*a_+4*lam, 4), vOFFK, SK, sKC, 512*a_+128*lam, nt), "K%d" % t)
                    L.append(f)
        return L
    def V_loads(t):
        base = RING + 32*(t % 4)
        L = []
        for i in range(8):
            def f(i=i):
                p("s_add_u32 %s, %s, %d" % (sT0, sKV, (8*t+i)*stride))
                svmem("buffer_load_dwordx4 %s, v%d, %s, %s offen%s" % (vr(base+4*i, 4), vL16, SV, sT0, nt), "V%d" % t)
            L.append(f)
        return L
    def loadK(t):
        for f in K_loads(t): f()
    def loadV(t):
        for f in V_loads(t): f()
    def tagcheck(regs, acc):
        p("v_xor_b32 v%d, %s, v%d" % (acc, sTAG, regs[0]))
        for r in regs[1:]: p("v_bitop3_b32 v%d, v%d, %s, v%d bitop3:0xbe" % (acc, r, sTAG, acc))
        p("v_and_b32 v%d, 0xff, v%d" % (acc, acc))
        p("v_cmp_ne_u32 vcc, 0, v%d" % acc)
        if cfg.get("nodep"): p("s_mov_b64 vcc, 0")
    p.wait("XA1")
    stamp("x_landed")
    for i in range(8):
        p("v_lshlrev_b32 v%d, 16, v%d" % (32+2*i, 224+i)); p("v_and_b32 v%d, 0xffff0000, v%d" % (33+2*i, 224+i))
    for i in range(8): p("v_add_f32 v%d, v%d, v%d" % (48+i, 32+2*i, 33+2*i))
    p("v_add_f32 v48, v48, v49"); p("v_add_f32 v50, v50, v51"); p("v_add_f32 v52, v52, v53"); p("v_add_f32 v54, v54, v55")
    p("v_add_f32 v48, v48, v50"); p("v_add_f32 v52, v52, v54"); p("v_add_f32 v48, v48, v52")
    allred(p, [48], [49], "v_add_f32", [8, 4, 2, 1, 16, 32])
    p("v_mul_f32 v49, 0x3a800000, v48")
    for i in range(16): p("v_sub_f32 v%d, v%d, v49" % (32+i, 32+i))
    for i in range(4): p("v_mul_f32 v%d, v%d, v%d" % (50+i, 32+i, 32+i))
    for i in range(4, 16): p("v_fmac_f32 v%d, v%d, v%d" % (50+(i % 4), 32+i, 32+i))
    p("v_add_f32 v50, v50, v51"); p("v_add_f32 v52, v52, v53"); p("v_add_f32 v50, v50, v52")
    allred(p, [50], [51], "v_add_f32", [8, 4, 2, 1, 16, 32])
    p("v_mul_f32 v50, 0x3a800000, v50")
    p("v_cvt_pk_bf16_f32 v51, v49, v50")
    p("v_lshlrev_b32 v52, 16, v51")
    p("v_and_b32 v53, 0xffff0000, v51")
    p("v_add_f32 v53, 0x3727c5ac, v53")
    p("v_cvt_pk_bf16_f32 v53, v53, v53"); p("v_lshlrev_b32 v53, 16, v53")
    p("v_sqrt_f32 v53, v53")
    p("v_cvt_pk_bf16_f32 v53, v53, v53"); p("v_lshlrev_b32 v53, 16, v53")
    p("v_rcp_f32 v54, v53")
    p.wait("XB")
    p("v_lshlrev_b32 v32, 16, v232"); p("v_and_b32 v33, 0xffff0000, v232")
    p("v_lshlrev_b32 v34, 16, v233"); p("v_and_b32 v35, 0xffff0000, v233")
    for i in range(4): p("v_sub_f32 v%d, v%d, v52" % (32+i, 32+i))
    p("v_cvt_pk_bf16_f32 v36, v32, v33"); p("v_cvt_pk_bf16_f32 v37, v34, v35")
    p("v_lshlrev_b32 v32, 16, v36"); p("v_and_b32 v33, 0xffff0000, v36")
    p("v_lshlrev_b32 v34, 16, v37"); p("v_and_b32 v35, 0xffff0000, v37")
    for i in range(4): p("v_mul_f32 v%d, v%d, v54" % (40+i, 32+i))
    for i in range(4): p("v_fma_f32 v%d, -v%d, v53, v%d" % (44+i, 40+i, 32+i))
    for i in range(4): p("v_fma_f32 v%d, v%d, v54, v%d" % (40+i, 44+i, 40+i))
    for i in range(4): p("v_cvt_pk_bf16_f32 v%d, v%d, v%d" % (36+i, 40+i, 40+i))
    p("v_lshlrev_b32 v12, 4, v0")
    p("ds_write_b128 v12, v[36:39] offset:%d" % L_XN)
    p("s_waitcnt lgkmcnt(0)")
    p("s_barrier")
    stamp("ln_done")
    p("s_add_u32 %s, %s, 1" % (sE, sE)); p("s_and_b32 %s, %s, 0xff" % (sTAG, sE)); p("v_mov_b32 v%d, %s" % (vTAG, sTAG))
    p("s_and_b32 %s, %s, 3" % (sA, sC)); p("s_lshl_b32 %s, %s, 8" % (sA, sA)); p("s_lshl_b32 %s, %s, 6" % (sD, sW)); p("s_add_u32 %s, %s, %s" % (sA, sA, sD))
    p("v_lshrrev_b32 v12, 3, v1"); p("v_add_u32 v12, %s, v12" % sA); p("v_lshlrev_b32 v12, 2, v12")
    p("s_and_b32 %s, s2, 7" % sA); p("s_lshl_b32 %s, %s, 7" % (sA, sA)); p("s_lshl_b32 %s, %s, 5" % (sD, sW)); p("s_add_u32 %s, %s, %s" % (sA, sA, sD))
    p("v_lshrrev_b32 v13, 4, v1"); p("v_add_u32 v13, %s, v13" % sA); p("v_lshlrev_b32 v13, 2, v13")
    for t in range(0, 8, 2):
        p("ds_read2_b32 v[%d:%d], v12 offset0:%d offset1:%d" % (96+t, 97+t, 8*t, 8*t+8))
    for t in range(0, 8, 2):
        p("ds_read2_b32 v[%d:%d], v13 offset0:%d offset1:%d" % (104+t, 105+t, 4*t, 4*t+4))
    for t in range(8):
        p("s_add_u32 %s, %s, %d" % (sT0, sCc, t*4*7168))
        svmem("buffer_load_dwordx4 %s, v17, %s, %s offen%s" % (vr(192+4*t, 4), SW3, sT0, ntw), "W3_%d" % t, True)
    p("s_waitcnt lgkmcnt(0)")
    for t in range(8):
        A = 48 + 4*(t % 2)
        for jj in range(4): p("v_and_b32 v%d, v%d, v%d" % (A+jj, 96+t, vMASK+jj))
        if t == 0: p.wait("Q7")
        p("v_mfma_f32_16x16x32_bf16 v[56:59], %s, %s, %s" % (vr(A, 4), vr(128+4*t, 4), "0" if t == 0 else "v[56:59]"))
    for t in range(8):
        for jj in range(4): p("v_and_b32 v%d, v%d, v%d" % (PERM+4*t+jj, 104+t, vMASK+jj))
    p("v_and_b32 v12, 7, v1"); p("v_lshlrev_b32 v12, 5, v12")
    p("v_bfe_u32 v13, v1, 4, 1"); p("v_lshlrev_b32 v13, 4, v13"); p("v_add_u32 v12, v12, v13")
    p("v_lshrrev_b32 v13, 5, v1"); p("v_lshlrev_b32 v13, 8, v13"); p("v_add_u32 v12, v12, v13")
    p("s_lshl_b32 %s, %s, 9" % (sA, sW)); p("v_add_u32 v12, %s, v12" % sA)
    p("s_mov_b32 exec_lo, 0x00ff00ff"); p("s_mov_b32 exec_hi, 0xff00ff00")
    p("ds_write_b128 v12, v[56:59] offset:%d" % L_QP)
    p("s_mov_b64 exec, -1")
    p("s_waitcnt lgkmcnt(0)")
    p("s_barrier")
    stamp("q_gemv")
    SKIP0 = p.label("pubq")
    p("s_cmp_lg_u32 %s, 0" % sW); p("s_cbranch_scc1 %s" % SKIP0)
    p("v_lshlrev_b32 v12, 4, v1")
    for i in range(8): p("ds_read_b128 %s, v12 offset:%d" % (vr(32+4*i, 4) if i < 4 else vr(112+4*(i-4), 4), L_QP + 256*i))
    p("s_lshl_b32 %s, %s, 2" % (sB, sG)); p("s_and_b32 %s, %s, 3" % (sD, sC)); p("s_add_u32 %s, %s, %s" % (sB, sB, sD)); p("s_lshl_b32 %s, %s, 12" % (sB, sB))
    p("s_lshr_b32 %s, %s, 2" % (sD, sC)); p("s_lshl_b32 %s, %s, 8" % (sD, sD)); p("s_add_u32 %s, %s, %s" % (sB, sB, sD))
    p("s_add_u32 %s, %s, %d" % (sB, sB, Q_BASE))
    p("s_waitcnt lgkmcnt(0)")
    for r in range(4):
        p("v_add_f32 v%d, v%d, v%d" % (32+r, 32+r, 36+r)); p("v_add_f32 v%d, v%d, v%d" % (40+r, 40+r, 44+r))
        p("v_add_f32 v%d, v%d, v%d" % (112+r, 112+r, 116+r)); p("v_add_f32 v%d, v%d, v%d" % (120+r, 120+r, 124+r))
    for r in range(4):
        p("v_add_f32 v%d, v%d, v%d" % (32+r, 32+r, 40+r)); p("v_add_f32 v%d, v%d, v%d" % (112+r, 112+r, 120+r))
    for r in range(4): p("v_add_f32 v%d, v%d, v%d" % (32+r, 32+r, 112+r))
    p("s_mov_b32 exec_lo, 0xffff"); p("s_mov_b32 exec_hi, 0")
    p.vmem("buffer_store_dwordx4 v[32:35], v12, %s, %s offen%s" % (SWS, sB, HS), "PUBQ", cond=True)
    p("s_mov_b64 exec, -1")
    p("%s:" % SKIP0)
    loadK(0)
    p.wait("W1_7")
    stamp("w1_landed")
    for t in range(8):
        p("v_mfma_f32_16x16x32_bf16 v[60:63], %s, %s, %s" % (vr(PERM+4*t, 4), vr(160+4*t, 4), "0" if t == 0 else "v[60:63]"))
    loadK(1)
    p.wait("W3_7")
    stamp("w3_landed")
    for t in range(8):
        p("v_mfma_f32_16x16x32_bf16 v[96:99], %s, %s, %s" % (vr(PERM+4*t, 4), vr(192+4*t, 4), "0" if t == 0 else "v[96:99]"))
    SKIP2 = p.label("flag")
    p("s_cmp_lg_u32 %s, 0" % sW); p("s_cbranch_scc1 %s" % SKIP2)
    p("v_lshlrev_b32 v12, 2, v1"); p("v_mov_b32 v13, %s" % sE)
    p("s_lshl_b32 %s, s2, 7" % sA); p("s_add_u32 %s, %s, %d" % (sA, sA, FLAG_BASE))
    p.wait("PUBQ")
    p("s_mov_b32 exec_hi, 0")
    p.vmem("buffer_store_dword v13, v12, %s, %s offen%s" % (SWS, sA, HS), "FLAG", cond=True)
    p("s_mov_b64 exec, -1")
    p("%s:" % SKIP2)
    stamp("flag")
    p("v_and_b32 v12, 15, v1"); p("v_lshlrev_b32 v12, 5, v12")
    p("v_bfe_u32 v13, v1, 4, 1"); p("v_lshlrev_b32 v13, 4, v13"); p("v_add_u32 v12, v12, v13")
    p("s_lshl_b32 %s, %s, 10" % (sA, sW)); p("v_add_u32 v12, %s, v12" % sA)
    p("s_mov_b32 exec_hi, 0")
    p("ds_write_b128 v12, v[60:63] offset:%d" % L_BP)
    p("ds_write_b128 v12, v[96:99] offset:%d" % (L_BP+512))
    p("s_mov_b64 exec, -1")
    loadK(2)
    p("s_waitcnt lgkmcnt(0)")
    p("s_barrier")
    stamp("b_gemv")
    SKIP1 = p.label("pub1")
    p("s_cmp_lg_u32 %s, 1" % sW); p("s_cbranch_scc1 %s" % SKIP1)
    p("s_cmp_ge_u32 s2, 224"); p("s_cbranch_scc1 %s" % SKIP1)
    p("v_lshlrev_b32 v12, 4, v1")
    for i in range(4): p("ds_read_b128 %s, v12 offset:%d" % (vr(32+4*i, 4), L_BP + 1024*i))
    p("s_and_b32 %s, s2, 7" % sA); p("s_mul_i32 %s, %s, %d" % (sA, sA, 3584*4))
    p("s_lshr_b32 %s, s2, 3" % sD); p("s_lshl_b32 %s, %s, 9" % (sD, sD)); p("s_add_u32 %s, %s, %s" % (sA, sA, sD))
    p("s_add_u32 %s, %s, %d" % (sA, sA, BP_BASE))
    p("v_lshrrev_b32 v13, 5, v1"); p("v_mul_u32_u24 v13, %d, v13" % (8*3584*4))
    p("v_and_b32 v14, 31, v1"); p("v_lshlrev_b32 v14, 4, v14"); p("v_add_u32 v13, v13, v14")
    p("s_waitcnt lgkmcnt(0)")
    for r in range(4):
        p("v_add_f32 v%d, v%d, v%d" % (32+r, 32+r, 36+r)); p("v_add_f32 v%d, v%d, v%d" % (40+r, 40+r, 44+r))
    for r in range(4): p("v_add_f32 v%d, v%d, v%d" % (32+r, 32+r, 40+r))
    for r in range(4): p("v_bfi_b32 v%d, %s, v%d, v%d" % (32+r, sFF, vTAG, 32+r))
    p.vmem("buffer_store_dwordx4 v[32:35], v13, %s, %s offen%s" % (SWS, sA, HS), "PUBB", cond=True)
    p("%s:" % SKIP1)
    for t in range(3, poll_after): loadK(t)
    SKIPP = p.label("nopoll")
    p("v_lshlrev_b32 v14, 7, v1")
    p("s_lshl_b32 %s, %s, 13" % (sB, sG)); p("s_add_u32 %s, %s, %d" % (sB, sB, FLAG_BASE))
    p("s_cmp_lg_u32 %s, 0" % sW); p("s_cbranch_scc1 %s" % SKIPP)
    p.vmem("buffer_load_dword v15, v14, %s, %s offen%s" % (SWS, sB, HL), "POLL", cond=True)
    p("%s:" % SKIPP)
    pend = []
    for t in range(poll_after, 8): pend += K_loads(t)
    for t in range(4): pend += V_loads(t)
    def tr(n):
        for _ in range(min(n, len(pend))): pend.pop(0)()
    tr(cfg.get("n_after_poll", 16))
    OKP = p.label("okpoll")
    p("s_cmp_lg_u32 %s, 0" % sW); p("s_cbranch_scc1 %s" % OKP)
    p.wait("POLL")
    p("s_mov_b32 %s, %d" % (sRETRY, RETRIES))
    RP = p.label("rpoll")
    p("%s:" % RP)
    p("v_cmp_ne_u32 vcc, %s, v15" % sE)
    if cfg.get("nodep"): p("s_branch %s" % OKP)
    p("s_cbranch_vccz %s" % OKP)
    p("s_sub_u32 %s, %s, 1" % (sRETRY, sRETRY)); p("s_cbranch_scc1 %s" % OKP)
    p("s_sleep %d" % cfg.get("sleep", 8))
    p("buffer_load_dword v15, v14, %s, %s offen%s" % (SWS, sB, HL))
    p("s_waitcnt vmcnt(0)")
    p("s_branch %s" % RP)
    p("%s:" % OKP)
    p("s_barrier")
    stamp("poll_ok")
    p("s_lshl_b32 %s, %s, 14" % (sA, sG)); p("s_lshl_b32 %s, %s, 10" % (sD, sW)); p("s_add_u32 %s, %s, %s" % (sA, sA, sD)); p("s_add_u32 %s, %s, %d" % (sA, sA, Q_BASE))
    for kq in range(4):
        p("s_add_u32 %s, %s, %d" % (sT0, sA, kq*4096))
        p.vmem("buffer_load_dwordx4 %s, v%d, %s, %s offen%s" % (vr(96+4*kq, 4), vL16, SWS, sT0, HL), "QG")
    tr(cfg.get("n_after_qg", 16))
    p("v_lshrrev_b32 v12, 5, v1"); p("s_lshl_b32 %s, %s, 1" % (sA, sW)); p("v_add_u32 v12, %s, v12" % sA); p("v_mul_u32_u24 v12, 272, v12")
    p("v_and_b32 v13, 31, v1"); p("v_lshlrev_b32 v13, 3, v13"); p("v_add_u32 v12, v12, v13")
    p("v_and_b32 v14, 7, v1"); p("v_mul_u32_u24 v14, 272, v14"); p("v_lshrrev_b32 v13, 4, v1"); p("v_lshlrev_b32 v13, 4, v13"); p("v_add_u32 v14, v14, v13")
    p("v_bfe_u32 v13, v1, 3, 1"); p("v_lshlrev_b32 v13, 6, v13"); p("v_add_u32 v14, v14, v13")
    p("v_mov_b32 v%d, 0xff800000" % vMAX)
    p.wait("QG")
    for r in range(4):
        p("v_add_f32 v%d, v%d, v%d" % (96+r, 96+r, 100+r)); p("v_add_f32 v%d, v%d, v%d" % (104+r, 104+r, 108+r))
    for r in range(4): p("v_add_f32 v%d, v%d, v%d" % (96+r, 96+r, 104+r))
    p("v_cvt_pk_bf16_f32 v96, v96, v97"); p("v_cvt_pk_bf16_f32 v97, v98, v99")
    p("ds_write_b64 v12, v[96:97] offset:%d" % L_QL)
    p("s_waitcnt lgkmcnt(0)")
    p("s_barrier")
    stamp("q_ready")
    for lam in range(2): p("ds_read_b128 %s, v14 offset:%d" % (vr(QF+4*lam, 4), L_QL + 128*lam))
    tr(1)
    p("s_waitcnt lgkmcnt(0)")
    def qk_mfma(t):
        D = PERM + 16*(t % 2)
        p.wait("K%d" % t)
        for lam in range(2):
            for h in range(2):
                for a_ in range(2):
                    d = D + 8*h + 4*a_
                    p("v_mfma_f32_16x16x32_bf16 %s, %s, %s, %s" % (vr(d, 4), ar(32*t+16*h+8*a_+4*lam, 4), vr(QF+4*lam, 4), "0" if lam == 0 else vr(d, 4)))
    def qk_post(t):
        D = PERM + 16*(t % 2); T = QF + 8
        for h in range(2):
            for r in range(4): p("v_permlane32_swap_b32 v%d, v%d" % (D+8*h+r, D+8*h+4+r))
        for h in range(2):
            for r in range(4): p("v_add_f32_dpp v%d, v%d, v%d row_ror:8%s" % (D+8*h+r, D+8*h+4+r, D+8*h+r, DPP))
        tr(1)
        src = [D+0, D+1, D+2, D+3, D+8, D+9, D+10, D+11]
        pk = [D+4, D+5, D+6, D+7]
        for i in range(4): p("v_cvt_pk_bf16_f32 v%d, v%d, v%d" % (pk[i], src[2*i], src[2*i+1]))
        for i in range(4):
            p("v_lshlrev_b32 v%d, 16, v%d" % (T+2*i, pk[i])); p("v_and_b32 v%d, 0xffff0000, v%d" % (T+2*i+1, pk[i]))
        for i in range(8): p("v_mul_f32 v%d, %s, v%d" % (T+i, sSCALE, T+i))
        tr(1)
        for i in range(4):
            p("v_cvt_pk_bf16_f32 v%d, v%d, v%d" % (SP+4*t+i, T+2*i, T+2*i+1))
            p("v_max3_f32 v%d, v%d, v%d, v%d" % (vMAX, vMAX, T+2*i, T+2*i+1))
    qk_mfma(0)
    for t in range(1, 8):
        qk_mfma(t)
        qk_post(t-1)
    qk_post(7)
    allred(p, [vMAX], [12], "v_max_f32", [16, 32])
    p("v_and_b32 v12, 15, v1"); p("v_lshlrev_b32 v12, 2, v12"); p("s_lshl_b32 %s, %s, 6" % (sA, sW)); p("v_add_u32 v13, %s, v12" % sA)
    p("ds_write_b32 v13, v%d offset:%d" % (vMAX, L_MX))
    p("s_waitcnt lgkmcnt(0)")
    p("s_barrier")
    p("ds_read_b32 v14, v12 offset:%d" % L_MX)
    p("ds_read_b32 v15, v12 offset:%d" % (L_MX+64))
    p("ds_read_b32 v16, v12 offset:%d" % (L_MX+128))
    p("ds_read_b32 v17, v12 offset:%d" % (L_MX+192))
    tr(1)
    p("s_waitcnt lgkmcnt(0)")
    p("v_max3_f32 v14, v14, v15, v16"); p("v_max_f32 v14, v14, v17")
    p("v_cvt_pk_bf16_f32 v14, v14, v14"); p("v_lshlrev_b32 v%d, 16, v14" % vMAX)
    p("v_mul_f32 v16, %s, v%d" % (sLOG2E, vMAX)); p("v_sub_f32 v16, 0, v16")
    stamp("qk_done")
    p("v_mov_b32 v%d, 0" % vL0); p("v_mov_b32 v%d, 0" % vL1)
    for b_ in range(8):
        T = PERM + 8*(b_ % 2)
        for i in range(4):
            p("v_lshlrev_b32 v%d, 16, v%d" % (T+2*i, SP+4*b_+i)); p("v_and_b32 v%d, 0xffff0000, v%d" % (T+2*i+1, SP+4*b_+i))
        for i in range(8): p("v_fma_f32 v%d, v%d, %s, v16" % (T+i, T+i, sLOG2E))
        for i in range(8): p("v_exp_f32 v%d, v%d" % (T+i, T+i))
        for i in range(4):
            p("v_cvt_pk_bf16_f32 v%d, v%d, v%d" % (SP+4*b_+i, T+2*i, T+2*i+1))
            p("v_add_f32 v%d, v%d, v%d" % (vL0, vL0, T+2*i)); p("v_add_f32 v%d, v%d, v%d" % (vL1, vL1, T+2*i+1))
        tr(1)
    tr(100)
    p("v_add_f32 v%d, v%d, v%d" % (vL0, vL0, vL1))
    allred(p, [vL0], [12], "v_add_f32", [16, 32])
    p("v_and_b32 v12, 15, v1"); p("v_lshlrev_b32 v12, 2, v12"); p("s_lshl_b32 %s, %s, 6" % (sA, sW)); p("v_add_u32 v13, %s, v12" % sA)
    p("ds_write_b32 v13, v%d offset:%d" % (vL0, L_LW))
    stamp("p_done")
    def silu(src, dst, tmp, n):
        for r in range(n): p("v_mul_f32 v%d, %s, v%d" % (tmp+r, sLOG2E, src+r))
        for r in range(n): p("v_exp_f32 v%d, -v%d" % (tmp+r, tmp+r))
        for r in range(n): p("v_add_f32 v%d, 1.0, v%d" % (tmp+r, tmp+r))
        for r in range(n): p("v_rcp_f32 v%d, v%d" % (tmp+r, tmp+r))
        for r in range(n): p("v_mul_f32 v%d, v%d, v%d" % (dst+r, src+r, tmp+r))
    def unpack2(dst, src):
        p("v_lshlrev_b32 v%d, 16, v%d" % (dst, src)); p("v_and_b32 v%d, 0xffff0000, v%d" % (dst+1, src))
    sH0, sH1 = "s69", "s70"
    p("v_lshrrev_b32 v15, 3, v1"); p("v_mul_u32_u24 v15, 14336, v15"); p("v_and_b32 v13, 7, v1"); p("v_min_u32 v13, 6, v13"); p("v_lshlrev_b32 v13, 4, v13"); p("v_add_u32 v15, v15, v13")
    p("s_mul_i32 %s, %s, 112" % (sH0, sRB)); p("s_add_u32 %s, %s, %d" % (sH0, sH0, BP_BASE)); p("s_add_u32 %s, %s, %d" % (sH1, sH0, 8*14336))
    p.vmem("buffer_load_dwordx4 v[16:19], v15, %s, %s offen%s" % (SWS, sH0, HL), "HG")
    p.vmem("buffer_load_dwordx4 v[20:23], v15, %s, %s offen%s" % (SWS, sH1, HL), "HG")
    def retry_block(check, reload, base):
        R = p.label("r" + base); OK = p.label("ok" + base)
        p("s_mov_b32 %s, %d" % (sRETRY, RETRIES))
        p("%s:" % R)
        check()
        p("s_cbranch_vccz %s" % OK)
        p("s_sub_u32 %s, %s, 1" % (sRETRY, sRETRY)); p("s_cbranch_scc1 %s" % OK)
        reload()
        p("s_waitcnt vmcnt(0)")
        p("s_branch %s" % R)
        p("%s:" % OK)
    def h_compute():
        p.wait("HG")
        def rl():
            p("s_sleep %d" % cfg.get("sleep", 8))
            p("buffer_load_dwordx4 v[16:19], v15, %s, %s offen%s" % (SWS, sH0, HL))
            p("buffer_load_dwordx4 v[20:23], v15, %s, %s offen%s" % (SWS, sH1, HL))
        retry_block(lambda: tagcheck(list(range(16, 24)), 14), rl, "h")
        red4(p, [16, 17, 18, 19]); red4(p, [20, 21, 22, 23])
        p("v_cvt_pk_bf16_f32 v24, v16, v20")
        unpack2(16, 24)
        silu(16, 16, 24, 1)
        p("v_cvt_pk_bf16_f32 v24, v16, v16"); p("v_lshlrev_b32 v16, 16, v24")
        p("v_mul_f32 v16, v16, v17")
        p("v_cvt_pk_bf16_f32 v16, v16, v16")
        p("v_lshrrev_b32 v12, 4, v1"); p("v_and_b32 v13, 1, v12"); p("v_lshlrev_b32 v13, 1, v13"); p("v_lshrrev_b32 v12, 1, v12"); p("v_or_b32 v12, v12, v13")
        p("v_lshlrev_b32 v12, 5, v12"); p("v_and_b32 v13, 7, v1"); p("v_lshlrev_b32 v13, 2, v13"); p("v_add_u32 v13, v13, v12")
        p("ds_write_b32 v13, v16 offset:%d" % L_HL)
        p("v_lshrrev_b32 v13, 4, v1"); p("v_lshlrev_b32 v13, 5, v13")
        p("s_waitcnt lgkmcnt(0)")
        p("ds_read_b128 v[16:19], v13 offset:%d" % L_HL); p("ds_read_b128 v[20:23], v13 offset:%d" % (L_HL+16))
    sOB = "s77"
    late = []
    def tl(n=1):
        for _ in range(min(n, len(late))): late.pop(0)()
    def pv(t, trickle=False):
        base = RING + 32*(t % 4)
        p.wait("V%d" % t)
        def perm(j):
            c, h = j >> 1, j & 1
            for tt in range(4):
                p("v_perm_b32 v%d, v%d, v%d, %s" % (PERM+4*j+tt, base+4*(2*tt+1)+c, base+4*(2*tt)+c, sSELHI if h else sSELLO))
        def mm(j):
            p("v_mfma_f32_16x16x32_bf16 %s, %s, %s, %s" % (vr(ACC+4*j, 4), vr(PERM+4*j, 4), vr(SP+4*t, 4), "0" if t == 0 else vr(ACC+4*j, 4)))
        perm(0)
        for j in range(1, 8):
            perm(j); mm(j-1)
            if trickle and j in (2, 5): tl(1)
        mm(7)
    vW2O, vOO = 31, 11
    sW2B = "s3"
    def late_addresses():
        p("v_lshrrev_b32 v12, 4, v1"); p("v_and_b32 v13, 15, v1"); p("v_lshlrev_b32 v13, 4, v13")
        p("v_lshlrev_b32 v%d, 11, v12" % vW2O); p("v_add_u32 v%d, v%d, v13" % (vW2O, vW2O))
        p("v_lshlrev_b32 v%d, 14, v12" % vOO); p("v_add_u32 v%d, v%d, v13" % (vOO, vOO))
        p("s_lshl_b32 %s, %s, 10" % (sD, sCH)); p("s_lshl_b32 %s, %s, 8" % (sA, sW)); p("s_add_u32 %s, %s, %s" % (sD, sD, sA))
        p("s_mul_i32 %s, %s, %d" % (sW2B, sRB, 28*2048)); p("s_add_u32 %s, %s, %s" % (sW2B, sW2B, sD))
        p("s_lshl_b32 %s, %s, 16" % (sOB, sRB)); p("s_add_u32 %s, %s, %s" % (sOB, sOB, sD))
    def W2_loads():
        L = []
        for t in range(7):
            def f(t=t):
                p("s_add_u32 %s, %s, %d" % (sT0, sW2B, t*4*2048))
                svmem("buffer_load_dwordx4 %s, v%d, %s, %s offen%s" % (ar(4*t, 4), vW2O, SW2, sT0, ntw), "W2")
            L.append(f)
        return L
    def O_loads():
        L = []
        for t in range(8):
            def f(t=t):
                p("s_add_u32 %s, %s, %d" % (sT0, sOB, t*2048))
                svmem("buffer_load_dwordx4 %s, v%d, %s, %s offen%s" % (ar(32+4*t, 4), vOO, SWO, sT0, ntw), "O")
            L.append(f)
        return L
    vAWB, vRD, vPO, vLWR, vMLS, vG0, vG1 = 24, 25, 26, 27, 28, 29, 30
    vPC, vCM, vCPW, vCPR, vZ = 160, 161, 162, 163, 165
    vAW = PERM + 24
    sPO, sPB, sPS, sGV, sGM, sGA = "s71", "s72", "s73", "s74", "s75", "s76"
    def tail_addresses_a():
        p("v_and_b32 v12, 7, v1"); p("v_lshlrev_b32 v13, 9, v12"); p("v_lshlrev_b32 v12, 4, v12"); p("v_add_u32 v12, v12, v13")
        p("v_lshrrev_b32 v13, 4, v1"); p("v_lshlrev_b32 v13, 7, v13"); p("v_add_u32 v12, v12, v13")
        p("s_lshl_b32 %s, %s, 12" % (sA, sW)); p("s_add_u32 %s, %s, %d" % (sA, sA, L_OP)); p("v_add_u32 v%d, %s, v12" % (vAWB, sA))
        p("v_lshlrev_b32 v%d, 4, v0" % vRD)
        p("v_lshrrev_b32 v14, 5, v0"); p("v_and_b32 v15, 7, v0"); p("v_xor_b32 v14, v14, v15"); p("v_lshlrev_b32 v14, 4, v14")
        p("v_lshrrev_b32 v15, 3, v0"); p("v_lshlrev_b32 v15, 7, v15"); p("v_add_u32 v%d, v14, v15" % vPO)
        p("s_mul_i32 %s, s2, %d" % (sPO, O_PITCH)); p("s_add_u32 %s, %s, %d" % (sPO, sPO, O_BASE))
        p("v_and_b32 v13, 15, v1"); p("v_lshlrev_b32 v%d, 2, v13" % vLWR)
        p("v_lshlrev_b32 v%d, 3, v1" % vMLS); p("v_add_u32 v%d, 4096, v%d" % (vMLS, vMLS))
        p("v_lshrrev_b32 v12, 3, v1"); p("v_mul_u32_u24 v%d, %d, v12" % (vG0, O_PITCH))
        p("v_and_b32 v13, 7, v1"); p("v_lshlrev_b32 v13, 4, v13"); p("v_add_u32 v%d, v%d, v13" % (vG1, vG0))
        p("s_lshl_b32 %s, %s, 6" % (sA, sG)); p("s_mul_i32 %s, %s, %d" % (sA, sA, O_PITCH)); p("s_add_u32 %s, %s, %d" % (sA, sA, O_BASE))
        p("s_bfe_u32 %s, s2, 0x30003" % sB)
        p("s_lshl_b32 %s, %s, 3" % (sD, sB)); p("s_add_u32 %s, %s, %s" % (sGM, sA, sD)); p("s_add_u32 %s, %s, 4096" % (sGM, sGM))
        p("s_lshl_b32 %s, %s, 2" % (sB, sB)); p("s_bfe_u32 %s, s2, 0x20001" % sD); p("s_add_u32 %s, %s, %s" % (sB, sB, sD)); p("s_lshl_b32 %s, %s, 7" % (sB, sB))
        p("s_add_u32 %s, %s, %s" % (sB, sB, sA))
        p("s_mul_i32 %s, %s, %d" % (sD, sW, 16*O_PITCH))
        p("s_add_u32 %s, %s, %s" % (sGV, sB, sD)); p("s_add_u32 %s, %s, %s" % (sGA, sGM, sD))
    def tail_addresses_b():
        p("v_bfe_u32 v12, v1, 2, 2"); p("v_lshlrev_b32 v12, 14, v12")
        p("v_and_b32 v13, 3, v1"); p("v_lshlrev_b32 v13, 5, v13"); p("v_add_u32 v12, v12, v13")
        p("v_bfe_u32 v13, v1, 4, 1"); p("v_lshlrev_b32 v13, 4, v13"); p("v_add_u32 v%d, v12, v13" % vPC)
        p("s_lshl_b32 %s, %s, 18" % (sA, sCH)); p("s_lshl_b32 %s, %s, 16" % (sD, sW)); p("s_add_u32 %s, %s, %s" % (sA, sA, sD))
        p("s_lshl_b32 %s, %s, 7" % (sD, sRB)); p("s_add_u32 %s, %s, %s" % (sA, sA, sD))
        p("s_add_u32 %s, %s, %d" % (sPB, sA, BB_BASE)); p("s_add_u32 %s, %s, %d" % (sPS, sA, S_BASE))
        p("v_lshrrev_b32 v12, 4, v1"); p("v_and_b32 v13, 1, v12"); p("v_lshlrev_b32 v13, 1, v13"); p("v_lshrrev_b32 v12, 1, v12"); p("v_or_b32 v12, v12, v13")
        p("v_lshlrev_b32 v12, 5, v12"); p("v_and_b32 v13, 7, v1"); p("v_lshlrev_b32 v13, 2, v13"); p("v_add_u32 v12, v12, v13")
        p("s_lshl_b32 %s, %s, 7" % (sA, sW)); p("v_add_u32 v%d, %s, v12" % (vCPW, sA))
        p("v_lshrrev_b32 v13, 4, v1"); p("v_lshlrev_b32 v%d, 5, v13" % vCPR)
        p("s_lshl_b32 %s, %s, 3" % (sA, sW)); p("v_mov_b32 v%d, %s" % (vCM, sA)); p("v_mov_b32 v%d, 0" % vZ)
    o_early = cfg.get("o_early", False)
    pv(0); loadV(4)
    pv(1); loadV(5)
    pv(2); loadV(6)
    pv(3); loadV(7)
    late_addresses()
    late += W2_loads() + O_loads()
    n_pre = cfg.get("n_pre", 10)
    pv(4, True); tl(1); h_compute(); tl(1); p("s_waitcnt lgkmcnt(0)"); pv(5, True); tl(1); tail_addresses_a(); tl(1); pv(6, True)
    while len(late) > 15 - n_pre: tl(1)
    pv(7)
    stamp("pv_done")
    for j in range(8): p("v_xor_b32 v%d, %d, v%d" % (vAW+j, 16*j, vAWB))
    p("s_mov_b32 exec_lo, 0x00ff00ff"); p("s_mov_b32 exec_hi, 0x00ff00ff")
    for j in range(8):
        p("ds_write_b128 v%d, %s" % (vAW+j, vr(ACC+4*j, 4)))
    p("s_mov_b64 exec, -1")
    p("s_waitcnt lgkmcnt(0)")
    p("s_barrier")
    for i in range(4): p("ds_read_b128 %s, v%d offset:%d" % (vr(PERM+4*i, 4), vRD, L_OP + 4096*i))
    for i in range(4): p("ds_read_b32 v%d, v%d offset:%d" % (PERM+16+i, vLWR, L_LW + 64*i))
    p("s_waitcnt lgkmcnt(4)")
    for r in range(4):
        p("v_add_f32 v%d, v%d, v%d" % (PERM+r, PERM+r, PERM+4+r)); p("v_add_f32 v%d, v%d, v%d" % (PERM+8+r, PERM+8+r, PERM+12+r))
    for r in range(4): p("v_add_f32 v%d, v%d, v%d" % (PERM+r, PERM+r, PERM+8+r))
    for r in range(4): p("v_bfi_b32 v%d, %s, v%d, v%d" % (PERM+r, sFF, vTAG, PERM+r))
    p.vmem("buffer_store_dwordx4 %s, v%d, %s, %s offen%s" % (vr(PERM, 4), vPO, SWS, sPO, HS), "PUBO")
    SKIP4 = p.label("ml")
    p("s_cmp_lg_u32 %s, 0" % sW); p("s_cbranch_scc1 %s" % SKIP4)
    p("s_waitcnt lgkmcnt(0)")
    p("v_add_f32 v%d, v%d, v%d" % (PERM+16, PERM+16, PERM+17)); p("v_add_f32 v%d, v%d, v%d" % (PERM+18, PERM+18, PERM+19)); p("v_add_f32 v%d, v%d, v%d" % (PERM+17, PERM+16, PERM+18))
    p("v_bfi_b32 v%d, %s, v%d, v%d" % (PERM+16, sFF, vTAG, vMAX)); p("v_bfi_b32 v%d, %s, v%d, v%d" % (PERM+17, sFF, vTAG, PERM+17))
    p("s_mov_b32 exec_lo, 0xffff"); p("s_mov_b32 exec_hi, 0")
    p.vmem("buffer_store_dwordx2 %s, v%d, %s, %s offen%s" % (vr(PERM+16, 2), vMLS, SWS, sPO, HS), "PUBML", cond=True)
    p("s_mov_b64 exec, -1")
    p("%s:" % SKIP4)
    p("s_waitcnt lgkmcnt(0)")
    stamp("o_pub")
    DD = 124
    def pub_cols(sb, name):
        for r in range(4): p("v_bfi_b32 v%d, %s, v%d, v%d" % (DD+r, sFF, vTAG, DD+r))
        p("s_mov_b32 exec_hi, 0")
        p.vmem("buffer_store_dwordx4 %s, v%d, %s, %s offen%s" % (vr(DD, 4), vPC, SWS, sb, HS), name)
        p("s_mov_b64 exec, -1")
    def diag_mult(src, n, breg):
        for t in range(n+1):
            if t < n:
                A = PERM + 4*(t % 4)
                for jj in range(4): p("v_and_b32 v%d, v%d, v%d" % (A+jj, src+t, vMASK+jj))
            if t >= 1:
                tt = t-1; AA = PERM + 4*(tt % 4)
                p("v_mfma_f32_16x16x32_bf16 %s, %s, %s, %s" % (vr(DD, 4), vr(AA, 4), ar(breg+4*tt, 4), "0" if tt == 0 else vr(DD, 4)))
    def w2_mult():
        p.wait("W2")
        diag_mult(16, 7, 0)
        pub_cols(sPB, "PUBB2")
        stamp("b_pub")
    def g2_loads(R, nm):
        f = (lambda t: p.vmem(t, nm)) if nm else p
        f("buffer_load_dwordx4 %s, v%d, %s, %s offen%s" % (vr(R, 4), vG1, SWS, sGV, HL))
        f("buffer_load_dwordx2 %s, v%d, %s, %s offen%s" % (vr(R+8, 2), vG0, SWS, sGA, HL))
        p("s_add_u32 %s, %s, %d" % (sT0, sGV, 8*O_PITCH))
        f("buffer_load_dwordx4 %s, v%d, %s, %s offen%s" % (vr(R+4, 4), vG1, SWS, sT0, HL))
        p("s_add_u32 %s, %s, %d" % (sT0, sGA, 8*O_PITCH))
        f("buffer_load_dwordx2 %s, v%d, %s, %s offen%s" % (vr(R+10, 2), vG0, SWS, sT0, HL))
    g2_loads(96, "G2A")
    tl(100)
    tail_addresses_b()
    w2_mult()
    p.wait("G2A")
    stamp("g2_first")
    def rl2():
        if cfg.get("g2sleep", 0): p("s_sleep %d" % cfg["g2sleep"])
        g2_loads(96, None)
    retry_block(lambda: tagcheck(list(range(96, 108)), 15), rl2, "g2")
    stamp("g2_ok")
    if stamps: p("s_mov_b32 s3, %s" % sRETRY)
    p("v_and_b32 v104, 0xffffff00, v104"); p("v_and_b32 v106, 0xffffff00, v106")
    p("v_max_f32 v120, v104, v106")
    allred(p, [120], [121], "v_max_f32", [8, 16, 32])
    p("v_sub_f32 v104, v104, v120"); p("v_sub_f32 v106, v106, v120")
    p("v_mul_f32 v104, %s, v104" % sLOG2E); p("v_mul_f32 v106, %s, v106" % sLOG2E)
    p("v_exp_f32 v104, v104"); p("v_exp_f32 v106, v106")
    for r in range(4): p("v_mul_f32 v%d, v104, v%d" % (96+r, 96+r))
    p("v_mul_f32 v105, v104, v105")
    for r in range(4): p("v_fmac_f32 v%d, v106, v%d" % (96+r, 100+r))
    p("v_fmac_f32 v105, v106, v107")
    allred(p, [105], [121], "v_add_f32", [32, 16, 8])
    red4(p, [96, 97, 98, 99])
    p("v_mov_b32 v121, v105")
    p("ds_write_b32 v%d, v96 offset:%d" % (vCPW, L_CP))
    p("ds_write_b64 v%d, v[120:121] offset:%d" % (vCM, L_CM))
    p("s_waitcnt lgkmcnt(0)")
    p("s_barrier")
    p("ds_read_b128 v[100:103], v%d offset:%d" % (vZ, L_CM)); p("ds_read_b128 v[104:107], v%d offset:%d" % (vZ, L_CM+16))
    for w_ in range(4):
        p("ds_read_b128 %s, v%d offset:%d" % (vr(32+8*w_, 4), vCPR, L_CP + 128*w_)); p("ds_read_b128 %s, v%d offset:%d" % (vr(36+8*w_, 4), vCPR, L_CP + 128*w_ + 16))
    p("s_waitcnt lgkmcnt(8)")
    p("v_max3_f32 v120, v100, v102, v104"); p("v_max_f32 v120, v120, v106")
    for i in range(4): p("v_sub_f32 v%d, v%d, v120" % (100+2*i, 100+2*i))
    for i in range(4): p("v_mul_f32 v%d, %s, v%d" % (100+2*i, sLOG2E, 100+2*i))
    for i in range(4): p("v_exp_f32 v%d, v%d" % (100+2*i, 100+2*i))
    p("v_mul_f32 v121, v100, v101"); p("v_fmac_f32 v121, v102, v103"); p("v_fmac_f32 v121, v104, v105"); p("v_fmac_f32 v121, v106, v107")
    p("v_rcp_f32 v121, v121")
    for i in range(4): p("v_mul_f32 v%d, v%d, v121" % (100+2*i, 100+2*i))
    for i in range(4): p("v_mov_b32 v%d, v%d" % (101+2*i, 100+2*i))
    p("s_waitcnt lgkmcnt(6)")
    for r in range(0, 8, 2): p("v_pk_mul_f32 %s, v[100:101], %s" % (vr(32+r, 2), vr(32+r, 2)))
    p("s_waitcnt lgkmcnt(4)")
    for r in range(0, 8, 2): p("v_pk_fma_f32 %s, v[102:103], %s, %s" % (vr(32+r, 2), vr(40+r, 2), vr(32+r, 2)))
    p("s_waitcnt lgkmcnt(2)")
    for r in range(0, 8, 2): p("v_pk_fma_f32 %s, v[104:105], %s, %s" % (vr(32+r, 2), vr(48+r, 2), vr(32+r, 2)))
    p("s_waitcnt lgkmcnt(0)")
    for r in range(0, 8, 2): p("v_pk_fma_f32 %s, v[106:107], %s, %s" % (vr(32+r, 2), vr(56+r, 2), vr(32+r, 2)))
    for r in range(8): p("v_cvt_pk_bf16_f32 v%d, v%d, v%d" % (16+r, 32+r, 32+r))
    p.wait("O")
    diag_mult(16, 8, 32)
    pub_cols(sPS, "PUBS")
    stamp("s_pub")
    FIN = p.label("fin")
    p("s_cmp_ge_u32 s2, 32"); p("s_cbranch_scc1 %s" % FIN)
    p("s_lshl_b32 %s, s2, 14" % sA); p("s_lshl_b32 %s, %s, 12" % (sD, sW)); p("s_add_u32 %s, %s, %s" % (sA, sA, sD))
    p("s_add_u32 %s, %s, %d" % (sB, sA, S_BASE)); p("s_add_u32 %s, %s, %d" % (sA, sA, BB_BASE))
    p("v_lshrrev_b32 v12, 4, v1"); p("v_and_b32 v13, 1, v12"); p("v_lshlrev_b32 v13, 1, v13"); p("v_lshrrev_b32 v12, 1, v12"); p("v_or_b32 v12, v12, v13")
    p("v_and_b32 v14, 7, v1"); p("v_lshlrev_b32 v14, 2, v14"); p("v_add_u32 v14, v14, v12")
    p("v_lshlrev_b32 v179, 1, v14"); p("s_lshl_b32 %s, s2, 6" % sCc)
    p("v_lshlrev_b32 v13, 2, v14"); p("s_lshl_b32 %s, %s, 7" % (sD, sW)); p("v_add_u32 v12, %s, v13" % sD)
    def fl(sb):
        def f(R, nm):
            g = (lambda t: p.vmem(t, nm)) if nm else p
            for u in range(4):
                g("buffer_load_dwordx4 %s, v%d, %s, %s offen offset:%d%s" % (vr(R+4*u, 4), vL16, SWS, sb, 1024*u, HL))
        return f
    def fin_reduce(R, dst):
        for r in range(0, 4, 2):
            p("v_pk_add_f32 %s, %s, %s" % (vr(R+r, 2), vr(R+r, 2), vr(R+4+r, 2))); p("v_pk_add_f32 %s, %s, %s" % (vr(R+8+r, 2), vr(R+8+r, 2), vr(R+12+r, 2)))
        for r in range(0, 4, 2): p("v_pk_add_f32 %s, %s, %s" % (vr(R+r, 2), vr(R+r, 2), vr(R+8+r, 2)))
        red4(p, [R, R+1, R+2, R+3])
        p("ds_write_b32 v12, v%d offset:%d" % (R, dst))
        p("s_waitcnt lgkmcnt(0)")
        p("s_barrier")
        for w_ in range(4): p("ds_read_b32 v%d, v13 offset:%d" % (R+w_, dst + 128*w_))
        p("s_waitcnt lgkmcnt(0)")
        p("v_add_f32 v%d, v%d, v%d" % (R, R, R+1)); p("v_add_f32 v%d, v%d, v%d" % (R+2, R+2, R+3)); p("v_add_f32 v%d, v%d, v%d" % (R, R, R+2))
        p("v_cvt_pk_bf16_f32 v%d, v%d, v%d" % (R, R, R)); p("v_lshlrev_b32 v%d, 16, v%d" % (R, R))
    p.vmem("buffer_load_ushort v18, v179, %s, %s offen" % (SX, sCc), "XF")
    fl(sA)(128, "FB")
    p.wait("FB")
    retry_block(lambda: tagcheck(list(range(128, 144)), 15), lambda: fl(sA)(128, None), "fb")
    fl(sB)(144, "FS0")
    fin_reduce(128, L_FP)
    silu(128, 32, 40, 1)
    p("v_cvt_pk_bf16_f32 v32, v32, v32"); p("v_lshlrev_b32 v32, 16, v32")
    p("v_lshlrev_b32 v44, 16, v18")
    stamp("g_done")
    p.wait("FS0")
    retry_block(lambda: tagcheck(list(range(144, 160)), 15), lambda: fl(sB)(144, None), "fs")
    stamp("fs_ok")
    fin_reduce(144, L_FP + 512)
    p("v_mul_f32 v36, v144, v32")
    p("v_cvt_pk_bf16_f32 v36, v36, v36"); p("v_lshlrev_b32 v36, 16, v36")
    p("v_add_f32 v36, v36, v44")
    p("v_cvt_pk_bf16_f32 v40, v36, v36")
    SK5 = p.label("out")
    p("s_cmp_lg_u32 %s, 0" % sW); p("s_cbranch_scc1 %s" % SK5)
    p("s_mov_b32 exec_lo, 0x00ff00ff"); p("s_mov_b32 exec_hi, 0x00ff00ff")
    p.vmem("buffer_store_short v40, v179, %s, %s offen" % (SOUT, sCc), "OUT", cond=True)
    p("s_cmp_lg_u32 s2, 0"); p("s_cbranch_scc1 %s" % SK5)
    p("v_mov_b32 v12, %d" % EPOCH); p("v_mov_b32 v13, %s" % sE)
    p("s_mov_b32 exec_lo, 1"); p("s_mov_b32 exec_hi, 0")
    p.vmem("buffer_store_dword v13, v12, %s, 0 offen%s" % (SWS, HS), "EPO", cond=True)
    p("%s:" % SK5)
    p("s_mov_b64 exec, -1")
    p("%s:" % FIN)
    if stamps:
        stamp("end")
        p("s_getreg_b32 %s, hwreg(HW_REG_XCC_ID)" % sA)
        p("s_waitcnt lgkmcnt(0)")
        for k in range(16):
            p("v_mov_b32 v%d, %s" % (32+k, ("s%d" % (78+2*k)) if k < nst[0] else "0"))
        p("v_mov_b32 v48, %s" % sA); p("v_mov_b32 v49, s3"); p("v_mov_b32 v50, 0"); p("v_mov_b32 v51, 0")
        p("s_lshl_b32 %s, s2, 2" % sB); p("s_add_u32 %s, %s, %s" % (sB, sB, sW)); p("s_lshl_b32 %s, %s, 7" % (sB, sB)); p("s_add_u32 %s, %s, %d" % (sB, sB, STAMP))
        p("v_mov_b32 v12, 0")
        p("s_mov_b32 exec_lo, 1"); p("s_mov_b32 exec_hi, 0")
        for i in range(4): p("buffer_store_dwordx4 %s, v12, %s, %s offen offset:%d" % (vr(32+4*i, 4), SWS, sB, 16*i))
        p("buffer_store_dwordx4 v[48:51], v12, %s, %s offen offset:64" % (SWS, sB))
        p("s_mov_b64 exec, -1")
    p("%s:" % END)
    p("s_endpgm")
    return p, names

HEADER = """; Fused decode step: layernorm -> {GQA attention over a 64K cache -> wo} * silu(SwiGLU FFN) + x.
; @launch grid=(256,1,1) block=(256,1,1) lds=%d
"""
def wrap(body, name=NAME, lds=LDS_BYTES, header=True):
    s = (HEADER % lds) if header else ""
    if header: s += '.amdgcn_target "amdgcn-amd-amdhsa--gfx950"\n'
    s += ".text\n.globl %s\n.p2align 8\n.type %s,@function\n%s:\n" % (name, name, name)
    s += body
    s += '.section .rodata,"a"\n.p2align 6\n.amdhsa_kernel %s\n' % name
    s += "  .amdhsa_next_free_vgpr 512\n  .amdhsa_next_free_sgpr 102\n  .amdhsa_accum_offset 256\n"
    s += "  .amdhsa_group_segment_fixed_size 0\n  .amdhsa_kernarg_size 96\n  .amdhsa_user_sgpr_count 2\n"
    s += "  .amdhsa_user_sgpr_kernarg_segment_ptr 1\n  .amdhsa_system_sgpr_workgroup_id_x 1\n"
    s += "  .amdhsa_float_denorm_mode_32 3\n"
    s += ".end_amdhsa_kernel\n"
    return s

if __name__ == "__main__":
    cfg = json.loads(sys.argv[2]) if len(sys.argv) > 2 else {}
    p, names = build(cfg)
    open(sys.argv[1], "w").write(wrap(p.text()))
    print("wrote", sys.argv[1], "stamps:", names)
```

```python
import sys, json
from sched import Prog

NAME = "recurrent_scan__gqa_block_cached__glu_gated_swiglu__decode_kernel"

EPOCH   = 0
Q_BASE  = 0x1000
FLAG_BASE = 0x14000
BP_BASE = 0x20000
O_BASE  = 0x80000
O_PITCH = 4224
S_BASE  = 0x200000
BB_BASE = 0x280000
STAMP   = 0x400000
L_XN = 0
L_QP = 4096
L_BP = 6144
L_QL = 10240
L_HL = 12544
L_MX = 12800
L_LW = 13056
L_CP = 13312
L_FP = 13824
L_CM = 14848
L_OP = 16384
LDS_BYTES = 32768

SX, SK, SV, SWQ, SWO, SW1, SW3, SW2, SOUT, SDBG, SWS = [ "s[%d:%d]" % (4*i+4, 4*i+7) for i in range(11)]
sW, sG, sC, sT0, sKV = "s48", "s49", "s50", "s51", "s52"
sSELLO, sSELHI, sE, sTAG, sFF, sLOG2E, sSCALE, sHI = "s53", "s54", "s55", "s56", "s57", "s58", "s59", "s60"
sRETRY = "s61"
sA, sB, sCc, sD = "s62", "s63", "s64", "s65"
sRB, sCH = "s66", "s67"
sKC = "s68"
sCB1, sCB3, sW3B = "s69", "s70", "s71"
vTID, vLANE, vOFFK, vL16 = 0, 1, 2, 3
vMASK = 4
vTAG, vMAX, vL0, vL1 = 8, 9, 10, 11
vT = 12
QF, SP, PERM, ACC, RING = 16, 32, 64, 96, 128

def vr(b, n=1): return "v%d" % b if n == 1 else "v[%d:%d]" % (b, b+n-1)
def ar(b, n=1): return "a%d" % b if n == 1 else "a[%d:%d]" % (b, b+n-1)

DPP = " row_mask:0xf bank_mask:0xf"
def allred(p, regs, tmps, op, steps):
    for s in steps:
        if s in (1, 2, 4, 8):
            for r in regs: p("%s_dpp v%d, v%d, v%d row_ror:%d%s" % (op, r, r, r, s, DPP))
        else:
            for r, t in zip(regs, tmps): p("v_mov_b32 v%d, v%d" % (t, r))
            for r, t in zip(regs, tmps): p("v_permlane%d_swap_b32 v%d, v%d" % (s, r, t))
            for r, t in zip(regs, tmps): p("%s v%d, v%d, v%d" % (op, r, r, t))

def red4(p, a):
    p("v_permlane32_swap_b32 v%d, v%d" % (a[0], a[1])); p("v_permlane32_swap_b32 v%d, v%d" % (a[2], a[3]))
    p("v_add_f32 v%d, v%d, v%d" % (a[0], a[0], a[1])); p("v_add_f32 v%d, v%d, v%d" % (a[2], a[2], a[3]))
    p("v_permlane16_swap_b32 v%d, v%d" % (a[0], a[2]))
    p("v_add_f32 v%d, v%d, v%d" % (a[0], a[0], a[2]))
    p("v_add_f32_dpp v%d, v%d, v%d row_ror:8%s" % (a[0], a[0], a[0], DPP))

def build(cfg):
    pat = cfg.get("pat", "lin")
    nt = " nt" if cfg.get("nt", True) else ""
    ntw = " nt" if cfg.get("ntw", True) else ""
    stamps = cfg.get("stamps", False)
    poll_after = cfg.get("poll_after", 6)
    HS = cfg.get("hs", " sc1")
    HL = cfg.get("hl", " sc1")
    RETRIES = cfg.get("retries", 40000)
    stride = {"lin": 1024, "str8": 8192, "w4": 4096, "glob": 262144}[pat]
    p = Prog()
    nst = [0]
    names = []
    def stamp(name):
        if not stamps or name in cfg.get("nostamp", []): return
        k = nst[0]; nst[0] += 1; names.append(name)
        assert k < 12
        p("s_memrealtime s[%d:%d]" % (78+2*k, 79+2*k))

    depth = cfg.get("depth", 0); dstep = cfg.get("dstep", 2); depth0 = cfg.get("depth0", depth)
    cnt = [0]
    def svmem(text, name, early=False):
        d = depth0 if early else depth
        if d and cnt[0] % dstep == 0: p("s_waitcnt vmcnt(%d)" % (d - dstep))
        cnt[0] += 1
        p.vmem(text, name)
    END = p.label("end")
    p("s_cmp_ge_u32 s2, 256")
    p("s_cbranch_scc1 %s" % END)
    stamp("start")
    if cfg.get("pf", 0):
        NPF = p.label("nopf")
        p("s_cmp_ge_u32 s2, %d" % cfg["pf"]); p("s_cbranch_scc1 %s" % NPF)
        p("v_cmp_gt_u32 vcc, 64, v0"); p("s_cbranch_vccz %s" % NPF)
        PFB = p.label("pfbase")
        p("s_getpc_b64 s[48:49]")
        p("%s:" % PFB)
        p("v_lshlrev_b32 v12, 7, v0")
        for i in range(cfg.get("pfn", 3)):
            p("v_min_u32 v13, %s-%s-4, v12" % (END, PFB))
            p.vmem("global_load_dword v%d, v13, s[48:49]" % (236+i), "PF", cond=True)
            p("v_add_u32 v12, 0x2000, v12")
        p("%s:" % NPF)
    for i, off in enumerate([0, 8, 16, 24, 32, 48, 56, 64, 72, 80, 88]):
        p("s_load_dwordx2 s[%d:%d], s[0:1], %d" % (4*i+4, 4*i+5, off))
    sizes = [2048, 1<<26, 1<<26, 1<<23, 1<<23, 1024*3584*2, 1024*3584*2, 1024*3584*2, 2048, 256, 1<<28]
    for i, sz in enumerate(sizes):
        p("s_mov_b32 s%d, 0x%x" % (4*i+6, sz)); p("s_mov_b32 s%d, 0x20000" % (4*i+7))
    p("s_cmp_lt_u32 s2, 224")
    p("s_cselect_b32 s26, s26, 0")
    p("s_cselect_b32 s30, s30, 0")
    p("v_lshrrev_b32 v12, 6, v0")
    p("v_and_b32 v1, 63, v0")
    p("v_readfirstlane_b32 %s, v12" % sW)
    p("s_lshr_b32 %s, s2, 6" % sG)
    p("s_and_b32 %s, s2, 63" % sC)
    p("s_mov_b32 %s, 0x05040100" % sSELLO); p("s_mov_b32 %s, 0x07060302" % sSELHI)
    p("s_mov_b32 %s, 0xff" % sFF); p("s_mov_b32 %s, 0x3fb8aa3b" % sLOG2E)
    p("s_mov_b32 %s, 0x3db504f3" % sSCALE); p("s_mov_b32 %s, 0xffff0000" % sHI)
    p("s_lshr_b32 %s, s2, 1" % sRB); p("s_and_b32 %s, s2, 1" % sCH)
    p("v_lshlrev_b32 v3, 4, v1")
    p("v_lshlrev_b32 v13, 5, v1")
    p("s_lshl_b32 %s, %s, 9" % (sA, sW))
    p("v_lshlrev_b32 v14, 3, v1")
    p("v_lshrrev_b32 v15, 3, v1"); p("v_lshlrev_b32 v15, 13, v15")
    p("v_and_b32 v16, 7, v1"); p("v_lshlrev_b32 v16, 4, v16"); p("v_add_u32 v15, v15, v16")
    p("v_lshrrev_b32 v17, 4, v1"); p("v_mul_u32_u24 v17, 7168, v17")
    p("v_and_b32 v18, 15, v1"); p("v_lshlrev_b32 v18, 4, v18"); p("v_add_u32 v17, v17, v18")
    p("s_and_b32 %s, %s, 3" % (sB, sC)); p("s_lshl_b32 %s, %s, 21" % (sB, sB))
    p("s_lshl_b32 %s, %s, 19" % (sCc, sW)); p("s_add_u32 %s, %s, %s" % (sB, sB, sCc))
    p("s_lshl_b32 %s, %s, 11" % (sCc, sG)); p("s_add_u32 %s, %s, %s" % (sB, sB, sCc))
    p("s_lshr_b32 %s, %s, 2" % (sCc, sC)); p("s_lshl_b32 %s, %s, 7" % (sCc, sCc)); p("s_add_u32 %s, %s, %s" % (sB, sB, sCc))
    p("s_and_b32 %s, s2, 7" % sCc); p("s_lshl_b32 %s, %s, 7" % (sCc, sCc))
    p("s_lshl_b32 %s, %s, 5" % (sD, sW)); p("s_add_u32 %s, %s, %s" % (sCc, sCc, sD)); p("s_mul_i32 %s, %s, 7168" % (sCc, sCc))
    r1, r3 = cfg.get("r1", 1), cfg.get("r3", 2)
    for dst, rr in ((sCB1, r1), (sCB3, r3)):
        p("s_lshr_b32 %s, s2, 3" % dst); p("s_add_u32 %s, %s, %d" % (dst, dst, rr))
        p("s_sub_u32 %s, %s, 28" % (sD, dst)); p("s_cselect_b32 %s, %s, %s" % (dst, dst, sD))
    p("s_lshl_b32 %s, %s, 8" % (sD, sCB3)); p("s_add_u32 %s, %s, %s" % (sW3B, sCc, sD))
    p("s_lshl_b32 %s, %s, 8" % (sD, sCB1)); p("s_add_u32 %s, %s, %s" % (sCc, sCc, sD))
    p("s_waitcnt lgkmcnt(0)")
    stamp("karg")
    p("s_load_dword %s, s[44:45], %d" % (sE, EPOCH))
    ntx = " nt" if cfg.get("ntx", False) else ""
    p.vmem("buffer_load_dwordx4 v[224:227], v13, %s, 0 offen%s" % (SX, ntx), "XA0")
    p.vmem("buffer_load_dwordx4 v[228:231], v13, %s, 0 offen offset:16%s" % (SX, ntx), "XA1")
    p.vmem("buffer_load_dwordx2 v[232:233], v14, %s, %s offen%s" % (SX, sA, ntx), "XB")
    if cfg.get("pbar", 1) >= 1: p("s_barrier")
    for t in range(8):
        p("s_add_u32 %s, %s, %d" % (sT0, sB, t*8*8192))
        svmem("buffer_load_dwordx4 %s, v15, %s, %s offen%s" % (vr(128+4*t, 4), SWQ, sT0, ntw), "Q%d" % t, True)
    if cfg.get("pbar", 1) >= 2: p("s_barrier")
    for t in range(8):
        p("s_add_u32 %s, %s, %d" % (sT0, sCc, t*4*7168))
        svmem("buffer_load_dwordx4 %s, v17, %s, %s offen%s" % (vr(160+4*t, 4), SW1, sT0, ntw), "W1_%d" % t, True)
    stamp("w1_issued")
    if pat == "lin":
        p("s_lshl_b32 %s, s2, 18" % sKV); p("s_lshl_b32 %s, %s, 16" % (sD, sW)); p("s_add_u32 %s, %s, %s" % (sKV, sKV, sD))
    elif pat == "str8":
        p("s_lshl_b32 %s, %s, 24" % (sKV, sG))
        p("s_lshr_b32 %s, %s, 3" % (sD, sC)); p("s_lshl_b32 %s, %s, 21" % (sD, sD)); p("s_add_u32 %s, %s, %s" % (sKV, sKV, sD))
        p("s_lshl_b32 %s, %s, 19" % (sD, sW)); p("s_add_u32 %s, %s, %s" % (sKV, sKV, sD))
        p("s_and_b32 %s, %s, 7" % (sD, sC)); p("s_lshl_b32 %s, %s, 10" % (sD, sD)); p("s_add_u32 %s, %s, %s" % (sKV, sKV, sD))
    elif pat == "w4":
        p("s_lshl_b32 %s, s2, 18" % sKV); p("s_lshl_b32 %s, %s, 10" % (sD, sW)); p("s_add_u32 %s, %s, %s" % (sKV, sKV, sD))
    elif pat == "glob":
        p("s_lshl_b32 %s, %s, 24" % (sKV, sG))
        p("s_lshl_b32 %s, %s, 12" % (sD, sC)); p("s_add_u32 %s, %s, %s" % (sKV, sKV, sD))
        p("s_lshl_b32 %s, %s, 10" % (sD, sW)); p("s_add_u32 %s, %s, %s" % (sKV, sKV, sD))
    p("v_and_b32 v12, 3, v1"); p("v_lshlrev_b32 v12, %d, v12" % (stride.bit_length()-1))
    p("v_bfe_u32 v2, v1, 2, 1"); p("v_lshlrev_b32 v2, 8, v2"); p("v_add_u32 v2, v2, v12")
    p("v_bfe_u32 v12, v1, 3, 1"); p("v_lshlrev_b32 v12, 6, v12"); p("v_add_u32 v2, v2, v12")
    p("v_lshrrev_b32 v12, 4, v1"); p("v_lshlrev_b32 v12, 4, v12"); p("v_add_u32 v2, v2, v12")
    p("v_and_b32 v12, 1, v1"); p("v_lshlrev_b32 v12, 4, v12"); p("v_mov_b32 v13, 0xffff"); p("v_lshlrev_b32 v13, v12, v13")
    p("v_bfe_u32 v12, v1, 1, 2")
    for jj in range(4):
        p("v_cmp_eq_u32 vcc, %d, v12" % jj); p("v_cndmask_b32 v%d, 0, v13, vcc" % (vMASK+jj))
    def K_loads(t):
        L = []
        for h in range(2):
            for a_ in range(2):
                for lam in range(2):
                    def f(h=h, a_=a_, lam=lam):
                        if a_ == 0 and lam == 0: p("s_add_u32 %s, %s, %d" % (sKC, sKV, (8*t+4*h)*stride))
                        svmem("buffer_load_dwordx4 %s, v%d, %s, %s offen offset:%d%s" % (ar(32*t+16*h+8*a_+4*lam, 4), vOFFK, SK, sKC, 512*a_+128*lam, nt), "K%d" % t)
                    L.append(f)
        return L
    def V_loads(t):
        base = RING + 32*(t % 4)
        L = []
        for i in range(8):
            def f(i=i):
                p("s_add_u32 %s, %s, %d" % (sT0, sKV, (8*t+i)*stride))
                svmem("buffer_load_dwordx4 %s, v%d, %s, %s offen%s" % (vr(base+4*i, 4), vL16, SV, sT0, nt), "V%d" % t)
            L.append(f)
        return L
    def loadK(t):
        for f in K_loads(t): f()
    def loadV(t):
        for f in V_loads(t): f()
    def tagcheck(regs, acc):
        p("v_xor_b32 v%d, %s, v%d" % (acc, sTAG, regs[0]))
        for r in regs[1:]: p("v_bitop3_b32 v%d, v%d, %s, v%d bitop3:0xbe" % (acc, r, sTAG, acc))
        p("v_and_b32 v%d, 0xff, v%d" % (acc, acc))
        p("v_cmp_ne_u32 vcc, 0, v%d" % acc)
        if cfg.get("nodep"): p("s_mov_b64 vcc, 0")
    p.wait("XA1")
    stamp("x_landed")
    for i in range(8):
        p("v_lshlrev_b32 v%d, 16, v%d" % (32+2*i, 224+i)); p("v_and_b32 v%d, 0xffff0000, v%d" % (33+2*i, 224+i))
    for i in range(8): p("v_add_f32 v%d, v%d, v%d" % (48+i, 32+2*i, 33+2*i))
    p("v_add_f32 v48, v48, v49"); p("v_add_f32 v50, v50, v51"); p("v_add_f32 v52, v52, v53"); p("v_add_f32 v54, v54, v55")
    p("v_add_f32 v48, v48, v50"); p("v_add_f32 v52, v52, v54"); p("v_add_f32 v48, v48, v52")
    allred(p, [48], [49], "v_add_f32", [8, 4, 2, 1, 16, 32])
    p("v_mul_f32 v49, 0x3a800000, v48")
    for i in range(16): p("v_sub_f32 v%d, v%d, v49" % (32+i, 32+i))
    for i in range(4): p("v_mul_f32 v%d, v%d, v%d" % (50+i, 32+i, 32+i))
    for i in range(4, 16): p("v_fmac_f32 v%d, v%d, v%d" % (50+(i % 4), 32+i, 32+i))
    p("v_add_f32 v50, v50, v51"); p("v_add_f32 v52, v52, v53"); p("v_add_f32 v50, v50, v52")
    allred(p, [50], [51], "v_add_f32", [8, 4, 2, 1, 16, 32])
    p("v_mul_f32 v50, 0x3a800000, v50")
    p("v_cvt_pk_bf16_f32 v51, v49, v50")
    p("v_lshlrev_b32 v52, 16, v51")
    p("v_and_b32 v53, 0xffff0000, v51")
    p("v_add_f32 v53, 0x3727c5ac, v53")
    p("v_cvt_pk_bf16_f32 v53, v53, v53"); p("v_lshlrev_b32 v53, 16, v53")
    p("v_sqrt_f32 v53, v53")
    p("v_cvt_pk_bf16_f32 v53, v53, v53"); p("v_lshlrev_b32 v53, 16, v53")
    p("v_rcp_f32 v54, v53")
    p.wait("XB")
    p("v_lshlrev_b32 v32, 16, v232"); p("v_and_b32 v33, 0xffff0000, v232")
    p("v_lshlrev_b32 v34, 16, v233"); p("v_and_b32 v35, 0xffff0000, v233")
    for i in range(4): p("v_sub_f32 v%d, v%d, v52" % (32+i, 32+i))
    p("v_cvt_pk_bf16_f32 v36, v32, v33"); p("v_cvt_pk_bf16_f32 v37, v34, v35")
    p("v_lshlrev_b32 v32, 16, v36"); p("v_and_b32 v33, 0xffff0000, v36")
    p("v_lshlrev_b32 v34, 16, v37"); p("v_and_b32 v35, 0xffff0000, v37")
    for i in range(4): p("v_mul_f32 v%d, v%d, v54" % (40+i, 32+i))
    for i in range(4): p("v_fma_f32 v%d, -v%d, v53, v%d" % (44+i, 40+i, 32+i))
    for i in range(4): p("v_fma_f32 v%d, v%d, v54, v%d" % (40+i, 44+i, 40+i))
    for i in range(4): p("v_cvt_pk_bf16_f32 v%d, v%d, v%d" % (36+i, 40+i, 40+i))
    p("v_lshlrev_b32 v12, 4, v0")
    p("ds_write_b128 v12, v[36:39] offset:%d" % L_XN)
    p("s_waitcnt lgkmcnt(0)")
    p("s_barrier")
    stamp("ln_done")
    p("s_add_u32 %s, %s, 1" % (sE, sE)); p("s_and_b32 %s, %s, 0xff" % (sTAG, sE)); p("v_mov_b32 v%d, %s" % (vTAG, sTAG))
    p("s_and_b32 %s, %s, 3" % (sA, sC)); p("s_lshl_b32 %s, %s, 8" % (sA, sA)); p("s_lshl_b32 %s, %s, 6" % (sD, sW)); p("s_add_u32 %s, %s, %s" % (sA, sA, sD))
    p("v_lshrrev_b32 v12, 3, v1"); p("v_add_u32 v12, %s, v12" % sA); p("v_lshlrev_b32 v12, 2, v12")
    p("s_and_b32 %s, s2, 7" % sA); p("s_lshl_b32 %s, %s, 7" % (sA, sA)); p("s_lshl_b32 %s, %s, 5" % (sD, sW)); p("s_add_u32 %s, %s, %s" % (sA, sA, sD))
    p("v_lshrrev_b32 v13, 4, v1"); p("v_add_u32 v13, %s, v13" % sA); p("v_lshlrev_b32 v13, 2, v13")
    for t in range(0, 8, 2):
        p("ds_read2_b32 v[%d:%d], v12 offset0:%d offset1:%d" % (96+t, 97+t, 8*t, 8*t+8))
    for t in range(0, 8, 2):
        p("ds_read2_b32 v[%d:%d], v13 offset0:%d offset1:%d" % (104+t, 105+t, 4*t, 4*t+4))
    for t in range(8):
        p("s_add_u32 %s, %s, %d" % (sT0, sW3B, t*4*7168))
        svmem("buffer_load_dwordx4 %s, v17, %s, %s offen%s" % (vr(192+4*t, 4), SW3, sT0, ntw), "W3_%d" % t, True)
    p("s_waitcnt lgkmcnt(0)")
    for t in range(8):
        A = 48 + 4*(t % 2)
        for jj in range(4): p("v_and_b32 v%d, v%d, v%d" % (A+jj, 96+t, vMASK+jj))
        if t == 0: p.wait("Q7")
        p("v_mfma_f32_16x16x32_bf16 v[56:59], %s, %s, %s" % (vr(A, 4), vr(128+4*t, 4), "0" if t == 0 else "v[56:59]"))
    for t in range(8):
        for jj in range(4): p("v_and_b32 v%d, v%d, v%d" % (PERM+4*t+jj, 104+t, vMASK+jj))
    p("v_and_b32 v12, 7, v1"); p("v_lshlrev_b32 v12, 5, v12")
    p("v_bfe_u32 v13, v1, 4, 1"); p("v_lshlrev_b32 v13, 4, v13"); p("v_add_u32 v12, v12, v13")
    p("v_lshrrev_b32 v13, 5, v1"); p("v_lshlrev_b32 v13, 8, v13"); p("v_add_u32 v12, v12, v13")
    p("s_lshl_b32 %s, %s, 9" % (sA, sW)); p("v_add_u32 v12, %s, v12" % sA)
    p("s_mov_b32 exec_lo, 0x00ff00ff"); p("s_mov_b32 exec_hi, 0xff00ff00")
    p("ds_write_b128 v12, v[56:59] offset:%d" % L_QP)
    p("s_mov_b64 exec, -1")
    p("s_waitcnt lgkmcnt(0)")
    p("s_barrier")
    stamp("q_gemv")
    SKIP0 = p.label("pubq")
    p("s_cmp_lg_u32 %s, 0" % sW); p("s_cbranch_scc1 %s" % SKIP0)
    p("v_lshlrev_b32 v12, 4, v1")
    for i in range(8): p("ds_read_b128 %s, v12 offset:%d" % (vr(32+4*i, 4) if i < 4 else vr(112+4*(i-4), 4), L_QP + 256*i))
    p("s_lshl_b32 %s, %s, 2" % (sB, sG)); p("s_and_b32 %s, %s, 3" % (sD, sC)); p("s_add_u32 %s, %s, %s" % (sB, sB, sD)); p("s_lshl_b32 %s, %s, 12" % (sB, sB))
    p("s_lshr_b32 %s, %s, 2" % (sD, sC)); p("s_lshl_b32 %s, %s, 8" % (sD, sD)); p("s_add_u32 %s, %s, %s" % (sB, sB, sD))
    p("s_add_u32 %s, %s, %d" % (sB, sB, Q_BASE))
    p("s_waitcnt lgkmcnt(0)")
    for r in range(4):
        p("v_add_f32 v%d, v%d, v%d" % (32+r, 32+r, 36+r)); p("v_add_f32 v%d, v%d, v%d" % (40+r, 40+r, 44+r))
        p("v_add_f32 v%d, v%d, v%d" % (112+r, 112+r, 116+r)); p("v_add_f32 v%d, v%d, v%d" % (120+r, 120+r, 124+r))
    for r in range(4):
        p("v_add_f32 v%d, v%d, v%d" % (32+r, 32+r, 40+r)); p("v_add_f32 v%d, v%d, v%d" % (112+r, 112+r, 120+r))
    for r in range(4): p("v_add_f32 v%d, v%d, v%d" % (32+r, 32+r, 112+r))
    p("s_mov_b32 exec_lo, 0xffff"); p("s_mov_b32 exec_hi, 0")
    p.vmem("buffer_store_dwordx4 v[32:35], v12, %s, %s offen%s" % (SWS, sB, HS), "PUBQ", cond=True)
    p("s_mov_b64 exec, -1")
    p("%s:" % SKIP0)
    loadK(0)
    p.wait("W1_7")
    stamp("w1_landed")
    for t in range(8):
        p("v_mfma_f32_16x16x32_bf16 v[60:63], %s, %s, %s" % (vr(PERM+4*t, 4), vr(160+4*t, 4), "0" if t == 0 else "v[60:63]"))
    loadK(1)
    p.wait("W3_7")
    stamp("w3_landed")
    for t in range(8):
        p("v_mfma_f32_16x16x32_bf16 v[96:99], %s, %s, %s" % (vr(PERM+4*t, 4), vr(192+4*t, 4), "0" if t == 0 else "v[96:99]"))
    SKIP2 = p.label("flag")
    p("s_cmp_lg_u32 %s, 0" % sW); p("s_cbranch_scc1 %s" % SKIP2)
    p("v_lshlrev_b32 v12, 2, v1"); p("v_mov_b32 v13, %s" % sE)
    p("s_lshl_b32 %s, s2, 7" % sA); p("s_add_u32 %s, %s, %d" % (sA, sA, FLAG_BASE))
    p.wait("PUBQ")
    p("s_mov_b32 exec_hi, 0")
    p.vmem("buffer_store_dword v13, v12, %s, %s offen%s" % (SWS, sA, HS), "FLAG", cond=True)
    p("s_mov_b64 exec, -1")
    p("%s:" % SKIP2)
    stamp("flag")
    p("v_and_b32 v12, 15, v1"); p("v_lshlrev_b32 v12, 5, v12")
    p("v_bfe_u32 v13, v1, 4, 1"); p("v_lshlrev_b32 v13, 4, v13"); p("v_add_u32 v12, v12, v13")
    p("s_lshl_b32 %s, %s, 10" % (sA, sW)); p("v_add_u32 v12, %s, v12" % sA)
    p("s_mov_b32 exec_hi, 0")
    p("ds_write_b128 v12, v[60:63] offset:%d" % L_BP)
    p("ds_write_b128 v12, v[96:99] offset:%d" % (L_BP+512))
    p("s_mov_b64 exec, -1")
    loadK(2)
    p("s_waitcnt lgkmcnt(0)")
    p("s_barrier")
    stamp("b_gemv")
    SKIP1 = p.label("pub1")
    p("s_cmp_lg_u32 %s, 1" % sW); p("s_cbranch_scc1 %s" % SKIP1)
    p("s_cmp_ge_u32 s2, 224"); p("s_cbranch_scc1 %s" % SKIP1)
    p("v_lshlrev_b32 v12, 4, v1")
    for i in range(4): p("ds_read_b128 %s, v12 offset:%d" % (vr(32+4*i, 4), L_BP + 1024*i))
    p("s_and_b32 %s, s2, 7" % sA); p("s_mul_i32 %s, %s, %d" % (sA, sA, 3584*4)); p("s_add_u32 %s, %s, %d" % (sA, sA, BP_BASE))
    p("s_lshl_b32 %s, %s, 9" % (sD, sCB1)); p("s_lshl_b32 %s, %s, 9" % (sB, sCB3)); p("s_add_u32 %s, %s, %d" % (sB, sB, 8*3584*4))
    p("v_mov_b32 v13, %s" % sD); p("v_mov_b32 v14, %s" % sB); p("v_cmp_gt_u32 vcc, 32, v1"); p("v_cndmask_b32 v13, v14, v13, vcc")
    p("v_and_b32 v14, 31, v1"); p("v_lshlrev_b32 v14, 4, v14"); p("v_add_u32 v13, v13, v14")
    p("s_waitcnt lgkmcnt(0)")
    for r in range(4):
        p("v_add_f32 v%d, v%d, v%d" % (32+r, 32+r, 36+r)); p("v_add_f32 v%d, v%d, v%d" % (40+r, 40+r, 44+r))
    for r in range(4): p("v_add_f32 v%d, v%d, v%d" % (32+r, 32+r, 40+r))
    for r in range(4): p("v_bfi_b32 v%d, %s, v%d, v%d" % (32+r, sFF, vTAG, 32+r))
    p.vmem("buffer_store_dwordx4 v[32:35], v13, %s, %s offen%s" % (SWS, sA, HS), "PUBB", cond=True)
    p("%s:" % SKIP1)
    for t in range(3, poll_after): loadK(t)
    SKIPP = p.label("nopoll")
    p("v_lshlrev_b32 v14, 7, v1")
    p("s_lshl_b32 %s, %s, 13" % (sB, sG)); p("s_add_u32 %s, %s, %d" % (sB, sB, FLAG_BASE))
    p("s_cmp_lg_u32 %s, 0" % sW); p("s_cbranch_scc1 %s" % SKIPP)
    p.vmem("buffer_load_dword v15, v14, %s, %s offen%s" % (SWS, sB, HL), "POLL", cond=True)
    p("%s:" % SKIPP)
    pend = []
    for t in range(poll_after, 8): pend += K_loads(t)
    for t in range(4): pend += V_loads(t)
    def tr(n):
        for _ in range(min(n, len(pend))): pend.pop(0)()
    tr(cfg.get("n_after_poll", 16))
    OKP = p.label("okpoll")
    p("s_cmp_lg_u32 %s, 0" % sW); p("s_cbranch_scc1 %s" % OKP)
    p.wait("POLL")
    p("s_mov_b32 %s, %d" % (sRETRY, RETRIES))
    RP = p.label("rpoll")
    p("%s:" % RP)
    p("v_cmp_ne_u32 vcc, %s, v15" % sE)
    if cfg.get("nodep"): p("s_branch %s" % OKP)
    p("s_cbranch_vccz %s" % OKP)
    p("s_sub_u32 %s, %s, 1" % (sRETRY, sRETRY)); p("s_cbranch_scc1 %s" % OKP)
    p("s_sleep %d" % cfg.get("sleep", 8))
    p("buffer_load_dword v15, v14, %s, %s offen%s" % (SWS, sB, HL))
    p("s_waitcnt vmcnt(0)")
    p("s_branch %s" % RP)
    p("%s:" % OKP)
    p("s_barrier")
    stamp("poll_ok")
    p("s_lshl_b32 %s, %s, 14" % (sA, sG)); p("s_lshl_b32 %s, %s, 10" % (sD, sW)); p("s_add_u32 %s, %s, %s" % (sA, sA, sD)); p("s_add_u32 %s, %s, %d" % (sA, sA, Q_BASE))
    for kq in range(4):
        p("s_add_u32 %s, %s, %d" % (sT0, sA, kq*4096))
        p.vmem("buffer_load_dwordx4 %s, v%d, %s, %s offen%s" % (vr(96+4*kq, 4), vL16, SWS, sT0, HL), "QG")
    tr(cfg.get("n_after_qg", 16))
    p("v_lshrrev_b32 v12, 5, v1"); p("s_lshl_b32 %s, %s, 1" % (sA, sW)); p("v_add_u32 v12, %s, v12" % sA); p("v_mul_u32_u24 v12, 272, v12")
    p("v_and_b32 v13, 31, v1"); p("v_lshlrev_b32 v13, 3, v13"); p("v_add_u32 v12, v12, v13")
    p("v_and_b32 v14, 7, v1"); p("v_mul_u32_u24 v14, 272, v14"); p("v_lshrrev_b32 v13, 4, v1"); p("v_lshlrev_b32 v13, 4, v13"); p("v_add_u32 v14, v14, v13")
    p("v_bfe_u32 v13, v1, 3, 1"); p("v_lshlrev_b32 v13, 6, v13"); p("v_add_u32 v14, v14, v13")
    p("v_mov_b32 v%d, 0xff800000" % vMAX)
    p.wait("QG")
    for r in range(4):
        p("v_add_f32 v%d, v%d, v%d" % (96+r, 96+r, 100+r)); p("v_add_f32 v%d, v%d, v%d" % (104+r, 104+r, 108+r))
    for r in range(4): p("v_add_f32 v%d, v%d, v%d" % (96+r, 96+r, 104+r))
    p("v_cvt_pk_bf16_f32 v96, v96, v97"); p("v_cvt_pk_bf16_f32 v97, v98, v99")
    p("ds_write_b64 v12, v[96:97] offset:%d" % L_QL)
    p("s_waitcnt lgkmcnt(0)")
    p("s_barrier")
    stamp("q_ready")
    for lam in range(2): p("ds_read_b128 %s, v14 offset:%d" % (vr(QF+4*lam, 4), L_QL + 128*lam))
    tr(1)
    p("s_waitcnt lgkmcnt(0)")
    def qk_mfma(t):
        D = PERM + 16*(t % 2)
        p.wait("K%d" % t)
        for lam in range(2):
            for h in range(2):
                for a_ in range(2):
                    d = D + 8*h + 4*a_
                    p("v_mfma_f32_16x16x32_bf16 %s, %s, %s, %s" % (vr(d, 4), ar(32*t+16*h+8*a_+4*lam, 4), vr(QF+4*lam, 4), "0" if lam == 0 else vr(d, 4)))
    def qk_post(t):
        D = PERM + 16*(t % 2); T = QF + 8
        for h in range(2):
            for r in range(4): p("v_permlane32_swap_b32 v%d, v%d" % (D+8*h+r, D+8*h+4+r))
        for h in range(2):
            for r in range(4): p("v_add_f32_dpp v%d, v%d, v%d row_ror:8%s" % (D+8*h+r, D+8*h+4+r, D+8*h+r, DPP))
        tr(1)
        src = [D+0, D+1, D+2, D+3, D+8, D+9, D+10, D+11]
        pk = [D+4, D+5, D+6, D+7]
        for i in range(4): p("v_cvt_pk_bf16_f32 v%d, v%d, v%d" % (pk[i], src[2*i], src[2*i+1]))
        for i in range(4):
            p("v_lshlrev_b32 v%d, 16, v%d" % (T+2*i, pk[i])); p("v_and_b32 v%d, 0xffff0000, v%d" % (T+2*i+1, pk[i]))
        for i in range(8): p("v_mul_f32 v%d, %s, v%d" % (T+i, sSCALE, T+i))
        tr(1)
        for i in range(4):
            p("v_cvt_pk_bf16_f32 v%d, v%d, v%d" % (SP+4*t+i, T+2*i, T+2*i+1))
            p("v_max3_f32 v%d, v%d, v%d, v%d" % (vMAX, vMAX, T+2*i, T+2*i+1))
    qk_mfma(0)
    for t in range(1, 8):
        qk_mfma(t)
        qk_post(t-1)
    qk_post(7)
    allred(p, [vMAX], [12], "v_max_f32", [16, 32])
    p("v_and_b32 v12, 15, v1"); p("v_lshlrev_b32 v12, 2, v12"); p("s_lshl_b32 %s, %s, 6" % (sA, sW)); p("v_add_u32 v13, %s, v12" % sA)
    p("ds_write_b32 v13, v%d offset:%d" % (vMAX, L_MX))
    p("s_waitcnt lgkmcnt(0)")
    p("s_barrier")
    p("ds_read_b32 v14, v12 offset:%d" % L_MX)
    p("ds_read_b32 v15, v12 offset:%d" % (L_MX+64))
    p("ds_read_b32 v16, v12 offset:%d" % (L_MX+128))
    p("ds_read_b32 v17, v12 offset:%d" % (L_MX+192))
    tr(1)
    p("s_waitcnt lgkmcnt(0)")
    p("v_max3_f32 v14, v14, v15, v16"); p("v_max_f32 v14, v14, v17")
    p("v_cvt_pk_bf16_f32 v14, v14, v14"); p("v_lshlrev_b32 v%d, 16, v14" % vMAX)
    p("v_mul_f32 v16, %s, v%d" % (sLOG2E, vMAX)); p("v_sub_f32 v16, 0, v16")
    stamp("qk_done")
    p("v_mov_b32 v%d, 0" % vL0); p("v_mov_b32 v%d, 0" % vL1)
    for b_ in range(8):
        T = PERM + 8*(b_ % 2)
        for i in range(4):
            p("v_lshlrev_b32 v%d, 16, v%d" % (T+2*i, SP+4*b_+i)); p("v_and_b32 v%d, 0xffff0000, v%d" % (T+2*i+1, SP+4*b_+i))
        for i in range(8): p("v_fma_f32 v%d, v%d, %s, v16" % (T+i, T+i, sLOG2E))
        for i in range(8): p("v_exp_f32 v%d, v%d" % (T+i, T+i))
        for i in range(4):
            p("v_cvt_pk_bf16_f32 v%d, v%d, v%d" % (SP+4*b_+i, T+2*i, T+2*i+1))
            p("v_add_f32 v%d, v%d, v%d" % (vL0, vL0, T+2*i)); p("v_add_f32 v%d, v%d, v%d" % (vL1, vL1, T+2*i+1))
        tr(1)
    tr(100)
    p("v_add_f32 v%d, v%d, v%d" % (vL0, vL0, vL1))
    allred(p, [vL0], [12], "v_add_f32", [16, 32])
    p("v_and_b32 v12, 15, v1"); p("v_lshlrev_b32 v12, 2, v12"); p("s_lshl_b32 %s, %s, 6" % (sA, sW)); p("v_add_u32 v13, %s, v12" % sA)
    p("ds_write_b32 v13, v%d offset:%d" % (vL0, L_LW))
    stamp("p_done")
    def silu(src, dst, tmp, n):
        for r in range(n): p("v_mul_f32 v%d, %s, v%d" % (tmp+r, sLOG2E, src+r))
        for r in range(n): p("v_exp_f32 v%d, -v%d" % (tmp+r, tmp+r))
        for r in range(n): p("v_add_f32 v%d, 1.0, v%d" % (tmp+r, tmp+r))
        for r in range(n): p("v_rcp_f32 v%d, v%d" % (tmp+r, tmp+r))
        for r in range(n): p("v_mul_f32 v%d, v%d, v%d" % (dst+r, src+r, tmp+r))
    def unpack2(dst, src):
        p("v_lshlrev_b32 v%d, 16, v%d" % (dst, src)); p("v_and_b32 v%d, 0xffff0000, v%d" % (dst+1, src))
    sH0, sH1 = "s69", "s70"
    p("v_lshrrev_b32 v15, 3, v1"); p("v_mul_u32_u24 v15, 14336, v15"); p("v_and_b32 v13, 7, v1"); p("v_min_u32 v13, 6, v13"); p("v_lshlrev_b32 v13, 4, v13"); p("v_add_u32 v15, v15, v13")
    p("s_mul_i32 %s, %s, 112" % (sH0, sRB)); p("s_add_u32 %s, %s, %d" % (sH0, sH0, BP_BASE)); p("s_add_u32 %s, %s, %d" % (sH1, sH0, 8*14336))
    p.vmem("buffer_load_dwordx4 v[16:19], v15, %s, %s offen%s" % (SWS, sH0, HL), "HG")
    p.vmem("buffer_load_dwordx4 v[20:23], v15, %s, %s offen%s" % (SWS, sH1, HL), "HG")
    def retry_block(check, reload, base):
        R = p.label("r" + base); OK = p.label("ok" + base)
        p("s_mov_b32 %s, %d" % (sRETRY, RETRIES))
        p("%s:" % R)
        check()
        p("s_cbranch_vccz %s" % OK)
        p("s_sub_u32 %s, %s, 1" % (sRETRY, sRETRY)); p("s_cbranch_scc1 %s" % OK)
        reload()
        p("s_waitcnt vmcnt(0)")
        p("s_branch %s" % R)
        p("%s:" % OK)
    def h_compute():
        p.wait("HG")
        def rl():
            p("s_sleep %d" % cfg.get("sleep", 8))
            p("buffer_load_dwordx4 v[16:19], v15, %s, %s offen%s" % (SWS, sH0, HL))
            p("buffer_load_dwordx4 v[20:23], v15, %s, %s offen%s" % (SWS, sH1, HL))
        retry_block(lambda: tagcheck(list(range(16, 24)), 14), rl, "h")
        red4(p, [16, 17, 18, 19]); red4(p, [20, 21, 22, 23])
        p("v_cvt_pk_bf16_f32 v24, v16, v20")
        unpack2(16, 24)
        silu(16, 16, 24, 1)
        p("v_cvt_pk_bf16_f32 v24, v16, v16"); p("v_lshlrev_b32 v16, 16, v24")
        p("v_mul_f32 v16, v16, v17")
        p("v_cvt_pk_bf16_f32 v16, v16, v16")
        p("v_lshrrev_b32 v12, 4, v1"); p("v_and_b32 v13, 1, v12"); p("v_lshlrev_b32 v13, 1, v13"); p("v_lshrrev_b32 v12, 1, v12"); p("v_or_b32 v12, v12, v13")
        p("v_lshlrev_b32 v12, 5, v12"); p("v_and_b32 v13, 7, v1"); p("v_lshlrev_b32 v13, 2, v13"); p("v_add_u32 v13, v13, v12")
        p("ds_write_b32 v13, v16 offset:%d" % L_HL)
        p("v_lshrrev_b32 v13, 4, v1"); p("v_lshlrev_b32 v13, 5, v13")
        p("s_waitcnt lgkmcnt(0)")
        p("ds_read_b128 v[16:19], v13 offset:%d" % L_HL); p("ds_read_b128 v[20:23], v13 offset:%d" % (L_HL+16))
    sOB = "s77"
    late = []
    def tl(n=1):
        for _ in range(min(n, len(late))): late.pop(0)()
    def pv(t, trickle=False):
        base = RING + 32*(t % 4)
        p.wait("V%d" % t)
        def perm(j):
            c, h = j >> 1, j & 1
            for tt in range(4):
                p("v_perm_b32 v%d, v%d, v%d, %s" % (PERM+4*j+tt, base+4*(2*tt+1)+c, base+4*(2*tt)+c, sSELHI if h else sSELLO))
        def mm(j):
            p("v_mfma_f32_16x16x32_bf16 %s, %s, %s, %s" % (vr(ACC+4*j, 4), vr(PERM+4*j, 4), vr(SP+4*t, 4), "0" if t == 0 else vr(ACC+4*j, 4)))
        perm(0)
        for j in range(1, 8):
            perm(j); mm(j-1)
            if trickle and j in (2, 5): tl(1)
        mm(7)
    vW2O, vOO = 31, 11
    sW2B = "s3"
    def late_addresses():
        p("v_lshrrev_b32 v12, 4, v1"); p("v_and_b32 v13, 15, v1"); p("v_lshlrev_b32 v13, 4, v13")
        p("v_lshlrev_b32 v%d, 11, v12" % vW2O); p("v_add_u32 v%d, v%d, v13" % (vW2O, vW2O))
        p("v_lshlrev_b32 v%d, 14, v12" % vOO); p("v_add_u32 v%d, v%d, v13" % (vOO, vOO))
        p("s_lshl_b32 %s, %s, 10" % (sD, sCH)); p("s_lshl_b32 %s, %s, 8" % (sA, sW)); p("s_add_u32 %s, %s, %s" % (sD, sD, sA))
        p("s_mul_i32 %s, %s, %d" % (sW2B, sRB, 28*2048)); p("s_add_u32 %s, %s, %s" % (sW2B, sW2B, sD))
        p("s_lshl_b32 %s, %s, 16" % (sOB, sRB)); p("s_add_u32 %s, %s, %s" % (sOB, sOB, sD))
    def W2_loads():
        L = []
        for t in range(7):
            def f(t=t):
                p("s_add_u32 %s, %s, %d" % (sT0, sW2B, t*4*2048))
                svmem("buffer_load_dwordx4 %s, v%d, %s, %s offen%s" % (ar(4*t, 4), vW2O, SW2, sT0, ntw), "W2")
            L.append(f)
        return L
    def O_loads():
        L = []
        for t in range(8):
            def f(t=t):
                p("s_add_u32 %s, %s, %d" % (sT0, sOB, t*2048))
                svmem("buffer_load_dwordx4 %s, v%d, %s, %s offen%s" % (ar(32+4*t, 4), vOO, SWO, sT0, ntw), "O")
            L.append(f)
        return L
    vAWB, vRD, vPO, vLWR, vMLS, vG0, vG1 = 24, 25, 26, 27, 28, 29, 30
    vPC, vCM, vCPW, vCPR, vZ = 160, 161, 162, 163, 165
    vAW = PERM + 24
    sPO, sPB, sPS, sGV, sGM, sGA = "s71", "s72", "s73", "s74", "s75", "s76"
    def tail_addresses_a():
        p("v_and_b32 v12, 7, v1"); p("v_lshlrev_b32 v13, 9, v12"); p("v_lshlrev_b32 v12, 4, v12"); p("v_add_u32 v12, v12, v13")
        p("v_lshrrev_b32 v13, 4, v1"); p("v_lshlrev_b32 v13, 7, v13"); p("v_add_u32 v12, v12, v13")
        p("s_lshl_b32 %s, %s, 12" % (sA, sW)); p("s_add_u32 %s, %s, %d" % (sA, sA, L_OP)); p("v_add_u32 v%d, %s, v12" % (vAWB, sA))
        p("v_lshlrev_b32 v%d, 4, v0" % vRD)
        p("v_lshrrev_b32 v14, 5, v0"); p("v_and_b32 v15, 7, v0"); p("v_xor_b32 v14, v14, v15"); p("v_lshlrev_b32 v14, 4, v14")
        p("v_lshrrev_b32 v15, 3, v0"); p("v_lshlrev_b32 v15, 7, v15"); p("v_add_u32 v%d, v14, v15" % vPO)
        p("s_mul_i32 %s, s2, %d" % (sPO, O_PITCH)); p("s_add_u32 %s, %s, %d" % (sPO, sPO, O_BASE))
        p("v_and_b32 v13, 15, v1"); p("v_lshlrev_b32 v%d, 2, v13" % vLWR)
        p("v_lshlrev_b32 v%d, 4, v1" % vMLS); p("v_add_u32 v%d, 4096, v%d" % (vMLS, vMLS))
        p("v_lshrrev_b32 v12, 3, v1"); p("v_mul_u32_u24 v%d, %d, v12" % (vG0, O_PITCH))
        p("v_and_b32 v13, 7, v1"); p("v_lshlrev_b32 v13, 4, v13"); p("v_add_u32 v%d, v%d, v13" % (vG1, vG0))
        p("s_lshl_b32 %s, %s, 6" % (sA, sG)); p("s_mul_i32 %s, %s, %d" % (sA, sA, O_PITCH)); p("s_add_u32 %s, %s, %d" % (sA, sA, O_BASE))
        p("s_bfe_u32 %s, s2, 0x30003" % sB)
        p("s_lshl_b32 %s, %s, 4" % (sD, sB)); p("s_add_u32 %s, %s, %s" % (sGM, sA, sD)); p("s_add_u32 %s, %s, 4096" % (sGM, sGM))
        p("s_lshl_b32 %s, %s, 2" % (sB, sB)); p("s_bfe_u32 %s, s2, 0x20001" % sD); p("s_add_u32 %s, %s, %s" % (sB, sB, sD)); p("s_lshl_b32 %s, %s, 7" % (sB, sB))
        p("s_add_u32 %s, %s, %s" % (sB, sB, sA))
        p("s_mul_i32 %s, %s, %d" % (sD, sW, 16*O_PITCH))
        p("s_add_u32 %s, %s, %s" % (sGV, sB, sD)); p("s_add_u32 %s, %s, %s" % (sGA, sGM, sD))
    def tail_addresses_b():
        p("v_bfe_u32 v12, v1, 2, 2"); p("v_lshlrev_b32 v12, 14, v12")
        p("v_and_b32 v13, 3, v1"); p("v_lshlrev_b32 v13, 5, v13"); p("v_add_u32 v12, v12, v13")
        p("v_bfe_u32 v13, v1, 4, 1"); p("v_lshlrev_b32 v13, 4, v13"); p("v_add_u32 v%d, v12, v13" % vPC)
        p("s_lshl_b32 %s, %s, 18" % (sA, sCH)); p("s_lshl_b32 %s, %s, 16" % (sD, sW)); p("s_add_u32 %s, %s, %s" % (sA, sA, sD))
        p("s_lshl_b32 %s, %s, 7" % (sD, sRB)); p("s_add_u32 %s, %s, %s" % (sA, sA, sD))
        p("s_add_u32 %s, %s, %d" % (sPB, sA, BB_BASE)); p("s_add_u32 %s, %s, %d" % (sPS, sA, S_BASE))
        p("v_lshrrev_b32 v12, 4, v1"); p("v_and_b32 v13, 1, v12"); p("v_lshlrev_b32 v13, 1, v13"); p("v_lshrrev_b32 v12, 1, v12"); p("v_or_b32 v12, v12, v13")
        p("v_lshlrev_b32 v12, 5, v12"); p("v_and_b32 v13, 7, v1"); p("v_lshlrev_b32 v13, 2, v13"); p("v_add_u32 v12, v12, v13")
        p("s_lshl_b32 %s, %s, 7" % (sA, sW)); p("v_add_u32 v%d, %s, v12" % (vCPW, sA))
        p("v_lshrrev_b32 v13, 4, v1"); p("v_lshlrev_b32 v%d, 5, v13" % vCPR)
        p("s_lshl_b32 %s, %s, 3" % (sA, sW)); p("v_mov_b32 v%d, %s" % (vCM, sA)); p("v_mov_b32 v%d, 0" % vZ)
    o_early = cfg.get("o_early", False)
    pv(0); loadV(4)
    pv(1); loadV(5)
    pv(2); loadV(6)
    pv(3); loadV(7)
    late_addresses()
    late += W2_loads() + O_loads()
    n_pre = cfg.get("n_pre", 10)
    pv(4, True); tl(1); h_compute(); tl(1); p("s_waitcnt lgkmcnt(0)"); pv(5, True); tl(1); tail_addresses_a(); tl(1); pv(6, True)
    while len(late) > 15 - n_pre: tl(1)
    pv(7)
    stamp("pv_done")
    for j in range(8): p("v_xor_b32 v%d, %d, v%d" % (vAW+j, 16*j, vAWB))
    p("s_mov_b32 exec_lo, 0x00ff00ff"); p("s_mov_b32 exec_hi, 0x00ff00ff")
    for j in range(8):
        p("ds_write_b128 v%d, %s" % (vAW+j, vr(ACC+4*j, 4)))
    p("s_mov_b64 exec, -1")
    p("s_waitcnt lgkmcnt(0)")
    p("s_barrier")
    for i in range(4): p("ds_read_b128 %s, v%d offset:%d" % (vr(PERM+4*i, 4), vRD, L_OP + 4096*i))
    for i in range(4): p("ds_read_b32 v%d, v%d offset:%d" % (PERM+16+i, vLWR, L_LW + 64*i))
    p("s_waitcnt lgkmcnt(4)")
    for r in range(4):
        p("v_add_f32 v%d, v%d, v%d" % (PERM+r, PERM+r, PERM+4+r)); p("v_add_f32 v%d, v%d, v%d" % (PERM+8+r, PERM+8+r, PERM+12+r))
    for r in range(4): p("v_add_f32 v%d, v%d, v%d" % (PERM+r, PERM+r, PERM+8+r))
    for r in range(4): p("v_bfi_b32 v%d, %s, v%d, v%d" % (PERM+r, sFF, vTAG, PERM+r))
    p.vmem("buffer_store_dwordx4 %s, v%d, %s, %s offen%s" % (vr(PERM, 4), vPO, SWS, sPO, HS), "PUBO")
    SKIP4 = p.label("ml")
    p("s_cmp_lg_u32 %s, 0" % sW); p("s_cbranch_scc1 %s" % SKIP4)
    p("s_waitcnt lgkmcnt(0)")
    p("v_add_f32 v%d, v%d, v%d" % (PERM+16, PERM+16, PERM+17)); p("v_add_f32 v%d, v%d, v%d" % (PERM+18, PERM+18, PERM+19)); p("v_add_f32 v%d, v%d, v%d" % (PERM+17, PERM+16, PERM+18))
    p("v_bfi_b32 v%d, %s, v%d, v%d" % (PERM+16, sFF, vTAG, vMAX)); p("v_bfi_b32 v%d, %s, v%d, v%d" % (PERM+17, sFF, vTAG, PERM+17))
    p("v_mov_b32 v%d, %s" % (PERM+18, sE)); p("v_mov_b32 v%d, %s" % (PERM+19, sE))
    p("s_mov_b32 exec_lo, 0xff"); p("s_mov_b32 exec_hi, 0")
    p.vmem("buffer_store_dwordx4 %s, v%d, %s, %s offen%s" % (vr(PERM+16, 4), vMLS, SWS, sPO, HS), "PUBML", cond=True)
    p("s_mov_b64 exec, -1")
    p("%s:" % SKIP4)
    p("s_waitcnt lgkmcnt(0)")
    stamp("o_pub")
    DD = 124
    def pub_cols(sb, name):
        for r in range(4): p("v_bfi_b32 v%d, %s, v%d, v%d" % (DD+r, sFF, vTAG, DD+r))
        p("s_mov_b32 exec_hi, 0")
        p.vmem("buffer_store_dwordx4 %s, v%d, %s, %s offen%s" % (vr(DD, 4), vPC, SWS, sb, HS), name)
        p("s_mov_b64 exec, -1")
    def diag_mult(src, n, breg):
        for t in range(n+1):
            if t < n:
                A = PERM + 4*(t % 4)
                for jj in range(4): p("v_and_b32 v%d, v%d, v%d" % (A+jj, src+t, vMASK+jj))
            if t >= 1:
                tt = t-1; AA = PERM + 4*(tt % 4)
                p("v_mfma_f32_16x16x32_bf16 %s, %s, %s, %s" % (vr(DD, 4), vr(AA, 4), ar(breg+4*tt, 4), "0" if tt == 0 else vr(DD, 4)))
    def w2_mult():
        p.wait("W2")
        diag_mult(16, 7, 0)
        pub_cols(sPB, "PUBB2")
        stamp("b_pub")
    def g2_loads(R, nm):
        f = (lambda t: p.vmem(t, nm)) if nm else p
        f("buffer_load_dwordx4 %s, v%d, %s, %s offen%s" % (vr(R, 4), vG1, SWS, sGV, HL))
        f("buffer_load_dwordx4 %s, v%d, %s, %s offen%s" % (vr(R+8, 4), vG0, SWS, sGA, HL))
        p("s_add_u32 %s, %s, %d" % (sT0, sGV, 8*O_PITCH))
        f("buffer_load_dwordx4 %s, v%d, %s, %s offen%s" % (vr(R+4, 4), vG1, SWS, sT0, HL))
        p("s_add_u32 %s, %s, %d" % (sT0, sGA, 8*O_PITCH))
        f("buffer_load_dwordx4 %s, v%d, %s, %s offen%s" % (vr(R+12, 4), vG0, SWS, sT0, HL))
    def g2_check():
        p("v_xor_b32 v14, %s, v106" % sE)
        for r in (107, 110, 111): p("v_bitop3_b32 v14, v%d, %s, v14 bitop3:0xbe" % (r, sE))
        regs = list(range(96, 106)) + [108, 109]
        p("v_xor_b32 v15, %s, v%d" % (sTAG, regs[0]))
        for r in regs[1:]: p("v_bitop3_b32 v15, v%d, %s, v15 bitop3:0xbe" % (r, sTAG))
        p("v_and_or_b32 v15, v15, %s, v14" % sFF)
        p("v_cmp_ne_u32 vcc, 0, v15")
        if cfg.get("nodep"): p("s_mov_b64 vcc, 0")
    g2_loads(96, "G2A")
    tl(100)
    tail_addresses_b()
    w2_mult()
    p.wait("G2A")
    stamp("g2_first")
    def rl2():
        if cfg.get("g2sleep", 0): p("s_sleep %d" % cfg["g2sleep"])
        g2_loads(96, None)
    retry_block(g2_check, rl2, "g2")
    stamp("g2_ok")
    if stamps: p("s_mov_b32 s3, %s" % sRETRY)
    p("v_and_b32 v104, 0xffffff00, v104"); p("v_and_b32 v108, 0xffffff00, v108")
    p("v_max_f32 v120, v104, v108")
    allred(p, [120], [121], "v_max_f32", [8, 16, 32])
    p("v_sub_f32 v104, v104, v120"); p("v_sub_f32 v108, v108, v120")
    p("v_mul_f32 v104, %s, v104" % sLOG2E); p("v_mul_f32 v108, %s, v108" % sLOG2E)
    p("v_exp_f32 v104, v104"); p("v_exp_f32 v108, v108")
    for r in range(4): p("v_mul_f32 v%d, v104, v%d" % (96+r, 96+r))
    p("v_mul_f32 v105, v104, v105")
    for r in range(4): p("v_fmac_f32 v%d, v108, v%d" % (96+r, 100+r))
    p("v_fmac_f32 v105, v108, v109")
    allred(p, [105], [121], "v_add_f32", [32, 16, 8])
    red4(p, [96, 97, 98, 99])
    p("v_mov_b32 v121, v105")
    p("ds_write_b32 v%d, v96 offset:%d" % (vCPW, L_CP))
    p("ds_write_b64 v%d, v[120:121] offset:%d" % (vCM, L_CM))
    p("s_waitcnt lgkmcnt(0)")
    p("s_barrier")
    p("ds_read_b128 v[100:103], v%d offset:%d" % (vZ, L_CM)); p("ds_read_b128 v[104:107], v%d offset:%d" % (vZ, L_CM+16))
    for w_ in range(4):
        p("ds_read_b128 %s, v%d offset:%d" % (vr(32+8*w_, 4), vCPR, L_CP + 128*w_)); p("ds_read_b128 %s, v%d offset:%d" % (vr(36+8*w_, 4), vCPR, L_CP + 128*w_ + 16))
    p("s_waitcnt lgkmcnt(8)")
    p("v_max3_f32 v120, v100, v102, v104"); p("v_max_f32 v120, v120, v106")
    for i in range(4): p("v_sub_f32 v%d, v%d, v120" % (100+2*i, 100+2*i))
    for i in range(4): p("v_mul_f32 v%d, %s, v%d" % (100+2*i, sLOG2E, 100+2*i))
    for i in range(4): p("v_exp_f32 v%d, v%d" % (100+2*i, 100+2*i))
    p("v_mul_f32 v121, v100, v101"); p("v_fmac_f32 v121, v102, v103"); p("v_fmac_f32 v121, v104, v105"); p("v_fmac_f32 v121, v106, v107")
    p("v_rcp_f32 v121, v121")
    for i in range(4): p("v_mul_f32 v%d, v%d, v121" % (100+2*i, 100+2*i))
    for i in range(4): p("v_mov_b32 v%d, v%d" % (101+2*i, 100+2*i))
    p("s_waitcnt lgkmcnt(6)")
    for r in range(0, 8, 2): p("v_pk_mul_f32 %s, v[100:101], %s" % (vr(32+r, 2), vr(32+r, 2)))
    p("s_waitcnt lgkmcnt(4)")
    for r in range(0, 8, 2): p("v_pk_fma_f32 %s, v[102:103], %s, %s" % (vr(32+r, 2), vr(40+r, 2), vr(32+r, 2)))
    p("s_waitcnt lgkmcnt(2)")
    for r in range(0, 8, 2): p("v_pk_fma_f32 %s, v[104:105], %s, %s" % (vr(32+r, 2), vr(48+r, 2), vr(32+r, 2)))
    p("s_waitcnt lgkmcnt(0)")
    for r in range(0, 8, 2): p("v_pk_fma_f32 %s, v[106:107], %s, %s" % (vr(32+r, 2), vr(56+r, 2), vr(32+r, 2)))
    for r in range(8): p("v_cvt_pk_bf16_f32 v%d, v%d, v%d" % (16+r, 32+r, 32+r))
    p.wait("O")
    diag_mult(16, 8, 32)
    pub_cols(sPS, "PUBS")
    stamp("s_pub")
    FIN = p.label("fin")
    p("s_cmp_ge_u32 s2, 32"); p("s_cbranch_scc1 %s" % FIN)
    p("s_lshl_b32 %s, s2, 14" % sA); p("s_lshl_b32 %s, %s, 12" % (sD, sW)); p("s_add_u32 %s, %s, %s" % (sA, sA, sD))
    p("s_add_u32 %s, %s, %d" % (sB, sA, S_BASE)); p("s_add_u32 %s, %s, %d" % (sA, sA, BB_BASE))
    p("v_lshrrev_b32 v12, 4, v1"); p("v_and_b32 v13, 1, v12"); p("v_lshlrev_b32 v13, 1, v13"); p("v_lshrrev_b32 v12, 1, v12"); p("v_or_b32 v12, v12, v13")
    p("v_and_b32 v14, 7, v1"); p("v_lshlrev_b32 v14, 2, v14"); p("v_add_u32 v14, v14, v12")
    p("v_lshlrev_b32 v179, 1, v14"); p("s_lshl_b32 %s, s2, 6" % sCc)
    p("v_lshlrev_b32 v13, 2, v14"); p("s_lshl_b32 %s, %s, 7" % (sD, sW)); p("v_add_u32 v12, %s, v13" % sD)
    def fl(sb):
        def f(R, nm):
            g = (lambda t: p.vmem(t, nm)) if nm else p
            for u in range(4):
                g("buffer_load_dwordx4 %s, v%d, %s, %s offen offset:%d%s" % (vr(R+4*u, 4), vL16, SWS, sb, 1024*u, HL))
        return f
    def fin_reduce(R, dst):
        for r in range(0, 4, 2):
            p("v_pk_add_f32 %s, %s, %s" % (vr(R+r, 2), vr(R+r, 2), vr(R+4+r, 2))); p("v_pk_add_f32 %s, %s, %s" % (vr(R+8+r, 2), vr(R+8+r, 2), vr(R+12+r, 2)))
        for r in range(0, 4, 2): p("v_pk_add_f32 %s, %s, %s" % (vr(R+r, 2), vr(R+r, 2), vr(R+8+r, 2)))
        red4(p, [R, R+1, R+2, R+3])
        p("ds_write_b32 v12, v%d offset:%d" % (R, dst))
        p("s_waitcnt lgkmcnt(0)")
        p("s_barrier")
        for w_ in range(4): p("ds_read_b32 v%d, v13 offset:%d" % (R+w_, dst + 128*w_))
        p("s_waitcnt lgkmcnt(0)")
        p("v_add_f32 v%d, v%d, v%d" % (R, R, R+1)); p("v_add_f32 v%d, v%d, v%d" % (R+2, R+2, R+3)); p("v_add_f32 v%d, v%d, v%d" % (R, R, R+2))
        p("v_cvt_pk_bf16_f32 v%d, v%d, v%d" % (R, R, R)); p("v_lshlrev_b32 v%d, 16, v%d" % (R, R))
    p.vmem("buffer_load_ushort v18, v179, %s, %s offen" % (SX, sCc), "XF")
    fl(sA)(128, "FB")
    p.wait("FB")
    retry_block(lambda: tagcheck(list(range(128, 144)), 15), lambda: fl(sA)(128, None), "fb")
    fl(sB)(144, "FS0")
    fin_reduce(128, L_FP)
    silu(128, 32, 40, 1)
    p("v_cvt_pk_bf16_f32 v32, v32, v32"); p("v_lshlrev_b32 v32, 16, v32")
    p("v_lshlrev_b32 v44, 16, v18")
    stamp("g_done")
    p.wait("FS0")
    retry_block(lambda: tagcheck(list(range(144, 160)), 15), lambda: fl(sB)(144, None), "fs")
    stamp("fs_ok")
    fin_reduce(144, L_FP + 512)
    p("v_mul_f32 v36, v144, v32")
    p("v_cvt_pk_bf16_f32 v36, v36, v36"); p("v_lshlrev_b32 v36, 16, v36")
    p("v_add_f32 v36, v36, v44")
    p("v_cvt_pk_bf16_f32 v40, v36, v36")
    SK5 = p.label("out")
    p("s_cmp_lg_u32 %s, 0" % sW); p("s_cbranch_scc1 %s" % SK5)
    p("s_mov_b32 exec_lo, 0x00ff00ff"); p("s_mov_b32 exec_hi, 0x00ff00ff")
    p.vmem("buffer_store_short v40, v179, %s, %s offen" % (SOUT, sCc), "OUT", cond=True)
    p("s_cmp_lg_u32 s2, 0"); p("s_cbranch_scc1 %s" % SK5)
    p("v_mov_b32 v12, %d" % EPOCH); p("v_mov_b32 v13, %s" % sE)
    p("s_mov_b32 exec_lo, 1"); p("s_mov_b32 exec_hi, 0")
    p.vmem("buffer_store_dword v13, v12, %s, 0 offen%s" % (SWS, HS), "EPO", cond=True)
    p("%s:" % SK5)
    p("s_mov_b64 exec, -1")
    p("%s:" % FIN)
    if stamps:
        stamp("end")
        p("s_getreg_b32 %s, hwreg(HW_REG_XCC_ID)" % sA)
        p("s_waitcnt lgkmcnt(0)")
        for k in range(16):
            p("v_mov_b32 v%d, %s" % (32+k, ("s%d" % (78+2*k)) if k < nst[0] else "0"))
        p("v_mov_b32 v48, %s" % sA); p("v_mov_b32 v49, s3"); p("s_getreg_b32 %s, hwreg(HW_REG_HW_ID)" % sD); p("v_mov_b32 v50, %s" % sD); p("v_mov_b32 v51, 0")
        p("s_lshl_b32 %s, s2, 2" % sB); p("s_add_u32 %s, %s, %s" % (sB, sB, sW)); p("s_lshl_b32 %s, %s, 7" % (sB, sB)); p("s_add_u32 %s, %s, %d" % (sB, sB, STAMP))
        p("v_mov_b32 v12, 0")
        p("s_mov_b32 exec_lo, 1"); p("s_mov_b32 exec_hi, 0")
        for i in range(4): p("buffer_store_dwordx4 %s, v12, %s, %s offen offset:%d" % (vr(32+4*i, 4), SWS, sB, 16*i))
        p("buffer_store_dwordx4 v[48:51], v12, %s, %s offen offset:64" % (SWS, sB))
        p("s_mov_b64 exec, -1")
    p("%s:" % END)
    p("s_endpgm")
    return p, names

HEADER = """; Fused decode step: layernorm -> {GQA attention over a 64K cache -> wo} * silu(SwiGLU FFN) + x.
; @launch grid=(256,1,1) block=(256,1,1) lds=%d
"""
def wrap(body, name=NAME, lds=LDS_BYTES, header=True):
    s = (HEADER % lds) if header else ""
    if header: s += '.amdgcn_target "amdgcn-amd-amdhsa--gfx950"\n'
    s += ".text\n.globl %s\n.p2align 8\n.type %s,@function\n%s:\n" % (name, name, name)
    s += body
    s += '.section .rodata,"a"\n.p2align 6\n.amdhsa_kernel %s\n' % name
    s += "  .amdhsa_next_free_vgpr 512\n  .amdhsa_next_free_sgpr 102\n  .amdhsa_accum_offset 256\n"
    s += "  .amdhsa_group_segment_fixed_size 0\n  .amdhsa_kernarg_size 96\n  .amdhsa_user_sgpr_count 2\n"
    s += "  .amdhsa_user_sgpr_kernarg_segment_ptr 1\n  .amdhsa_system_sgpr_workgroup_id_x 1\n"
    s += "  .amdhsa_float_denorm_mode_32 3\n"
    s += ".end_amdhsa_kernel\n"
    return s

if __name__ == "__main__":
    cfg = json.loads(sys.argv[2]) if len(sys.argv) > 2 else {}
    p, names = build(cfg)
    open(sys.argv[1], "w").write(wrap(p.text()))
    print("wrote", sys.argv[1], "stamps:", names)
```

```python
import sys, json
from sched import Prog

NAME = "recurrent_scan__gqa_block_cached__glu_gated_swiglu__decode_kernel"

EPOCH   = 0
Q_BASE  = 0x1000
FLAG_BASE = 0x14000
BP_BASE = 0x20000
O_BASE  = 0x80000
O_PITCH = 4224
S_BASE  = 0x200000
BB_BASE = 0x280000
STAMP   = 0x400000
L_XN = 0
L_QP = 4096
L_BP = 6144
L_QL = 10240
L_HL = 12544
L_MX = 12800
L_LW = 13056
L_CP = 13312
L_FP = 13824
L_CM = 14848
L_OP = 16384
LDS_BYTES = 32768

SX, SK, SV, SWQ, SWO, SW1, SW3, SW2, SOUT, SDBG, SWS = [ "s[%d:%d]" % (4*i+4, 4*i+7) for i in range(11)]
sW, sG, sC, sT0, sKV = "s48", "s49", "s50", "s51", "s52"
sSELLO, sSELHI, sE, sTAG, sFF, sLOG2E, sSCALE, sHI = "s53", "s54", "s55", "s56", "s57", "s58", "s59", "s60"
sRETRY = "s61"
sA, sB, sCc, sD = "s62", "s63", "s64", "s65"
sRB, sCH = "s66", "s67"
sKC = "s68"
sCB1, sCB3, sW3B = "s69", "s70", "s71"
sVC, sROT = "s72", "s73"
vTID, vLANE, vOFFK, vL16 = 0, 1, 2, 3
vMASK = 4
vTAG, vMAX, vL0, vL1 = 8, 9, 10, 11
vT = 12
QF, SP, PERM, ACC, RING = 16, 32, 64, 96, 128

def vr(b, n=1): return "v%d" % b if n == 1 else "v[%d:%d]" % (b, b+n-1)
def ar(b, n=1): return "a%d" % b if n == 1 else "a[%d:%d]" % (b, b+n-1)

DPP = " row_mask:0xf bank_mask:0xf"
def allred(p, regs, tmps, op, steps):
    for s in steps:
        if s in (1, 2, 4, 8):
            for r in regs: p("%s_dpp v%d, v%d, v%d row_ror:%d%s" % (op, r, r, r, s, DPP))
        else:
            for r, t in zip(regs, tmps): p("v_mov_b32 v%d, v%d" % (t, r))
            for r, t in zip(regs, tmps): p("v_permlane%d_swap_b32 v%d, v%d" % (s, r, t))
            for r, t in zip(regs, tmps): p("%s v%d, v%d, v%d" % (op, r, r, t))

def red4(p, a):
    p("v_permlane32_swap_b32 v%d, v%d" % (a[0], a[1])); p("v_permlane32_swap_b32 v%d, v%d" % (a[2], a[3]))
    p("v_add_f32 v%d, v%d, v%d" % (a[0], a[0], a[1])); p("v_add_f32 v%d, v%d, v%d" % (a[2], a[2], a[3]))
    p("v_permlane16_swap_b32 v%d, v%d" % (a[0], a[2]))
    p("v_add_f32 v%d, v%d, v%d" % (a[0], a[0], a[2]))
    p("v_add_f32_dpp v%d, v%d, v%d row_ror:8%s" % (a[0], a[0], a[0], DPP))

def build(cfg):
    pat = cfg.get("pat", "lin")
    nt = " nt" if cfg.get("nt", True) else ""
    ntw = " nt" if cfg.get("ntw", True) else ""
    stamps = cfg.get("stamps", False)
    poll_after = cfg.get("poll_after", 6)
    HS = cfg.get("hs", " sc1")
    HL = cfg.get("hl", " sc1")
    RETRIES = cfg.get("retries", 40000)
    R_ = cfg.get("R", 1)
    stride = {"lin": 1024, "str8": 8192, "w4": 4096 * R_, "glob": 262144}[pat]
    rot = cfg.get("rot", 0)
    p = Prog()
    nst = [0]
    names = []
    def stamp(name):
        if not stamps or name in cfg.get("nostamp", []): return
        k = nst[0]; nst[0] += 1; names.append(name)
        assert k < 12
        p("s_memrealtime s[%d:%d]" % (78+2*k, 79+2*k))

    depth = cfg.get("depth", 0); dstep = cfg.get("dstep", 2); depth0 = cfg.get("depth0", depth)
    cnt = [0]
    def svmem(text, name, early=False):
        d = depth0 if early else depth
        if d and cnt[0] % dstep == 0: p("s_waitcnt vmcnt(%d)" % (d - dstep))
        cnt[0] += 1
        p.vmem(text, name)
    END = p.label("end")
    p("s_cmp_ge_u32 s2, 256")
    p("s_cbranch_scc1 %s" % END)
    stamp("start")
    if cfg.get("pf", 0):
        NPF = p.label("nopf")
        p("s_cmp_ge_u32 s2, %d" % cfg["pf"]); p("s_cbranch_scc1 %s" % NPF)
        p("v_cmp_gt_u32 vcc, 64, v0"); p("s_cbranch_vccz %s" % NPF)
        PFB = p.label("pfbase")
        p("s_getpc_b64 s[48:49]")
        p("%s:" % PFB)
        p("v_lshlrev_b32 v12, 7, v0")
        for i in range(cfg.get("pfn", 3)):
            p("v_min_u32 v13, %s-%s-4, v12" % (END, PFB))
            p.vmem("global_load_dword v%d, v13, s[48:49]" % (236+i), "PF", cond=True)
            p("v_add_u32 v12, 0x2000, v12")
        p("%s:" % NPF)
    for i, off in enumerate([0, 8, 16, 24, 32, 48, 56, 64, 72, 80, 88]):
        p("s_load_dwordx2 s[%d:%d], s[0:1], %d" % (4*i+4, 4*i+5, off))
    sizes = [2048, 1<<26, 1<<26, 1<<23, 1<<23, 1024*3584*2, 1024*3584*2, 1024*3584*2, 2048, 256, 1<<28]
    for i, sz in enumerate(sizes):
        p("s_mov_b32 s%d, 0x%x" % (4*i+6, sz)); p("s_mov_b32 s%d, 0x20000" % (4*i+7))
    p("s_cmp_lt_u32 s2, 224")
    p("s_cselect_b32 s26, s26, 0")
    p("s_cselect_b32 s30, s30, 0")
    p("v_lshrrev_b32 v12, 6, v0")
    p("v_and_b32 v1, 63, v0")
    p("v_readfirstlane_b32 %s, v12" % sW)
    p("s_lshr_b32 %s, s2, 6" % sG)
    p("s_and_b32 %s, s2, 63" % sC)
    p("s_mov_b32 %s, 0x05040100" % sSELLO); p("s_mov_b32 %s, 0x07060302" % sSELHI)
    p("s_mov_b32 %s, 0xff" % sFF); p("s_mov_b32 %s, 0x3fb8aa3b" % sLOG2E)
    p("s_mov_b32 %s, 0x3db504f3" % sSCALE); p("s_mov_b32 %s, 0xffff0000" % sHI)
    p("s_lshr_b32 %s, s2, 1" % sRB); p("s_and_b32 %s, s2, 1" % sCH)
    p("v_lshlrev_b32 v3, 4, v1")
    p("v_lshlrev_b32 v13, 5, v1")
    p("s_lshl_b32 %s, %s, 9" % (sA, sW))
    p("v_lshlrev_b32 v14, 3, v1")
    p("v_lshrrev_b32 v15, 3, v1"); p("v_lshlrev_b32 v15, 13, v15")
    p("v_and_b32 v16, 7, v1"); p("v_lshlrev_b32 v16, 4, v16"); p("v_add_u32 v15, v15, v16")
    p("v_lshrrev_b32 v17, 4, v1"); p("v_mul_u32_u24 v17, 7168, v17")
    p("v_and_b32 v18, 15, v1"); p("v_lshlrev_b32 v18, 4, v18"); p("v_add_u32 v17, v17, v18")
    p("s_and_b32 %s, %s, 3" % (sB, sC)); p("s_lshl_b32 %s, %s, 21" % (sB, sB))
    p("s_lshl_b32 %s, %s, 19" % (sCc, sW)); p("s_add_u32 %s, %s, %s" % (sB, sB, sCc))
    p("s_lshl_b32 %s, %s, 11" % (sCc, sG)); p("s_add_u32 %s, %s, %s" % (sB, sB, sCc))
    p("s_lshr_b32 %s, %s, 2" % (sCc, sC)); p("s_lshl_b32 %s, %s, 7" % (sCc, sCc)); p("s_add_u32 %s, %s, %s" % (sB, sB, sCc))
    p("s_and_b32 %s, s2, 7" % sCc); p("s_lshl_b32 %s, %s, 7" % (sCc, sCc))
    p("s_lshl_b32 %s, %s, 5" % (sD, sW)); p("s_add_u32 %s, %s, %s" % (sCc, sCc, sD)); p("s_mul_i32 %s, %s, 7168" % (sCc, sCc))
    r1, r3 = cfg.get("r1", 1), cfg.get("r3", 2)
    for dst, rr in ((sCB1, r1), (sCB3, r3)):
        p("s_lshr_b32 %s, s2, 3" % dst); p("s_add_u32 %s, %s, %d" % (dst, dst, rr))
        p("s_sub_u32 %s, %s, 28" % (sD, dst)); p("s_cselect_b32 %s, %s, %s" % (dst, dst, sD))
    p("s_lshl_b32 %s, %s, 8" % (sD, sCB3)); p("s_add_u32 %s, %s, %s" % (sW3B, sCc, sD))
    p("s_lshl_b32 %s, %s, 8" % (sD, sCB1)); p("s_add_u32 %s, %s, %s" % (sCc, sCc, sD))
    p("s_waitcnt lgkmcnt(0)")
    stamp("karg")
    p("s_load_dword %s, s[44:45], %d" % (sE, EPOCH))
    ntx = " nt" if cfg.get("ntx", False) else ""
    p.vmem("buffer_load_dwordx4 v[224:227], v13, %s, 0 offen%s" % (SX, ntx), "XA0")
    p.vmem("buffer_load_dwordx4 v[228:231], v13, %s, 0 offen offset:16%s" % (SX, ntx), "XA1")
    p.vmem("buffer_load_dwordx2 v[232:233], v14, %s, %s offen%s" % (SX, sA, ntx), "XB")
    if cfg.get("pbar", 1) >= 1: p("s_barrier")
    for t in range(8):
        p("s_add_u32 %s, %s, %d" % (sT0, sB, t*8*8192))
        svmem("buffer_load_dwordx4 %s, v15, %s, %s offen%s" % (vr(128+4*t, 4), SWQ, sT0, ntw), "Q%d" % t, True)
    if cfg.get("pbar", 1) >= 2: p("s_barrier")
    for t in range(8):
        p("s_add_u32 %s, %s, %d" % (sT0, sCc, t*4*7168))
        svmem("buffer_load_dwordx4 %s, v17, %s, %s offen%s" % (vr(160+4*t, 4), SW1, sT0, ntw), "W1_%d" % t, True)
    stamp("w1_issued")
    if pat == "lin":
        p("s_lshl_b32 %s, s2, 18" % sKV); p("s_lshl_b32 %s, %s, 16" % (sD, sW)); p("s_add_u32 %s, %s, %s" % (sKV, sKV, sD))
    elif pat == "str8":
        p("s_lshl_b32 %s, %s, 24" % (sKV, sG))
        p("s_lshr_b32 %s, %s, 3" % (sD, sC)); p("s_lshl_b32 %s, %s, 21" % (sD, sD)); p("s_add_u32 %s, %s, %s" % (sKV, sKV, sD))
        p("s_lshl_b32 %s, %s, 19" % (sD, sW)); p("s_add_u32 %s, %s, %s" % (sKV, sKV, sD))
        p("s_and_b32 %s, %s, 7" % (sD, sC)); p("s_lshl_b32 %s, %s, 10" % (sD, sD)); p("s_add_u32 %s, %s, %s" % (sKV, sKV, sD))
    elif pat == "w4":
        lg = R_.bit_length() - 1
        p("s_lshl_b32 %s, %s, 24" % (sKV, sG))
        p("s_lshr_b32 %s, %s, %d" % (sD, sC, lg)); p("s_lshl_b32 %s, %s, %d" % (sD, sD, 18 + lg)); p("s_add_u32 %s, %s, %s" % (sKV, sKV, sD))
        p("s_and_b32 %s, %s, %d" % (sD, sC, R_ - 1)); p("s_lshl_b32 %s, %s, 12" % (sD, sD)); p("s_add_u32 %s, %s, %s" % (sKV, sKV, sD))
        p("s_lshl_b32 %s, %s, 10" % (sD, sW)); p("s_add_u32 %s, %s, %s" % (sKV, sKV, sD))
    elif pat == "glob":
        p("s_lshl_b32 %s, %s, 24" % (sKV, sG))
        p("s_lshl_b32 %s, %s, 12" % (sD, sC)); p("s_add_u32 %s, %s, %s" % (sKV, sKV, sD))
        p("s_lshl_b32 %s, %s, 10" % (sD, sW)); p("s_add_u32 %s, %s, %s" % (sKV, sKV, sD))
    if rot == 1: p("s_and_b32 %s, %s, 7" % (sROT, sC))
    if rot == 2: p("s_lshr_b32 %s, %s, 3" % (sROT, sC))
    if rot == 3: p("s_lshr_b32 %s, %s, 3" % (sROT, sC)); p("s_add_u32 %s, %s, %s" % (sROT, sROT, sC))
    p("v_and_b32 v12, 3, v1"); p("v_lshlrev_b32 v12, %d, v12" % (stride.bit_length()-1))
    p("v_bfe_u32 v2, v1, 2, 1"); p("v_lshlrev_b32 v2, 8, v2"); p("v_add_u32 v2, v2, v12")
    p("v_bfe_u32 v12, v1, 3, 1"); p("v_lshlrev_b32 v12, 6, v12"); p("v_add_u32 v2, v2, v12")
    p("v_lshrrev_b32 v12, 4, v1"); p("v_lshlrev_b32 v12, 4, v12"); p("v_add_u32 v2, v2, v12")
    p("v_and_b32 v12, 1, v1"); p("v_lshlrev_b32 v12, 4, v12"); p("v_mov_b32 v13, 0xffff"); p("v_lshlrev_b32 v13, v12, v13")
    p("v_bfe_u32 v12, v1, 1, 2")
    for jj in range(4):
        p("v_cmp_eq_u32 vcc, %d, v12" % jj); p("v_cndmask_b32 v%d, 0, v13, vcc" % (vMASK+jj))
    def grp_base(dst, t):
        if not rot:
            p("s_add_u32 %s, %s, %d" % (dst, sKV, 8*t*stride))
        else:
            p("s_add_u32 %s, %s, %d" % (dst, sROT, t)); p("s_and_b32 %s, %s, 7" % (dst, dst))
            p("s_mul_i32 %s, %s, %d" % (dst, dst, 8*stride)); p("s_add_u32 %s, %s, %s" % (dst, dst, sKV))
    def K_loads(t):
        L = []
        for h in range(2):
            for a_ in range(2):
                for lam in range(2):
                    def f(h=h, a_=a_, lam=lam):
                        if a_ == 0 and lam == 0:
                            if h == 0: grp_base(sKC, t)
                            else: p("s_add_u32 %s, %s, %d" % (sKC, sKC, 4*stride))
                        svmem("buffer_load_dwordx4 %s, v%d, %s, %s offen offset:%d%s" % (ar(32*t+16*h+8*a_+4*lam, 4), vOFFK, SK, sKC, 512*a_+128*lam, nt), "K%d" % t)
                    L.append(f)
        return L
    def V_loads(t):
        base = RING + 32*(t % 4)
        L = []
        for i in range(8):
            def f(i=i):
                if i == 0: grp_base(sVC, t)
                else: p("s_add_u32 %s, %s, %d" % (sVC, sVC, stride))
                svmem("buffer_load_dwordx4 %s, v%d, %s, %s offen%s" % (vr(base+4*i, 4), vL16, SV, sVC, nt), "V%d" % t)
            L.append(f)
        return L
    def loadK(t):
        for f in K_loads(t): f()
    def loadV(t):
        for f in V_loads(t): f()
    def tagcheck(regs, acc):
        p("v_xor_b32 v%d, %s, v%d" % (acc, sTAG, regs[0]))
        for r in regs[1:]: p("v_bitop3_b32 v%d, v%d, %s, v%d bitop3:0xbe" % (acc, r, sTAG, acc))
        p("v_and_b32 v%d, 0xff, v%d" % (acc, acc))
        p("v_cmp_ne_u32 vcc, 0, v%d" % acc)
        if cfg.get("nodep"): p("s_mov_b64 vcc, 0")
    p.wait("XA1")
    stamp("x_landed")
    for i in range(8):
        p("v_lshlrev_b32 v%d, 16, v%d" % (32+2*i, 224+i)); p("v_and_b32 v%d, 0xffff0000, v%d" % (33+2*i, 224+i))
    for i in range(8): p("v_add_f32 v%d, v%d, v%d" % (48+i, 32+2*i, 33+2*i))
    p("v_add_f32 v48, v48, v49"); p("v_add_f32 v50, v50, v51"); p("v_add_f32 v52, v52, v53"); p("v_add_f32 v54, v54, v55")
    p("v_add_f32 v48, v48, v50"); p("v_add_f32 v52, v52, v54"); p("v_add_f32 v48, v48, v52")
    allred(p, [48], [49], "v_add_f32", [8, 4, 2, 1, 16, 32])
    p("v_mul_f32 v49, 0x3a800000, v48")
    for i in range(16): p("v_sub_f32 v%d, v%d, v49" % (32+i, 32+i))
    for i in range(4): p("v_mul_f32 v%d, v%d, v%d" % (50+i, 32+i, 32+i))
    for i in range(4, 16): p("v_fmac_f32 v%d, v%d, v%d" % (50+(i % 4), 32+i, 32+i))
    p("v_add_f32 v50, v50, v51"); p("v_add_f32 v52, v52, v53"); p("v_add_f32 v50, v50, v52")
    allred(p, [50], [51], "v_add_f32", [8, 4, 2, 1, 16, 32])
    p("v_mul_f32 v50, 0x3a800000, v50")
    p("v_cvt_pk_bf16_f32 v51, v49, v50")
    p("v_lshlrev_b32 v52, 16, v51")
    p("v_and_b32 v53, 0xffff0000, v51")
    p("v_add_f32 v53, 0x3727c5ac, v53")
    p("v_cvt_pk_bf16_f32 v53, v53, v53"); p("v_lshlrev_b32 v53, 16, v53")
    p("v_sqrt_f32 v53, v53")
    p("v_cvt_pk_bf16_f32 v53, v53, v53"); p("v_lshlrev_b32 v53, 16, v53")
    p("v_rcp_f32 v54, v53")
    p.wait("XB")
    p("v_lshlrev_b32 v32, 16, v232"); p("v_and_b32 v33, 0xffff0000, v232")
    p("v_lshlrev_b32 v34, 16, v233"); p("v_and_b32 v35, 0xffff0000, v233")
    for i in range(4): p("v_sub_f32 v%d, v%d, v52" % (32+i, 32+i))
    p("v_cvt_pk_bf16_f32 v36, v32, v33"); p("v_cvt_pk_bf16_f32 v37, v34, v35")
    p("v_lshlrev_b32 v32, 16, v36"); p("v_and_b32 v33, 0xffff0000, v36")
    p("v_lshlrev_b32 v34, 16, v37"); p("v_and_b32 v35, 0xffff0000, v37")
    for i in range(4): p("v_mul_f32 v%d, v%d, v54" % (40+i, 32+i))
    for i in range(4): p("v_fma_f32 v%d, -v%d, v53, v%d" % (44+i, 40+i, 32+i))
    for i in range(4): p("v_fma_f32 v%d, v%d, v54, v%d" % (40+i, 44+i, 40+i))
    for i in range(4): p("v_cvt_pk_bf16_f32 v%d, v%d, v%d" % (36+i, 40+i, 40+i))
    p("v_lshlrev_b32 v12, 4, v0")
    p("ds_write_b128 v12, v[36:39] offset:%d" % L_XN)
    p("s_waitcnt lgkmcnt(0)")
    p("s_barrier")
    stamp("ln_done")
    p("s_add_u32 %s, %s, 1" % (sE, sE)); p("s_and_b32 %s, %s, 0xff" % (sTAG, sE)); p("v_mov_b32 v%d, %s" % (vTAG, sTAG))
    p("s_and_b32 %s, %s, 3" % (sA, sC)); p("s_lshl_b32 %s, %s, 8" % (sA, sA)); p("s_lshl_b32 %s, %s, 6" % (sD, sW)); p("s_add_u32 %s, %s, %s" % (sA, sA, sD))
    p("v_lshrrev_b32 v12, 3, v1"); p("v_add_u32 v12, %s, v12" % sA); p("v_lshlrev_b32 v12, 2, v12")
    p("s_and_b32 %s, s2, 7" % sA); p("s_lshl_b32 %s, %s, 7" % (sA, sA)); p("s_lshl_b32 %s, %s, 5" % (sD, sW)); p("s_add_u32 %s, %s, %s" % (sA, sA, sD))
    p("v_lshrrev_b32 v13, 4, v1"); p("v_add_u32 v13, %s, v13" % sA); p("v_lshlrev_b32 v13, 2, v13")
    for t in range(0, 8, 2):
        p("ds_read2_b32 v[%d:%d], v12 offset0:%d offset1:%d" % (96+t, 97+t, 8*t, 8*t+8))
    for t in range(0, 8, 2):
        p("ds_read2_b32 v[%d:%d], v13 offset0:%d offset1:%d" % (104+t, 105+t, 4*t, 4*t+4))
    for t in range(8):
        p("s_add_u32 %s, %s, %d" % (sT0, sW3B, t*4*7168))
        svmem("buffer_load_dwordx4 %s, v17, %s, %s offen%s" % (vr(192+4*t, 4), SW3, sT0, ntw), "W3_%d" % t, True)
    p("s_waitcnt lgkmcnt(0)")
    for t in range(8):
        A = 48 + 4*(t % 2)
        for jj in range(4): p("v_and_b32 v%d, v%d, v%d" % (A+jj, 96+t, vMASK+jj))
        if t == 0: p.wait("Q7")
        p("v_mfma_f32_16x16x32_bf16 v[56:59], %s, %s, %s" % (vr(A, 4), vr(128+4*t, 4), "0" if t == 0 else "v[56:59]"))
    for t in range(8):
        for jj in range(4): p("v_and_b32 v%d, v%d, v%d" % (PERM+4*t+jj, 104+t, vMASK+jj))
    p("v_and_b32 v12, 7, v1"); p("v_lshlrev_b32 v12, 5, v12")
    p("v_bfe_u32 v13, v1, 4, 1"); p("v_lshlrev_b32 v13, 4, v13"); p("v_add_u32 v12, v12, v13")
    p("v_lshrrev_b32 v13, 5, v1"); p("v_lshlrev_b32 v13, 8, v13"); p("v_add_u32 v12, v12, v13")
    p("s_lshl_b32 %s, %s, 9" % (sA, sW)); p("v_add_u32 v12, %s, v12" % sA)
    p("s_mov_b32 exec_lo, 0x00ff00ff"); p("s_mov_b32 exec_hi, 0xff00ff00")
    p("ds_write_b128 v12, v[56:59] offset:%d" % L_QP)
    p("s_mov_b64 exec, -1")
    p("s_waitcnt lgkmcnt(0)")
    p("s_barrier")
    stamp("q_gemv")
    SKIP0 = p.label("pubq")
    p("s_cmp_lg_u32 %s, 0" % sW); p("s_cbranch_scc1 %s" % SKIP0)
    p("v_lshlrev_b32 v12, 4, v1")
    for i in range(8): p("ds_read_b128 %s, v12 offset:%d" % (vr(32+4*i, 4) if i < 4 else vr(112+4*(i-4), 4), L_QP + 256*i))
    p("s_lshl_b32 %s, %s, 2" % (sB, sG)); p("s_and_b32 %s, %s, 3" % (sD, sC)); p("s_add_u32 %s, %s, %s" % (sB, sB, sD)); p("s_lshl_b32 %s, %s, 12" % (sB, sB))
    p("s_lshr_b32 %s, %s, 2" % (sD, sC)); p("s_lshl_b32 %s, %s, 8" % (sD, sD)); p("s_add_u32 %s, %s, %s" % (sB, sB, sD))
    p("s_add_u32 %s, %s, %d" % (sB, sB, Q_BASE))
    p("s_waitcnt lgkmcnt(0)")
    for r in range(4):
        p("v_add_f32 v%d, v%d, v%d" % (32+r, 32+r, 36+r)); p("v_add_f32 v%d, v%d, v%d" % (40+r, 40+r, 44+r))
        p("v_add_f32 v%d, v%d, v%d" % (112+r, 112+r, 116+r)); p("v_add_f32 v%d, v%d, v%d" % (120+r, 120+r, 124+r))
    for r in range(4):
        p("v_add_f32 v%d, v%d, v%d" % (32+r, 32+r, 40+r)); p("v_add_f32 v%d, v%d, v%d" % (112+r, 112+r, 120+r))
    for r in range(4): p("v_add_f32 v%d, v%d, v%d" % (32+r, 32+r, 112+r))
    p("s_mov_b32 exec_lo, 0xffff"); p("s_mov_b32 exec_hi, 0")
    p.vmem("buffer_store_dwordx4 v[32:35], v12, %s, %s offen%s" % (SWS, sB, HS), "PUBQ", cond=True)
    p("s_mov_b64 exec, -1")
    p("%s:" % SKIP0)
    loadK(0)
    p.wait("W1_7")
    stamp("w1_landed")
    for t in range(8):
        p("v_mfma_f32_16x16x32_bf16 v[60:63], %s, %s, %s" % (vr(PERM+4*t, 4), vr(160+4*t, 4), "0" if t == 0 else "v[60:63]"))
    loadK(1)
    p.wait("W3_7")
    stamp("w3_landed")
    for t in range(8):
        p("v_mfma_f32_16x16x32_bf16 v[96:99], %s, %s, %s" % (vr(PERM+4*t, 4), vr(192+4*t, 4), "0" if t == 0 else "v[96:99]"))
    SKIP2 = p.label("flag")
    p("s_cmp_lg_u32 %s, 0" % sW); p("s_cbranch_scc1 %s" % SKIP2)
    p("v_lshlrev_b32 v12, 2, v1"); p("v_mov_b32 v13, %s" % sE)
    p("s_lshl_b32 %s, s2, 7" % sA); p("s_add_u32 %s, %s, %d" % (sA, sA, FLAG_BASE))
    p.wait("PUBQ")
    p("s_mov_b32 exec_hi, 0")
    p.vmem("buffer_store_dword v13, v12, %s, %s offen%s" % (SWS, sA, HS), "FLAG", cond=True)
    p("s_mov_b64 exec, -1")
    p("%s:" % SKIP2)
    stamp("flag")
    p("v_and_b32 v12, 15, v1"); p("v_lshlrev_b32 v12, 5, v12")
    p("v_bfe_u32 v13, v1, 4, 1"); p("v_lshlrev_b32 v13, 4, v13"); p("v_add_u32 v12, v12, v13")
    p("s_lshl_b32 %s, %s, 10" % (sA, sW)); p("v_add_u32 v12, %s, v12" % sA)
    p("s_mov_b32 exec_hi, 0")
    p("ds_write_b128 v12, v[60:63] offset:%d" % L_BP)
    p("ds_write_b128 v12, v[96:99] offset:%d" % (L_BP+512))
    p("s_mov_b64 exec, -1")
    loadK(2)
    p("s_waitcnt lgkmcnt(0)")
    p("s_barrier")
    stamp("b_gemv")
    SKIP1 = p.label("pub1")
    p("s_cmp_lg_u32 %s, 1" % sW); p("s_cbranch_scc1 %s" % SKIP1)
    p("s_cmp_ge_u32 s2, 224"); p("s_cbranch_scc1 %s" % SKIP1)
    p("v_lshlrev_b32 v12, 4, v1")
    for i in range(4): p("ds_read_b128 %s, v12 offset:%d" % (vr(32+4*i, 4), L_BP + 1024*i))
    p("s_and_b32 %s, s2, 7" % sA); p("s_mul_i32 %s, %s, %d" % (sA, sA, 3584*4)); p("s_add_u32 %s, %s, %d" % (sA, sA, BP_BASE))
    p("s_lshl_b32 %s, %s, 9" % (sD, sCB1)); p("s_lshl_b32 %s, %s, 9" % (sB, sCB3)); p("s_add_u32 %s, %s, %d" % (sB, sB, 8*3584*4))
    p("v_mov_b32 v13, %s" % sD); p("v_mov_b32 v14, %s" % sB); p("v_cmp_gt_u32 vcc, 32, v1"); p("v_cndmask_b32 v13, v14, v13, vcc")
    p("v_and_b32 v14, 31, v1"); p("v_lshlrev_b32 v14, 4, v14"); p("v_add_u32 v13, v13, v14")
    p("s_waitcnt lgkmcnt(0)")
    for r in range(4):
        p("v_add_f32 v%d, v%d, v%d" % (32+r, 32+r, 36+r)); p("v_add_f32 v%d, v%d, v%d" % (40+r, 40+r, 44+r))
    for r in range(4): p("v_add_f32 v%d, v%d, v%d" % (32+r, 32+r, 40+r))
    for r in range(4): p("v_bfi_b32 v%d, %s, v%d, v%d" % (32+r, sFF, vTAG, 32+r))
    p.vmem("buffer_store_dwordx4 v[32:35], v13, %s, %s offen%s" % (SWS, sA, HS), "PUBB", cond=True)
    p("%s:" % SKIP1)
    for t in range(3, poll_after): loadK(t)
    SKIPP = p.label("nopoll")
    p("v_lshlrev_b32 v14, 7, v1")
    p("s_lshl_b32 %s, %s, 13" % (sB, sG)); p("s_add_u32 %s, %s, %d" % (sB, sB, FLAG_BASE))
    p("s_cmp_lg_u32 %s, 0" % sW); p("s_cbranch_scc1 %s" % SKIPP)
    p.vmem("buffer_load_dword v15, v14, %s, %s offen%s" % (SWS, sB, HL), "POLL", cond=True)
    p("%s:" % SKIPP)
    pend = []
    for t in range(poll_after, 8): pend += K_loads(t)
    for t in range(4): pend += V_loads(t)
    def tr(n):
        for _ in range(min(n, len(pend))): pend.pop(0)()
    tr(cfg.get("n_after_poll", 16))
    OKP = p.label("okpoll")
    p("s_cmp_lg_u32 %s, 0" % sW); p("s_cbranch_scc1 %s" % OKP)
    p.wait("POLL")
    p("s_mov_b32 %s, %d" % (sRETRY, RETRIES))
    RP = p.label("rpoll")
    p("%s:" % RP)
    p("v_cmp_ne_u32 vcc, %s, v15" % sE)
    if cfg.get("nodep"): p("s_branch %s" % OKP)
    p("s_cbranch_vccz %s" % OKP)
    p("s_sub_u32 %s, %s, 1" % (sRETRY, sRETRY)); p("s_cbranch_scc1 %s" % OKP)
    p("s_sleep %d" % cfg.get("sleep", 8))
    p("buffer_load_dword v15, v14, %s, %s offen%s" % (SWS, sB, HL))
    p("s_waitcnt vmcnt(0)")
    p("s_branch %s" % RP)
    p("%s:" % OKP)
    p("s_barrier")
    stamp("poll_ok")
    p("s_lshl_b32 %s, %s, 14" % (sA, sG)); p("s_lshl_b32 %s, %s, 10" % (sD, sW)); p("s_add_u32 %s, %s, %s" % (sA, sA, sD)); p("s_add_u32 %s, %s, %d" % (sA, sA, Q_BASE))
    for kq in range(4):
        p("s_add_u32 %s, %s, %d" % (sT0, sA, kq*4096))
        p.vmem("buffer_load_dwordx4 %s, v%d, %s, %s offen%s" % (vr(96+4*kq, 4), vL16, SWS, sT0, HL), "QG")
    tr(cfg.get("n_after_qg", 16))
    p("v_lshrrev_b32 v12, 5, v1"); p("s_lshl_b32 %s, %s, 1" % (sA, sW)); p("v_add_u32 v12, %s, v12" % sA); p("v_mul_u32_u24 v12, 272, v12")
    p("v_and_b32 v13, 31, v1"); p("v_lshlrev_b32 v13, 3, v13"); p("v_add_u32 v12, v12, v13")
    p("v_and_b32 v14, 7, v1"); p("v_mul_u32_u24 v14, 272, v14"); p("v_lshrrev_b32 v13, 4, v1"); p("v_lshlrev_b32 v13, 4, v13"); p("v_add_u32 v14, v14, v13")
    p("v_bfe_u32 v13, v1, 3, 1"); p("v_lshlrev_b32 v13, 6, v13"); p("v_add_u32 v14, v14, v13")
    p("v_mov_b32 v%d, 0xff800000" % vMAX)
    p.wait("QG")
    for r in range(4):
        p("v_add_f32 v%d, v%d, v%d" % (96+r, 96+r, 100+r)); p("v_add_f32 v%d, v%d, v%d" % (104+r, 104+r, 108+r))
    for r in range(4): p("v_add_f32 v%d, v%d, v%d" % (96+r, 96+r, 104+r))
    p("v_cvt_pk_bf16_f32 v96, v96, v97"); p("v_cvt_pk_bf16_f32 v97, v98, v99")
    p("ds_write_b64 v12, v[96:97] offset:%d" % L_QL)
    p("s_waitcnt lgkmcnt(0)")
    p("s_barrier")
    stamp("q_ready")
    for lam in range(2): p("ds_read_b128 %s, v14 offset:%d" % (vr(QF+4*lam, 4), L_QL + 128*lam))
    tr(1)
    p("s_waitcnt lgkmcnt(0)")
    def qk_mfma(t):
        D = PERM + 16*(t % 2)
        p.wait("K%d" % t)
        for lam in range(2):
            for h in range(2):
                for a_ in range(2):
                    d = D + 8*h + 4*a_
                    p("v_mfma_f32_16x16x32_bf16 %s, %s, %s, %s" % (vr(d, 4), ar(32*t+16*h+8*a_+4*lam, 4), vr(QF+4*lam, 4), "0" if lam == 0 else vr(d, 4)))
    def qk_post(t):
        D = PERM + 16*(t % 2); T = QF + 8
        for h in range(2):
            for r in range(4): p("v_permlane32_swap_b32 v%d, v%d" % (D+8*h+r, D+8*h+4+r))
        for h in range(2):
            for r in range(4): p("v_add_f32_dpp v%d, v%d, v%d row_ror:8%s" % (D+8*h+r, D+8*h+4+r, D+8*h+r, DPP))
        tr(1)
        src = [D+0, D+1, D+2, D+3, D+8, D+9, D+10, D+11]
        pk = [D+4, D+5, D+6, D+7]
        for i in range(4): p("v_cvt_pk_bf16_f32 v%d, v%d, v%d" % (pk[i], src[2*i], src[2*i+1]))
        for i in range(4):
            p("v_lshlrev_b32 v%d, 16, v%d" % (T+2*i, pk[i])); p("v_and_b32 v%d, 0xffff0000, v%d" % (T+2*i+1, pk[i]))
        for i in range(8): p("v_mul_f32 v%d, %s, v%d" % (T+i, sSCALE, T+i))
        tr(1)
        for i in range(4):
            p("v_cvt_pk_bf16_f32 v%d, v%d, v%d" % (SP+4*t+i, T+2*i, T+2*i+1))
            p("v_max3_f32 v%d, v%d, v%d, v%d" % (vMAX, vMAX, T+2*i, T+2*i+1))
    qk_mfma(0)
    for t in range(1, 8):
        qk_mfma(t)
        qk_post(t-1)
    qk_post(7)
    allred(p, [vMAX], [12], "v_max_f32", [16, 32])
    p("v_and_b32 v12, 15, v1"); p("v_lshlrev_b32 v12, 2, v12"); p("s_lshl_b32 %s, %s, 6" % (sA, sW)); p("v_add_u32 v13, %s, v12" % sA)
    p("ds_write_b32 v13, v%d offset:%d" % (vMAX, L_MX))
    p("s_waitcnt lgkmcnt(0)")
    p("s_barrier")
    p("ds_read_b32 v14, v12 offset:%d" % L_MX)
    p("ds_read_b32 v15, v12 offset:%d" % (L_MX+64))
    p("ds_read_b32 v16, v12 offset:%d" % (L_MX+128))
    p("ds_read_b32 v17, v12 offset:%d" % (L_MX+192))
    tr(1)
    p("s_waitcnt lgkmcnt(0)")
    p("v_max3_f32 v14, v14, v15, v16"); p("v_max_f32 v14, v14, v17")
    p("v_cvt_pk_bf16_f32 v14, v14, v14"); p("v_lshlrev_b32 v%d, 16, v14" % vMAX)
    p("v_mul_f32 v16, %s, v%d" % (sLOG2E, vMAX)); p("v_sub_f32 v16, 0, v16")
    stamp("qk_done")
    p("v_mov_b32 v%d, 0" % vL0); p("v_mov_b32 v%d, 0" % vL1)
    for b_ in range(8):
        T = PERM + 8*(b_ % 2)
        for i in range(4):
            p("v_lshlrev_b32 v%d, 16, v%d" % (T+2*i, SP+4*b_+i)); p("v_and_b32 v%d, 0xffff0000, v%d" % (T+2*i+1, SP+4*b_+i))
        for i in range(8): p("v_fma_f32 v%d, v%d, %s, v16" % (T+i, T+i, sLOG2E))
        for i in range(8): p("v_exp_f32 v%d, v%d" % (T+i, T+i))
        for i in range(4):
            p("v_cvt_pk_bf16_f32 v%d, v%d, v%d" % (SP+4*b_+i, T+2*i, T+2*i+1))
            p("v_add_f32 v%d, v%d, v%d" % (vL0, vL0, T+2*i)); p("v_add_f32 v%d, v%d, v%d" % (vL1, vL1, T+2*i+1))
        tr(1)
    tr(100)
    p("v_add_f32 v%d, v%d, v%d" % (vL0, vL0, vL1))
    allred(p, [vL0], [12], "v_add_f32", [16, 32])
    p("v_and_b32 v12, 15, v1"); p("v_lshlrev_b32 v12, 2, v12"); p("s_lshl_b32 %s, %s, 6" % (sA, sW)); p("v_add_u32 v13, %s, v12" % sA)
    p("ds_write_b32 v13, v%d offset:%d" % (vL0, L_LW))
    stamp("p_done")
    def silu(src, dst, tmp, n):
        for r in range(n): p("v_mul_f32 v%d, %s, v%d" % (tmp+r, sLOG2E, src+r))
        for r in range(n): p("v_exp_f32 v%d, -v%d" % (tmp+r, tmp+r))
        for r in range(n): p("v_add_f32 v%d, 1.0, v%d" % (tmp+r, tmp+r))
        for r in range(n): p("v_rcp_f32 v%d, v%d" % (tmp+r, tmp+r))
        for r in range(n): p("v_mul_f32 v%d, v%d, v%d" % (dst+r, src+r, tmp+r))
    def unpack2(dst, src):
        p("v_lshlrev_b32 v%d, 16, v%d" % (dst, src)); p("v_and_b32 v%d, 0xffff0000, v%d" % (dst+1, src))
    sH0, sH1 = "s69", "s70"
    p("v_lshrrev_b32 v15, 3, v1"); p("v_mul_u32_u24 v15, 14336, v15"); p("v_and_b32 v13, 7, v1"); p("v_min_u32 v13, 6, v13"); p("v_lshlrev_b32 v13, 4, v13"); p("v_add_u32 v15, v15, v13")
    p("s_mul_i32 %s, %s, 112" % (sH0, sRB)); p("s_add_u32 %s, %s, %d" % (sH0, sH0, BP_BASE)); p("s_add_u32 %s, %s, %d" % (sH1, sH0, 8*14336))
    p.vmem("buffer_load_dwordx4 v[16:19], v15, %s, %s offen%s" % (SWS, sH0, HL), "HG")
    p.vmem("buffer_load_dwordx4 v[20:23], v15, %s, %s offen%s" % (SWS, sH1, HL), "HG")
    def retry_block(check, reload, base):
        R = p.label("r" + base); OK = p.label("ok" + base)
        p("s_mov_b32 %s, %d" % (sRETRY, RETRIES))
        p("%s:" % R)
        check()
        p("s_cbranch_vccz %s" % OK)
        p("s_sub_u32 %s, %s, 1" % (sRETRY, sRETRY)); p("s_cbranch_scc1 %s" % OK)
        reload()
        p("s_waitcnt vmcnt(0)")
        p("s_branch %s" % R)
        p("%s:" % OK)
    def h_compute():
        p.wait("HG")
        def rl():
            p("s_sleep %d" % cfg.get("sleep", 8))
            p("buffer_load_dwordx4 v[16:19], v15, %s, %s offen%s" % (SWS, sH0, HL))
            p("buffer_load_dwordx4 v[20:23], v15, %s, %s offen%s" % (SWS, sH1, HL))
        retry_block(lambda: tagcheck(list(range(16, 24)), 14), rl, "h")
        red4(p, [16, 17, 18, 19]); red4(p, [20, 21, 22, 23])
        p("v_cvt_pk_bf16_f32 v24, v16, v20")
        unpack2(16, 24)
        silu(16, 16, 24, 1)
        p("v_cvt_pk_bf16_f32 v24, v16, v16"); p("v_lshlrev_b32 v16, 16, v24")
        p("v_mul_f32 v16, v16, v17")
        p("v_cvt_pk_bf16_f32 v16, v16, v16")
        p("v_lshrrev_b32 v12, 4, v1"); p("v_and_b32 v13, 1, v12"); p("v_lshlrev_b32 v13, 1, v13"); p("v_lshrrev_b32 v12, 1, v12"); p("v_or_b32 v12, v12, v13")
        p("v_lshlrev_b32 v12, 5, v12"); p("v_and_b32 v13, 7, v1"); p("v_lshlrev_b32 v13, 2, v13"); p("v_add_u32 v13, v13, v12")
        p("ds_write_b32 v13, v16 offset:%d" % L_HL)
        p("v_lshrrev_b32 v13, 4, v1"); p("v_lshlrev_b32 v13, 5, v13")
        p("s_waitcnt lgkmcnt(0)")
        p("ds_read_b128 v[16:19], v13 offset:%d" % L_HL); p("ds_read_b128 v[20:23], v13 offset:%d" % (L_HL+16))
    sOB = "s77"
    late = []
    def tl(n=1):
        for _ in range(min(n, len(late))): late.pop(0)()
    def pv(t, trickle=False):
        base = RING + 32*(t % 4)
        p.wait("V%d" % t)
        def perm(j):
            c, h = j >> 1, j & 1
            for tt in range(4):
                p("v_perm_b32 v%d, v%d, v%d, %s" % (PERM+4*j+tt, base+4*(2*tt+1)+c, base+4*(2*tt)+c, sSELHI if h else sSELLO))
        def mm(j):
            p("v_mfma_f32_16x16x32_bf16 %s, %s, %s, %s" % (vr(ACC+4*j, 4), vr(PERM+4*j, 4), vr(SP+4*t, 4), "0" if t == 0 else vr(ACC+4*j, 4)))
        perm(0)
        for j in range(1, 8):
            perm(j); mm(j-1)
            if trickle and j in (2, 5): tl(1)
        mm(7)
    vW2O, vOO = 31, 11
    sW2B = "s3"
    def late_addresses():
        p("v_lshrrev_b32 v12, 4, v1"); p("v_and_b32 v13, 15, v1"); p("v_lshlrev_b32 v13, 4, v13")
        p("v_lshlrev_b32 v%d, 11, v12" % vW2O); p("v_add_u32 v%d, v%d, v13" % (vW2O, vW2O))
        p("v_lshlrev_b32 v%d, 14, v12" % vOO); p("v_add_u32 v%d, v%d, v13" % (vOO, vOO))
        p("s_lshl_b32 %s, %s, 10" % (sD, sCH)); p("s_lshl_b32 %s, %s, 8" % (sA, sW)); p("s_add_u32 %s, %s, %s" % (sD, sD, sA))
        p("s_mul_i32 %s, %s, %d" % (sW2B, sRB, 28*2048)); p("s_add_u32 %s, %s, %s" % (sW2B, sW2B, sD))
        p("s_lshl_b32 %s, %s, 16" % (sOB, sRB)); p("s_add_u32 %s, %s, %s" % (sOB, sOB, sD))
    def W2_loads():
        L = []
        for t in range(7):
            def f(t=t):
                p("s_add_u32 %s, %s, %d" % (sT0, sW2B, t*4*2048))
                svmem("buffer_load_dwordx4 %s, v%d, %s, %s offen%s" % (ar(4*t, 4), vW2O, SW2, sT0, ntw), "W2")
            L.append(f)
        return L
    def O_loads():
        L = []
        for t in range(8):
            def f(t=t):
                p("s_add_u32 %s, %s, %d" % (sT0, sOB, t*2048))
                svmem("buffer_load_dwordx4 %s, v%d, %s, %s offen%s" % (ar(32+4*t, 4), vOO, SWO, sT0, ntw), "O")
            L.append(f)
        return L
    vAWB, vRD, vPO, vLWR, vMLS, vG0, vG1 = 24, 25, 26, 27, 28, 29, 30
    vPC, vCM, vCPW, vCPR, vZ = 160, 161, 162, 163, 165
    vAW = PERM + 24
    sPO, sPB, sPS, sGV, sGM, sGA = "s71", "s72", "s73", "s74", "s75", "s76"
    def tail_addresses_a():
        p("v_and_b32 v12, 7, v1"); p("v_lshlrev_b32 v13, 9, v12"); p("v_lshlrev_b32 v12, 4, v12"); p("v_add_u32 v12, v12, v13")
        p("v_lshrrev_b32 v13, 4, v1"); p("v_lshlrev_b32 v13, 7, v13"); p("v_add_u32 v12, v12, v13")
        p("s_lshl_b32 %s, %s, 12" % (sA, sW)); p("s_add_u32 %s, %s, %d" % (sA, sA, L_OP)); p("v_add_u32 v%d, %s, v12" % (vAWB, sA))
        p("v_lshlrev_b32 v%d, 4, v0" % vRD)
        p("v_lshrrev_b32 v14, 5, v0"); p("v_and_b32 v15, 7, v0"); p("v_xor_b32 v14, v14, v15"); p("v_lshlrev_b32 v14, 4, v14")
        p("v_lshrrev_b32 v15, 3, v0"); p("v_lshlrev_b32 v15, 7, v15"); p("v_add_u32 v%d, v14, v15" % vPO)
        p("s_mul_i32 %s, s2, %d" % (sPO, O_PITCH)); p("s_add_u32 %s, %s, %d" % (sPO, sPO, O_BASE))
        p("v_and_b32 v13, 15, v1"); p("v_lshlrev_b32 v%d, 2, v13" % vLWR)
        p("v_lshlrev_b32 v%d, 4, v1" % vMLS); p("v_add_u32 v%d, 4096, v%d" % (vMLS, vMLS))
        p("v_lshrrev_b32 v12, 3, v1"); p("v_mul_u32_u24 v%d, %d, v12" % (vG0, O_PITCH))
        p("v_and_b32 v13, 7, v1"); p("v_lshlrev_b32 v13, 4, v13"); p("v_add_u32 v%d, v%d, v13" % (vG1, vG0))
        p("s_lshl_b32 %s, %s, 6" % (sA, sG)); p("s_mul_i32 %s, %s, %d" % (sA, sA, O_PITCH)); p("s_add_u32 %s, %s, %d" % (sA, sA, O_BASE))
        p("s_bfe_u32 %s, s2, 0x30003" % sB)
        p("s_lshl_b32 %s, %s, 4" % (sD, sB)); p("s_add_u32 %s, %s, %s" % (sGM, sA, sD)); p("s_add_u32 %s, %s, 4096" % (sGM, sGM))
        p("s_lshl_b32 %s, %s, 2" % (sB, sB)); p("s_bfe_u32 %s, s2, 0x20001" % sD); p("s_add_u32 %s, %s, %s" % (sB, sB, sD)); p("s_lshl_b32 %s, %s, 7" % (sB, sB))
        p("s_add_u32 %s, %s, %s" % (sB, sB, sA))
        p("s_mul_i32 %s, %s, %d" % (sD, sW, 16*O_PITCH))
        p("s_add_u32 %s, %s, %s" % (sGV, sB, sD)); p("s_add_u32 %s, %s, %s" % (sGA, sGM, sD))
    def tail_addresses_b():
        p("v_bfe_u32 v12, v1, 2, 2"); p("v_lshlrev_b32 v12, 14, v12")
        p("v_and_b32 v13, 3, v1"); p("v_lshlrev_b32 v13, 5, v13"); p("v_add_u32 v12, v12, v13")
        p("v_bfe_u32 v13, v1, 4, 1"); p("v_lshlrev_b32 v13, 4, v13"); p("v_add_u32 v%d, v12, v13" % vPC)
        p("s_lshl_b32 %s, %s, 18" % (sA, sCH)); p("s_lshl_b32 %s, %s, 16" % (sD, sW)); p("s_add_u32 %s, %s, %s" % (sA, sA, sD))
        p("s_lshl_b32 %s, %s, 7" % (sD, sRB)); p("s_add_u32 %s, %s, %s" % (sA, sA, sD))
        p("s_add_u32 %s, %s, %d" % (sPB, sA, BB_BASE)); p("s_add_u32 %s, %s, %d" % (sPS, sA, S_BASE))
        p("v_lshrrev_b32 v12, 4, v1"); p("v_and_b32 v13, 1, v12"); p("v_lshlrev_b32 v13, 1, v13"); p("v_lshrrev_b32 v12, 1, v12"); p("v_or_b32 v12, v12, v13")
        p("v_lshlrev_b32 v12, 5, v12"); p("v_and_b32 v13, 7, v1"); p("v_lshlrev_b32 v13, 2, v13"); p("v_add_u32 v12, v12, v13")
        p("s_lshl_b32 %s, %s, 7" % (sA, sW)); p("v_add_u32 v%d, %s, v12" % (vCPW, sA))
        p("v_lshrrev_b32 v13, 4, v1"); p("v_lshlrev_b32 v%d, 5, v13" % vCPR)
        p("s_lshl_b32 %s, %s, 3" % (sA, sW)); p("v_mov_b32 v%d, %s" % (vCM, sA)); p("v_mov_b32 v%d, 0" % vZ)
    o_early = cfg.get("o_early", False)
    pv(0); loadV(4)
    pv(1); loadV(5)
    pv(2); loadV(6)
    pv(3); loadV(7)
    late_addresses()
    late += W2_loads() + O_loads()
    n_pre = cfg.get("n_pre", 10)
    pv(4, True); tl(1); h_compute(); tl(1); p("s_waitcnt lgkmcnt(0)"); pv(5, True); tl(1); tail_addresses_a(); tl(1); pv(6, True)
    while len(late) > 15 - n_pre: tl(1)
    pv(7)
    stamp("pv_done")
    for j in range(8): p("v_xor_b32 v%d, %d, v%d" % (vAW+j, 16*j, vAWB))
    p("s_mov_b32 exec_lo, 0x00ff00ff"); p("s_mov_b32 exec_hi, 0x00ff00ff")
    for j in range(8):
        p("ds_write_b128 v%d, %s" % (vAW+j, vr(ACC+4*j, 4)))
    p("s_mov_b64 exec, -1")
    p("s_waitcnt lgkmcnt(0)")
    p("s_barrier")
    for i in range(4): p("ds_read_b128 %s, v%d offset:%d" % (vr(PERM+4*i, 4), vRD, L_OP + 4096*i))
    for i in range(4): p("ds_read_b32 v%d, v%d offset:%d" % (PERM+16+i, vLWR, L_LW + 64*i))
    p("s_waitcnt lgkmcnt(4)")
    for r in range(4):
        p("v_add_f32 v%d, v%d, v%d" % (PERM+r, PERM+r, PERM+4+r)); p("v_add_f32 v%d, v%d, v%d" % (PERM+8+r, PERM+8+r, PERM+12+r))
    for r in range(4): p("v_add_f32 v%d, v%d, v%d" % (PERM+r, PERM+r, PERM+8+r))
    for r in range(4): p("v_bfi_b32 v%d, %s, v%d, v%d" % (PERM+r, sFF, vTAG, PERM+r))
    p.vmem("buffer_store_dwordx4 %s, v%d, %s, %s offen%s" % (vr(PERM, 4), vPO, SWS, sPO, HS), "PUBO")
    SKIP4 = p.label("ml")
    p("s_cmp_lg_u32 %s, 0" % sW); p("s_cbranch_scc1 %s" % SKIP4)
    p("s_waitcnt lgkmcnt(0)")
    p("v_add_f32 v%d, v%d, v%d" % (PERM+16, PERM+16, PERM+17)); p("v_add_f32 v%d, v%d, v%d" % (PERM+18, PERM+18, PERM+19)); p("v_add_f32 v%d, v%d, v%d" % (PERM+17, PERM+16, PERM+18))
    p("v_bfi_b32 v%d, %s, v%d, v%d" % (PERM+16, sFF, vTAG, vMAX)); p("v_bfi_b32 v%d, %s, v%d, v%d" % (PERM+17, sFF, vTAG, PERM+17))
    p("v_mov_b32 v%d, %s" % (PERM+18, sE)); p("v_mov_b32 v%d, %s" % (PERM+19, sE))
    p("s_mov_b32 exec_lo, 0xff"); p("s_mov_b32 exec_hi, 0")
    p.vmem("buffer_store_dwordx4 %s, v%d, %s, %s offen%s" % (vr(PERM+16, 4), vMLS, SWS, sPO, HS), "PUBML", cond=True)
    p("s_mov_b64 exec, -1")
    p("%s:" % SKIP4)
    p("s_waitcnt lgkmcnt(0)")
    stamp("o_pub")
    DD = 124
    def pub_cols(sb, name):
        for r in range(4): p("v_bfi_b32 v%d, %s, v%d, v%d" % (DD+r, sFF, vTAG, DD+r))
        p("s_mov_b32 exec_hi, 0")
        p.vmem("buffer_store_dwordx4 %s, v%d, %s, %s offen%s" % (vr(DD, 4), vPC, SWS, sb, HS), name)
        p("s_mov_b64 exec, -1")
    def diag_mult(src, n, breg):
        for t in range(n+1):
            if t < n:
                A = PERM + 4*(t % 4)
                for jj in range(4): p("v_and_b32 v%d, v%d, v%d" % (A+jj, src+t, vMASK+jj))
            if t >= 1:
                tt = t-1; AA = PERM + 4*(tt % 4)
                p("v_mfma_f32_16x16x32_bf16 %s, %s, %s, %s" % (vr(DD, 4), vr(AA, 4), ar(breg+4*tt, 4), "0" if tt == 0 else vr(DD, 4)))
    def w2_mult():
        p.wait("W2")
        diag_mult(16, 7, 0)
        pub_cols(sPB, "PUBB2")
        stamp("b_pub")
    def g2_loads(R, nm):
        f = (lambda t: p.vmem(t, nm)) if nm else p
        f("buffer_load_dwordx4 %s, v%d, %s, %s offen%s" % (vr(R, 4), vG1, SWS, sGV, HL))
        f("buffer_load_dwordx4 %s, v%d, %s, %s offen%s" % (vr(R+8, 4), vG0, SWS, sGA, HL))
        p("s_add_u32 %s, %s, %d" % (sT0, sGV, 8*O_PITCH))
        f("buffer_load_dwordx4 %s, v%d, %s, %s offen%s" % (vr(R+4, 4), vG1, SWS, sT0, HL))
        p("s_add_u32 %s, %s, %d" % (sT0, sGA, 8*O_PITCH))
        f("buffer_load_dwordx4 %s, v%d, %s, %s offen%s" % (vr(R+12, 4), vG0, SWS, sT0, HL))
    def g2_check():
        p("v_xor_b32 v14, %s, v106" % sE)
        for r in (107, 110, 111): p("v_bitop3_b32 v14, v%d, %s, v14 bitop3:0xbe" % (r, sE))
        regs = list(range(96, 106)) + [108, 109]
        p("v_xor_b32 v15, %s, v%d" % (sTAG, regs[0]))
        for r in regs[1:]: p("v_bitop3_b32 v15, v%d, %s, v15 bitop3:0xbe" % (r, sTAG))
        p("v_and_or_b32 v15, v15, %s, v14" % sFF)
        p("v_cmp_ne_u32 vcc, 0, v15")
        if cfg.get("nodep"): p("s_mov_b64 vcc, 0")
    g2_loads(96, "G2A")
    tl(100)
    tail_addresses_b()
    w2_mult()
    p.wait("G2A")
    stamp("g2_first")
    def rl2():
        if cfg.get("g2sleep", 0): p("s_sleep %d" % cfg["g2sleep"])
        g2_loads(96, None)
    retry_block(g2_check, rl2, "g2")
    stamp("g2_ok")
    if stamps: p("s_mov_b32 s3, %s" % sRETRY)
    p("v_and_b32 v104, 0xffffff00, v104"); p("v_and_b32 v108, 0xffffff00, v108")
    p("v_max_f32 v120, v104, v108")
    allred(p, [120], [121], "v_max_f32", [8, 16, 32])
    p("v_sub_f32 v104, v104, v120"); p("v_sub_f32 v108, v108, v120")
    p("v_mul_f32 v104, %s, v104" % sLOG2E); p("v_mul_f32 v108, %s, v108" % sLOG2E)
    p("v_exp_f32 v104, v104"); p("v_exp_f32 v108, v108")
    for r in range(4): p("v_mul_f32 v%d, v104, v%d" % (96+r, 96+r))
    p("v_mul_f32 v105, v104, v105")
    for r in range(4): p("v_fmac_f32 v%d, v108, v%d" % (96+r, 100+r))
    p("v_fmac_f32 v105, v108, v109")
    allred(p, [105], [121], "v_add_f32", [32, 16, 8])
    red4(p, [96, 97, 98, 99])
    p("v_mov_b32 v121, v105")
    p("ds_write_b32 v%d, v96 offset:%d" % (vCPW, L_CP))
    p("ds_write_b64 v%d, v[120:121] offset:%d" % (vCM, L_CM))
    p("s_waitcnt lgkmcnt(0)")
    p("s_barrier")
    p("ds_read_b128 v[100:103], v%d offset:%d" % (vZ, L_CM)); p("ds_read_b128 v[104:107], v%d offset:%d" % (vZ, L_CM+16))
    for w_ in range(4):
        p("ds_read_b128 %s, v%d offset:%d" % (vr(32+8*w_, 4), vCPR, L_CP + 128*w_)); p("ds_read_b128 %s, v%d offset:%d" % (vr(36+8*w_, 4), vCPR, L_CP + 128*w_ + 16))
    p("s_waitcnt lgkmcnt(8)")
    p("v_max3_f32 v120, v100, v102, v104"); p("v_max_f32 v120, v120, v106")
    for i in range(4): p("v_sub_f32 v%d, v%d, v120" % (100+2*i, 100+2*i))
    for i in range(4): p("v_mul_f32 v%d, %s, v%d" % (100+2*i, sLOG2E, 100+2*i))
    for i in range(4): p("v_exp_f32 v%d, v%d" % (100+2*i, 100+2*i))
    p("v_mul_f32 v121, v100, v101"); p("v_fmac_f32 v121, v102, v103"); p("v_fmac_f32 v121, v104, v105"); p("v_fmac_f32 v121, v106, v107")
    p("v_rcp_f32 v121, v121")
    for i in range(4): p("v_mul_f32 v%d, v%d, v121" % (100+2*i, 100+2*i))
    for i in range(4): p("v_mov_b32 v%d, v%d" % (101+2*i, 100+2*i))
    p("s_waitcnt lgkmcnt(6)")
    for r in range(0, 8, 2): p("v_pk_mul_f32 %s, v[100:101], %s" % (vr(32+r, 2), vr(32+r, 2)))
    p("s_waitcnt lgkmcnt(4)")
    for r in range(0, 8, 2): p("v_pk_fma_f32 %s, v[102:103], %s, %s" % (vr(32+r, 2), vr(40+r, 2), vr(32+r, 2)))
    p("s_waitcnt lgkmcnt(2)")
    for r in range(0, 8, 2): p("v_pk_fma_f32 %s, v[104:105], %s, %s" % (vr(32+r, 2), vr(48+r, 2), vr(32+r, 2)))
    p("s_waitcnt lgkmcnt(0)")
    for r in range(0, 8, 2): p("v_pk_fma_f32 %s, v[106:107], %s, %s" % (vr(32+r, 2), vr(56+r, 2), vr(32+r, 2)))
    for r in range(8): p("v_cvt_pk_bf16_f32 v%d, v%d, v%d" % (16+r, 32+r, 32+r))
    p.wait("O")
    diag_mult(16, 8, 32)
    pub_cols(sPS, "PUBS")
    stamp("s_pub")
    FIN = p.label("fin")
    p("s_cmp_ge_u32 s2, 32"); p("s_cbranch_scc1 %s" % FIN)
    p("s_lshl_b32 %s, s2, 14" % sA); p("s_lshl_b32 %s, %s, 12" % (sD, sW)); p("s_add_u32 %s, %s, %s" % (sA, sA, sD))
    p("s_add_u32 %s, %s, %d" % (sB, sA, S_BASE)); p("s_add_u32 %s, %s, %d" % (sA, sA, BB_BASE))
    p("v_lshrrev_b32 v12, 4, v1"); p("v_and_b32 v13, 1, v12"); p("v_lshlrev_b32 v13, 1, v13"); p("v_lshrrev_b32 v12, 1, v12"); p("v_or_b32 v12, v12, v13")
    p("v_and_b32 v14, 7, v1"); p("v_lshlrev_b32 v14, 2, v14"); p("v_add_u32 v14, v14, v12")
    p("v_lshlrev_b32 v179, 1, v14"); p("s_lshl_b32 %s, s2, 6" % sCc)
    p("v_lshlrev_b32 v13, 2, v14"); p("s_lshl_b32 %s, %s, 7" % (sD, sW)); p("v_add_u32 v12, %s, v13" % sD)
    def fl(sb):
        def f(R, nm):
            g = (lambda t: p.vmem(t, nm)) if nm else p
            for u in range(4):
                g("buffer_load_dwordx4 %s, v%d, %s, %s offen offset:%d%s" % (vr(R+4*u, 4), vL16, SWS, sb, 1024*u, HL))
        return f
    def fin_reduce(R, dst):
        for r in range(0, 4, 2):
            p("v_pk_add_f32 %s, %s, %s" % (vr(R+r, 2), vr(R+r, 2), vr(R+4+r, 2))); p("v_pk_add_f32 %s, %s, %s" % (vr(R+8+r, 2), vr(R+8+r, 2), vr(R+12+r, 2)))
        for r in range(0, 4, 2): p("v_pk_add_f32 %s, %s, %s" % (vr(R+r, 2), vr(R+r, 2), vr(R+8+r, 2)))
        red4(p, [R, R+1, R+2, R+3])
        p("ds_write_b32 v12, v%d offset:%d" % (R, dst))
        p("s_waitcnt lgkmcnt(0)")
        p("s_barrier")
        for w_ in range(4): p("ds_read_b32 v%d, v13 offset:%d" % (R+w_, dst + 128*w_))
        p("s_waitcnt lgkmcnt(0)")
        p("v_add_f32 v%d, v%d, v%d" % (R, R, R+1)); p("v_add_f32 v%d, v%d, v%d" % (R+2, R+2, R+3)); p("v_add_f32 v%d, v%d, v%d" % (R, R, R+2))
        p("v_cvt_pk_bf16_f32 v%d, v%d, v%d" % (R, R, R)); p("v_lshlrev_b32 v%d, 16, v%d" % (R, R))
    p.vmem("buffer_load_ushort v18, v179, %s, %s offen" % (SX, sCc), "XF")
    fl(sA)(128, "FB")
    p.wait("FB")
    retry_block(lambda: tagcheck(list(range(128, 144)), 15), lambda: fl(sA)(128, None), "fb")
    fl(sB)(144, "FS0")
    fin_reduce(128, L_FP)
    silu(128, 32, 40, 1)
    p("v_cvt_pk_bf16_f32 v32, v32, v32"); p("v_lshlrev_b32 v32, 16, v32")
    p("v_lshlrev_b32 v44, 16, v18")
    stamp("g_done")
    p.wait("FS0")
    retry_block(lambda: tagcheck(list(range(144, 160)), 15), lambda: fl(sB)(144, None), "fs")
    stamp("fs_ok")
    fin_reduce(144, L_FP + 512)
    p("v_mul_f32 v36, v144, v32")
    p("v_cvt_pk_bf16_f32 v36, v36, v36"); p("v_lshlrev_b32 v36, 16, v36")
    p("v_add_f32 v36, v36, v44")
    p("v_cvt_pk_bf16_f32 v40, v36, v36")
    SK5 = p.label("out")
    p("s_cmp_lg_u32 %s, 0" % sW); p("s_cbranch_scc1 %s" % SK5)
    p("s_mov_b32 exec_lo, 0x00ff00ff"); p("s_mov_b32 exec_hi, 0x00ff00ff")
    p.vmem("buffer_store_short v40, v179, %s, %s offen" % (SOUT, sCc), "OUT", cond=True)
    p("s_cmp_lg_u32 s2, 0"); p("s_cbranch_scc1 %s" % SK5)
    p("v_mov_b32 v12, %d" % EPOCH); p("v_mov_b32 v13, %s" % sE)
    p("s_mov_b32 exec_lo, 1"); p("s_mov_b32 exec_hi, 0")
    p.vmem("buffer_store_dword v13, v12, %s, 0 offen%s" % (SWS, HS), "EPO", cond=True)
    p("%s:" % SK5)
    p("s_mov_b64 exec, -1")
    p("%s:" % FIN)
    if stamps:
        stamp("end")
        p("s_getreg_b32 %s, hwreg(HW_REG_XCC_ID)" % sA)
        p("s_waitcnt lgkmcnt(0)")
        for k in range(16):
            p("v_mov_b32 v%d, %s" % (32+k, ("s%d" % (78+2*k)) if k < nst[0] else "0"))
        p("v_mov_b32 v48, %s" % sA); p("v_mov_b32 v49, s3"); p("s_getreg_b32 %s, hwreg(HW_REG_HW_ID)" % sD); p("v_mov_b32 v50, %s" % sD); p("v_mov_b32 v51, 0")
        p("s_lshl_b32 %s, s2, 2" % sB); p("s_add_u32 %s, %s, %s" % (sB, sB, sW)); p("s_lshl_b32 %s, %s, 7" % (sB, sB)); p("s_add_u32 %s, %s, %d" % (sB, sB, STAMP))
        p("v_mov_b32 v12, 0")
        p("s_mov_b32 exec_lo, 1"); p("s_mov_b32 exec_hi, 0")
        for i in range(4): p("buffer_store_dwordx4 %s, v12, %s, %s offen offset:%d" % (vr(32+4*i, 4), SWS, sB, 16*i))
        p("buffer_store_dwordx4 v[48:51], v12, %s, %s offen offset:64" % (SWS, sB))
        p("s_mov_b64 exec, -1")
    p("%s:" % END)
    p("s_endpgm")
    return p, names

HEADER = """; Fused decode step: layernorm -> {GQA attention over a 64K cache -> wo} * silu(SwiGLU FFN) + x.
; @launch grid=(256,1,1) block=(256,1,1) lds=%d
"""
def wrap(body, name=NAME, lds=LDS_BYTES, header=True):
    s = (HEADER % lds) if header else ""
    if header: s += '.amdgcn_target "amdgcn-amd-amdhsa--gfx950"\n'
    s += ".text\n.globl %s\n.p2align 8\n.type %s,@function\n%s:\n" % (name, name, name)
    s += body
    s += '.section .rodata,"a"\n.p2align 6\n.amdhsa_kernel %s\n' % name
    s += "  .amdhsa_next_free_vgpr 512\n  .amdhsa_next_free_sgpr 102\n  .amdhsa_accum_offset 256\n"
    s += "  .amdhsa_group_segment_fixed_size 0\n  .amdhsa_kernarg_size 96\n  .amdhsa_user_sgpr_count 2\n"
    s += "  .amdhsa_user_sgpr_kernarg_segment_ptr 1\n  .amdhsa_system_sgpr_workgroup_id_x 1\n"
    s += "  .amdhsa_float_denorm_mode_32 3\n"
    s += ".end_amdhsa_kernel\n"
    return s

if __name__ == "__main__":
    cfg = json.loads(sys.argv[2]) if len(sys.argv) > 2 else {}
    p, names = build(cfg)
    open(sys.argv[1], "w").write(wrap(p.text()))
    print("wrote", sys.argv[1], "stamps:", names)
```

```python
import sys, json
from sched import Prog

NAME = "recurrent_scan__gqa_block_cached__glu_gated_swiglu__decode_kernel"

EPOCH   = 0
Q_BASE  = 0x1000
FLAG_BASE = 0x14000
BP_BASE = 0x20000
O_BASE  = 0x80000
O_PITCH = 4224
S_BASE  = 0x200000
BB_BASE = 0x280000
STAMP   = 0x400000
L_XN = 0
L_QP = 4096
L_BP = 6144
L_QL = 10240
L_HL = 12544
L_MX = 12800
L_LW = 13056
L_CP = 13312
L_FP = 13824
L_CM = 14848
L_OP = 16384
LDS_BYTES = 32768

SX, SK, SV, SWQ, SWO, SW1, SW3, SW2, SOUT, SDBG, SWS = [ "s[%d:%d]" % (4*i+4, 4*i+7) for i in range(11)]
sW, sG, sC, sT0, sKV = "s48", "s49", "s50", "s51", "s52"
sSELLO, sSELHI, sE, sTAG, sFF, sLOG2E, sSCALE, sHI = "s53", "s54", "s55", "s56", "s57", "s58", "s59", "s60"
sRETRY = "s61"
sA, sB, sCc, sD = "s62", "s63", "s64", "s65"
sRB, sCH = "s66", "s67"
sKC = "s68"
sCB1, sCB3, sW3B = "s69", "s70", "s71"
sVC, sROT = "s72", "s73"
vTID, vLANE, vOFFK, vL16 = 0, 1, 2, 3
vMASK = 4
vTAG, vMAX, vL0, vL1 = 8, 9, 10, 11
vT = 12
QF, SP, PERM, ACC, RING = 16, 32, 64, 96, 128

def vr(b, n=1): return "v%d" % b if n == 1 else "v[%d:%d]" % (b, b+n-1)
def ar(b, n=1): return "a%d" % b if n == 1 else "a[%d:%d]" % (b, b+n-1)

DPP = " row_mask:0xf bank_mask:0xf"
def allred(p, regs, tmps, op, steps):
    for s in steps:
        if s in (1, 2, 4, 8):
            for r in regs: p("%s_dpp v%d, v%d, v%d row_ror:%d%s" % (op, r, r, r, s, DPP))
        else:
            for r, t in zip(regs, tmps): p("v_mov_b32 v%d, v%d" % (t, r))
            for r, t in zip(regs, tmps): p("v_permlane%d_swap_b32 v%d, v%d" % (s, r, t))
            for r, t in zip(regs, tmps): p("%s v%d, v%d, v%d" % (op, r, r, t))

def red4(p, a):
    p("v_permlane32_swap_b32 v%d, v%d" % (a[0], a[1])); p("v_permlane32_swap_b32 v%d, v%d" % (a[2], a[3]))
    p("v_add_f32 v%d, v%d, v%d" % (a[0], a[0], a[1])); p("v_add_f32 v%d, v%d, v%d" % (a[2], a[2], a[3]))
    p("v_permlane16_swap_b32 v%d, v%d" % (a[0], a[2]))
    p("v_add_f32 v%d, v%d, v%d" % (a[0], a[0], a[2]))
    p("v_add_f32_dpp v%d, v%d, v%d row_ror:8%s" % (a[0], a[0], a[0], DPP))

def build(cfg):
    pat = cfg.get("pat", "lin")
    nt = " nt" if cfg.get("nt", True) else ""
    ntw = " nt" if cfg.get("ntw", True) else ""
    stamps = cfg.get("stamps", False)
    poll_after = cfg.get("poll_after", 6)
    HS = cfg.get("hs", " sc1")
    HL = cfg.get("hl", " sc1")
    RETRIES = cfg.get("retries", 40000)
    R_ = cfg.get("R", 1)
    stride = {"lin": 1024, "str8": 8192, "w4": 4096 * R_, "glob": 262144}[pat]
    rot = cfg.get("rot", 0)
    p = Prog()
    nst = [0]
    names = []
    def stamp(name):
        if not stamps or name in cfg.get("nostamp", []): return
        k = nst[0]; nst[0] += 1; names.append(name)
        assert k < 12
        p("s_memrealtime s[%d:%d]" % (78+2*k, 79+2*k))

    depth = cfg.get("depth", 0); dstep = cfg.get("dstep", 2); depth0 = cfg.get("depth0", depth)
    cnt = [0]
    def svmem(text, name, early=False):
        d = depth0 if early else depth
        if d and cnt[0] % dstep == 0: p("s_waitcnt vmcnt(%d)" % (d - dstep))
        cnt[0] += 1
        p.vmem(text, name)
    END = p.label("end")
    p("s_cmp_ge_u32 s2, 256")
    p("s_cbranch_scc1 %s" % END)
    stamp("start")
    if cfg.get("pf", 0):
        NPF = p.label("nopf")
        p("s_cmp_ge_u32 s2, %d" % cfg["pf"]); p("s_cbranch_scc1 %s" % NPF)
        p("v_cmp_gt_u32 vcc, 64, v0"); p("s_cbranch_vccz %s" % NPF)
        PFB = p.label("pfbase")
        p("s_getpc_b64 s[48:49]")
        p("%s:" % PFB)
        p("v_lshlrev_b32 v12, 7, v0")
        for i in range(cfg.get("pfn", 3)):
            p("v_min_u32 v13, %s-%s-4, v12" % (END, PFB))
            p.vmem("global_load_dword v%d, v13, s[48:49]" % (236+i), "PF", cond=True)
            p("v_add_u32 v12, 0x2000, v12")
        p("%s:" % NPF)
    for i, off in enumerate([0, 8, 16, 24, 32, 48, 56, 64, 72, 80, 88]):
        p("s_load_dwordx2 s[%d:%d], s[0:1], %d" % (4*i+4, 4*i+5, off))
    sizes = [2048, 1<<26, 1<<26, 1<<23, 1<<23, 1024*3584*2, 1024*3584*2, 1024*3584*2, 2048, 256, 1<<28]
    for i, sz in enumerate(sizes):
        p("s_mov_b32 s%d, 0x%x" % (4*i+6, sz)); p("s_mov_b32 s%d, 0x20000" % (4*i+7))
    p("s_cmp_lt_u32 s2, 224")
    p("s_cselect_b32 s26, s26, 0")
    p("s_cselect_b32 s30, s30, 0")
    p("v_lshrrev_b32 v12, 6, v0")
    p("v_and_b32 v1, 63, v0")
    p("v_readfirstlane_b32 %s, v12" % sW)
    p("s_lshr_b32 %s, s2, 6" % sG)
    p("s_and_b32 %s, s2, 63" % sC)
    p("s_mov_b32 %s, 0x05040100" % sSELLO); p("s_mov_b32 %s, 0x07060302" % sSELHI)
    p("s_mov_b32 %s, 0xff" % sFF); p("s_mov_b32 %s, 0x3fb8aa3b" % sLOG2E)
    p("s_mov_b32 %s, 0x3db504f3" % sSCALE); p("s_mov_b32 %s, 0xffff0000" % sHI)
    p("s_lshr_b32 %s, s2, 1" % sRB); p("s_and_b32 %s, s2, 1" % sCH)
    p("v_lshlrev_b32 v3, 4, v1")
    p("v_lshlrev_b32 v13, 5, v1")
    p("s_lshl_b32 %s, %s, 9" % (sA, sW))
    p("v_lshlrev_b32 v14, 3, v1")
    p("v_lshrrev_b32 v15, 3, v1"); p("v_lshlrev_b32 v15, 13, v15")
    p("v_and_b32 v16, 7, v1"); p("v_lshlrev_b32 v16, 4, v16"); p("v_add_u32 v15, v15, v16")
    p("v_lshrrev_b32 v17, 4, v1"); p("v_mul_u32_u24 v17, 7168, v17")
    p("v_and_b32 v18, 15, v1"); p("v_lshlrev_b32 v18, 4, v18"); p("v_add_u32 v17, v17, v18")
    p("s_and_b32 %s, %s, 3" % (sB, sC)); p("s_lshl_b32 %s, %s, 21" % (sB, sB))
    p("s_lshl_b32 %s, %s, 19" % (sCc, sW)); p("s_add_u32 %s, %s, %s" % (sB, sB, sCc))
    p("s_lshl_b32 %s, %s, 11" % (sCc, sG)); p("s_add_u32 %s, %s, %s" % (sB, sB, sCc))
    p("s_lshr_b32 %s, %s, 2" % (sCc, sC)); p("s_lshl_b32 %s, %s, 7" % (sCc, sCc)); p("s_add_u32 %s, %s, %s" % (sB, sB, sCc))
    p("s_and_b32 %s, s2, 7" % sCc); p("s_lshl_b32 %s, %s, 7" % (sCc, sCc))
    p("s_lshl_b32 %s, %s, 5" % (sD, sW)); p("s_add_u32 %s, %s, %s" % (sCc, sCc, sD)); p("s_mul_i32 %s, %s, 7168" % (sCc, sCc))
    r1, r3 = cfg.get("r1", 1), cfg.get("r3", 2)
    for dst, rr in ((sCB1, r1), (sCB3, r3)):
        p("s_lshr_b32 %s, s2, 3" % dst); p("s_add_u32 %s, %s, %d" % (dst, dst, rr))
        p("s_sub_u32 %s, %s, 28" % (sD, dst)); p("s_cselect_b32 %s, %s, %s" % (dst, dst, sD))
    p("s_lshl_b32 %s, %s, 8" % (sD, sCB3)); p("s_add_u32 %s, %s, %s" % (sW3B, sCc, sD))
    p("s_lshl_b32 %s, %s, 8" % (sD, sCB1)); p("s_add_u32 %s, %s, %s" % (sCc, sCc, sD))
    p("s_waitcnt lgkmcnt(0)")
    stamp("karg")
    p("s_load_dword %s, s[44:45], %d" % (sE, EPOCH))
    ntx = " nt" if cfg.get("ntx", False) else ""
    p.vmem("buffer_load_dwordx4 v[224:227], v13, %s, 0 offen%s" % (SX, ntx), "XA0")
    p.vmem("buffer_load_dwordx4 v[228:231], v13, %s, 0 offen offset:16%s" % (SX, ntx), "XA1")
    p.vmem("buffer_load_dwordx2 v[232:233], v14, %s, %s offen%s" % (SX, sA, ntx), "XB")
    if cfg.get("pbar", 1) >= 1: p("s_barrier")
    for t in range(8):
        p("s_add_u32 %s, %s, %d" % (sT0, sB, t*8*8192))
        svmem("buffer_load_dwordx4 %s, v15, %s, %s offen%s" % (vr(128+4*t, 4), SWQ, sT0, ntw), "Q%d" % t, True)
    if cfg.get("pbar", 1) >= 2: p("s_barrier")
    for t in range(8):
        p("s_add_u32 %s, %s, %d" % (sT0, sCc, t*4*7168))
        svmem("buffer_load_dwordx4 %s, v17, %s, %s offen%s" % (vr(160+4*t, 4), SW1, sT0, ntw), "W1_%d" % t, True)
    stamp("w1_issued")
    if pat == "lin":
        p("s_lshl_b32 %s, s2, 18" % sKV); p("s_lshl_b32 %s, %s, 16" % (sD, sW)); p("s_add_u32 %s, %s, %s" % (sKV, sKV, sD))
    elif pat == "str8":
        p("s_lshl_b32 %s, %s, 24" % (sKV, sG))
        p("s_lshr_b32 %s, %s, 3" % (sD, sC)); p("s_lshl_b32 %s, %s, 21" % (sD, sD)); p("s_add_u32 %s, %s, %s" % (sKV, sKV, sD))
        p("s_lshl_b32 %s, %s, 19" % (sD, sW)); p("s_add_u32 %s, %s, %s" % (sKV, sKV, sD))
        p("s_and_b32 %s, %s, 7" % (sD, sC)); p("s_lshl_b32 %s, %s, 10" % (sD, sD)); p("s_add_u32 %s, %s, %s" % (sKV, sKV, sD))
    elif pat == "w4":
        lg = R_.bit_length() - 1
        p("s_lshl_b32 %s, %s, 24" % (sKV, sG))
        p("s_lshr_b32 %s, %s, %d" % (sD, sC, lg)); p("s_lshl_b32 %s, %s, %d" % (sD, sD, 18 + lg)); p("s_add_u32 %s, %s, %s" % (sKV, sKV, sD))
        p("s_and_b32 %s, %s, %d" % (sD, sC, R_ - 1)); p("s_lshl_b32 %s, %s, 12" % (sD, sD)); p("s_add_u32 %s, %s, %s" % (sKV, sKV, sD))
        p("s_lshl_b32 %s, %s, 10" % (sD, sW)); p("s_add_u32 %s, %s, %s" % (sKV, sKV, sD))
    elif pat == "glob":
        p("s_lshl_b32 %s, %s, 24" % (sKV, sG))
        p("s_lshl_b32 %s, %s, 12" % (sD, sC)); p("s_add_u32 %s, %s, %s" % (sKV, sKV, sD))
        p("s_lshl_b32 %s, %s, 10" % (sD, sW)); p("s_add_u32 %s, %s, %s" % (sKV, sKV, sD))
    if rot == 1: p("s_and_b32 %s, %s, 7" % (sROT, sC))
    if rot == 2: p("s_lshr_b32 %s, %s, 3" % (sROT, sC))
    if rot == 3: p("s_lshr_b32 %s, %s, 3" % (sROT, sC)); p("s_add_u32 %s, %s, %s" % (sROT, sROT, sC))
    p("v_and_b32 v12, 3, v1"); p("v_lshlrev_b32 v12, %d, v12" % (stride.bit_length()-1))
    p("v_bfe_u32 v2, v1, 2, 1"); p("v_lshlrev_b32 v2, 8, v2"); p("v_add_u32 v2, v2, v12")
    p("v_bfe_u32 v12, v1, 3, 1"); p("v_lshlrev_b32 v12, 6, v12"); p("v_add_u32 v2, v2, v12")
    p("v_lshrrev_b32 v12, 4, v1"); p("v_lshlrev_b32 v12, 4, v12"); p("v_add_u32 v2, v2, v12")
    p("v_and_b32 v12, 1, v1"); p("v_lshlrev_b32 v12, 4, v12"); p("v_mov_b32 v13, 0xffff"); p("v_lshlrev_b32 v13, v12, v13")
    p("v_bfe_u32 v12, v1, 1, 2")
    for jj in range(4):
        p("v_cmp_eq_u32 vcc, %d, v12" % jj); p("v_cndmask_b32 v%d, 0, v13, vcc" % (vMASK+jj))
    def grp_base(dst, t):
        if not rot:
            p("s_add_u32 %s, %s, %d" % (dst, sKV, 8*t*stride))
        else:
            p("s_add_u32 %s, %s, %d" % (dst, sROT, t)); p("s_and_b32 %s, %s, 7" % (dst, dst))
            p("s_mul_i32 %s, %s, %d" % (dst, dst, 8*stride)); p("s_add_u32 %s, %s, %s" % (dst, dst, sKV))
    def K_loads(t):
        L = []
        for h in range(2):
            for a_ in range(2):
                for lam in range(2):
                    def f(h=h, a_=a_, lam=lam):
                        if a_ == 0 and lam == 0:
                            if h == 0: grp_base(sKC, t)
                            else: p("s_add_u32 %s, %s, %d" % (sKC, sKC, 4*stride))
                        svmem("buffer_load_dwordx4 %s, v%d, %s, %s offen offset:%d%s" % (ar(32*t+16*h+8*a_+4*lam, 4), vOFFK, SK, sKC, 512*a_+128*lam, nt), "K%d" % t)
                    L.append(f)
        return L
    def V_loads(t):
        base = RING + 32*(t % 4)
        L = []
        for i in range(8):
            def f(i=i):
                if i == 0: grp_base(sVC, t)
                else: p("s_add_u32 %s, %s, %d" % (sVC, sVC, stride))
                svmem("buffer_load_dwordx4 %s, v%d, %s, %s offen%s" % (vr(base+4*i, 4), vL16, SV, sVC, nt), "V%d" % t)
            L.append(f)
        return L
    def loadK(t):
        for f in K_loads(t): f()
    def loadV(t):
        for f in V_loads(t): f()
    def tagcheck(regs, acc):
        p("v_xor_b32 v%d, %s, v%d" % (acc, sTAG, regs[0]))
        for r in regs[1:]: p("v_bitop3_b32 v%d, v%d, %s, v%d bitop3:0xbe" % (acc, r, sTAG, acc))
        p("v_and_b32 v%d, 0xff, v%d" % (acc, acc))
        p("v_cmp_ne_u32 vcc, 0, v%d" % acc)
        if cfg.get("nodep"): p("s_mov_b64 vcc, 0")
    p.wait("XA1")
    stamp("x_landed")
    for i in range(8):
        p("v_lshlrev_b32 v%d, 16, v%d" % (32+2*i, 224+i)); p("v_and_b32 v%d, 0xffff0000, v%d" % (33+2*i, 224+i))
    for i in range(8): p("v_add_f32 v%d, v%d, v%d" % (48+i, 32+2*i, 33+2*i))
    p("v_add_f32 v48, v48, v49"); p("v_add_f32 v50, v50, v51"); p("v_add_f32 v52, v52, v53"); p("v_add_f32 v54, v54, v55")
    p("v_add_f32 v48, v48, v50"); p("v_add_f32 v52, v52, v54"); p("v_add_f32 v48, v48, v52")
    allred(p, [48], [49], "v_add_f32", [8, 4, 2, 1, 16, 32])
    p("v_mul_f32 v49, 0x3a800000, v48")
    for i in range(16): p("v_sub_f32 v%d, v%d, v49" % (32+i, 32+i))
    for i in range(4): p("v_mul_f32 v%d, v%d, v%d" % (50+i, 32+i, 32+i))
    for i in range(4, 16): p("v_fmac_f32 v%d, v%d, v%d" % (50+(i % 4), 32+i, 32+i))
    p("v_add_f32 v50, v50, v51"); p("v_add_f32 v52, v52, v53"); p("v_add_f32 v50, v50, v52")
    allred(p, [50], [51], "v_add_f32", [8, 4, 2, 1, 16, 32])
    p("v_mul_f32 v50, 0x3a800000, v50")
    p("v_cvt_pk_bf16_f32 v51, v49, v50")
    p("v_lshlrev_b32 v52, 16, v51")
    p("v_and_b32 v53, 0xffff0000, v51")
    p("v_add_f32 v53, 0x3727c5ac, v53")
    p("v_cvt_pk_bf16_f32 v53, v53, v53"); p("v_lshlrev_b32 v53, 16, v53")
    p("v_sqrt_f32 v53, v53")
    p("v_cvt_pk_bf16_f32 v53, v53, v53"); p("v_lshlrev_b32 v53, 16, v53")
    p("v_rcp_f32 v54, v53")
    p.wait("XB")
    p("v_lshlrev_b32 v32, 16, v232"); p("v_and_b32 v33, 0xffff0000, v232")
    p("v_lshlrev_b32 v34, 16, v233"); p("v_and_b32 v35, 0xffff0000, v233")
    for i in range(4): p("v_sub_f32 v%d, v%d, v52" % (32+i, 32+i))
    p("v_cvt_pk_bf16_f32 v36, v32, v33"); p("v_cvt_pk_bf16_f32 v37, v34, v35")
    p("v_lshlrev_b32 v32, 16, v36"); p("v_and_b32 v33, 0xffff0000, v36")
    p("v_lshlrev_b32 v34, 16, v37"); p("v_and_b32 v35, 0xffff0000, v37")
    for i in range(4): p("v_mul_f32 v%d, v%d, v54" % (40+i, 32+i))
    for i in range(4): p("v_fma_f32 v%d, -v%d, v53, v%d" % (44+i, 40+i, 32+i))
    for i in range(4): p("v_fma_f32 v%d, v%d, v54, v%d" % (40+i, 44+i, 40+i))
    for i in range(4): p("v_cvt_pk_bf16_f32 v%d, v%d, v%d" % (36+i, 40+i, 40+i))
    p("v_lshlrev_b32 v12, 4, v0")
    p("ds_write_b128 v12, v[36:39] offset:%d" % L_XN)
    p("s_waitcnt lgkmcnt(0)")
    p("s_barrier")
    stamp("ln_done")
    p("s_add_u32 %s, %s, 1" % (sE, sE)); p("s_and_b32 %s, %s, 0xff" % (sTAG, sE)); p("v_mov_b32 v%d, %s" % (vTAG, sTAG))
    p("s_and_b32 %s, %s, 3" % (sA, sC)); p("s_lshl_b32 %s, %s, 8" % (sA, sA)); p("s_lshl_b32 %s, %s, 6" % (sD, sW)); p("s_add_u32 %s, %s, %s" % (sA, sA, sD))
    p("v_lshrrev_b32 v12, 3, v1"); p("v_add_u32 v12, %s, v12" % sA); p("v_lshlrev_b32 v12, 2, v12")
    p("s_and_b32 %s, s2, 7" % sA); p("s_lshl_b32 %s, %s, 7" % (sA, sA)); p("s_lshl_b32 %s, %s, 5" % (sD, sW)); p("s_add_u32 %s, %s, %s" % (sA, sA, sD))
    p("v_lshrrev_b32 v13, 4, v1"); p("v_add_u32 v13, %s, v13" % sA); p("v_lshlrev_b32 v13, 2, v13")
    for t in range(0, 8, 2):
        p("ds_read2_b32 v[%d:%d], v12 offset0:%d offset1:%d" % (96+t, 97+t, 8*t, 8*t+8))
    for t in range(0, 8, 2):
        p("ds_read2_b32 v[%d:%d], v13 offset0:%d offset1:%d" % (104+t, 105+t, 4*t, 4*t+4))
    for t in range(8):
        p("s_add_u32 %s, %s, %d" % (sT0, sW3B, t*4*7168))
        svmem("buffer_load_dwordx4 %s, v17, %s, %s offen%s" % (vr(192+4*t, 4), SW3, sT0, ntw), "W3_%d" % t, True)
    p("s_waitcnt lgkmcnt(0)")
    for t in range(8):
        A = 48 + 4*(t % 2)
        for jj in range(4): p("v_and_b32 v%d, v%d, v%d" % (A+jj, 96+t, vMASK+jj))
        if t == 0: p.wait("Q7")
        p("v_mfma_f32_16x16x32_bf16 v[56:59], %s, %s, %s" % (vr(A, 4), vr(128+4*t, 4), "0" if t == 0 else "v[56:59]"))
    for t in range(8):
        for jj in range(4): p("v_and_b32 v%d, v%d, v%d" % (PERM+4*t+jj, 104+t, vMASK+jj))
    p("v_and_b32 v12, 7, v1"); p("v_lshlrev_b32 v12, 5, v12")
    p("v_bfe_u32 v13, v1, 4, 1"); p("v_lshlrev_b32 v13, 4, v13"); p("v_add_u32 v12, v12, v13")
    p("v_lshrrev_b32 v13, 5, v1"); p("v_lshlrev_b32 v13, 8, v13"); p("v_add_u32 v12, v12, v13")
    p("s_lshl_b32 %s, %s, 9" % (sA, sW)); p("v_add_u32 v12, %s, v12" % sA)
    p("s_mov_b32 exec_lo, 0x00ff00ff"); p("s_mov_b32 exec_hi, 0xff00ff00")
    p("ds_write_b128 v12, v[56:59] offset:%d" % L_QP)
    p("s_mov_b64 exec, -1")
    p("s_waitcnt lgkmcnt(0)")
    p("s_barrier")
    stamp("q_gemv")
    SKIP0 = p.label("pubq")
    p("s_cmp_lg_u32 %s, 0" % sW); p("s_cbranch_scc1 %s" % SKIP0)
    p("v_lshlrev_b32 v12, 4, v1")
    for i in range(8): p("ds_read_b128 %s, v12 offset:%d" % (vr(32+4*i, 4) if i < 4 else vr(112+4*(i-4), 4), L_QP + 256*i))
    p("s_lshl_b32 %s, %s, 2" % (sB, sG)); p("s_and_b32 %s, %s, 3" % (sD, sC)); p("s_add_u32 %s, %s, %s" % (sB, sB, sD)); p("s_lshl_b32 %s, %s, 12" % (sB, sB))
    p("s_lshr_b32 %s, %s, 2" % (sD, sC)); p("s_lshl_b32 %s, %s, 8" % (sD, sD)); p("s_add_u32 %s, %s, %s" % (sB, sB, sD))
    p("s_add_u32 %s, %s, %d" % (sB, sB, Q_BASE))
    p("s_waitcnt lgkmcnt(0)")
    for r in range(4):
        p("v_add_f32 v%d, v%d, v%d" % (32+r, 32+r, 36+r)); p("v_add_f32 v%d, v%d, v%d" % (40+r, 40+r, 44+r))
        p("v_add_f32 v%d, v%d, v%d" % (112+r, 112+r, 116+r)); p("v_add_f32 v%d, v%d, v%d" % (120+r, 120+r, 124+r))
    for r in range(4):
        p("v_add_f32 v%d, v%d, v%d" % (32+r, 32+r, 40+r)); p("v_add_f32 v%d, v%d, v%d" % (112+r, 112+r, 120+r))
    for r in range(4): p("v_add_f32 v%d, v%d, v%d" % (32+r, 32+r, 112+r))
    p("s_mov_b32 exec_lo, 0xffff"); p("s_mov_b32 exec_hi, 0")
    p.vmem("buffer_store_dwordx4 v[32:35], v12, %s, %s offen%s" % (SWS, sB, HS), "PUBQ", cond=True)
    p("s_mov_b64 exec, -1")
    p("%s:" % SKIP0)
    loadK(0)
    p.wait("W1_7")
    stamp("w1_landed")
    for t in range(8):
        p("v_mfma_f32_16x16x32_bf16 v[60:63], %s, %s, %s" % (vr(PERM+4*t, 4), vr(160+4*t, 4), "0" if t == 0 else "v[60:63]"))
    loadK(1)
    p.wait("W3_7")
    stamp("w3_landed")
    for t in range(8):
        p("v_mfma_f32_16x16x32_bf16 v[96:99], %s, %s, %s" % (vr(PERM+4*t, 4), vr(192+4*t, 4), "0" if t == 0 else "v[96:99]"))
    SKIP2 = p.label("flag")
    p("s_cmp_lg_u32 %s, 0" % sW); p("s_cbranch_scc1 %s" % SKIP2)
    p("v_lshlrev_b32 v12, 2, v1"); p("v_mov_b32 v13, %s" % sE)
    p("s_lshl_b32 %s, s2, 7" % sA); p("s_add_u32 %s, %s, %d" % (sA, sA, FLAG_BASE))
    p.wait("PUBQ")
    p("s_mov_b32 exec_hi, 0")
    p.vmem("buffer_store_dword v13, v12, %s, %s offen%s" % (SWS, sA, HS), "FLAG", cond=True)
    p("s_mov_b64 exec, -1")
    p("%s:" % SKIP2)
    stamp("flag")
    p("v_and_b32 v12, 15, v1"); p("v_lshlrev_b32 v12, 5, v12")
    p("v_bfe_u32 v13, v1, 4, 1"); p("v_lshlrev_b32 v13, 4, v13"); p("v_add_u32 v12, v12, v13")
    p("s_lshl_b32 %s, %s, 10" % (sA, sW)); p("v_add_u32 v12, %s, v12" % sA)
    p("s_mov_b32 exec_hi, 0")
    p("ds_write_b128 v12, v[60:63] offset:%d" % L_BP)
    p("ds_write_b128 v12, v[96:99] offset:%d" % (L_BP+512))
    p("s_mov_b64 exec, -1")
    loadK(2)
    p("s_waitcnt lgkmcnt(0)")
    p("s_barrier")
    stamp("b_gemv")
    SKIP1 = p.label("pub1")
    p("s_cmp_lg_u32 %s, 1" % sW); p("s_cbranch_scc1 %s" % SKIP1)
    p("s_cmp_ge_u32 s2, 224"); p("s_cbranch_scc1 %s" % SKIP1)
    p("v_lshlrev_b32 v12, 4, v1")
    for i in range(4): p("ds_read_b128 %s, v12 offset:%d" % (vr(32+4*i, 4), L_BP + 1024*i))
    p("s_and_b32 %s, s2, 7" % sA); p("s_mul_i32 %s, %s, %d" % (sA, sA, 3584*4)); p("s_add_u32 %s, %s, %d" % (sA, sA, BP_BASE))
    p("s_lshl_b32 %s, %s, 9" % (sD, sCB1)); p("s_lshl_b32 %s, %s, 9" % (sB, sCB3)); p("s_add_u32 %s, %s, %d" % (sB, sB, 8*3584*4))
    p("v_mov_b32 v13, %s" % sD); p("v_mov_b32 v14, %s" % sB); p("v_cmp_gt_u32 vcc, 32, v1"); p("v_cndmask_b32 v13, v14, v13, vcc")
    p("v_and_b32 v14, 31, v1"); p("v_lshlrev_b32 v14, 4, v14"); p("v_add_u32 v13, v13, v14")
    p("s_waitcnt lgkmcnt(0)")
    for r in range(4):
        p("v_add_f32 v%d, v%d, v%d" % (32+r, 32+r, 36+r)); p("v_add_f32 v%d, v%d, v%d" % (40+r, 40+r, 44+r))
    for r in range(4): p("v_add_f32 v%d, v%d, v%d" % (32+r, 32+r, 40+r))
    for r in range(4): p("v_bfi_b32 v%d, %s, v%d, v%d" % (32+r, sFF, vTAG, 32+r))
    p.vmem("buffer_store_dwordx4 v[32:35], v13, %s, %s offen%s" % (SWS, sA, HS), "PUBB", cond=True)
    p("%s:" % SKIP1)
    for t in range(3, poll_after): loadK(t)
    SKIPP = p.label("nopoll")
    p("v_lshlrev_b32 v14, 7, v1")
    p("s_lshl_b32 %s, %s, 13" % (sB, sG)); p("s_add_u32 %s, %s, %d" % (sB, sB, FLAG_BASE))
    p("s_cmp_lg_u32 %s, 0" % sW); p("s_cbranch_scc1 %s" % SKIPP)
    p.vmem("buffer_load_dword v15, v14, %s, %s offen%s" % (SWS, sB, HL), "POLL", cond=True)
    p("%s:" % SKIPP)
    pend = []
    for t in range(poll_after, 8): pend += K_loads(t)
    for t in range(4): pend += V_loads(t)
    def tr(n):
        for _ in range(min(n, len(pend))): pend.pop(0)()
    tr(cfg.get("n_after_poll", 16))
    OKP = p.label("okpoll")
    p("s_cmp_lg_u32 %s, 0" % sW); p("s_cbranch_scc1 %s" % OKP)
    p.wait("POLL")
    p("s_mov_b32 %s, %d" % (sRETRY, RETRIES))
    RP = p.label("rpoll")
    p("%s:" % RP)
    p("v_cmp_ne_u32 vcc, %s, v15" % sE)
    if cfg.get("nodep"): p("s_branch %s" % OKP)
    p("s_cbranch_vccz %s" % OKP)
    p("s_sub_u32 %s, %s, 1" % (sRETRY, sRETRY)); p("s_cbranch_scc1 %s" % OKP)
    p("s_sleep %d" % cfg.get("sleep", 8))
    p("buffer_load_dword v15, v14, %s, %s offen%s" % (SWS, sB, HL))
    p("s_waitcnt vmcnt(0)")
    p("s_branch %s" % RP)
    p("%s:" % OKP)
    p("s_barrier")
    stamp("poll_ok")
    p("s_lshl_b32 %s, %s, 14" % (sA, sG)); p("s_lshl_b32 %s, %s, 10" % (sD, sW)); p("s_add_u32 %s, %s, %s" % (sA, sA, sD)); p("s_add_u32 %s, %s, %d" % (sA, sA, Q_BASE))
    for kq in range(4):
        p("s_add_u32 %s, %s, %d" % (sT0, sA, kq*4096))
        p.vmem("buffer_load_dwordx4 %s, v%d, %s, %s offen%s" % (vr(96+4*kq, 4), vL16, SWS, sT0, HL), "QG")
    tr(cfg.get("n_after_qg", 16))
    p("v_lshrrev_b32 v12, 5, v1"); p("s_lshl_b32 %s, %s, 1" % (sA, sW)); p("v_add_u32 v12, %s, v12" % sA); p("v_mul_u32_u24 v12, 272, v12")
    p("v_and_b32 v13, 31, v1"); p("v_lshlrev_b32 v13, 3, v13"); p("v_add_u32 v12, v12, v13")
    p("v_and_b32 v14, 7, v1"); p("v_mul_u32_u24 v14, 272, v14"); p("v_lshrrev_b32 v13, 4, v1"); p("v_lshlrev_b32 v13, 4, v13"); p("v_add_u32 v14, v14, v13")
    p("v_bfe_u32 v13, v1, 3, 1"); p("v_lshlrev_b32 v13, 6, v13"); p("v_add_u32 v14, v14, v13")
    p("v_mov_b32 v%d, 0xff800000" % vMAX)
    p.wait("QG")
    for r in range(4):
        p("v_add_f32 v%d, v%d, v%d" % (96+r, 96+r, 100+r)); p("v_add_f32 v%d, v%d, v%d" % (104+r, 104+r, 108+r))
    for r in range(4): p("v_add_f32 v%d, v%d, v%d" % (96+r, 96+r, 104+r))
    p("v_cvt_pk_bf16_f32 v96, v96, v97"); p("v_cvt_pk_bf16_f32 v97, v98, v99")
    p("ds_write_b64 v12, v[96:97] offset:%d" % L_QL)
    p("s_waitcnt lgkmcnt(0)")
    p("s_barrier")
    stamp("q_ready")
    for lam in range(2): p("ds_read_b128 %s, v14 offset:%d" % (vr(QF+4*lam, 4), L_QL + 128*lam))
    tr(1)
    p("s_waitcnt lgkmcnt(0)")
    def qk_mfma(t):
        D = PERM + 16*(t % 2)
        p.wait("K%d" % t)
        for lam in range(2):
            for h in range(2):
                for a_ in range(2):
                    d = D + 8*h + 4*a_
                    p("v_mfma_f32_16x16x32_bf16 %s, %s, %s, %s" % (vr(d, 4), ar(32*t+16*h+8*a_+4*lam, 4), vr(QF+4*lam, 4), "0" if lam == 0 else vr(d, 4)))
    def qk_post(t):
        D = PERM + 16*(t % 2); T = QF + 8
        for h in range(2):
            for r in range(4): p("v_permlane32_swap_b32 v%d, v%d" % (D+8*h+r, D+8*h+4+r))
        for h in range(2):
            for r in range(4): p("v_add_f32_dpp v%d, v%d, v%d row_ror:8%s" % (D+8*h+r, D+8*h+4+r, D+8*h+r, DPP))
        tr(1)
        src = [D+0, D+1, D+2, D+3, D+8, D+9, D+10, D+11]
        pk = [D+4, D+5, D+6, D+7]
        for i in range(4): p("v_cvt_pk_bf16_f32 v%d, v%d, v%d" % (pk[i], src[2*i], src[2*i+1]))
        for i in range(4):
            p("v_lshlrev_b32 v%d, 16, v%d" % (T+2*i, pk[i])); p("v_and_b32 v%d, 0xffff0000, v%d" % (T+2*i+1, pk[i]))
        for i in range(8): p("v_mul_f32 v%d, %s, v%d" % (T+i, sSCALE, T+i))
        tr(1)
        for i in range(4):
            p("v_cvt_pk_bf16_f32 v%d, v%d, v%d" % (SP+4*t+i, T+2*i, T+2*i+1))
            p("v_max3_f32 v%d, v%d, v%d, v%d" % (vMAX, vMAX, T+2*i, T+2*i+1))
    qk_mfma(0)
    for t in range(1, 8):
        qk_mfma(t)
        qk_post(t-1)
    qk_post(7)
    allred(p, [vMAX], [12], "v_max_f32", [16, 32])
    p("v_and_b32 v12, 15, v1"); p("v_lshlrev_b32 v12, 2, v12"); p("s_lshl_b32 %s, %s, 6" % (sA, sW)); p("v_add_u32 v13, %s, v12" % sA)
    p("ds_write_b32 v13, v%d offset:%d" % (vMAX, L_MX))
    p("s_waitcnt lgkmcnt(0)")
    p("s_barrier")
    p("ds_read_b32 v14, v12 offset:%d" % L_MX)
    p("ds_read_b32 v15, v12 offset:%d" % (L_MX+64))
    p("ds_read_b32 v16, v12 offset:%d" % (L_MX+128))
    p("ds_read_b32 v17, v12 offset:%d" % (L_MX+192))
    tr(1)
    p("s_waitcnt lgkmcnt(0)")
    p("v_max3_f32 v14, v14, v15, v16"); p("v_max_f32 v14, v14, v17")
    p("v_cvt_pk_bf16_f32 v14, v14, v14"); p("v_lshlrev_b32 v%d, 16, v14" % vMAX)
    p("v_mul_f32 v16, %s, v%d" % (sLOG2E, vMAX)); p("v_sub_f32 v16, 0, v16")
    stamp("qk_done")
    p("v_mov_b32 v%d, 0" % vL0); p("v_mov_b32 v%d, 0" % vL1)
    for b_ in range(8):
        T = PERM + 8*(b_ % 2)
        for i in range(4):
            p("v_lshlrev_b32 v%d, 16, v%d" % (T+2*i, SP+4*b_+i)); p("v_and_b32 v%d, 0xffff0000, v%d" % (T+2*i+1, SP+4*b_+i))
        for i in range(8): p("v_fma_f32 v%d, v%d, %s, v16" % (T+i, T+i, sLOG2E))
        for i in range(8): p("v_exp_f32 v%d, v%d" % (T+i, T+i))
        for i in range(4):
            p("v_cvt_pk_bf16_f32 v%d, v%d, v%d" % (SP+4*b_+i, T+2*i, T+2*i+1))
            p("v_add_f32 v%d, v%d, v%d" % (vL0, vL0, T+2*i)); p("v_add_f32 v%d, v%d, v%d" % (vL1, vL1, T+2*i+1))
        tr(1)
    tr(100)
    p("v_add_f32 v%d, v%d, v%d" % (vL0, vL0, vL1))
    allred(p, [vL0], [12], "v_add_f32", [16, 32])
    p("v_and_b32 v12, 15, v1"); p("v_lshlrev_b32 v12, 2, v12"); p("s_lshl_b32 %s, %s, 6" % (sA, sW)); p("v_add_u32 v13, %s, v12" % sA)
    p("ds_write_b32 v13, v%d offset:%d" % (vL0, L_LW))
    stamp("p_done")
    def silu(src, dst, tmp, n):
        for r in range(n): p("v_mul_f32 v%d, %s, v%d" % (tmp+r, sLOG2E, src+r))
        for r in range(n): p("v_exp_f32 v%d, -v%d" % (tmp+r, tmp+r))
        for r in range(n): p("v_add_f32 v%d, 1.0, v%d" % (tmp+r, tmp+r))
        for r in range(n): p("v_rcp_f32 v%d, v%d" % (tmp+r, tmp+r))
        for r in range(n): p("v_mul_f32 v%d, v%d, v%d" % (dst+r, src+r, tmp+r))
    def unpack2(dst, src):
        p("v_lshlrev_b32 v%d, 16, v%d" % (dst, src)); p("v_and_b32 v%d, 0xffff0000, v%d" % (dst+1, src))
    sH0, sH1 = "s69", "s70"
    p("v_lshrrev_b32 v15, 3, v1"); p("v_mul_u32_u24 v15, 14336, v15"); p("v_and_b32 v13, 7, v1"); p("v_min_u32 v13, 6, v13"); p("v_lshlrev_b32 v13, 4, v13"); p("v_add_u32 v15, v15, v13")
    p("s_mul_i32 %s, %s, 112" % (sH0, sRB)); p("s_add_u32 %s, %s, %d" % (sH0, sH0, BP_BASE)); p("s_add_u32 %s, %s, %d" % (sH1, sH0, 8*14336))
    p.vmem("buffer_load_dwordx4 v[16:19], v15, %s, %s offen%s" % (SWS, sH0, HL), "HG")
    p.vmem("buffer_load_dwordx4 v[20:23], v15, %s, %s offen%s" % (SWS, sH1, HL), "HG")
    def retry_block(check, reload, base):
        R = p.label("r" + base); OK = p.label("ok" + base)
        p("s_mov_b32 %s, %d" % (sRETRY, RETRIES))
        p("%s:" % R)
        check()
        p("s_cbranch_vccz %s" % OK)
        p("s_sub_u32 %s, %s, 1" % (sRETRY, sRETRY)); p("s_cbranch_scc1 %s" % OK)
        reload()
        p("s_waitcnt vmcnt(0)")
        p("s_branch %s" % R)
        p("%s:" % OK)
    def h_compute():
        p.wait("HG")
        def rl():
            p("s_sleep %d" % cfg.get("sleep", 8))
            p("buffer_load_dwordx4 v[16:19], v15, %s, %s offen%s" % (SWS, sH0, HL))
            p("buffer_load_dwordx4 v[20:23], v15, %s, %s offen%s" % (SWS, sH1, HL))
        retry_block(lambda: tagcheck(list(range(16, 24)), 14), rl, "h")
        red4(p, [16, 17, 18, 19]); red4(p, [20, 21, 22, 23])
        p("v_cvt_pk_bf16_f32 v24, v16, v20")
        unpack2(16, 24)
        silu(16, 16, 24, 1)
        p("v_cvt_pk_bf16_f32 v24, v16, v16"); p("v_lshlrev_b32 v16, 16, v24")
        p("v_mul_f32 v16, v16, v17")
        p("v_cvt_pk_bf16_f32 v16, v16, v16")
        p("v_lshrrev_b32 v12, 4, v1"); p("v_and_b32 v13, 1, v12"); p("v_lshlrev_b32 v13, 1, v13"); p("v_lshrrev_b32 v12, 1, v12"); p("v_or_b32 v12, v12, v13")
        p("v_lshlrev_b32 v12, 5, v12"); p("v_and_b32 v13, 7, v1"); p("v_lshlrev_b32 v13, 2, v13"); p("v_add_u32 v13, v13, v12")
        p("ds_write_b32 v13, v16 offset:%d" % L_HL)
        p("v_lshrrev_b32 v13, 4, v1"); p("v_lshlrev_b32 v13, 5, v13")
        p("s_waitcnt lgkmcnt(0)")
        p("ds_read_b128 v[16:19], v13 offset:%d" % L_HL); p("ds_read_b128 v[20:23], v13 offset:%d" % (L_HL+16))
    sOB = "s77"
    late = []
    def tl(n=1):
        for _ in range(min(n, len(late))): late.pop(0)()
    def pv(t, trickle=False):
        base = RING + 32*(t % 4)
        p.wait("V%d" % t)
        def perm(j):
            c, h = j >> 1, j & 1
            for tt in range(4):
                p("v_perm_b32 v%d, v%d, v%d, %s" % (PERM+4*j+tt, base+4*(2*tt+1)+c, base+4*(2*tt)+c, sSELHI if h else sSELLO))
        def mm(j):
            p("v_mfma_f32_16x16x32_bf16 %s, %s, %s, %s" % (vr(ACC+4*j, 4), vr(PERM+4*j, 4), vr(SP+4*t, 4), "0" if t == 0 else vr(ACC+4*j, 4)))
        perm(0)
        for j in range(1, 8):
            perm(j); mm(j-1)
            if trickle and j in (2, 5): tl(1)
        mm(7)
    vW2O, vOO = 31, 11
    sW2B = "s3"
    def late_addresses():
        p("v_lshrrev_b32 v12, 4, v1"); p("v_and_b32 v13, 15, v1"); p("v_lshlrev_b32 v13, 4, v13")
        p("v_lshlrev_b32 v%d, 11, v12" % vW2O); p("v_add_u32 v%d, v%d, v13" % (vW2O, vW2O))
        p("v_lshlrev_b32 v%d, 14, v12" % vOO); p("v_add_u32 v%d, v%d, v13" % (vOO, vOO))
        p("s_lshl_b32 %s, %s, 10" % (sD, sCH)); p("s_lshl_b32 %s, %s, 8" % (sA, sW)); p("s_add_u32 %s, %s, %s" % (sD, sD, sA))
        p("s_mul_i32 %s, %s, %d" % (sW2B, sRB, 28*2048)); p("s_add_u32 %s, %s, %s" % (sW2B, sW2B, sD))
        p("s_lshl_b32 %s, %s, 16" % (sOB, sRB)); p("s_add_u32 %s, %s, %s" % (sOB, sOB, sD))
    def W2_loads():
        L = []
        for t in range(7):
            def f(t=t):
                p("s_add_u32 %s, %s, %d" % (sT0, sW2B, t*4*2048))
                svmem("buffer_load_dwordx4 %s, v%d, %s, %s offen%s" % (ar(4*t, 4), vW2O, SW2, sT0, ntw), "W2")
            L.append(f)
        return L
    def O_loads():
        L = []
        for t in range(8):
            def f(t=t):
                p("s_add_u32 %s, %s, %d" % (sT0, sOB, t*2048))
                svmem("buffer_load_dwordx4 %s, v%d, %s, %s offen%s" % (ar(32+4*t, 4), vOO, SWO, sT0, ntw), "O")
            L.append(f)
        return L
    vAWB, vRD, vPO, vLWR, vMLS, vG0, vG1 = 24, 25, 26, 27, 28, 29, 30
    vPC, vCM, vCPW, vCPR, vZ = 160, 161, 162, 163, 165
    vAW = PERM + 24
    sPO, sPB, sPS, sGV, sGM, sGA = "s71", "s72", "s73", "s74", "s75", "s76"
    def tail_addresses_a():
        p("v_and_b32 v12, 7, v1"); p("v_lshlrev_b32 v13, 9, v12"); p("v_lshlrev_b32 v12, 4, v12"); p("v_add_u32 v12, v12, v13")
        p("v_lshrrev_b32 v13, 4, v1"); p("v_lshlrev_b32 v13, 7, v13"); p("v_add_u32 v12, v12, v13")
        p("s_lshl_b32 %s, %s, 12" % (sA, sW)); p("s_add_u32 %s, %s, %d" % (sA, sA, L_OP)); p("v_add_u32 v%d, %s, v12" % (vAWB, sA))
        p("v_lshlrev_b32 v%d, 4, v0" % vRD)
        p("v_lshrrev_b32 v14, 5, v0"); p("v_and_b32 v15, 7, v0"); p("v_xor_b32 v14, v14, v15"); p("v_lshlrev_b32 v14, 4, v14")
        p("v_lshrrev_b32 v15, 3, v0"); p("v_lshlrev_b32 v15, 7, v15"); p("v_add_u32 v%d, v14, v15" % vPO)
        p("s_mul_i32 %s, s2, %d" % (sPO, O_PITCH)); p("s_add_u32 %s, %s, %d" % (sPO, sPO, O_BASE))
        p("v_and_b32 v13, 15, v1"); p("v_lshlrev_b32 v%d, 2, v13" % vLWR)
        p("v_lshlrev_b32 v%d, 4, v1" % vMLS); p("v_add_u32 v%d, 4096, v%d" % (vMLS, vMLS))
        p("v_lshrrev_b32 v12, 3, v1"); p("v_mul_u32_u24 v%d, %d, v12" % (vG0, O_PITCH))
        p("v_and_b32 v13, 7, v1"); p("v_lshlrev_b32 v13, 4, v13"); p("v_add_u32 v%d, v%d, v13" % (vG1, vG0))
        p("s_lshl_b32 %s, %s, 6" % (sA, sG)); p("s_mul_i32 %s, %s, %d" % (sA, sA, O_PITCH)); p("s_add_u32 %s, %s, %d" % (sA, sA, O_BASE))
        p("s_bfe_u32 %s, s2, 0x30003" % sB)
        p("s_lshl_b32 %s, %s, 4" % (sD, sB)); p("s_add_u32 %s, %s, %s" % (sGM, sA, sD)); p("s_add_u32 %s, %s, 4096" % (sGM, sGM))
        p("s_lshl_b32 %s, %s, 2" % (sB, sB)); p("s_bfe_u32 %s, s2, 0x20001" % sD); p("s_add_u32 %s, %s, %s" % (sB, sB, sD)); p("s_lshl_b32 %s, %s, 7" % (sB, sB))
        p("s_add_u32 %s, %s, %s" % (sB, sB, sA))
        p("s_mul_i32 %s, %s, %d" % (sD, sW, 16*O_PITCH))
        p("s_add_u32 %s, %s, %s" % (sGV, sB, sD)); p("s_add_u32 %s, %s, %s" % (sGA, sGM, sD))
    def tail_addresses_b():
        p("v_bfe_u32 v12, v1, 2, 2"); p("v_lshlrev_b32 v12, 14, v12")
        p("v_and_b32 v13, 3, v1"); p("v_lshlrev_b32 v13, 5, v13"); p("v_add_u32 v12, v12, v13")
        p("v_bfe_u32 v13, v1, 4, 1"); p("v_lshlrev_b32 v13, 4, v13"); p("v_add_u32 v%d, v12, v13" % vPC)
        p("s_lshl_b32 %s, %s, 18" % (sA, sCH)); p("s_lshl_b32 %s, %s, 16" % (sD, sW)); p("s_add_u32 %s, %s, %s" % (sA, sA, sD))
        p("s_lshl_b32 %s, %s, 7" % (sD, sRB)); p("s_add_u32 %s, %s, %s" % (sA, sA, sD))
        p("s_add_u32 %s, %s, %d" % (sPB, sA, BB_BASE)); p("s_add_u32 %s, %s, %d" % (sPS, sA, S_BASE))
        p("v_lshrrev_b32 v12, 4, v1"); p("v_and_b32 v13, 1, v12"); p("v_lshlrev_b32 v13, 1, v13"); p("v_lshrrev_b32 v12, 1, v12"); p("v_or_b32 v12, v12, v13")
        p("v_lshlrev_b32 v12, 5, v12"); p("v_and_b32 v13, 7, v1"); p("v_lshlrev_b32 v13, 2, v13"); p("v_add_u32 v12, v12, v13")
        p("s_lshl_b32 %s, %s, 7" % (sA, sW)); p("v_add_u32 v%d, %s, v12" % (vCPW, sA))
        p("v_lshrrev_b32 v13, 4, v1"); p("v_lshlrev_b32 v%d, 5, v13" % vCPR)
        p("s_lshl_b32 %s, %s, 3" % (sA, sW)); p("v_mov_b32 v%d, %s" % (vCM, sA)); p("v_mov_b32 v%d, 0" % vZ)
    o_early = cfg.get("o_early", False)
    pv(0); loadV(4)
    pv(1); loadV(5)
    pv(2); loadV(6)
    pv(3); loadV(7)
    late_addresses()
    late += W2_loads() + O_loads()
    n_pre = cfg.get("n_pre", 10)
    pv(4, True); tl(1); h_compute(); tl(1); p("s_waitcnt lgkmcnt(0)"); pv(5, True); tl(1); tail_addresses_a(); tl(1); pv(6, True)
    while len(late) > 15 - n_pre: tl(1)
    pv(7)
    stamp("pv_done")
    for j in range(8): p("v_xor_b32 v%d, %d, v%d" % (vAW+j, 16*j, vAWB))
    p("s_mov_b32 exec_lo, 0x00ff00ff"); p("s_mov_b32 exec_hi, 0x00ff00ff")
    for j in range(8):
        p("ds_write_b128 v%d, %s" % (vAW+j, vr(ACC+4*j, 4)))
    p("s_mov_b64 exec, -1")
    p("s_waitcnt lgkmcnt(0)")
    p("s_barrier")
    for i in range(4): p("ds_read_b128 %s, v%d offset:%d" % (vr(PERM+4*i, 4), vRD, L_OP + 4096*i))
    for i in range(4): p("ds_read_b32 v%d, v%d offset:%d" % (PERM+16+i, vLWR, L_LW + 64*i))
    p("s_waitcnt lgkmcnt(4)")
    for r in range(4):
        p("v_add_f32 v%d, v%d, v%d" % (PERM+r, PERM+r, PERM+4+r)); p("v_add_f32 v%d, v%d, v%d" % (PERM+8+r, PERM+8+r, PERM+12+r))
    for r in range(4): p("v_add_f32 v%d, v%d, v%d" % (PERM+r, PERM+r, PERM+8+r))
    for r in range(4): p("v_bfi_b32 v%d, %s, v%d, v%d" % (PERM+r, sFF, vTAG, PERM+r))
    p.vmem("buffer_store_dwordx4 %s, v%d, %s, %s offen%s" % (vr(PERM, 4), vPO, SWS, sPO, HS), "PUBO")
    SKIP4 = p.label("ml")
    p("s_cmp_lg_u32 %s, 0" % sW); p("s_cbranch_scc1 %s" % SKIP4)
    p("s_waitcnt lgkmcnt(0)")
    p("v_add_f32 v%d, v%d, v%d" % (PERM+16, PERM+16, PERM+17)); p("v_add_f32 v%d, v%d, v%d" % (PERM+18, PERM+18, PERM+19)); p("v_add_f32 v%d, v%d, v%d" % (PERM+17, PERM+16, PERM+18))
    p("v_bfi_b32 v%d, %s, v%d, v%d" % (PERM+16, sFF, vTAG, vMAX)); p("v_bfi_b32 v%d, %s, v%d, v%d" % (PERM+17, sFF, vTAG, PERM+17))
    p("v_mov_b32 v%d, %s" % (PERM+18, sE)); p("v_mov_b32 v%d, %s" % (PERM+19, sE))
    p("s_mov_b32 exec_lo, 0xff"); p("s_mov_b32 exec_hi, 0")
    p.vmem("buffer_store_dwordx4 %s, v%d, %s, %s offen%s" % (vr(PERM+16, 4), vMLS, SWS, sPO, HS), "PUBML", cond=True)
    p("s_mov_b64 exec, -1")
    p("%s:" % SKIP4)
    p("s_waitcnt lgkmcnt(0)")
    stamp("o_pub")
    DD = 124
    def pub_cols(sb, name):
        for r in range(4): p("v_bfi_b32 v%d, %s, v%d, v%d" % (DD+r, sFF, vTAG, DD+r))
        p("s_mov_b32 exec_hi, 0")
        p.vmem("buffer_store_dwordx4 %s, v%d, %s, %s offen%s" % (vr(DD, 4), vPC, SWS, sb, HS), name)
        p("s_mov_b64 exec, -1")
    def diag_mult(src, n, breg):
        for t in range(n+1):
            if t < n:
                A = PERM + 4*(t % 4)
                for jj in range(4): p("v_and_b32 v%d, v%d, v%d" % (A+jj, src+t, vMASK+jj))
            if t >= 1:
                tt = t-1; AA = PERM + 4*(tt % 4)
                p("v_mfma_f32_16x16x32_bf16 %s, %s, %s, %s" % (vr(DD, 4), vr(AA, 4), ar(breg+4*tt, 4), "0" if tt == 0 else vr(DD, 4)))
    def w2_mult():
        p.wait("W2")
        diag_mult(16, 7, 0)
        pub_cols(sPB, "PUBB2")
        stamp("b_pub")
    def g2_loads(R, nm):
        f = (lambda t: p.vmem(t, nm)) if nm else p
        f("buffer_load_dwordx4 %s, v%d, %s, %s offen%s" % (vr(R, 4), vG1, SWS, sGV, HL))
        f("buffer_load_dwordx4 %s, v%d, %s, %s offen%s" % (vr(R+8, 4), vG0, SWS, sGA, HL))
        p("s_add_u32 %s, %s, %d" % (sT0, sGV, 8*O_PITCH))
        f("buffer_load_dwordx4 %s, v%d, %s, %s offen%s" % (vr(R+4, 4), vG1, SWS, sT0, HL))
        p("s_add_u32 %s, %s, %d" % (sT0, sGA, 8*O_PITCH))
        f("buffer_load_dwordx4 %s, v%d, %s, %s offen%s" % (vr(R+12, 4), vG0, SWS, sT0, HL))
    def g2_check():
        p("v_xor_b32 v14, %s, v106" % sE)
        for r in (107, 110, 111): p("v_bitop3_b32 v14, v%d, %s, v14 bitop3:0xbe" % (r, sE))
        regs = list(range(96, 106)) + [108, 109]
        p("v_xor_b32 v15, %s, v%d" % (sTAG, regs[0]))
        for r in regs[1:]: p("v_bitop3_b32 v15, v%d, %s, v15 bitop3:0xbe" % (r, sTAG))
        p("v_and_or_b32 v15, v15, %s, v14" % sFF)
        p("v_cmp_ne_u32 vcc, 0, v15")
        if cfg.get("nodep"): p("s_mov_b64 vcc, 0")
    g2_loads(96, "G2A")
    tl(100)
    tail_addresses_b()
    w2_mult()
    p.wait("G2A")
    stamp("g2_first")
    def rl2():
        if cfg.get("g2sleep", 0): p("s_sleep %d" % cfg["g2sleep"])
        g2_loads(96, None)
    retry_block(g2_check, rl2, "g2")
    stamp("g2_ok")
    if stamps: p("s_mov_b32 s3, %s" % sRETRY)
    p("v_and_b32 v104, 0xffffff00, v104"); p("v_and_b32 v108, 0xffffff00, v108")
    p("v_max_f32 v120, v104, v108")
    allred(p, [120], [121], "v_max_f32", [8, 16, 32])
    p("v_sub_f32 v104, v104, v120"); p("v_sub_f32 v108, v108, v120")
    p("v_mul_f32 v104, %s, v104" % sLOG2E); p("v_mul_f32 v108, %s, v108" % sLOG2E)
    p("v_exp_f32 v104, v104"); p("v_exp_f32 v108, v108")
    for r in range(4): p("v_mul_f32 v%d, v104, v%d" % (96+r, 96+r))
    p("v_mul_f32 v105, v104, v105")
    for r in range(4): p("v_fmac_f32 v%d, v108, v%d" % (96+r, 100+r))
    p("v_fmac_f32 v105, v108, v109")
    allred(p, [105], [121], "v_add_f32", [32, 16, 8])
    red4(p, [96, 97, 98, 99])
    p("v_mov_b32 v121, v105")
    p("ds_write_b32 v%d, v96 offset:%d" % (vCPW, L_CP))
    p("ds_write_b64 v%d, v[120:121] offset:%d" % (vCM, L_CM))
    p("s_waitcnt lgkmcnt(0)")
    p("s_barrier")
    p("ds_read_b128 v[100:103], v%d offset:%d" % (vZ, L_CM)); p("ds_read_b128 v[104:107], v%d offset:%d" % (vZ, L_CM+16))
    for w_ in range(4):
        p("ds_read_b128 %s, v%d offset:%d" % (vr(32+8*w_, 4), vCPR, L_CP + 128*w_)); p("ds_read_b128 %s, v%d offset:%d" % (vr(36+8*w_, 4), vCPR, L_CP + 128*w_ + 16))
    p("s_waitcnt lgkmcnt(8)")
    p("v_max3_f32 v120, v100, v102, v104"); p("v_max_f32 v120, v120, v106")
    for i in range(4): p("v_sub_f32 v%d, v%d, v120" % (100+2*i, 100+2*i))
    for i in range(4): p("v_mul_f32 v%d, %s, v%d" % (100+2*i, sLOG2E, 100+2*i))
    for i in range(4): p("v_exp_f32 v%d, v%d" % (100+2*i, 100+2*i))
    p("v_mul_f32 v121, v100, v101"); p("v_fmac_f32 v121, v102, v103"); p("v_fmac_f32 v121, v104, v105"); p("v_fmac_f32 v121, v106, v107")
    p("v_rcp_f32 v121, v121")
    for i in range(4): p("v_mul_f32 v%d, v%d, v121" % (100+2*i, 100+2*i))
    for i in range(4): p("v_mov_b32 v%d, v%d" % (101+2*i, 100+2*i))
    p("s_waitcnt lgkmcnt(6)")
    for r in range(0, 8, 2): p("v_pk_mul_f32 %s, v[100:101], %s" % (vr(32+r, 2), vr(32+r, 2)))
    p("s_waitcnt lgkmcnt(4)")
    for r in range(0, 8, 2): p("v_pk_fma_f32 %s, v[102:103], %s, %s" % (vr(32+r, 2), vr(40+r, 2), vr(32+r, 2)))
    p("s_waitcnt lgkmcnt(2)")
    for r in range(0, 8, 2): p("v_pk_fma_f32 %s, v[104:105], %s, %s" % (vr(32+r, 2), vr(48+r, 2), vr(32+r, 2)))
    p("s_waitcnt lgkmcnt(0)")
    for r in range(0, 8, 2): p("v_pk_fma_f32 %s, v[106:107], %s, %s" % (vr(32+r, 2), vr(56+r, 2), vr(32+r, 2)))
    for r in range(8): p("v_cvt_pk_bf16_f32 v%d, v%d, v%d" % (16+r, 32+r, 32+r))
    p.wait("O")
    diag_mult(16, 8, 32)
    pub_cols(sPS, "PUBS")
    stamp("s_pub")
    FIN = p.label("fin")
    p("s_cmp_ge_u32 s2, 32"); p("s_cbranch_scc1 %s" % FIN)
    p("s_lshl_b32 %s, s2, 14" % sA); p("s_lshl_b32 %s, %s, 12" % (sD, sW)); p("s_add_u32 %s, %s, %s" % (sA, sA, sD))
    p("s_add_u32 %s, %s, %d" % (sB, sA, S_BASE)); p("s_add_u32 %s, %s, %d" % (sA, sA, BB_BASE))
    p("v_lshrrev_b32 v12, 4, v1"); p("v_and_b32 v13, 1, v12"); p("v_lshlrev_b32 v13, 1, v13"); p("v_lshrrev_b32 v12, 1, v12"); p("v_or_b32 v12, v12, v13")
    p("v_and_b32 v14, 7, v1"); p("v_lshlrev_b32 v14, 2, v14"); p("v_add_u32 v14, v14, v12")
    p("v_lshlrev_b32 v179, 1, v14"); p("s_lshl_b32 %s, s2, 6" % sCc)
    p("v_lshlrev_b32 v13, 2, v14"); p("s_lshl_b32 %s, %s, 7" % (sD, sW)); p("v_add_u32 v12, %s, v13" % sD)
    def fl(sb):
        def f(R, nm):
            g = (lambda t: p.vmem(t, nm)) if nm else p
            for u in range(4):
                g("buffer_load_dwordx4 %s, v%d, %s, %s offen offset:%d%s" % (vr(R+4*u, 4), vL16, SWS, sb, 1024*u, HL))
        return f
    def fin_reduce(R, dst):
        for r in range(0, 4, 2):
            p("v_pk_add_f32 %s, %s, %s" % (vr(R+r, 2), vr(R+r, 2), vr(R+4+r, 2))); p("v_pk_add_f32 %s, %s, %s" % (vr(R+8+r, 2), vr(R+8+r, 2), vr(R+12+r, 2)))
        for r in range(0, 4, 2): p("v_pk_add_f32 %s, %s, %s" % (vr(R+r, 2), vr(R+r, 2), vr(R+8+r, 2)))
        red4(p, [R, R+1, R+2, R+3])
        p("ds_write_b32 v12, v%d offset:%d" % (R, dst))
        p("s_waitcnt lgkmcnt(0)")
        p("s_barrier")
        for w_ in range(4): p("ds_read_b32 v%d, v13 offset:%d" % (R+w_, dst + 128*w_))
        p("s_waitcnt lgkmcnt(0)")
        p("v_add_f32 v%d, v%d, v%d" % (R, R, R+1)); p("v_add_f32 v%d, v%d, v%d" % (R+2, R+2, R+3)); p("v_add_f32 v%d, v%d, v%d" % (R, R, R+2))
        p("v_cvt_pk_bf16_f32 v%d, v%d, v%d" % (R, R, R)); p("v_lshlrev_b32 v%d, 16, v%d" % (R, R))
    p.vmem("buffer_load_ushort v18, v179, %s, %s offen" % (SX, sCc), "XF")
    fl(sA)(128, "FB")
    p.wait("FB")
    retry_block(lambda: tagcheck(list(range(128, 144)), 15), lambda: fl(sA)(128, None), "fb")
    fl(sB)(144, "FS0")
    fin_reduce(128, L_FP)
    silu(128, 32, 40, 1)
    p("v_cvt_pk_bf16_f32 v32, v32, v32"); p("v_lshlrev_b32 v32, 16, v32")
    p("v_lshlrev_b32 v44, 16, v18")
    stamp("g_done")
    p.wait("FS0")
    retry_block(lambda: tagcheck(list(range(144, 160)), 15), lambda: fl(sB)(144, None), "fs")
    stamp("fs_ok")
    fin_reduce(144, L_FP + 512)
    p("v_mul_f32 v36, v144, v32")
    p("v_cvt_pk_bf16_f32 v36, v36, v36"); p("v_lshlrev_b32 v36, 16, v36")
    p("v_add_f32 v36, v36, v44")
    p("v_cvt_pk_bf16_f32 v40, v36, v36")
    SK5 = p.label("out")
    p("s_cmp_lg_u32 %s, 0" % sW); p("s_cbranch_scc1 %s" % SK5)
    p("s_mov_b32 exec_lo, 0x00ff00ff"); p("s_mov_b32 exec_hi, 0x00ff00ff")
    p.vmem("buffer_store_short v40, v179, %s, %s offen" % (SOUT, sCc), "OUT", cond=True)
    p("s_cmp_lg_u32 s2, 0"); p("s_cbranch_scc1 %s" % SK5)
    p("v_mov_b32 v12, %d" % EPOCH); p("v_mov_b32 v13, %s" % sE)
    p("s_mov_b32 exec_lo, 1"); p("s_mov_b32 exec_hi, 0")
    p.vmem("buffer_store_dword v13, v12, %s, 0 offen%s" % (SWS, HS), "EPO", cond=True)
    p("%s:" % SK5)
    p("s_mov_b64 exec, -1")
    p("%s:" % FIN)
    if stamps:
        stamp("end")
        p("s_getreg_b32 %s, hwreg(HW_REG_XCC_ID)" % sA)
        p("s_waitcnt lgkmcnt(0)")
        for k in range(16):
            p("v_mov_b32 v%d, %s" % (32+k, ("s%d" % (78+2*k)) if k < nst[0] else "0"))
        p("v_mov_b32 v48, %s" % sA); p("v_mov_b32 v49, s3"); p("s_getreg_b32 %s, hwreg(HW_REG_HW_ID)" % sD); p("v_mov_b32 v50, %s" % sD); p("v_mov_b32 v51, 0")
        p("s_lshl_b32 %s, s2, 2" % sB); p("s_add_u32 %s, %s, %s" % (sB, sB, sW)); p("s_lshl_b32 %s, %s, 7" % (sB, sB)); p("s_add_u32 %s, %s, %d" % (sB, sB, STAMP))
        p("v_mov_b32 v12, 0")
        p("s_mov_b32 exec_lo, 1"); p("s_mov_b32 exec_hi, 0")
        for i in range(4): p("buffer_store_dwordx4 %s, v12, %s, %s offen offset:%d" % (vr(32+4*i, 4), SWS, sB, 16*i))
        p("buffer_store_dwordx4 v[48:51], v12, %s, %s offen offset:64" % (SWS, sB))
        p("s_mov_b64 exec, -1")
    if stamps and cfg.get("dbg"):
        p("v_mov_b32 v60, 0")
        for k in range(min(8, nst[0])):
            p("v_cmp_eq_u32 vcc, %d, v1" % k); p("v_mov_b32 v61, s%d" % (78+2*k)); p("v_cndmask_b32 v60, v60, v61, vcc")
            p("v_cmp_eq_u32 vcc, %d, v1" % (8+k)); p("v_not_b32 v61, v61"); p("v_cndmask_b32 v60, v60, v61, vcc")
        p("v_lshlrev_b32 v62, 2, v1")
        p("s_mov_b32 exec_lo, 0xffff"); p("s_mov_b32 exec_hi, 0")
        p("buffer_atomic_umax v60, v62, %s, 0 offen" % SDBG)
        p("s_mov_b64 exec, -1")
    p("%s:" % END)
    p("s_endpgm")
    return p, names

HEADER = """; Fused decode step: layernorm -> {GQA attention over a 64K cache -> wo} * silu(SwiGLU FFN) + x.
; @launch grid=(256,1,1) block=(256,1,1) lds=%d
"""
def wrap(body, name=NAME, lds=LDS_BYTES, header=True):
    s = (HEADER % lds) if header else ""
    if header: s += '.amdgcn_target "amdgcn-amd-amdhsa--gfx950"\n'
    s += ".text\n.globl %s\n.p2align 8\n.type %s,@function\n%s:\n" % (name, name, name)
    s += body
    s += '.section .rodata,"a"\n.p2align 6\n.amdhsa_kernel %s\n' % name
    s += "  .amdhsa_next_free_vgpr 512\n  .amdhsa_next_free_sgpr 102\n  .amdhsa_accum_offset 256\n"
    s += "  .amdhsa_group_segment_fixed_size 0\n  .amdhsa_kernarg_size 96\n  .amdhsa_user_sgpr_count 2\n"
    s += "  .amdhsa_user_sgpr_kernarg_segment_ptr 1\n  .amdhsa_system_sgpr_workgroup_id_x 1\n"
    s += "  .amdhsa_float_denorm_mode_32 3\n"
    s += ".end_amdhsa_kernel\n"
    return s

if __name__ == "__main__":
    cfg = json.loads(sys.argv[2]) if len(sys.argv) > 2 else {}
    p, names = build(cfg)
    open(sys.argv[1], "w").write(wrap(p.text()))
    print("wrote", sys.argv[1], "stamps:", names)
```

```python
import sys, json
from sched import Prog

NAME = "recurrent_scan__gqa_block_cached__glu_gated_swiglu__decode_kernel"

EPOCH   = 0
Q_BASE  = 0x1000
FLAG_BASE = 0x14000
BP_BASE = 0x20000
O_BASE  = 0x80000
O_PITCH = 4224
S_BASE  = 0x200000
BB_BASE = 0x280000
STAMP   = 0x400000
L_XN = 0
L_QP = 4096
L_BP = 6144
L_QL = 10240
L_HL = 12544
L_MX = 12800
L_LW = 13056
L_CP = 13312
L_FP = 13824
L_CM = 14848
L_OP = 16384
LDS_BYTES = 32768

SX, SK, SV, SWQ, SWO, SW1, SW3, SW2, SOUT, SDBG, SWS = [ "s[%d:%d]" % (4*i+4, 4*i+7) for i in range(11)]
sW, sG, sC, sT0, sKV = "s48", "s49", "s50", "s51", "s52"
sSELLO, sSELHI, sE, sTAG, sFF, sLOG2E, sSCALE, sHI = "s53", "s54", "s55", "s56", "s57", "s58", "s59", "s60"
sRETRY = "s61"
sA, sB, sCc, sD = "s62", "s63", "s64", "s65"
sRB, sCH = "s66", "s67"
sKC = "s68"
sCB1, sCB3, sW3B = "s69", "s70", "s71"
sVC, sROT = "s72", "s73"
vTID, vLANE, vOFFK, vL16 = 0, 1, 2, 3
vMASK = 4
vTAG, vMAX, vL0, vL1 = 8, 9, 10, 11
vT = 12
QF, SP, PERM, ACC, RING = 16, 32, 64, 96, 128

def vr(b, n=1): return "v%d" % b if n == 1 else "v[%d:%d]" % (b, b+n-1)
def ar(b, n=1): return "a%d" % b if n == 1 else "a[%d:%d]" % (b, b+n-1)

DPP = " row_mask:0xf bank_mask:0xf"
def allred(p, regs, tmps, op, steps):
    for s in steps:
        if s in (1, 2, 4, 8):
            for r in regs: p("%s_dpp v%d, v%d, v%d row_ror:%d%s" % (op, r, r, r, s, DPP))
        else:
            for r, t in zip(regs, tmps): p("v_mov_b32 v%d, v%d" % (t, r))
            for r, t in zip(regs, tmps): p("v_permlane%d_swap_b32 v%d, v%d" % (s, r, t))
            for r, t in zip(regs, tmps): p("%s v%d, v%d, v%d" % (op, r, r, t))

def red4(p, a):
    p("v_permlane32_swap_b32 v%d, v%d" % (a[0], a[1])); p("v_permlane32_swap_b32 v%d, v%d" % (a[2], a[3]))
    p("v_add_f32 v%d, v%d, v%d" % (a[0], a[0], a[1])); p("v_add_f32 v%d, v%d, v%d" % (a[2], a[2], a[3]))
    p("v_permlane16_swap_b32 v%d, v%d" % (a[0], a[2]))
    p("v_add_f32 v%d, v%d, v%d" % (a[0], a[0], a[2]))
    p("v_add_f32_dpp v%d, v%d, v%d row_ror:8%s" % (a[0], a[0], a[0], DPP))

def build(cfg):
    pat = cfg.get("pat", "lin")
    nt = " nt" if cfg.get("nt", True) else ""
    ntw = " nt" if cfg.get("ntw", True) else ""
    stamps = cfg.get("stamps", False)
    poll_after = cfg.get("poll_after", 6)
    HS = cfg.get("hs", " sc1")
    HL = cfg.get("hl", " sc1")
    RETRIES = cfg.get("retries", 40000)
    R_ = cfg.get("R", 1)
    stride = {"lin": 1024, "str8": 8192, "w4": 4096 * R_, "glob": 262144}[pat]
    rot = cfg.get("rot", 0)
    p = Prog()
    nst = [0]
    names = []
    def stamp(name):
        if not stamps or name in cfg.get("nostamp", []): return
        k = nst[0]; nst[0] += 1; names.append(name)
        assert k < 12
        p("s_memrealtime s[%d:%d]" % (78+2*k, 79+2*k))

    depth = cfg.get("depth", 0); dstep = cfg.get("dstep", 2); depth0 = cfg.get("depth0", depth)
    cnt = [0]
    def svmem(text, name, early=False):
        d = depth0 if early else depth
        if d and cnt[0] % dstep == 0: p("s_waitcnt vmcnt(%d)" % (d - dstep))
        cnt[0] += 1
        p.vmem(text, name)
    END = p.label("end")
    p("s_cmp_ge_u32 s2, 256")
    p("s_cbranch_scc1 %s" % END)
    stamp("start")
    if cfg.get("pf", 0):
        NPF = p.label("nopf")
        p("s_cmp_ge_u32 s2, %d" % cfg["pf"]); p("s_cbranch_scc1 %s" % NPF)
        p("v_cmp_gt_u32 vcc, 64, v0"); p("s_cbranch_vccz %s" % NPF)
        PFB = p.label("pfbase")
        p("s_getpc_b64 s[48:49]")
        p("%s:" % PFB)
        p("v_lshlrev_b32 v12, 7, v0")
        for i in range(cfg.get("pfn", 3)):
            p("v_min_u32 v13, %s-%s-4, v12" % (END, PFB))
            p.vmem("global_load_dword v%d, v13, s[48:49]" % (236+i), "PF", cond=True)
            p("v_add_u32 v12, 0x2000, v12")
        p("%s:" % NPF)
    for i, off in enumerate([0, 8, 16, 24, 32, 48, 56, 64, 72, 80, 88]):
        p("s_load_dwordx2 s[%d:%d], s[0:1], %d" % (4*i+4, 4*i+5, off))
    sizes = [2048, 1<<26, 1<<26, 1<<23, 1<<23, 1024*3584*2, 1024*3584*2, 1024*3584*2, 2048, 256, 1<<28]
    for i, sz in enumerate(sizes):
        p("s_mov_b32 s%d, 0x%x" % (4*i+6, sz)); p("s_mov_b32 s%d, 0x20000" % (4*i+7))
    p("s_cmp_lt_u32 s2, 224")
    p("s_cselect_b32 s26, s26, 0")
    p("s_cselect_b32 s30, s30, 0")
    p("v_lshrrev_b32 v12, 6, v0")
    p("v_and_b32 v1, 63, v0")
    p("v_readfirstlane_b32 %s, v12" % sW)
    p("s_lshr_b32 %s, s2, 6" % sG)
    p("s_and_b32 %s, s2, 63" % sC)
    p("s_mov_b32 %s, 0x05040100" % sSELLO); p("s_mov_b32 %s, 0x07060302" % sSELHI)
    p("s_mov_b32 %s, 0xff" % sFF); p("s_mov_b32 %s, 0x3fb8aa3b" % sLOG2E)
    p("s_mov_b32 %s, 0x3db504f3" % sSCALE); p("s_mov_b32 %s, 0xffff0000" % sHI)
    p("s_lshr_b32 %s, s2, 1" % sRB); p("s_and_b32 %s, s2, 1" % sCH)
    p("v_lshlrev_b32 v3, 4, v1")
    p("v_lshlrev_b32 v13, 5, v1")
    p("s_lshl_b32 %s, %s, 9" % (sA, sW))
    p("v_lshlrev_b32 v14, 3, v1")
    p("v_lshrrev_b32 v15, 3, v1"); p("v_lshlrev_b32 v15, 13, v15")
    p("v_and_b32 v16, 7, v1"); p("v_lshlrev_b32 v16, 4, v16"); p("v_add_u32 v15, v15, v16")
    p("v_lshrrev_b32 v17, 4, v1"); p("v_mul_u32_u24 v17, 7168, v17")
    p("v_and_b32 v18, 15, v1"); p("v_lshlrev_b32 v18, 4, v18"); p("v_add_u32 v17, v17, v18")
    p("s_and_b32 %s, %s, 3" % (sB, sC)); p("s_lshl_b32 %s, %s, 21" % (sB, sB))
    p("s_lshl_b32 %s, %s, 19" % (sCc, sW)); p("s_add_u32 %s, %s, %s" % (sB, sB, sCc))
    p("s_lshl_b32 %s, %s, 11" % (sCc, sG)); p("s_add_u32 %s, %s, %s" % (sB, sB, sCc))
    p("s_lshr_b32 %s, %s, 2" % (sCc, sC)); p("s_lshl_b32 %s, %s, 7" % (sCc, sCc)); p("s_add_u32 %s, %s, %s" % (sB, sB, sCc))
    p("s_and_b32 %s, s2, 7" % sCc); p("s_lshl_b32 %s, %s, 7" % (sCc, sCc))
    p("s_lshl_b32 %s, %s, 5" % (sD, sW)); p("s_add_u32 %s, %s, %s" % (sCc, sCc, sD)); p("s_mul_i32 %s, %s, 7168" % (sCc, sCc))
    r1, r3 = cfg.get("r1", 1), cfg.get("r3", 2)
    for dst, rr in ((sCB1, r1), (sCB3, r3)):
        p("s_lshr_b32 %s, s2, 3" % dst); p("s_add_u32 %s, %s, %d" % (dst, dst, rr))
        p("s_sub_u32 %s, %s, 28" % (sD, dst)); p("s_cselect_b32 %s, %s, %s" % (dst, dst, sD))
    p("s_lshl_b32 %s, %s, 8" % (sD, sCB3)); p("s_add_u32 %s, %s, %s" % (sW3B, sCc, sD))
    p("s_lshl_b32 %s, %s, 8" % (sD, sCB1)); p("s_add_u32 %s, %s, %s" % (sCc, sCc, sD))
    p("s_waitcnt lgkmcnt(0)")
    stamp("karg")
    p("s_load_dword %s, s[44:45], %d" % (sE, EPOCH))
    ntx = " nt" if cfg.get("ntx", False) else ""
    p.vmem("buffer_load_dwordx4 v[224:227], v13, %s, 0 offen%s" % (SX, ntx), "XA0")
    p.vmem("buffer_load_dwordx4 v[228:231], v13, %s, 0 offen offset:16%s" % (SX, ntx), "XA1")
    p.vmem("buffer_load_dwordx2 v[232:233], v14, %s, %s offen%s" % (SX, sA, ntx), "XB")
    if cfg.get("pbar", 1) >= 1: p("s_barrier")
    for t in range(8):
        p("s_add_u32 %s, %s, %d" % (sT0, sB, t*8*8192))
        svmem("buffer_load_dwordx4 %s, v15, %s, %s offen%s" % (vr(128+4*t, 4), SWQ, sT0, ntw), "Q%d" % t, True)
    if cfg.get("pbar", 1) >= 2: p("s_barrier")
    for t in range(8):
        p("s_add_u32 %s, %s, %d" % (sT0, sCc, t*4*7168))
        svmem("buffer_load_dwordx4 %s, v17, %s, %s offen%s" % (vr(160+4*t, 4), SW1, sT0, ntw), "W1_%d" % t, True)
    stamp("w1_issued")
    if pat == "lin":
        p("s_lshl_b32 %s, s2, 18" % sKV); p("s_lshl_b32 %s, %s, 16" % (sD, sW)); p("s_add_u32 %s, %s, %s" % (sKV, sKV, sD))
    elif pat == "str8":
        p("s_lshl_b32 %s, %s, 24" % (sKV, sG))
        p("s_lshr_b32 %s, %s, 3" % (sD, sC)); p("s_lshl_b32 %s, %s, 21" % (sD, sD)); p("s_add_u32 %s, %s, %s" % (sKV, sKV, sD))
        p("s_lshl_b32 %s, %s, 19" % (sD, sW)); p("s_add_u32 %s, %s, %s" % (sKV, sKV, sD))
        p("s_and_b32 %s, %s, 7" % (sD, sC)); p("s_lshl_b32 %s, %s, 10" % (sD, sD)); p("s_add_u32 %s, %s, %s" % (sKV, sKV, sD))
    elif pat == "w4":
        lg = R_.bit_length() - 1
        p("s_lshl_b32 %s, %s, 24" % (sKV, sG))
        p("s_lshr_b32 %s, %s, %d" % (sD, sC, lg)); p("s_lshl_b32 %s, %s, %d" % (sD, sD, 18 + lg)); p("s_add_u32 %s, %s, %s" % (sKV, sKV, sD))
        p("s_and_b32 %s, %s, %d" % (sD, sC, R_ - 1)); p("s_lshl_b32 %s, %s, 12" % (sD, sD)); p("s_add_u32 %s, %s, %s" % (sKV, sKV, sD))
        p("s_lshl_b32 %s, %s, 10" % (sD, sW)); p("s_add_u32 %s, %s, %s" % (sKV, sKV, sD))
    elif pat == "glob":
        p("s_lshl_b32 %s, %s, 24" % (sKV, sG))
        p("s_lshl_b32 %s, %s, 12" % (sD, sC)); p("s_add_u32 %s, %s, %s" % (sKV, sKV, sD))
        p("s_lshl_b32 %s, %s, 10" % (sD, sW)); p("s_add_u32 %s, %s, %s" % (sKV, sKV, sD))
    if rot == 1: p("s_and_b32 %s, %s, 7" % (sROT, sC))
    if rot == 2: p("s_lshr_b32 %s, %s, 3" % (sROT, sC))
    if rot == 3: p("s_lshr_b32 %s, %s, 3" % (sROT, sC)); p("s_add_u32 %s, %s, %s" % (sROT, sROT, sC))
    p("v_and_b32 v12, 3, v1"); p("v_lshlrev_b32 v12, %d, v12" % (stride.bit_length()-1))
    p("v_bfe_u32 v2, v1, 2, 1"); p("v_lshlrev_b32 v2, 8, v2"); p("v_add_u32 v2, v2, v12")
    p("v_bfe_u32 v12, v1, 3, 1"); p("v_lshlrev_b32 v12, 6, v12"); p("v_add_u32 v2, v2, v12")
    p("v_lshrrev_b32 v12, 4, v1"); p("v_lshlrev_b32 v12, 4, v12"); p("v_add_u32 v2, v2, v12")
    p("v_and_b32 v12, 1, v1"); p("v_lshlrev_b32 v12, 4, v12"); p("v_mov_b32 v13, 0xffff"); p("v_lshlrev_b32 v13, v12, v13")
    p("v_bfe_u32 v12, v1, 1, 2")
    for jj in range(4):
        p("v_cmp_eq_u32 vcc, %d, v12" % jj); p("v_cndmask_b32 v%d, 0, v13, vcc" % (vMASK+jj))
    def grp_base(dst, t):
        if not rot:
            p("s_add_u32 %s, %s, %d" % (dst, sKV, 8*t*stride))
        else:
            p("s_add_u32 %s, %s, %d" % (dst, sROT, t)); p("s_and_b32 %s, %s, 7" % (dst, dst))
            p("s_mul_i32 %s, %s, %d" % (dst, dst, 8*stride)); p("s_add_u32 %s, %s, %s" % (dst, dst, sKV))
    def K_loads(t):
        L = []
        for h in range(2):
            for a_ in range(2):
                for lam in range(2):
                    def f(h=h, a_=a_, lam=lam):
                        if a_ == 0 and lam == 0:
                            if h == 0: grp_base(sKC, t)
                            else: p("s_add_u32 %s, %s, %d" % (sKC, sKC, 4*stride))
                        svmem("buffer_load_dwordx4 %s, v%d, %s, %s offen offset:%d%s" % (ar(32*t+16*h+8*a_+4*lam, 4), vOFFK, SK, sKC, 512*a_+128*lam, nt), "K%d" % t)
                    L.append(f)
        return L
    def V_loads(t):
        base = RING + 32*(t % 4)
        L = []
        for i in range(8):
            def f(i=i):
                if i == 0: grp_base(sVC, t)
                else: p("s_add_u32 %s, %s, %d" % (sVC, sVC, stride))
                svmem("buffer_load_dwordx4 %s, v%d, %s, %s offen%s" % (vr(base+4*i, 4), vL16, SV, sVC, nt), "V%d" % t)
            L.append(f)
        return L
    def loadK(t):
        for f in K_loads(t): f()
    def loadV(t):
        for f in V_loads(t): f()
    def tagcheck(regs, acc):
        p("v_xor_b32 v%d, %s, v%d" % (acc, sTAG, regs[0]))
        for r in regs[1:]: p("v_bitop3_b32 v%d, v%d, %s, v%d bitop3:0xbe" % (acc, r, sTAG, acc))
        p("v_and_b32 v%d, 0xff, v%d" % (acc, acc))
        p("v_cmp_ne_u32 vcc, 0, v%d" % acc)
        if cfg.get("nodep"): p("s_mov_b64 vcc, 0")
    p.wait("XA1")
    stamp("x_landed")
    for i in range(8):
        p("v_lshlrev_b32 v%d, 16, v%d" % (32+2*i, 224+i)); p("v_and_b32 v%d, 0xffff0000, v%d" % (33+2*i, 224+i))
    for i in range(8): p("v_add_f32 v%d, v%d, v%d" % (48+i, 32+2*i, 33+2*i))
    p("v_add_f32 v48, v48, v49"); p("v_add_f32 v50, v50, v51"); p("v_add_f32 v52, v52, v53"); p("v_add_f32 v54, v54, v55")
    p("v_add_f32 v48, v48, v50"); p("v_add_f32 v52, v52, v54"); p("v_add_f32 v48, v48, v52")
    allred(p, [48], [49], "v_add_f32", [8, 4, 2, 1, 16, 32])
    p("v_mul_f32 v49, 0x3a800000, v48")
    for i in range(16): p("v_sub_f32 v%d, v%d, v49" % (32+i, 32+i))
    for i in range(4): p("v_mul_f32 v%d, v%d, v%d" % (50+i, 32+i, 32+i))
    for i in range(4, 16): p("v_fmac_f32 v%d, v%d, v%d" % (50+(i % 4), 32+i, 32+i))
    p("v_add_f32 v50, v50, v51"); p("v_add_f32 v52, v52, v53"); p("v_add_f32 v50, v50, v52")
    allred(p, [50], [51], "v_add_f32", [8, 4, 2, 1, 16, 32])
    p("v_mul_f32 v50, 0x3a800000, v50")
    p("v_cvt_pk_bf16_f32 v51, v49, v50")
    p("v_lshlrev_b32 v52, 16, v51")
    p("v_and_b32 v53, 0xffff0000, v51")
    p("v_add_f32 v53, 0x3727c5ac, v53")
    p("v_cvt_pk_bf16_f32 v53, v53, v53"); p("v_lshlrev_b32 v53, 16, v53")
    p("v_sqrt_f32 v53, v53")
    p("v_cvt_pk_bf16_f32 v53, v53, v53"); p("v_lshlrev_b32 v53, 16, v53")
    p("v_rcp_f32 v54, v53")
    p.wait("XB")
    p("v_lshlrev_b32 v32, 16, v232"); p("v_and_b32 v33, 0xffff0000, v232")
    p("v_lshlrev_b32 v34, 16, v233"); p("v_and_b32 v35, 0xffff0000, v233")
    for i in range(4): p("v_sub_f32 v%d, v%d, v52" % (32+i, 32+i))
    p("v_cvt_pk_bf16_f32 v36, v32, v33"); p("v_cvt_pk_bf16_f32 v37, v34, v35")
    p("v_lshlrev_b32 v32, 16, v36"); p("v_and_b32 v33, 0xffff0000, v36")
    p("v_lshlrev_b32 v34, 16, v37"); p("v_and_b32 v35, 0xffff0000, v37")
    for i in range(4): p("v_mul_f32 v%d, v%d, v54" % (40+i, 32+i))
    for i in range(4): p("v_fma_f32 v%d, -v%d, v53, v%d" % (44+i, 40+i, 32+i))
    for i in range(4): p("v_fma_f32 v%d, v%d, v54, v%d" % (40+i, 44+i, 40+i))
    for i in range(4): p("v_cvt_pk_bf16_f32 v%d, v%d, v%d" % (36+i, 40+i, 40+i))
    p("v_lshlrev_b32 v12, 4, v0")
    p("ds_write_b128 v12, v[36:39] offset:%d" % L_XN)
    p("s_waitcnt lgkmcnt(0)")
    p("s_barrier")
    stamp("ln_done")
    p("s_add_u32 %s, %s, 1" % (sE, sE)); p("s_and_b32 %s, %s, 0xff" % (sTAG, sE)); p("v_mov_b32 v%d, %s" % (vTAG, sTAG))
    p("s_and_b32 %s, %s, 3" % (sA, sC)); p("s_lshl_b32 %s, %s, 8" % (sA, sA)); p("s_lshl_b32 %s, %s, 6" % (sD, sW)); p("s_add_u32 %s, %s, %s" % (sA, sA, sD))
    p("v_lshrrev_b32 v12, 3, v1"); p("v_add_u32 v12, %s, v12" % sA); p("v_lshlrev_b32 v12, 2, v12")
    p("s_and_b32 %s, s2, 7" % sA); p("s_lshl_b32 %s, %s, 7" % (sA, sA)); p("s_lshl_b32 %s, %s, 5" % (sD, sW)); p("s_add_u32 %s, %s, %s" % (sA, sA, sD))
    p("v_lshrrev_b32 v13, 4, v1"); p("v_add_u32 v13, %s, v13" % sA); p("v_lshlrev_b32 v13, 2, v13")
    for t in range(0, 8, 2):
        p("ds_read2_b32 v[%d:%d], v12 offset0:%d offset1:%d" % (96+t, 97+t, 8*t, 8*t+8))
    for t in range(0, 8, 2):
        p("ds_read2_b32 v[%d:%d], v13 offset0:%d offset1:%d" % (104+t, 105+t, 4*t, 4*t+4))
    for t in range(8):
        p("s_add_u32 %s, %s, %d" % (sT0, sW3B, t*4*7168))
        svmem("buffer_load_dwordx4 %s, v17, %s, %s offen%s" % (vr(192+4*t, 4), SW3, sT0, ntw), "W3_%d" % t, True)
    p("s_waitcnt lgkmcnt(0)")
    for t in range(8):
        A = 48 + 4*(t % 2)
        for jj in range(4): p("v_and_b32 v%d, v%d, v%d" % (A+jj, 96+t, vMASK+jj))
        if t == 0: p.wait("Q7")
        p("v_mfma_f32_16x16x32_bf16 v[56:59], %s, %s, %s" % (vr(A, 4), vr(128+4*t, 4), "0" if t == 0 else "v[56:59]"))
    for t in range(8):
        for jj in range(4): p("v_and_b32 v%d, v%d, v%d" % (PERM+4*t+jj, 104+t, vMASK+jj))
    p("v_and_b32 v12, 7, v1"); p("v_lshlrev_b32 v12, 5, v12")
    p("v_bfe_u32 v13, v1, 4, 1"); p("v_lshlrev_b32 v13, 4, v13"); p("v_add_u32 v12, v12, v13")
    p("v_lshrrev_b32 v13, 5, v1"); p("v_lshlrev_b32 v13, 8, v13"); p("v_add_u32 v12, v12, v13")
    p("s_lshl_b32 %s, %s, 9" % (sA, sW)); p("v_add_u32 v12, %s, v12" % sA)
    p("s_mov_b32 exec_lo, 0x00ff00ff"); p("s_mov_b32 exec_hi, 0xff00ff00")
    p("ds_write_b128 v12, v[56:59] offset:%d" % L_QP)
    p("s_mov_b64 exec, -1")
    p("s_waitcnt lgkmcnt(0)")
    p("s_barrier")
    stamp("q_gemv")
    SKIP0 = p.label("pubq")
    p("s_cmp_lg_u32 %s, 0" % sW); p("s_cbranch_scc1 %s" % SKIP0)
    p("v_lshlrev_b32 v12, 4, v1")
    for i in range(8): p("ds_read_b128 %s, v12 offset:%d" % (vr(32+4*i, 4) if i < 4 else vr(112+4*(i-4), 4), L_QP + 256*i))
    p("s_lshl_b32 %s, %s, 2" % (sB, sG)); p("s_and_b32 %s, %s, 3" % (sD, sC)); p("s_add_u32 %s, %s, %s" % (sB, sB, sD)); p("s_lshl_b32 %s, %s, 12" % (sB, sB))
    p("s_lshr_b32 %s, %s, 2" % (sD, sC)); p("s_lshl_b32 %s, %s, 8" % (sD, sD)); p("s_add_u32 %s, %s, %s" % (sB, sB, sD))
    p("s_add_u32 %s, %s, %d" % (sB, sB, Q_BASE))
    p("s_waitcnt lgkmcnt(0)")
    for r in range(4):
        p("v_add_f32 v%d, v%d, v%d" % (32+r, 32+r, 36+r)); p("v_add_f32 v%d, v%d, v%d" % (40+r, 40+r, 44+r))
        p("v_add_f32 v%d, v%d, v%d" % (112+r, 112+r, 116+r)); p("v_add_f32 v%d, v%d, v%d" % (120+r, 120+r, 124+r))
    for r in range(4):
        p("v_add_f32 v%d, v%d, v%d" % (32+r, 32+r, 40+r)); p("v_add_f32 v%d, v%d, v%d" % (112+r, 112+r, 120+r))
    for r in range(4): p("v_add_f32 v%d, v%d, v%d" % (32+r, 32+r, 112+r))
    p("s_mov_b32 exec_lo, 0xffff"); p("s_mov_b32 exec_hi, 0")
    p.vmem("buffer_store_dwordx4 v[32:35], v12, %s, %s offen%s" % (SWS, sB, HS), "PUBQ", cond=True)
    p("s_mov_b64 exec, -1")
    p("%s:" % SKIP0)
    loadK(0)
    p.wait("W1_7")
    stamp("w1_landed")
    for t in range(8):
        p("v_mfma_f32_16x16x32_bf16 v[60:63], %s, %s, %s" % (vr(PERM+4*t, 4), vr(160+4*t, 4), "0" if t == 0 else "v[60:63]"))
    loadK(1)
    p.wait("W3_7")
    stamp("w3_landed")
    for t in range(8):
        p("v_mfma_f32_16x16x32_bf16 v[96:99], %s, %s, %s" % (vr(PERM+4*t, 4), vr(192+4*t, 4), "0" if t == 0 else "v[96:99]"))
    SKIP2 = p.label("flag")
    p("s_cmp_lg_u32 %s, 0" % sW); p("s_cbranch_scc1 %s" % SKIP2)
    p("v_lshlrev_b32 v12, 2, v1"); p("v_mov_b32 v13, %s" % sE)
    p("s_lshl_b32 %s, s2, 7" % sA); p("s_add_u32 %s, %s, %d" % (sA, sA, FLAG_BASE))
    p.wait("PUBQ")
    p("s_mov_b32 exec_hi, 0")
    p.vmem("buffer_store_dword v13, v12, %s, %s offen%s" % (SWS, sA, HS), "FLAG", cond=True)
    p("s_mov_b64 exec, -1")
    p("%s:" % SKIP2)
    stamp("flag")
    p("v_and_b32 v12, 15, v1"); p("v_lshlrev_b32 v12, 5, v12")
    p("v_bfe_u32 v13, v1, 4, 1"); p("v_lshlrev_b32 v13, 4, v13"); p("v_add_u32 v12, v12, v13")
    p("s_lshl_b32 %s, %s, 10" % (sA, sW)); p("v_add_u32 v12, %s, v12" % sA)
    p("s_mov_b32 exec_hi, 0")
    p("ds_write_b128 v12, v[60:63] offset:%d" % L_BP)
    p("ds_write_b128 v12, v[96:99] offset:%d" % (L_BP+512))
    p("s_mov_b64 exec, -1")
    loadK(2)
    p("s_waitcnt lgkmcnt(0)")
    p("s_barrier")
    stamp("b_gemv")
    SKIP1 = p.label("pub1")
    p("s_cmp_lg_u32 %s, 1" % sW); p("s_cbranch_scc1 %s" % SKIP1)
    p("s_cmp_ge_u32 s2, 224"); p("s_cbranch_scc1 %s" % SKIP1)
    p("v_lshlrev_b32 v12, 4, v1")
    for i in range(4): p("ds_read_b128 %s, v12 offset:%d" % (vr(32+4*i, 4), L_BP + 1024*i))
    p("s_and_b32 %s, s2, 7" % sA); p("s_mul_i32 %s, %s, %d" % (sA, sA, 3584*4)); p("s_add_u32 %s, %s, %d" % (sA, sA, BP_BASE))
    p("s_lshl_b32 %s, %s, 9" % (sD, sCB1)); p("s_lshl_b32 %s, %s, 9" % (sB, sCB3)); p("s_add_u32 %s, %s, %d" % (sB, sB, 8*3584*4))
    p("v_mov_b32 v13, %s" % sD); p("v_mov_b32 v14, %s" % sB); p("v_cmp_gt_u32 vcc, 32, v1"); p("v_cndmask_b32 v13, v14, v13, vcc")
    p("v_and_b32 v14, 31, v1"); p("v_lshlrev_b32 v14, 4, v14"); p("v_add_u32 v13, v13, v14")
    p("s_waitcnt lgkmcnt(0)")
    for r in range(4):
        p("v_add_f32 v%d, v%d, v%d" % (32+r, 32+r, 36+r)); p("v_add_f32 v%d, v%d, v%d" % (40+r, 40+r, 44+r))
    for r in range(4): p("v_add_f32 v%d, v%d, v%d" % (32+r, 32+r, 40+r))
    for r in range(4): p("v_bfi_b32 v%d, %s, v%d, v%d" % (32+r, sFF, vTAG, 32+r))
    p.vmem("buffer_store_dwordx4 v[32:35], v13, %s, %s offen%s" % (SWS, sA, HS), "PUBB", cond=True)
    p("%s:" % SKIP1)
    for t in range(3, poll_after): loadK(t)
    SKIPP = p.label("nopoll")
    p("v_lshlrev_b32 v14, 7, v1")
    p("s_lshl_b32 %s, %s, 13" % (sB, sG)); p("s_add_u32 %s, %s, %d" % (sB, sB, FLAG_BASE))
    p("s_cmp_lg_u32 %s, 0" % sW); p("s_cbranch_scc1 %s" % SKIPP)
    p.vmem("buffer_load_dword v15, v14, %s, %s offen%s" % (SWS, sB, HL), "POLL", cond=True)
    p("%s:" % SKIPP)
    pend = []
    for t in range(poll_after, 8): pend += K_loads(t)
    for t in range(4): pend += V_loads(t)
    def tr(n):
        for _ in range(min(n, len(pend))): pend.pop(0)()
    tr(cfg.get("n_after_poll", 16))
    OKP = p.label("okpoll")
    p("s_cmp_lg_u32 %s, 0" % sW); p("s_cbranch_scc1 %s" % OKP)
    p.wait("POLL")
    p("s_mov_b32 %s, %d" % (sRETRY, RETRIES))
    RP = p.label("rpoll")
    p("%s:" % RP)
    p("v_cmp_ne_u32 vcc, %s, v15" % sE)
    if cfg.get("nodep"): p("s_branch %s" % OKP)
    p("s_cbranch_vccz %s" % OKP)
    p("s_sub_u32 %s, %s, 1" % (sRETRY, sRETRY)); p("s_cbranch_scc1 %s" % OKP)
    p("s_sleep %d" % cfg.get("sleep", 8))
    p("buffer_load_dword v15, v14, %s, %s offen%s" % (SWS, sB, HL))
    p("s_waitcnt vmcnt(0)")
    p("s_branch %s" % RP)
    p("%s:" % OKP)
    p("s_barrier")
    stamp("poll_ok")
    p("s_lshl_b32 %s, %s, 14" % (sA, sG)); p("s_lshl_b32 %s, %s, 10" % (sD, sW)); p("s_add_u32 %s, %s, %s" % (sA, sA, sD)); p("s_add_u32 %s, %s, %d" % (sA, sA, Q_BASE))
    for kq in range(4):
        p("s_add_u32 %s, %s, %d" % (sT0, sA, kq*4096))
        p.vmem("buffer_load_dwordx4 %s, v%d, %s, %s offen%s" % (vr(96+4*kq, 4), vL16, SWS, sT0, HL), "QG")
    tr(cfg.get("n_after_qg", 16))
    p("v_lshrrev_b32 v12, 5, v1"); p("s_lshl_b32 %s, %s, 1" % (sA, sW)); p("v_add_u32 v12, %s, v12" % sA); p("v_mul_u32_u24 v12, 272, v12")
    p("v_and_b32 v13, 31, v1"); p("v_lshlrev_b32 v13, 3, v13"); p("v_add_u32 v12, v12, v13")
    p("v_and_b32 v14, 7, v1"); p("v_mul_u32_u24 v14, 272, v14"); p("v_lshrrev_b32 v13, 4, v1"); p("v_lshlrev_b32 v13, 4, v13"); p("v_add_u32 v14, v14, v13")
    p("v_bfe_u32 v13, v1, 3, 1"); p("v_lshlrev_b32 v13, 6, v13"); p("v_add_u32 v14, v14, v13")
    p("v_mov_b32 v%d, 0xff800000" % vMAX)
    p.wait("QG")
    for r in range(4):
        p("v_add_f32 v%d, v%d, v%d" % (96+r, 96+r, 100+r)); p("v_add_f32 v%d, v%d, v%d" % (104+r, 104+r, 108+r))
    for r in range(4): p("v_add_f32 v%d, v%d, v%d" % (96+r, 96+r, 104+r))
    p("v_cvt_pk_bf16_f32 v96, v96, v97"); p("v_cvt_pk_bf16_f32 v97, v98, v99")
    p("ds_write_b64 v12, v[96:97] offset:%d" % L_QL)
    p("s_waitcnt lgkmcnt(0)")
    p("s_barrier")
    stamp("q_ready")
    for lam in range(2): p("ds_read_b128 %s, v14 offset:%d" % (vr(QF+4*lam, 4), L_QL + 128*lam))
    tr(1)
    p("s_waitcnt lgkmcnt(0)")
    def qk_mfma(t):
        D = PERM + 16*(t % 2)
        p.wait("K%d" % t)
        for lam in range(2):
            for h in range(2):
                for a_ in range(2):
                    d = D + 8*h + 4*a_
                    p("v_mfma_f32_16x16x32_bf16 %s, %s, %s, %s" % (vr(d, 4), ar(32*t+16*h+8*a_+4*lam, 4), vr(QF+4*lam, 4), "0" if lam == 0 else vr(d, 4)))
    def qk_post(t):
        D = PERM + 16*(t % 2); T = QF + 8
        for h in range(2):
            for r in range(4): p("v_permlane32_swap_b32 v%d, v%d" % (D+8*h+r, D+8*h+4+r))
        for h in range(2):
            for r in range(4): p("v_add_f32_dpp v%d, v%d, v%d row_ror:8%s" % (D+8*h+r, D+8*h+4+r, D+8*h+r, DPP))
        tr(1)
        src = [D+0, D+1, D+2, D+3, D+8, D+9, D+10, D+11]
        pk = [D+4, D+5, D+6, D+7]
        for i in range(4): p("v_cvt_pk_bf16_f32 v%d, v%d, v%d" % (pk[i], src[2*i], src[2*i+1]))
        for i in range(4):
            p("v_lshlrev_b32 v%d, 16, v%d" % (T+2*i, pk[i])); p("v_and_b32 v%d, 0xffff0000, v%d" % (T+2*i+1, pk[i]))
        for i in range(8): p("v_mul_f32 v%d, %s, v%d" % (T+i, sSCALE, T+i))
        tr(1)
        for i in range(4):
            p("v_cvt_pk_bf16_f32 v%d, v%d, v%d" % (SP+4*t+i, T+2*i, T+2*i+1))
            p("v_max3_f32 v%d, v%d, v%d, v%d" % (vMAX, vMAX, T+2*i, T+2*i+1))
    qk_mfma(0)
    for t in range(1, 8):
        qk_mfma(t)
        qk_post(t-1)
    qk_post(7)
    allred(p, [vMAX], [12], "v_max_f32", [16, 32])
    p("v_and_b32 v12, 15, v1"); p("v_lshlrev_b32 v12, 2, v12"); p("s_lshl_b32 %s, %s, 6" % (sA, sW)); p("v_add_u32 v13, %s, v12" % sA)
    p("ds_write_b32 v13, v%d offset:%d" % (vMAX, L_MX))
    p("s_waitcnt lgkmcnt(0)")
    p("s_barrier")
    p("ds_read_b32 v14, v12 offset:%d" % L_MX)
    p("ds_read_b32 v15, v12 offset:%d" % (L_MX+64))
    p("ds_read_b32 v16, v12 offset:%d" % (L_MX+128))
    p("ds_read_b32 v17, v12 offset:%d" % (L_MX+192))
    tr(1)
    p("s_waitcnt lgkmcnt(0)")
    p("v_max3_f32 v14, v14, v15, v16"); p("v_max_f32 v14, v14, v17")
    p("v_cvt_pk_bf16_f32 v14, v14, v14"); p("v_lshlrev_b32 v%d, 16, v14" % vMAX)
    p("v_mul_f32 v16, %s, v%d" % (sLOG2E, vMAX)); p("v_sub_f32 v16, 0, v16")
    stamp("qk_done")
    p("v_mov_b32 v%d, 0" % vL0); p("v_mov_b32 v%d, 0" % vL1)
    for b_ in range(8):
        T = PERM + 8*(b_ % 2)
        for i in range(4):
            p("v_lshlrev_b32 v%d, 16, v%d" % (T+2*i, SP+4*b_+i)); p("v_and_b32 v%d, 0xffff0000, v%d" % (T+2*i+1, SP+4*b_+i))
        for i in range(8): p("v_fma_f32 v%d, v%d, %s, v16" % (T+i, T+i, sLOG2E))
        for i in range(8): p("v_exp_f32 v%d, v%d" % (T+i, T+i))
        for i in range(4):
            p("v_cvt_pk_bf16_f32 v%d, v%d, v%d" % (SP+4*b_+i, T+2*i, T+2*i+1))
            p("v_add_f32 v%d, v%d, v%d" % (vL0, vL0, T+2*i)); p("v_add_f32 v%d, v%d, v%d" % (vL1, vL1, T+2*i+1))
        tr(1)
    tr(100)
    p("v_add_f32 v%d, v%d, v%d" % (vL0, vL0, vL1))
    allred(p, [vL0], [12], "v_add_f32", [16, 32])
    p("v_and_b32 v12, 15, v1"); p("v_lshlrev_b32 v12, 2, v12"); p("s_lshl_b32 %s, %s, 6" % (sA, sW)); p("v_add_u32 v13, %s, v12" % sA)
    p("ds_write_b32 v13, v%d offset:%d" % (vL0, L_LW))
    stamp("p_done")
    def silu(src, dst, tmp, n):
        for r in range(n): p("v_mul_f32 v%d, %s, v%d" % (tmp+r, sLOG2E, src+r))
        for r in range(n): p("v_exp_f32 v%d, -v%d" % (tmp+r, tmp+r))
        for r in range(n): p("v_add_f32 v%d, 1.0, v%d" % (tmp+r, tmp+r))
        for r in range(n): p("v_rcp_f32 v%d, v%d" % (tmp+r, tmp+r))
        for r in range(n): p("v_mul_f32 v%d, v%d, v%d" % (dst+r, src+r, tmp+r))
    def unpack2(dst, src):
        p("v_lshlrev_b32 v%d, 16, v%d" % (dst, src)); p("v_and_b32 v%d, 0xffff0000, v%d" % (dst+1, src))
    sH0, sH1 = "s69", "s70"
    p("v_lshrrev_b32 v15, 3, v1"); p("v_mul_u32_u24 v15, 14336, v15"); p("v_and_b32 v13, 7, v1"); p("v_min_u32 v13, 6, v13"); p("v_lshlrev_b32 v13, 4, v13"); p("v_add_u32 v15, v15, v13")
    p("s_mul_i32 %s, %s, 112" % (sH0, sRB)); p("s_add_u32 %s, %s, %d" % (sH0, sH0, BP_BASE)); p("s_add_u32 %s, %s, %d" % (sH1, sH0, 8*14336))
    p.vmem("buffer_load_dwordx4 v[16:19], v15, %s, %s offen%s" % (SWS, sH0, HL), "HG")
    p.vmem("buffer_load_dwordx4 v[20:23], v15, %s, %s offen%s" % (SWS, sH1, HL), "HG")
    def retry_block(check, reload, base):
        R = p.label("r" + base); OK = p.label("ok" + base)
        p("s_mov_b32 %s, %d" % (sRETRY, RETRIES))
        p("%s:" % R)
        check()
        p("s_cbranch_vccz %s" % OK)
        p("s_sub_u32 %s, %s, 1" % (sRETRY, sRETRY)); p("s_cbranch_scc1 %s" % OK)
        reload()
        p("s_waitcnt vmcnt(0)")
        p("s_branch %s" % R)
        p("%s:" % OK)
    def h_compute():
        p.wait("HG")
        def rl():
            p("s_sleep %d" % cfg.get("sleep", 8))
            p("buffer_load_dwordx4 v[16:19], v15, %s, %s offen%s" % (SWS, sH0, HL))
            p("buffer_load_dwordx4 v[20:23], v15, %s, %s offen%s" % (SWS, sH1, HL))
        retry_block(lambda: tagcheck(list(range(16, 24)), 14), rl, "h")
        red4(p, [16, 17, 18, 19]); red4(p, [20, 21, 22, 23])
        p("v_cvt_pk_bf16_f32 v24, v16, v20")
        unpack2(16, 24)
        silu(16, 16, 24, 1)
        p("v_cvt_pk_bf16_f32 v24, v16, v16"); p("v_lshlrev_b32 v16, 16, v24")
        p("v_mul_f32 v16, v16, v17")
        p("v_cvt_pk_bf16_f32 v16, v16, v16")
        p("v_lshrrev_b32 v12, 4, v1"); p("v_and_b32 v13, 1, v12"); p("v_lshlrev_b32 v13, 1, v13"); p("v_lshrrev_b32 v12, 1, v12"); p("v_or_b32 v12, v12, v13")
        p("v_lshlrev_b32 v12, 5, v12"); p("v_and_b32 v13, 7, v1"); p("v_lshlrev_b32 v13, 2, v13"); p("v_add_u32 v13, v13, v12")
        p("ds_write_b32 v13, v16 offset:%d" % L_HL)
        p("v_lshrrev_b32 v13, 4, v1"); p("v_lshlrev_b32 v13, 5, v13")
        p("s_waitcnt lgkmcnt(0)")
        p("ds_read_b128 v[16:19], v13 offset:%d" % L_HL); p("ds_read_b128 v[20:23], v13 offset:%d" % (L_HL+16))
    sOB = "s77"
    late = []
    def tl(n=1):
        for _ in range(min(n, len(late))): late.pop(0)()
    def pv(t, trickle=False):
        base = RING + 32*(t % 4)
        p.wait("V%d" % t)
        def perm(j):
            c, h = j >> 1, j & 1
            for tt in range(4):
                p("v_perm_b32 v%d, v%d, v%d, %s" % (PERM+4*j+tt, base+4*(2*tt+1)+c, base+4*(2*tt)+c, sSELHI if h else sSELLO))
        def mm(j):
            p("v_mfma_f32_16x16x32_bf16 %s, %s, %s, %s" % (vr(ACC+4*j, 4), vr(PERM+4*j, 4), vr(SP+4*t, 4), "0" if t == 0 else vr(ACC+4*j, 4)))
        perm(0)
        for j in range(1, 8):
            perm(j); mm(j-1)
            if trickle and j in (2, 5): tl(1)
        mm(7)
    vW2O, vOO = 31, 11
    sW2B = "s3"
    def late_addresses():
        p("v_lshrrev_b32 v12, 4, v1"); p("v_and_b32 v13, 15, v1"); p("v_lshlrev_b32 v13, 4, v13")
        p("v_lshlrev_b32 v%d, 11, v12" % vW2O); p("v_add_u32 v%d, v%d, v13" % (vW2O, vW2O))
        p("v_lshlrev_b32 v%d, 14, v12" % vOO); p("v_add_u32 v%d, v%d, v13" % (vOO, vOO))
        p("s_lshl_b32 %s, %s, 10" % (sD, sCH)); p("s_lshl_b32 %s, %s, 8" % (sA, sW)); p("s_add_u32 %s, %s, %s" % (sD, sD, sA))
        p("s_mul_i32 %s, %s, %d" % (sW2B, sRB, 28*2048)); p("s_add_u32 %s, %s, %s" % (sW2B, sW2B, sD))
        p("s_lshl_b32 %s, %s, 16" % (sOB, sRB)); p("s_add_u32 %s, %s, %s" % (sOB, sOB, sD))
    def W2_loads():
        L = []
        for t in range(7):
            def f(t=t):
                p("s_add_u32 %s, %s, %d" % (sT0, sW2B, t*4*2048))
                svmem("buffer_load_dwordx4 %s, v%d, %s, %s offen%s" % (ar(4*t, 4), vW2O, SW2, sT0, ntw), "W2")
            L.append(f)
        return L
    def O_loads():
        L = []
        for t in range(8):
            def f(t=t):
                p("s_add_u32 %s, %s, %d" % (sT0, sOB, t*2048))
                svmem("buffer_load_dwordx4 %s, v%d, %s, %s offen%s" % (ar(32+4*t, 4), vOO, SWO, sT0, ntw), "O")
            L.append(f)
        return L
    vAWB, vRD, vPO, vLWR, vMLS, vG0, vG1 = 24, 25, 26, 27, 28, 29, 30
    vPC, vCM, vCPW, vCPR, vZ = 160, 161, 162, 163, 165
    vAW = PERM + 24
    sPO, sPB, sPS, sGV, sGM, sGA = "s71", "s72", "s73", "s74", "s75", "s76"
    def tail_addresses_a():
        p("v_and_b32 v12, 7, v1"); p("v_lshlrev_b32 v13, 9, v12"); p("v_lshlrev_b32 v12, 4, v12"); p("v_add_u32 v12, v12, v13")
        p("v_lshrrev_b32 v13, 4, v1"); p("v_lshlrev_b32 v13, 7, v13"); p("v_add_u32 v12, v12, v13")
        p("s_lshl_b32 %s, %s, 12" % (sA, sW)); p("s_add_u32 %s, %s, %d" % (sA, sA, L_OP)); p("v_add_u32 v%d, %s, v12" % (vAWB, sA))
        p("v_lshlrev_b32 v%d, 4, v0" % vRD)
        p("v_lshrrev_b32 v14, 5, v0"); p("v_and_b32 v15, 7, v0"); p("v_xor_b32 v14, v14, v15"); p("v_lshlrev_b32 v14, 4, v14")
        p("v_lshrrev_b32 v15, 3, v0"); p("v_lshlrev_b32 v15, 7, v15"); p("v_add_u32 v%d, v14, v15" % vPO)
        p("s_mul_i32 %s, s2, %d" % (sPO, O_PITCH)); p("s_add_u32 %s, %s, %d" % (sPO, sPO, O_BASE))
        p("v_and_b32 v13, 15, v1"); p("v_lshlrev_b32 v%d, 2, v13" % vLWR)
        p("v_lshlrev_b32 v%d, 4, v1" % vMLS); p("v_add_u32 v%d, 4096, v%d" % (vMLS, vMLS))
        p("v_lshrrev_b32 v12, 3, v1"); p("v_mul_u32_u24 v%d, %d, v12" % (vG0, O_PITCH))
        p("v_and_b32 v13, 7, v1"); p("v_lshlrev_b32 v13, 4, v13"); p("v_add_u32 v%d, v%d, v13" % (vG1, vG0))
        p("s_lshl_b32 %s, %s, 6" % (sA, sG)); p("s_mul_i32 %s, %s, %d" % (sA, sA, O_PITCH)); p("s_add_u32 %s, %s, %d" % (sA, sA, O_BASE))
        p("s_bfe_u32 %s, s2, 0x30003" % sB)
        p("s_lshl_b32 %s, %s, 4" % (sD, sB)); p("s_add_u32 %s, %s, %s" % (sGM, sA, sD)); p("s_add_u32 %s, %s, 4096" % (sGM, sGM))
        p("s_lshl_b32 %s, %s, 2" % (sB, sB)); p("s_bfe_u32 %s, s2, 0x20001" % sD); p("s_add_u32 %s, %s, %s" % (sB, sB, sD)); p("s_lshl_b32 %s, %s, 7" % (sB, sB))
        p("s_add_u32 %s, %s, %s" % (sB, sB, sA))
        p("s_mul_i32 %s, %s, %d" % (sD, sW, 16*O_PITCH))
        p("s_add_u32 %s, %s, %s" % (sGV, sB, sD)); p("s_add_u32 %s, %s, %s" % (sGA, sGM, sD))
    def tail_addresses_b():
        p("v_bfe_u32 v12, v1, 2, 2"); p("v_lshlrev_b32 v12, 14, v12")
        p("v_and_b32 v13, 3, v1"); p("v_lshlrev_b32 v13, 5, v13"); p("v_add_u32 v12, v12, v13")
        p("v_bfe_u32 v13, v1, 4, 1"); p("v_lshlrev_b32 v13, 4, v13"); p("v_add_u32 v%d, v12, v13" % vPC)
        p("s_lshl_b32 %s, %s, 18" % (sA, sCH)); p("s_lshl_b32 %s, %s, 16" % (sD, sW)); p("s_add_u32 %s, %s, %s" % (sA, sA, sD))
        p("s_lshl_b32 %s, %s, 7" % (sD, sRB)); p("s_add_u32 %s, %s, %s" % (sA, sA, sD))
        p("s_add_u32 %s, %s, %d" % (sPB, sA, BB_BASE)); p("s_add_u32 %s, %s, %d" % (sPS, sA, S_BASE))
        p("v_lshrrev_b32 v12, 4, v1"); p("v_and_b32 v13, 1, v12"); p("v_lshlrev_b32 v13, 1, v13"); p("v_lshrrev_b32 v12, 1, v12"); p("v_or_b32 v12, v12, v13")
        p("v_lshlrev_b32 v12, 5, v12"); p("v_and_b32 v13, 7, v1"); p("v_lshlrev_b32 v13, 2, v13"); p("v_add_u32 v12, v12, v13")
        p("s_lshl_b32 %s, %s, 7" % (sA, sW)); p("v_add_u32 v%d, %s, v12" % (vCPW, sA))
        p("v_lshrrev_b32 v13, 4, v1"); p("v_lshlrev_b32 v%d, 5, v13" % vCPR)
        p("s_lshl_b32 %s, %s, 3" % (sA, sW)); p("v_mov_b32 v%d, %s" % (vCM, sA)); p("v_mov_b32 v%d, 0" % vZ)
    o_early = cfg.get("o_early", False)
    pv(0); loadV(4)
    pv(1); loadV(5)
    pv(2); loadV(6)
    pv(3); loadV(7)
    late_addresses()
    late += W2_loads() + O_loads()
    n_pre = cfg.get("n_pre", 10)
    pv(4, True); tl(1); h_compute(); tl(1); p("s_waitcnt lgkmcnt(0)"); pv(5, True); tl(1); tail_addresses_a(); tl(1); pv(6, True)
    while len(late) > 15 - n_pre: tl(1)
    pv(7)
    stamp("pv_done")
    for j in range(8): p("v_xor_b32 v%d, %d, v%d" % (vAW+j, 16*j, vAWB))
    p("s_mov_b32 exec_lo, 0x00ff00ff"); p("s_mov_b32 exec_hi, 0x00ff00ff")
    for j in range(8):
        p("ds_write_b128 v%d, %s" % (vAW+j, vr(ACC+4*j, 4)))
    p("s_mov_b64 exec, -1")
    p("s_waitcnt lgkmcnt(0)")
    p("s_barrier")
    for i in range(4): p("ds_read_b128 %s, v%d offset:%d" % (vr(PERM+4*i, 4), vRD, L_OP + 4096*i))
    for i in range(4): p("ds_read_b32 v%d, v%d offset:%d" % (PERM+16+i, vLWR, L_LW + 64*i))
    p("s_waitcnt lgkmcnt(4)")
    for r in range(4):
        p("v_add_f32 v%d, v%d, v%d" % (PERM+r, PERM+r, PERM+4+r)); p("v_add_f32 v%d, v%d, v%d" % (PERM+8+r, PERM+8+r, PERM+12+r))
    for r in range(4): p("v_add_f32 v%d, v%d, v%d" % (PERM+r, PERM+r, PERM+8+r))
    for r in range(4): p("v_bfi_b32 v%d, %s, v%d, v%d" % (PERM+r, sFF, vTAG, PERM+r))
    p.vmem("buffer_store_dwordx4 %s, v%d, %s, %s offen%s" % (vr(PERM, 4), vPO, SWS, sPO, HS), "PUBO")
    SKIP4 = p.label("ml")
    p("s_cmp_lg_u32 %s, 0" % sW); p("s_cbranch_scc1 %s" % SKIP4)
    p("s_waitcnt lgkmcnt(0)")
    p("v_add_f32 v%d, v%d, v%d" % (PERM+16, PERM+16, PERM+17)); p("v_add_f32 v%d, v%d, v%d" % (PERM+18, PERM+18, PERM+19)); p("v_add_f32 v%d, v%d, v%d" % (PERM+17, PERM+16, PERM+18))
    p("v_bfi_b32 v%d, %s, v%d, v%d" % (PERM+16, sFF, vTAG, vMAX)); p("v_bfi_b32 v%d, %s, v%d, v%d" % (PERM+17, sFF, vTAG, PERM+17))
    p("v_mov_b32 v%d, %s" % (PERM+18, sE)); p("v_mov_b32 v%d, %s" % (PERM+19, sE))
    p("s_mov_b32 exec_lo, 0xff"); p("s_mov_b32 exec_hi, 0")
    p.vmem("buffer_store_dwordx4 %s, v%d, %s, %s offen%s" % (vr(PERM+16, 4), vMLS, SWS, sPO, HS), "PUBML", cond=True)
    p("s_mov_b64 exec, -1")
    p("%s:" % SKIP4)
    p("s_waitcnt lgkmcnt(0)")
    stamp("o_pub")
    DD = 124
    def pub_cols(sb, name):
        for r in range(4): p("v_bfi_b32 v%d, %s, v%d, v%d" % (DD+r, sFF, vTAG, DD+r))
        p("s_mov_b32 exec_hi, 0")
        p.vmem("buffer_store_dwordx4 %s, v%d, %s, %s offen%s" % (vr(DD, 4), vPC, SWS, sb, HS), name)
        p("s_mov_b64 exec, -1")
    def diag_mult(src, n, breg):
        for t in range(n+1):
            if t < n:
                A = PERM + 4*(t % 4)
                for jj in range(4): p("v_and_b32 v%d, v%d, v%d" % (A+jj, src+t, vMASK+jj))
            if t >= 1:
                tt = t-1; AA = PERM + 4*(tt % 4)
                p("v_mfma_f32_16x16x32_bf16 %s, %s, %s, %s" % (vr(DD, 4), vr(AA, 4), ar(breg+4*tt, 4), "0" if tt == 0 else vr(DD, 4)))
    def w2_mult():
        p.wait("W2")
        diag_mult(16, 7, 0)
        pub_cols(sPB, "PUBB2")
        stamp("b_pub")
    def g2_loads(R, nm):
        f = (lambda t: p.vmem(t, nm)) if nm else p
        f("buffer_load_dwordx4 %s, v%d, %s, %s offen%s" % (vr(R, 4), vG1, SWS, sGV, HL))
        f("buffer_load_dwordx4 %s, v%d, %s, %s offen%s" % (vr(R+8, 4), vG0, SWS, sGA, HL))
        p("s_add_u32 %s, %s, %d" % (sT0, sGV, 8*O_PITCH))
        f("buffer_load_dwordx4 %s, v%d, %s, %s offen%s" % (vr(R+4, 4), vG1, SWS, sT0, HL))
        p("s_add_u32 %s, %s, %d" % (sT0, sGA, 8*O_PITCH))
        f("buffer_load_dwordx4 %s, v%d, %s, %s offen%s" % (vr(R+12, 4), vG0, SWS, sT0, HL))
    def g2_check():
        p("v_xor_b32 v14, %s, v106" % sE)
        for r in (107, 110, 111): p("v_bitop3_b32 v14, v%d, %s, v14 bitop3:0xbe" % (r, sE))
        regs = list(range(96, 106)) + [108, 109]
        p("v_xor_b32 v15, %s, v%d" % (sTAG, regs[0]))
        for r in regs[1:]: p("v_bitop3_b32 v15, v%d, %s, v15 bitop3:0xbe" % (r, sTAG))
        p("v_and_or_b32 v15, v15, %s, v14" % sFF)
        p("v_cmp_ne_u32 vcc, 0, v15")
        if cfg.get("nodep"): p("s_mov_b64 vcc, 0")
    g2_loads(96, "G2A")
    tl(100)
    tail_addresses_b()
    w2_mult()
    p.wait("G2A")
    stamp("g2_first")
    def rl2():
        if cfg.get("g2sleep", 0): p("s_sleep %d" % cfg["g2sleep"])
        g2_loads(96, None)
    retry_block(g2_check, rl2, "g2")
    stamp("g2_ok")
    if stamps: p("s_mov_b32 s3, %s" % sRETRY)
    p("v_and_b32 v104, 0xffffff00, v104"); p("v_and_b32 v108, 0xffffff00, v108")
    p("v_max_f32 v120, v104, v108")
    allred(p, [120], [121], "v_max_f32", [8, 16, 32])
    p("v_sub_f32 v104, v104, v120"); p("v_sub_f32 v108, v108, v120")
    p("v_mul_f32 v104, %s, v104" % sLOG2E); p("v_mul_f32 v108, %s, v108" % sLOG2E)
    p("v_exp_f32 v104, v104"); p("v_exp_f32 v108, v108")
    for r in range(4): p("v_mul_f32 v%d, v104, v%d" % (96+r, 96+r))
    p("v_mul_f32 v105, v104, v105")
    for r in range(4): p("v_fmac_f32 v%d, v108, v%d" % (96+r, 100+r))
    p("v_fmac_f32 v105, v108, v109")
    allred(p, [105], [121], "v_add_f32", [32, 16, 8])
    red4(p, [96, 97, 98, 99])
    p("v_mov_b32 v121, v105")
    p("ds_write_b32 v%d, v96 offset:%d" % (vCPW, L_CP))
    p("ds_write_b64 v%d, v[120:121] offset:%d" % (vCM, L_CM))
    p("s_waitcnt lgkmcnt(0)")
    p("s_barrier")
    p("ds_read_b128 v[100:103], v%d offset:%d" % (vZ, L_CM)); p("ds_read_b128 v[104:107], v%d offset:%d" % (vZ, L_CM+16))
    for w_ in range(4):
        p("ds_read_b128 %s, v%d offset:%d" % (vr(32+8*w_, 4), vCPR, L_CP + 128*w_)); p("ds_read_b128 %s, v%d offset:%d" % (vr(36+8*w_, 4), vCPR, L_CP + 128*w_ + 16))
    p("s_waitcnt lgkmcnt(8)")
    p("v_max3_f32 v120, v100, v102, v104"); p("v_max_f32 v120, v120, v106")
    for i in range(4): p("v_sub_f32 v%d, v%d, v120" % (100+2*i, 100+2*i))
    for i in range(4): p("v_mul_f32 v%d, %s, v%d" % (100+2*i, sLOG2E, 100+2*i))
    for i in range(4): p("v_exp_f32 v%d, v%d" % (100+2*i, 100+2*i))
    p("v_mul_f32 v121, v100, v101"); p("v_fmac_f32 v121, v102, v103"); p("v_fmac_f32 v121, v104, v105"); p("v_fmac_f32 v121, v106, v107")
    p("v_rcp_f32 v121, v121")
    for i in range(4): p("v_mul_f32 v%d, v%d, v121" % (100+2*i, 100+2*i))
    for i in range(4): p("v_mov_b32 v%d, v%d" % (101+2*i, 100+2*i))
    p("s_waitcnt lgkmcnt(6)")
    for r in range(0, 8, 2): p("v_pk_mul_f32 %s, v[100:101], %s" % (vr(32+r, 2), vr(32+r, 2)))
    p("s_waitcnt lgkmcnt(4)")
    for r in range(0, 8, 2): p("v_pk_fma_f32 %s, v[102:103], %s, %s" % (vr(32+r, 2), vr(40+r, 2), vr(32+r, 2)))
    p("s_waitcnt lgkmcnt(2)")
    for r in range(0, 8, 2): p("v_pk_fma_f32 %s, v[104:105], %s, %s" % (vr(32+r, 2), vr(48+r, 2), vr(32+r, 2)))
    p("s_waitcnt lgkmcnt(0)")
    for r in range(0, 8, 2): p("v_pk_fma_f32 %s, v[106:107], %s, %s" % (vr(32+r, 2), vr(56+r, 2), vr(32+r, 2)))
    for r in range(8): p("v_cvt_pk_bf16_f32 v%d, v%d, v%d" % (16+r, 32+r, 32+r))
    p.wait("O")
    diag_mult(16, 8, 32)
    pub_cols(sPS, "PUBS")
    stamp("s_pub")
    FIN = p.label("fin")
    p("s_cmp_ge_u32 s2, 32"); p("s_cbranch_scc1 %s" % FIN)
    p("s_lshl_b32 %s, s2, 14" % sA); p("s_lshl_b32 %s, %s, 12" % (sD, sW)); p("s_add_u32 %s, %s, %s" % (sA, sA, sD))
    p("s_add_u32 %s, %s, %d" % (sB, sA, S_BASE)); p("s_add_u32 %s, %s, %d" % (sA, sA, BB_BASE))
    p("v_lshrrev_b32 v12, 4, v1"); p("v_and_b32 v13, 1, v12"); p("v_lshlrev_b32 v13, 1, v13"); p("v_lshrrev_b32 v12, 1, v12"); p("v_or_b32 v12, v12, v13")
    p("v_and_b32 v14, 7, v1"); p("v_lshlrev_b32 v14, 2, v14"); p("v_add_u32 v14, v14, v12")
    p("v_lshlrev_b32 v179, 1, v14"); p("s_lshl_b32 %s, s2, 6" % sCc)
    p("v_lshlrev_b32 v13, 2, v14"); p("s_lshl_b32 %s, %s, 7" % (sD, sW)); p("v_add_u32 v12, %s, v13" % sD)
    def fl(sb):
        def f(R, nm):
            g = (lambda t: p.vmem(t, nm)) if nm else p
            for u in range(4):
                g("buffer_load_dwordx4 %s, v%d, %s, %s offen offset:%d%s" % (vr(R+4*u, 4), vL16, SWS, sb, 1024*u, HL))
        return f
    def fin_reduce(R, dst):
        for r in range(0, 4, 2):
            p("v_pk_add_f32 %s, %s, %s" % (vr(R+r, 2), vr(R+r, 2), vr(R+4+r, 2))); p("v_pk_add_f32 %s, %s, %s" % (vr(R+8+r, 2), vr(R+8+r, 2), vr(R+12+r, 2)))
        for r in range(0, 4, 2): p("v_pk_add_f32 %s, %s, %s" % (vr(R+r, 2), vr(R+r, 2), vr(R+8+r, 2)))
        red4(p, [R, R+1, R+2, R+3])
        p("ds_write_b32 v12, v%d offset:%d" % (R, dst))
        p("s_waitcnt lgkmcnt(0)")
        p("s_barrier")
        for w_ in range(4): p("ds_read_b32 v%d, v13 offset:%d" % (R+w_, dst + 128*w_))
        p("s_waitcnt lgkmcnt(0)")
        p("v_add_f32 v%d, v%d, v%d" % (R, R, R+1)); p("v_add_f32 v%d, v%d, v%d" % (R+2, R+2, R+3)); p("v_add_f32 v%d, v%d, v%d" % (R, R, R+2))
        p("v_cvt_pk_bf16_f32 v%d, v%d, v%d" % (R, R, R)); p("v_lshlrev_b32 v%d, 16, v%d" % (R, R))
    p.vmem("buffer_load_ushort v18, v179, %s, %s offen" % (SX, sCc), "XF")
    fl(sA)(128, "FB")
    p.wait("FB")
    retry_block(lambda: tagcheck(list(range(128, 144)), 15), lambda: fl(sA)(128, None), "fb")
    fl(sB)(144, "FS0")
    fin_reduce(128, L_FP)
    silu(128, 32, 40, 1)
    p("v_cvt_pk_bf16_f32 v32, v32, v32"); p("v_lshlrev_b32 v32, 16, v32")
    p("v_lshlrev_b32 v44, 16, v18")
    stamp("g_done")
    p.wait("FS0")
    retry_block(lambda: tagcheck(list(range(144, 160)), 15), lambda: fl(sB)(144, None), "fs")
    stamp("fs_ok")
    fin_reduce(144, L_FP + 512)
    p("v_mul_f32 v36, v144, v32")
    p("v_cvt_pk_bf16_f32 v36, v36, v36"); p("v_lshlrev_b32 v36, 16, v36")
    p("v_add_f32 v36, v36, v44")
    p("v_cvt_pk_bf16_f32 v40, v36, v36")
    SK5 = p.label("out")
    p("s_cmp_lg_u32 %s, 0" % sW); p("s_cbranch_scc1 %s" % SK5)
    p("s_mov_b32 exec_lo, 0x00ff00ff"); p("s_mov_b32 exec_hi, 0x00ff00ff")
    p.vmem("buffer_store_short v40, v179, %s, %s offen" % (SOUT, sCc), "OUT", cond=True)
    p("s_cmp_lg_u32 s2, 0"); p("s_cbranch_scc1 %s" % SK5)
    p("v_mov_b32 v12, %d" % EPOCH); p("v_mov_b32 v13, %s" % sE)
    p("s_mov_b32 exec_lo, 1"); p("s_mov_b32 exec_hi, 0")
    p.vmem("buffer_store_dword v13, v12, %s, 0 offen%s" % (SWS, HS), "EPO", cond=True)
    p("%s:" % SK5)
    p("s_mov_b64 exec, -1")
    p("%s:" % FIN)
    if stamps:
        stamp("end")
        p("s_getreg_b32 %s, hwreg(HW_REG_XCC_ID)" % sA)
        p("s_waitcnt lgkmcnt(0)")
        for k in range(16):
            p("v_mov_b32 v%d, %s" % (32+k, ("s%d" % (78+2*k)) if k < nst[0] else "0"))
        p("v_mov_b32 v48, %s" % sA); p("v_mov_b32 v49, s3"); p("s_getreg_b32 %s, hwreg(HW_REG_HW_ID)" % sD); p("v_mov_b32 v50, %s" % sD); p("v_mov_b32 v51, 0")
        p("s_lshl_b32 %s, s2, 2" % sB); p("s_add_u32 %s, %s, %s" % (sB, sB, sW)); p("s_lshl_b32 %s, %s, 7" % (sB, sB)); p("s_add_u32 %s, %s, %d" % (sB, sB, STAMP))
        p("v_mov_b32 v12, 0")
        p("s_mov_b32 exec_lo, 1"); p("s_mov_b32 exec_hi, 0")
        if not cfg.get("dbg"):
            for i in range(4): p("buffer_store_dwordx4 %s, v12, %s, %s offen offset:%d" % (vr(32+4*i, 4), SWS, sB, 16*i))
            p("buffer_store_dwordx4 v[48:51], v12, %s, %s offen offset:64" % (SWS, sB))
        p("s_mov_b64 exec, -1")
    if stamps and cfg.get("dbg"):
        NODBG = p.label("nodbg")
        p("s_cmp_ge_u32 s2, 32"); p("s_cbranch_scc1 %s" % NODBG)
        p("s_cmp_lg_u32 %s, 0" % sW); p("s_cbranch_scc1 %s" % NODBG)
        p("v_mov_b32 v60, 0")
        for k in range(min(8, nst[0])):
            p("v_cmp_eq_u32 vcc, %d, v1" % k); p("v_mov_b32 v61, s%d" % (78+2*k)); p("v_cndmask_b32 v60, v60, v61, vcc")
            p("v_cmp_eq_u32 vcc, %d, v1" % (8+k)); p("v_not_b32 v61, v61"); p("v_cndmask_b32 v60, v60, v61, vcc")
        p("v_lshlrev_b32 v62, 2, v1")
        p("s_mov_b32 exec_lo, 0xffff"); p("s_mov_b32 exec_hi, 0")
        p("buffer_atomic_umax v60, v62, %s, 0 offen" % SDBG)
        p("s_mov_b64 exec, -1")
        p("%s:" % NODBG)
    p("%s:" % END)
    p("s_endpgm")
    return p, names

HEADER = """; Fused decode step: layernorm -> {GQA attention over a 64K cache -> wo} * silu(SwiGLU FFN) + x.
; @launch grid=(256,1,1) block=(256,1,1) lds=%d
"""
def wrap(body, name=NAME, lds=LDS_BYTES, header=True):
    s = (HEADER % lds) if header else ""
    if header: s += '.amdgcn_target "amdgcn-amd-amdhsa--gfx950"\n'
    s += ".text\n.globl %s\n.p2align 8\n.type %s,@function\n%s:\n" % (name, name, name)
    s += body
    s += '.section .rodata,"a"\n.p2align 6\n.amdhsa_kernel %s\n' % name
    s += "  .amdhsa_next_free_vgpr 512\n  .amdhsa_next_free_sgpr 102\n  .amdhsa_accum_offset 256\n"
    s += "  .amdhsa_group_segment_fixed_size 0\n  .amdhsa_kernarg_size 96\n  .amdhsa_user_sgpr_count 2\n"
    s += "  .amdhsa_user_sgpr_kernarg_segment_ptr 1\n  .amdhsa_system_sgpr_workgroup_id_x 1\n"
    s += "  .amdhsa_float_denorm_mode_32 3\n"
    s += ".end_amdhsa_kernel\n"
    return s

if __name__ == "__main__":
    cfg = json.loads(sys.argv[2]) if len(sys.argv) > 2 else {}
    p, names = build(cfg)
    open(sys.argv[1], "w").write(wrap(p.text()))
    print("wrote", sys.argv[1], "stamps:", names)
```

```python
import sys, json
from sched import Prog

NAME = "recurrent_scan__gqa_block_cached__glu_gated_swiglu__decode_kernel"

EPOCH   = 0
Q_BASE  = 0x1000
FLAG_BASE = 0x14000
CNT_BASE = 0x1C000
BP_BASE = 0x20000
O_BASE  = 0x80000
O_PITCH = 4224
S_BASE  = 0x200000
BB_BASE = 0x280000
STAMP   = 0x400000
L_XN = 0
L_QP = 4096
L_BP = 6144
L_QL = 10240
L_HL = 12544
L_MX = 12800
L_LW = 13056
L_CP = 13312
L_FP = 13824
L_CM = 14848
L_OP = 16384
LDS_BYTES = 32768

SX, SK, SV, SWQ, SWO, SW1, SW3, SW2, SOUT, SDBG, SWS = [ "s[%d:%d]" % (4*i+4, 4*i+7) for i in range(11)]
sW, sG, sC, sT0, sKV = "s48", "s49", "s50", "s51", "s52"
sSELLO, sSELHI, sE, sTAG, sFF, sLOG2E, sSCALE, sHI = "s53", "s54", "s55", "s56", "s57", "s58", "s59", "s60"
sRETRY = "s61"
sA, sB, sCc, sD = "s62", "s63", "s64", "s65"
sRB, sCH = "s66", "s67"
sKC = "s68"
sCB1, sCB3, sW3B = "s69", "s70", "s71"
sVC, sROT = "s72", "s73"
sPOOL, sX = "s74", "s75"
vTID, vLANE, vOFFK, vL16 = 0, 1, 2, 3
vMASK = 4
vTAG, vMAX, vL0, vL1 = 8, 9, 10, 11
vT = 12
QF, SP, PERM, ACC, RING = 16, 32, 64, 96, 128

def vr(b, n=1): return "v%d" % b if n == 1 else "v[%d:%d]" % (b, b+n-1)
def ar(b, n=1): return "a%d" % b if n == 1 else "a[%d:%d]" % (b, b+n-1)

DPP = " row_mask:0xf bank_mask:0xf"
def allred(p, regs, tmps, op, steps):
    for s in steps:
        if s in (1, 2, 4, 8):
            for r in regs: p("%s_dpp v%d, v%d, v%d row_ror:%d%s" % (op, r, r, r, s, DPP))
        else:
            for r, t in zip(regs, tmps): p("v_mov_b32 v%d, v%d" % (t, r))
            for r, t in zip(regs, tmps): p("v_permlane%d_swap_b32 v%d, v%d" % (s, r, t))
            for r, t in zip(regs, tmps): p("%s v%d, v%d, v%d" % (op, r, r, t))

def red4(p, a):
    p("v_permlane32_swap_b32 v%d, v%d" % (a[0], a[1])); p("v_permlane32_swap_b32 v%d, v%d" % (a[2], a[3]))
    p("v_add_f32 v%d, v%d, v%d" % (a[0], a[0], a[1])); p("v_add_f32 v%d, v%d, v%d" % (a[2], a[2], a[3]))
    p("v_permlane16_swap_b32 v%d, v%d" % (a[0], a[2]))
    p("v_add_f32 v%d, v%d, v%d" % (a[0], a[0], a[2]))
    p("v_add_f32_dpp v%d, v%d, v%d row_ror:8%s" % (a[0], a[0], a[0], DPP))

def build(cfg):
    pat = cfg.get("pat", "lin")
    nt = " nt" if cfg.get("nt", True) else ""
    ntw = " nt" if cfg.get("ntw", True) else ""
    stamps = cfg.get("stamps", False)
    poll_after = cfg.get("poll_after", 6)
    HS = cfg.get("hs", " sc1")
    HL = cfg.get("hl", " sc1")
    RETRIES = cfg.get("retries", 40000)
    R_ = cfg.get("R", 1)
    stride = {"lin": 1024, "str8": 8192, "w4": 4096 * R_, "glob": 262144}[pat]
    rot = cfg.get("rot", 0)
    dyn = cfg.get("dyn", False)
    NS = 7 if dyn else 8
    if dyn: assert pat == "w4" and R_ == 1 and not rot
    p = Prog()
    nst = [0]
    names = []
    def stamp(name):
        if not stamps or name in cfg.get("nostamp", []): return
        k = nst[0]; nst[0] += 1; names.append(name)
        assert k < 11
        p("s_memrealtime s[%d:%d]" % (78+2*k, 79+2*k))

    depth = cfg.get("depth", 0); dstep = cfg.get("dstep", 2); depth0 = cfg.get("depth0", depth)
    cnt = [0]
    def svmem(text, name, early=False):
        d = depth0 if early else depth
        if d and cnt[0] % dstep == 0: p("s_waitcnt vmcnt(%d)" % (d - dstep))
        cnt[0] += 1
        p.vmem(text, name)
    END = p.label("end")
    p("s_cmp_ge_u32 s2, 256")
    p("s_cbranch_scc1 %s" % END)
    stamp("start")
    if cfg.get("pf", 0):
        NPF = p.label("nopf")
        p("s_cmp_ge_u32 s2, %d" % cfg["pf"]); p("s_cbranch_scc1 %s" % NPF)
        p("v_cmp_gt_u32 vcc, 64, v0"); p("s_cbranch_vccz %s" % NPF)
        PFB = p.label("pfbase")
        p("s_getpc_b64 s[48:49]")
        p("%s:" % PFB)
        p("v_lshlrev_b32 v12, 7, v0")
        for i in range(cfg.get("pfn", 3)):
            p("v_min_u32 v13, %s-%s-4, v12" % (END, PFB))
            p.vmem("global_load_dword v%d, v13, s[48:49]" % (236+i), "PF", cond=True)
            p("v_add_u32 v12, 0x2000, v12")
        p("%s:" % NPF)
    for i, off in enumerate([0, 8, 16, 24, 32, 48, 56, 64, 72, 80, 88]):
        p("s_load_dwordx2 s[%d:%d], s[0:1], %d" % (4*i+4, 4*i+5, off))
    sizes = [2048, 1<<26, 1<<26, 1<<23, 1<<23, 1024*3584*2, 1024*3584*2, 1024*3584*2, 2048, 256, 1<<28]
    for i, sz in enumerate(sizes):
        p("s_mov_b32 s%d, 0x%x" % (4*i+6, sz)); p("s_mov_b32 s%d, 0x20000" % (4*i+7))
    p("s_cmp_lt_u32 s2, 224")
    p("s_cselect_b32 s26, s26, 0")
    p("s_cselect_b32 s30, s30, 0")
    p("v_lshrrev_b32 v12, 6, v0")
    p("v_and_b32 v1, 63, v0")
    p("v_readfirstlane_b32 %s, v12" % sW)
    p("s_lshr_b32 %s, s2, 6" % sG)
    p("s_and_b32 %s, s2, 63" % sC)
    p("s_mov_b32 %s, 0x05040100" % sSELLO); p("s_mov_b32 %s, 0x07060302" % sSELHI)
    p("s_mov_b32 %s, 0xff" % sFF); p("s_mov_b32 %s, 0x3fb8aa3b" % sLOG2E)
    p("s_mov_b32 %s, 0x3db504f3" % sSCALE); p("s_mov_b32 %s, 0xffff0000" % sHI)
    p("s_lshr_b32 %s, s2, 1" % sRB); p("s_and_b32 %s, s2, 1" % sCH)
    p("v_lshlrev_b32 v3, 4, v1")
    p("v_lshlrev_b32 v13, 5, v1")
    p("s_lshl_b32 %s, %s, 9" % (sA, sW))
    p("v_lshlrev_b32 v14, 3, v1")
    p("v_lshrrev_b32 v15, 3, v1"); p("v_lshlrev_b32 v15, 13, v15")
    p("v_and_b32 v16, 7, v1"); p("v_lshlrev_b32 v16, 4, v16"); p("v_add_u32 v15, v15, v16")
    p("v_lshrrev_b32 v17, 4, v1"); p("v_mul_u32_u24 v17, 7168, v17")
    p("v_and_b32 v18, 15, v1"); p("v_lshlrev_b32 v18, 4, v18"); p("v_add_u32 v17, v17, v18")
    p("s_and_b32 %s, %s, 3" % (sB, sC)); p("s_lshl_b32 %s, %s, 21" % (sB, sB))
    p("s_lshl_b32 %s, %s, 19" % (sCc, sW)); p("s_add_u32 %s, %s, %s" % (sB, sB, sCc))
    p("s_lshl_b32 %s, %s, 11" % (sCc, sG)); p("s_add_u32 %s, %s, %s" % (sB, sB, sCc))
    p("s_lshr_b32 %s, %s, 2" % (sCc, sC)); p("s_lshl_b32 %s, %s, 7" % (sCc, sCc)); p("s_add_u32 %s, %s, %s" % (sB, sB, sCc))
    p("s_and_b32 %s, s2, 7" % sCc); p("s_lshl_b32 %s, %s, 7" % (sCc, sCc))
    p("s_lshl_b32 %s, %s, 5" % (sD, sW)); p("s_add_u32 %s, %s, %s" % (sCc, sCc, sD)); p("s_mul_i32 %s, %s, 7168" % (sCc, sCc))
    r1, r3 = cfg.get("r1", 1), cfg.get("r3", 2)
    for dst, rr in ((sCB1, r1), (sCB3, r3)):
        p("s_lshr_b32 %s, s2, 3" % dst); p("s_add_u32 %s, %s, %d" % (dst, dst, rr))
        p("s_sub_u32 %s, %s, 28" % (sD, dst)); p("s_cselect_b32 %s, %s, %s" % (dst, dst, sD))
    p("s_lshl_b32 %s, %s, 8" % (sD, sCB3)); p("s_add_u32 %s, %s, %s" % (sW3B, sCc, sD))
    p("s_lshl_b32 %s, %s, 8" % (sD, sCB1)); p("s_add_u32 %s, %s, %s" % (sCc, sCc, sD))
    p("s_waitcnt lgkmcnt(0)")
    stamp("karg")
    p("s_load_dword %s, s[44:45], %d" % (sE, EPOCH))
    ntx = " nt" if cfg.get("ntx", False) else ""
    p.vmem("buffer_load_dwordx4 v[224:227], v13, %s, 0 offen%s" % (SX, ntx), "XA0")
    p.vmem("buffer_load_dwordx4 v[228:231], v13, %s, 0 offen offset:16%s" % (SX, ntx), "XA1")
    p.vmem("buffer_load_dwordx2 v[232:233], v14, %s, %s offen%s" % (SX, sA, ntx), "XB")
    if cfg.get("pbar", 1) >= 1: p("s_barrier")
    for t in range(8):
        p("s_add_u32 %s, %s, %d" % (sT0, sB, t*8*8192))
        svmem("buffer_load_dwordx4 %s, v15, %s, %s offen%s" % (vr(128+4*t, 4), SWQ, sT0, ntw), "Q%d" % t, True)
    if cfg.get("pbar", 1) >= 2: p("s_barrier")
    for t in range(8):
        p("s_add_u32 %s, %s, %d" % (sT0, sCc, t*4*7168))
        svmem("buffer_load_dwordx4 %s, v17, %s, %s offen%s" % (vr(160+4*t, 4), SW1, sT0, ntw), "W1_%d" % t, True)
    stamp("w1_issued")
    if pat == "lin":
        p("s_lshl_b32 %s, s2, 18" % sKV); p("s_lshl_b32 %s, %s, 16" % (sD, sW)); p("s_add_u32 %s, %s, %s" % (sKV, sKV, sD))
    elif pat == "str8":
        p("s_lshl_b32 %s, %s, 24" % (sKV, sG))
        p("s_lshr_b32 %s, %s, 3" % (sD, sC)); p("s_lshl_b32 %s, %s, 21" % (sD, sD)); p("s_add_u32 %s, %s, %s" % (sKV, sKV, sD))
        p("s_lshl_b32 %s, %s, 19" % (sD, sW)); p("s_add_u32 %s, %s, %s" % (sKV, sKV, sD))
        p("s_and_b32 %s, %s, 7" % (sD, sC)); p("s_lshl_b32 %s, %s, 10" % (sD, sD)); p("s_add_u32 %s, %s, %s" % (sKV, sKV, sD))
    elif pat == "w4" and dyn:
        p("s_lshl_b32 %s, %s, 24" % (sKV, sG)); p("s_lshl_b32 %s, %s, 10" % (sD, sW)); p("s_add_u32 %s, %s, %s" % (sKV, sKV, sD))
        p("s_add_u32 %s, %s, %d" % (sPOOL, sKV, 64*NS*32768))
        p("s_mul_i32 %s, %s, %d" % (sD, sC, NS*32768)); p("s_add_u32 %s, %s, %s" % (sKV, sKV, sD))
    elif pat == "w4":
        lg = R_.bit_length() - 1
        p("s_lshl_b32 %s, %s, 24" % (sKV, sG))
        p("s_lshr_b32 %s, %s, %d" % (sD, sC, lg)); p("s_lshl_b32 %s, %s, %d" % (sD, sD, 18 + lg)); p("s_add_u32 %s, %s, %s" % (sKV, sKV, sD))
        p("s_and_b32 %s, %s, %d" % (sD, sC, R_ - 1)); p("s_lshl_b32 %s, %s, 12" % (sD, sD)); p("s_add_u32 %s, %s, %s" % (sKV, sKV, sD))
        p("s_lshl_b32 %s, %s, 10" % (sD, sW)); p("s_add_u32 %s, %s, %s" % (sKV, sKV, sD))
    elif pat == "glob":
        p("s_lshl_b32 %s, %s, 24" % (sKV, sG))
        p("s_lshl_b32 %s, %s, 12" % (sD, sC)); p("s_add_u32 %s, %s, %s" % (sKV, sKV, sD))
        p("s_lshl_b32 %s, %s, 10" % (sD, sW)); p("s_add_u32 %s, %s, %s" % (sKV, sKV, sD))
    if rot == 1: p("s_and_b32 %s, %s, 7" % (sROT, sC))
    if rot == 2: p("s_lshr_b32 %s, %s, 3" % (sROT, sC))
    if rot == 3: p("s_lshr_b32 %s, %s, 3" % (sROT, sC)); p("s_add_u32 %s, %s, %s" % (sROT, sROT, sC))
    p("v_and_b32 v12, 3, v1"); p("v_lshlrev_b32 v12, %d, v12" % (stride.bit_length()-1))
    p("v_bfe_u32 v2, v1, 2, 1"); p("v_lshlrev_b32 v2, 8, v2"); p("v_add_u32 v2, v2, v12")
    p("v_bfe_u32 v12, v1, 3, 1"); p("v_lshlrev_b32 v12, 6, v12"); p("v_add_u32 v2, v2, v12")
    p("v_lshrrev_b32 v12, 4, v1"); p("v_lshlrev_b32 v12, 4, v12"); p("v_add_u32 v2, v2, v12")
    p("v_and_b32 v12, 1, v1"); p("v_lshlrev_b32 v12, 4, v12"); p("v_mov_b32 v13, 0xffff"); p("v_lshlrev_b32 v13, v12, v13")
    p("v_bfe_u32 v12, v1, 1, 2")
    for jj in range(4):
        p("v_cmp_eq_u32 vcc, %d, v12" % jj); p("v_cndmask_b32 v%d, 0, v13, vcc" % (vMASK+jj))
    def grp_base(dst, t, dynbase=False):
        if dynbase:
            p("s_mov_b32 %s, %s" % (dst, sX))
        elif not rot:
            p("s_add_u32 %s, %s, %d" % (dst, sKV, 8*t*stride))
        else:
            p("s_add_u32 %s, %s, %d" % (dst, sROT, t)); p("s_and_b32 %s, %s, 7" % (dst, dst))
            p("s_mul_i32 %s, %s, %d" % (dst, dst, 8*stride)); p("s_add_u32 %s, %s, %s" % (dst, dst, sKV))
    def K_loads(t, slot=None):
        L = []
        db = slot is not None
        sl = slot if db else t
        for h in range(2):
            for a_ in range(2):
                for lam in range(2):
                    def f(h=h, a_=a_, lam=lam):
                        if a_ == 0 and lam == 0:
                            if h == 0: grp_base(sKC, t, db)
                            else: p("s_add_u32 %s, %s, %d" % (sKC, sKC, 4*stride))
                        svmem("buffer_load_dwordx4 %s, v%d, %s, %s offen offset:%d%s" % (ar(32*sl+16*h+8*a_+4*lam, 4), vOFFK, SK, sKC, 512*a_+128*lam, nt), "K%d" % t)
                    L.append(f)
        return L
    def V_loads(t, db=False):
        base = RING + 32*(t % 4)
        L = []
        for i in range(8):
            def f(i=i):
                if i == 0: grp_base(sVC, t, db)
                else: p("s_add_u32 %s, %s, %d" % (sVC, sVC, stride))
                svmem("buffer_load_dwordx4 %s, v%d, %s, %s offen%s" % (vr(base+4*i, 4), vL16, SV, sVC, nt), "V%d" % t)
            L.append(f)
        return L
    def loadK(t):
        for f in K_loads(t): f()
    def loadV(t):
        for f in V_loads(t): f()
    def tagcheck(regs, acc):
        p("v_xor_b32 v%d, %s, v%d" % (acc, sTAG, regs[0]))
        for r in regs[1:]: p("v_bitop3_b32 v%d, v%d, %s, v%d bitop3:0xbe" % (acc, r, sTAG, acc))
        p("v_and_b32 v%d, 0xff, v%d" % (acc, acc))
        p("v_cmp_ne_u32 vcc, 0, v%d" % acc)
        if cfg.get("nodep"): p("s_mov_b64 vcc, 0")
    p.wait("XA1")
    stamp("x_landed")
    for i in range(8):
        p("v_lshlrev_b32 v%d, 16, v%d" % (32+2*i, 224+i)); p("v_and_b32 v%d, 0xffff0000, v%d" % (33+2*i, 224+i))
    for i in range(8): p("v_add_f32 v%d, v%d, v%d" % (48+i, 32+2*i, 33+2*i))
    p("v_add_f32 v48, v48, v49"); p("v_add_f32 v50, v50, v51"); p("v_add_f32 v52, v52, v53"); p("v_add_f32 v54, v54, v55")
    p("v_add_f32 v48, v48, v50"); p("v_add_f32 v52, v52, v54"); p("v_add_f32 v48, v48, v52")
    allred(p, [48], [49], "v_add_f32", [8, 4, 2, 1, 16, 32])
    p("v_mul_f32 v49, 0x3a800000, v48")
    for i in range(16): p("v_sub_f32 v%d, v%d, v49" % (32+i, 32+i))
    for i in range(4): p("v_mul_f32 v%d, v%d, v%d" % (50+i, 32+i, 32+i))
    for i in range(4, 16): p("v_fmac_f32 v%d, v%d, v%d" % (50+(i % 4), 32+i, 32+i))
    p("v_add_f32 v50, v50, v51"); p("v_add_f32 v52, v52, v53"); p("v_add_f32 v50, v50, v52")
    allred(p, [50], [51], "v_add_f32", [8, 4, 2, 1, 16, 32])
    p("v_mul_f32 v50, 0x3a800000, v50")
    p("v_cvt_pk_bf16_f32 v51, v49, v50")
    p("v_lshlrev_b32 v52, 16, v51")
    p("v_and_b32 v53, 0xffff0000, v51")
    p("v_add_f32 v53, 0x3727c5ac, v53")
    p("v_cvt_pk_bf16_f32 v53, v53, v53"); p("v_lshlrev_b32 v53, 16, v53")
    p("v_sqrt_f32 v53, v53")
    p("v_cvt_pk_bf16_f32 v53, v53, v53"); p("v_lshlrev_b32 v53, 16, v53")
    p("v_rcp_f32 v54, v53")
    p.wait("XB")
    p("v_lshlrev_b32 v32, 16, v232"); p("v_and_b32 v33, 0xffff0000, v232")
    p("v_lshlrev_b32 v34, 16, v233"); p("v_and_b32 v35, 0xffff0000, v233")
    for i in range(4): p("v_sub_f32 v%d, v%d, v52" % (32+i, 32+i))
    p("v_cvt_pk_bf16_f32 v36, v32, v33"); p("v_cvt_pk_bf16_f32 v37, v34, v35")
    p("v_lshlrev_b32 v32, 16, v36"); p("v_and_b32 v33, 0xffff0000, v36")
    p("v_lshlrev_b32 v34, 16, v37"); p("v_and_b32 v35, 0xffff0000, v37")
    for i in range(4): p("v_mul_f32 v%d, v%d, v54" % (40+i, 32+i))
    for i in range(4): p("v_fma_f32 v%d, -v%d, v53, v%d" % (44+i, 40+i, 32+i))
    for i in range(4): p("v_fma_f32 v%d, v%d, v54, v%d" % (40+i, 44+i, 40+i))
    for i in range(4): p("v_cvt_pk_bf16_f32 v%d, v%d, v%d" % (36+i, 40+i, 40+i))
    p("v_lshlrev_b32 v12, 4, v0")
    p("ds_write_b128 v12, v[36:39] offset:%d" % L_XN)
    p("s_waitcnt lgkmcnt(0)")
    p("s_barrier")
    stamp("ln_done")
    p("s_add_u32 %s, %s, 1" % (sE, sE)); p("s_and_b32 %s, %s, 0xff" % (sTAG, sE)); p("v_mov_b32 v%d, %s" % (vTAG, sTAG))
    p("s_and_b32 %s, %s, 3" % (sA, sC)); p("s_lshl_b32 %s, %s, 8" % (sA, sA)); p("s_lshl_b32 %s, %s, 6" % (sD, sW)); p("s_add_u32 %s, %s, %s" % (sA, sA, sD))
    p("v_lshrrev_b32 v12, 3, v1"); p("v_add_u32 v12, %s, v12" % sA); p("v_lshlrev_b32 v12, 2, v12")
    p("s_and_b32 %s, s2, 7" % sA); p("s_lshl_b32 %s, %s, 7" % (sA, sA)); p("s_lshl_b32 %s, %s, 5" % (sD, sW)); p("s_add_u32 %s, %s, %s" % (sA, sA, sD))
    p("v_lshrrev_b32 v13, 4, v1"); p("v_add_u32 v13, %s, v13" % sA); p("v_lshlrev_b32 v13, 2, v13")
    for t in range(0, 8, 2):
        p("ds_read2_b32 v[%d:%d], v12 offset0:%d offset1:%d" % (96+t, 97+t, 8*t, 8*t+8))
    for t in range(0, 8, 2):
        p("ds_read2_b32 v[%d:%d], v13 offset0:%d offset1:%d" % (104+t, 105+t, 4*t, 4*t+4))
    for t in range(8):
        p("s_add_u32 %s, %s, %d" % (sT0, sW3B, t*4*7168))
        svmem("buffer_load_dwordx4 %s, v17, %s, %s offen%s" % (vr(192+4*t, 4), SW3, sT0, ntw), "W3_%d" % t, True)
    p("s_waitcnt lgkmcnt(0)")
    for t in range(8):
        A = 48 + 4*(t % 2)
        for jj in range(4): p("v_and_b32 v%d, v%d, v%d" % (A+jj, 96+t, vMASK+jj))
        if t == 0: p.wait("Q7")
        p("v_mfma_f32_16x16x32_bf16 v[56:59], %s, %s, %s" % (vr(A, 4), vr(128+4*t, 4), "0" if t == 0 else "v[56:59]"))
    for t in range(8):
        for jj in range(4): p("v_and_b32 v%d, v%d, v%d" % (PERM+4*t+jj, 104+t, vMASK+jj))
    p("v_and_b32 v12, 7, v1"); p("v_lshlrev_b32 v12, 5, v12")
    p("v_bfe_u32 v13, v1, 4, 1"); p("v_lshlrev_b32 v13, 4, v13"); p("v_add_u32 v12, v12, v13")
    p("v_lshrrev_b32 v13, 5, v1"); p("v_lshlrev_b32 v13, 8, v13"); p("v_add_u32 v12, v12, v13")
    p("s_lshl_b32 %s, %s, 9" % (sA, sW)); p("v_add_u32 v12, %s, v12" % sA)
    p("s_mov_b32 exec_lo, 0x00ff00ff"); p("s_mov_b32 exec_hi, 0xff00ff00")
    p("ds_write_b128 v12, v[56:59] offset:%d" % L_QP)
    p("s_mov_b64 exec, -1")
    p("s_waitcnt lgkmcnt(0)")
    p("s_barrier")
    stamp("q_gemv")
    SKIP0 = p.label("pubq")
    p("s_cmp_lg_u32 %s, 0" % sW); p("s_cbranch_scc1 %s" % SKIP0)
    p("v_lshlrev_b32 v12, 4, v1")
    for i in range(8): p("ds_read_b128 %s, v12 offset:%d" % (vr(32+4*i, 4) if i < 4 else vr(112+4*(i-4), 4), L_QP + 256*i))
    p("s_lshl_b32 %s, %s, 2" % (sB, sG)); p("s_and_b32 %s, %s, 3" % (sD, sC)); p("s_add_u32 %s, %s, %s" % (sB, sB, sD)); p("s_lshl_b32 %s, %s, 12" % (sB, sB))
    p("s_lshr_b32 %s, %s, 2" % (sD, sC)); p("s_lshl_b32 %s, %s, 8" % (sD, sD)); p("s_add_u32 %s, %s, %s" % (sB, sB, sD))
    p("s_add_u32 %s, %s, %d" % (sB, sB, Q_BASE))
    p("s_waitcnt lgkmcnt(0)")
    for r in range(4):
        p("v_add_f32 v%d, v%d, v%d" % (32+r, 32+r, 36+r)); p("v_add_f32 v%d, v%d, v%d" % (40+r, 40+r, 44+r))
        p("v_add_f32 v%d, v%d, v%d" % (112+r, 112+r, 116+r)); p("v_add_f32 v%d, v%d, v%d" % (120+r, 120+r, 124+r))
    for r in range(4):
        p("v_add_f32 v%d, v%d, v%d" % (32+r, 32+r, 40+r)); p("v_add_f32 v%d, v%d, v%d" % (112+r, 112+r, 120+r))
    for r in range(4): p("v_add_f32 v%d, v%d, v%d" % (32+r, 32+r, 112+r))
    if dyn:
        NOZ = p.label("nozero")
        p("s_cmp_lg_u32 %s, 0" % sC); p("s_cbranch_scc1 %s" % NOZ)
        for r in range(4): p("v_mov_b32 v%d, 0" % (36+r))
        p("s_lshl_b32 %s, %s, 9" % (sD, sG)); p("s_add_u32 %s, %s, %d" % (sD, sD, CNT_BASE))
        p("s_mov_b32 exec_hi, 0")
        p.vmem("buffer_store_dwordx4 v[36:39], v12, %s, %s offen%s" % (SWS, sD, HS), "ZCNT", cond=True)
        p("s_mov_b64 exec, -1")
        p("%s:" % NOZ)
    p("s_mov_b32 exec_lo, 0xffff"); p("s_mov_b32 exec_hi, 0")
    p.vmem("buffer_store_dwordx4 v[32:35], v12, %s, %s offen%s" % (SWS, sB, HS), "PUBQ", cond=True)
    p("s_mov_b64 exec, -1")
    p("%s:" % SKIP0)
    loadK(0)
    p.wait("W1_7")
    stamp("w1_landed")
    for t in range(8):
        p("v_mfma_f32_16x16x32_bf16 v[60:63], %s, %s, %s" % (vr(PERM+4*t, 4), vr(160+4*t, 4), "0" if t == 0 else "v[60:63]"))
    loadK(1)
    p.wait("W3_7")
    stamp("w3_landed")
    for t in range(8):
        p("v_mfma_f32_16x16x32_bf16 v[96:99], %s, %s, %s" % (vr(PERM+4*t, 4), vr(192+4*t, 4), "0" if t == 0 else "v[96:99]"))
    SKIP2 = p.label("flag")
    p("s_cmp_lg_u32 %s, 0" % sW); p("s_cbranch_scc1 %s" % SKIP2)
    p("v_lshlrev_b32 v12, 2, v1"); p("v_mov_b32 v13, %s" % sE)
    p("s_lshl_b32 %s, s2, 7" % sA); p("s_add_u32 %s, %s, %d" % (sA, sA, FLAG_BASE))
    p.wait("PUBQ")
    p("s_mov_b32 exec_hi, 0")
    p.vmem("buffer_store_dword v13, v12, %s, %s offen%s" % (SWS, sA, HS), "FLAG", cond=True)
    p("s_mov_b64 exec, -1")
    p("%s:" % SKIP2)
    stamp("flag")
    p("v_and_b32 v12, 15, v1"); p("v_lshlrev_b32 v12, 5, v12")
    p("v_bfe_u32 v13, v1, 4, 1"); p("v_lshlrev_b32 v13, 4, v13"); p("v_add_u32 v12, v12, v13")
    p("s_lshl_b32 %s, %s, 10" % (sA, sW)); p("v_add_u32 v12, %s, v12" % sA)
    p("s_mov_b32 exec_hi, 0")
    p("ds_write_b128 v12, v[60:63] offset:%d" % L_BP)
    p("ds_write_b128 v12, v[96:99] offset:%d" % (L_BP+512))
    p("s_mov_b64 exec, -1")
    loadK(2)
    p("s_waitcnt lgkmcnt(0)")
    p("s_barrier")
    stamp("b_gemv")
    SKIP1 = p.label("pub1")
    p("s_cmp_lg_u32 %s, 1" % sW); p("s_cbranch_scc1 %s" % SKIP1)
    p("s_cmp_ge_u32 s2, 224"); p("s_cbranch_scc1 %s" % SKIP1)
    p("v_lshlrev_b32 v12, 4, v1")
    for i in range(4): p("ds_read_b128 %s, v12 offset:%d" % (vr(32+4*i, 4), L_BP + 1024*i))
    p("s_and_b32 %s, s2, 7" % sA); p("s_mul_i32 %s, %s, %d" % (sA, sA, 3584*4)); p("s_add_u32 %s, %s, %d" % (sA, sA, BP_BASE))
    p("s_lshl_b32 %s, %s, 9" % (sD, sCB1)); p("s_lshl_b32 %s, %s, 9" % (sB, sCB3)); p("s_add_u32 %s, %s, %d" % (sB, sB, 8*3584*4))
    p("v_mov_b32 v13, %s" % sD); p("v_mov_b32 v14, %s" % sB); p("v_cmp_gt_u32 vcc, 32, v1"); p("v_cndmask_b32 v13, v14, v13, vcc")
    p("v_and_b32 v14, 31, v1"); p("v_lshlrev_b32 v14, 4, v14"); p("v_add_u32 v13, v13, v14")
    p("s_waitcnt lgkmcnt(0)")
    for r in range(4):
        p("v_add_f32 v%d, v%d, v%d" % (32+r, 32+r, 36+r)); p("v_add_f32 v%d, v%d, v%d" % (40+r, 40+r, 44+r))
    for r in range(4): p("v_add_f32 v%d, v%d, v%d" % (32+r, 32+r, 40+r))
    for r in range(4): p("v_bfi_b32 v%d, %s, v%d, v%d" % (32+r, sFF, vTAG, 32+r))
    p.vmem("buffer_store_dwordx4 v[32:35], v13, %s, %s offen%s" % (SWS, sA, HS), "PUBB", cond=True)
    p("%s:" % SKIP1)
    for t in range(3, poll_after): loadK(t)
    SKIPP = p.label("nopoll")
    p("v_lshlrev_b32 v14, 7, v1")
    p("s_lshl_b32 %s, %s, 13" % (sB, sG)); p("s_add_u32 %s, %s, %d" % (sB, sB, FLAG_BASE))
    p("s_cmp_lg_u32 %s, 0" % sW); p("s_cbranch_scc1 %s" % SKIPP)
    p.vmem("buffer_load_dword v15, v14, %s, %s offen%s" % (SWS, sB, HL), "POLL", cond=True)
    p("%s:" % SKIPP)
    pend = []
    for t in range(poll_after, NS): pend += K_loads(t)
    for t in range(4): pend += V_loads(t)
    def tr(n):
        for _ in range(min(n, len(pend))): pend.pop(0)()
    tr(cfg.get("n_after_poll", 16))
    OKP = p.label("okpoll")
    p("s_cmp_lg_u32 %s, 0" % sW); p("s_cbranch_scc1 %s" % OKP)
    p.wait("POLL")
    p("s_mov_b32 %s, %d" % (sRETRY, RETRIES))
    RP = p.label("rpoll")
    p("%s:" % RP)
    p("v_cmp_ne_u32 vcc, %s, v15" % sE)
    if cfg.get("nodep"): p("s_branch %s" % OKP)
    p("s_cbranch_vccz %s" % OKP)
    p("s_sub_u32 %s, %s, 1" % (sRETRY, sRETRY)); p("s_cbranch_scc1 %s" % OKP)
    p("s_sleep %d" % cfg.get("sleep", 8))
    p("buffer_load_dword v15, v14, %s, %s offen%s" % (SWS, sB, HL))
    p("s_waitcnt vmcnt(0)")
    p("s_branch %s" % RP)
    p("%s:" % OKP)
    p("s_barrier")
    stamp("poll_ok")
    p("s_lshl_b32 %s, %s, 14" % (sA, sG)); p("s_lshl_b32 %s, %s, 10" % (sD, sW)); p("s_add_u32 %s, %s, %s" % (sA, sA, sD)); p("s_add_u32 %s, %s, %d" % (sA, sA, Q_BASE))
    for kq in range(4):
        p("s_add_u32 %s, %s, %d" % (sT0, sA, kq*4096))
        p.vmem("buffer_load_dwordx4 %s, v%d, %s, %s offen%s" % (vr(96+4*kq, 4), vL16, SWS, sT0, HL), "QG")
    tr(cfg.get("n_after_qg", 16))
    p("v_lshrrev_b32 v12, 5, v1"); p("s_lshl_b32 %s, %s, 1" % (sA, sW)); p("v_add_u32 v12, %s, v12" % sA); p("v_mul_u32_u24 v12, 272, v12")
    p("v_and_b32 v13, 31, v1"); p("v_lshlrev_b32 v13, 3, v13"); p("v_add_u32 v12, v12, v13")
    p("v_and_b32 v14, 7, v1"); p("v_mul_u32_u24 v14, 272, v14"); p("v_lshrrev_b32 v13, 4, v1"); p("v_lshlrev_b32 v13, 4, v13"); p("v_add_u32 v14, v14, v13")
    p("v_bfe_u32 v13, v1, 3, 1"); p("v_lshlrev_b32 v13, 6, v13"); p("v_add_u32 v14, v14, v13")
    p("v_mov_b32 v%d, 0xff800000" % vMAX)
    p.wait("QG")
    for r in range(4):
        p("v_add_f32 v%d, v%d, v%d" % (96+r, 96+r, 100+r)); p("v_add_f32 v%d, v%d, v%d" % (104+r, 104+r, 108+r))
    for r in range(4): p("v_add_f32 v%d, v%d, v%d" % (96+r, 96+r, 104+r))
    p("v_cvt_pk_bf16_f32 v96, v96, v97"); p("v_cvt_pk_bf16_f32 v97, v98, v99")
    p("ds_write_b64 v12, v[96:97] offset:%d" % L_QL)
    p("s_waitcnt lgkmcnt(0)")
    p("s_barrier")
    stamp("q_ready")
    for lam in range(2): p("ds_read_b128 %s, v14 offset:%d" % (vr(QF+4*lam, 4), L_QL + 128*lam))
    tr(1)
    p("s_waitcnt lgkmcnt(0)")
    def qk_mfma(t):
        D = PERM + 16*(t % 2)
        p.wait("K%d" % t)
        for lam in range(2):
            for h in range(2):
                for a_ in range(2):
                    d = D + 8*h + 4*a_
                    p("v_mfma_f32_16x16x32_bf16 %s, %s, %s, %s" % (vr(d, 4), ar(32*t+16*h+8*a_+4*lam, 4), vr(QF+4*lam, 4), "0" if lam == 0 else vr(d, 4)))
    def qk_post(t):
        D = PERM + 16*(t % 2); T = QF + 8
        for h in range(2):
            for r in range(4): p("v_permlane32_swap_b32 v%d, v%d" % (D+8*h+r, D+8*h+4+r))
        for h in range(2):
            for r in range(4): p("v_add_f32_dpp v%d, v%d, v%d row_ror:8%s" % (D+8*h+r, D+8*h+4+r, D+8*h+r, DPP))
        tr(1)
        src = [D+0, D+1, D+2, D+3, D+8, D+9, D+10, D+11]
        pk = [D+4, D+5, D+6, D+7]
        for i in range(4): p("v_cvt_pk_bf16_f32 v%d, v%d, v%d" % (pk[i], src[2*i], src[2*i+1]))
        for i in range(4):
            p("v_lshlrev_b32 v%d, 16, v%d" % (T+2*i, pk[i])); p("v_and_b32 v%d, 0xffff0000, v%d" % (T+2*i+1, pk[i]))
        for i in range(8): p("v_mul_f32 v%d, %s, v%d" % (T+i, sSCALE, T+i))
        tr(1)
        for i in range(4):
            p("v_cvt_pk_bf16_f32 v%d, v%d, v%d" % (SP+4*t+i, T+2*i, T+2*i+1))
            p("v_max3_f32 v%d, v%d, v%d, v%d" % (vMAX, vMAX, T+2*i, T+2*i+1))
    qk_mfma(0)
    for t in range(1, NS):
        qk_mfma(t)
        qk_post(t-1)
    qk_post(NS-1)
    allred(p, [vMAX], [12], "v_max_f32", [16, 32])
    p("v_cvt_pk_bf16_f32 v12, v%d, v%d" % (vMAX, vMAX)); p("v_lshlrev_b32 v%d, 16, v12" % vMAX)
    p("v_mul_f32 v14, %s, v%d" % (sLOG2E, vMAX)); p("v_sub_f32 v14, 0, v14")
    stamp("qk_done")
    p("v_mov_b32 v%d, 0" % vL0); p("v_mov_b32 v%d, 0" % vL1)
    for b_ in range(NS):
        T = PERM + 8*(b_ % 2)
        for i in range(4):
            p("v_lshlrev_b32 v%d, 16, v%d" % (T+2*i, SP+4*b_+i)); p("v_and_b32 v%d, 0xffff0000, v%d" % (T+2*i+1, SP+4*b_+i))
        for i in range(8): p("v_fma_f32 v%d, v%d, %s, v14" % (T+i, T+i, sLOG2E))
        for i in range(8): p("v_exp_f32 v%d, v%d" % (T+i, T+i))
        for i in range(4):
            p("v_cvt_pk_bf16_f32 v%d, v%d, v%d" % (SP+4*b_+i, T+2*i, T+2*i+1))
            p("v_add_f32 v%d, v%d, v%d" % (vL0, vL0, T+2*i)); p("v_add_f32 v%d, v%d, v%d" % (vL1, vL1, T+2*i+1))
        tr(1)
    tr(100)
    p("v_add_f32 v%d, v%d, v%d" % (vL0, vL0, vL1))
    stamp("p_done")
    if cfg.get("touch", 0):
        T0_ = p.label("t0"); T1_ = p.label("t1"); TE = p.label("te")
        p("s_cmp_eq_u32 %s, 3" % sW); p("s_cbranch_scc1 %s" % TE)
        p("s_cmp_lg_u32 %s, 0" % sW); p("s_cbranch_scc1 %s" % T0_)
        p("v_min_u32 v12, 32, v1"); p("v_lshlrev_b32 v12, 7, v12")
        p("s_mul_i32 %s, s2, %d" % (sA, O_PITCH)); p("s_add_u32 %s, %s, %d" % (sA, sA, O_BASE))
        p("s_branch %s" % T1_)
        p("%s:" % T0_)
        p("v_and_b32 v12, 15, v1"); p("v_lshlrev_b32 v12, 14, v12")
        p("s_lshl_b32 %s, %s, 18" % (sA, sCH)); p("s_lshl_b32 %s, %s, 7" % (sD, sRB)); p("s_add_u32 %s, %s, %s" % (sA, sA, sD))
        p("s_sub_u32 %s, %s, 1" % (sD, sW)); p("s_mul_i32 %s, %s, %d" % (sD, sD, BB_BASE - S_BASE)); p("s_add_u32 %s, %s, %s" % (sA, sA, sD)); p("s_add_u32 %s, %s, %d" % (sA, sA, S_BASE))
        p("%s:" % T1_)
        p.vmem("buffer_load_dword a255, v12, %s, %s offen%s" % (SWS, sA, cfg.get("touchpol", "")), "TOUCH", cond=True)
        p("%s:" % TE)
    def silu(src, dst, tmp, n):
        for r in range(n): p("v_mul_f32 v%d, %s, v%d" % (tmp+r, sLOG2E, src+r))
        for r in range(n): p("v_exp_f32 v%d, -v%d" % (tmp+r, tmp+r))
        for r in range(n): p("v_add_f32 v%d, 1.0, v%d" % (tmp+r, tmp+r))
        for r in range(n): p("v_rcp_f32 v%d, v%d" % (tmp+r, tmp+r))
        for r in range(n): p("v_mul_f32 v%d, v%d, v%d" % (dst+r, src+r, tmp+r))
    def unpack2(dst, src):
        p("v_lshlrev_b32 v%d, 16, v%d" % (dst, src)); p("v_and_b32 v%d, 0xffff0000, v%d" % (dst+1, src))
    sH0, sH1 = "s69", "s70"
    def h_issue():
        p("v_lshrrev_b32 v15, 3, v1"); p("v_mul_u32_u24 v15, 14336, v15"); p("v_and_b32 v13, 7, v1"); p("v_min_u32 v13, 6, v13"); p("v_lshlrev_b32 v13, 4, v13"); p("v_add_u32 v15, v15, v13")
        p("s_mul_i32 %s, %s, 112" % (sH0, sRB)); p("s_add_u32 %s, %s, %d" % (sH0, sH0, BP_BASE)); p("s_add_u32 %s, %s, %d" % (sH1, sH0, 8*14336))
        p.vmem("buffer_load_dwordx4 v[32:35], v15, %s, %s offen%s" % (SWS, sH0, HL), "HG")
        p.vmem("buffer_load_dwordx4 v[36:39], v15, %s, %s offen%s" % (SWS, sH1, HL), "HG")
    def retry_block(check, reload, base):
        R = p.label("r" + base); OK = p.label("ok" + base)
        p("s_mov_b32 %s, %d" % (sRETRY, RETRIES))
        p("%s:" % R)
        check()
        p("s_cbranch_vccz %s" % OK)
        p("s_sub_u32 %s, %s, 1" % (sRETRY, sRETRY)); p("s_cbranch_scc1 %s" % OK)
        reload()
        p("s_waitcnt vmcnt(0)")
        p("s_branch %s" % R)
        p("%s:" % OK)
    def h_compute():
        p.wait("HG")
        def rl():
            p("s_sleep %d" % cfg.get("sleep", 8))
            p("buffer_load_dwordx4 v[32:35], v15, %s, %s offen%s" % (SWS, sH0, HL))
            p("buffer_load_dwordx4 v[36:39], v15, %s, %s offen%s" % (SWS, sH1, HL))
        retry_block(lambda: tagcheck(list(range(32, 40)), 14), rl, "h")
        red4(p, [32, 33, 34, 35]); red4(p, [36, 37, 38, 39])
        p("v_cvt_pk_bf16_f32 v40, v32, v36")
        unpack2(32, 40)
        silu(32, 32, 40, 1)
        p("v_cvt_pk_bf16_f32 v40, v32, v32"); p("v_lshlrev_b32 v32, 16, v40")
        p("v_mul_f32 v32, v32, v33")
        p("v_cvt_pk_bf16_f32 v32, v32, v32")
        p("v_lshrrev_b32 v12, 4, v1"); p("v_and_b32 v13, 1, v12"); p("v_lshlrev_b32 v13, 1, v13"); p("v_lshrrev_b32 v12, 1, v12"); p("v_or_b32 v12, v12, v13")
        p("v_lshlrev_b32 v12, 5, v12"); p("v_and_b32 v13, 7, v1"); p("v_lshlrev_b32 v13, 2, v13"); p("v_add_u32 v13, v13, v12")
        p("ds_write_b32 v13, v32 offset:%d" % L_HL)
    sOB = "s77"
    late = []
    def tl(n=1):
        for _ in range(min(n, len(late))): late.pop(0)()
    PX = 60
    def pv(t, trickle=False):
        base = RING + 32*(t % 4)
        Preg = SP + 4*t if t < NS else PX
        p.wait("V%d" % t)
        def perm(j):
            c, h = j >> 1, j & 1
            for tt in range(4):
                p("v_perm_b32 v%d, v%d, v%d, %s" % (PERM+4*j+tt, base+4*(2*tt+1)+c, base+4*(2*tt)+c, sSELHI if h else sSELLO))
        def mm(j):
            p("v_mfma_f32_16x16x32_bf16 %s, %s, %s, %s" % (vr(ACC+4*j, 4), vr(PERM+4*j, 4), vr(Preg, 4), "0" if t == 0 else vr(ACC+4*j, 4)))
        perm(0)
        for j in range(1, 8):
            perm(j); mm(j-1)
            if trickle and j in (2, 5): tl(1)
        mm(7)
    vW2O, vOO = 31, 11
    sW2B = "s3"
    def late_addresses():
        p("v_lshrrev_b32 v12, 4, v1"); p("v_and_b32 v13, 15, v1"); p("v_lshlrev_b32 v13, 4, v13")
        p("v_lshlrev_b32 v%d, 11, v12" % vW2O); p("v_add_u32 v%d, v%d, v13" % (vW2O, vW2O))
        p("v_lshlrev_b32 v%d, 14, v12" % vOO); p("v_add_u32 v%d, v%d, v13" % (vOO, vOO))
        p("s_lshl_b32 %s, %s, 10" % (sD, sCH)); p("s_lshl_b32 %s, %s, 8" % (sA, sW)); p("s_add_u32 %s, %s, %s" % (sD, sD, sA))
        p("s_mul_i32 %s, %s, %d" % (sW2B, sRB, 28*2048)); p("s_add_u32 %s, %s, %s" % (sW2B, sW2B, sD))
        p("s_lshl_b32 %s, %s, 16" % (sOB, sRB)); p("s_add_u32 %s, %s, %s" % (sOB, sOB, sD))
    def W2_loads():
        L = []
        for t in range(7):
            def f(t=t):
                p("s_add_u32 %s, %s, %d" % (sT0, sW2B, t*4*2048))
                svmem("buffer_load_dwordx4 %s, v%d, %s, %s offen%s" % (ar(4*t, 4), vW2O, SW2, sT0, ntw), "W2")
            L.append(f)
        return L
    def O_loads():
        L = []
        for t in range(8):
            def f(t=t):
                p("s_add_u32 %s, %s, %d" % (sT0, sOB, t*2048))
                svmem("buffer_load_dwordx4 %s, v%d, %s, %s offen%s" % (ar(32+4*t, 4), vOO, SWO, sT0, ntw), "O")
            L.append(f)
        return L
    vAWB, vRD, vPO, vLWR, vMLS, vG0, vG1 = 24, 25, 26, 27, 28, 29, 30
    vPC, vCM, vCPW, vCPR, vZ = 160, 161, 162, 163, 165
    vAW = PERM + 24
    sPO, sPB, sPS, sGV, sGM, sGA = "s71", "s72", "s73", "s74", "s75", "s76"
    def tail_addresses_a():
        p("v_and_b32 v12, 7, v1"); p("v_lshlrev_b32 v13, 9, v12"); p("v_lshlrev_b32 v12, 4, v12"); p("v_add_u32 v12, v12, v13")
        p("v_lshrrev_b32 v13, 4, v1"); p("v_lshlrev_b32 v13, 7, v13"); p("v_add_u32 v12, v12, v13")
        p("s_lshl_b32 %s, %s, 12" % (sA, sW)); p("s_add_u32 %s, %s, %d" % (sA, sA, L_OP)); p("v_add_u32 v%d, %s, v12" % (vAWB, sA))
        p("v_lshlrev_b32 v%d, 4, v0" % vRD)
        p("v_lshrrev_b32 v14, 5, v0"); p("v_and_b32 v15, 7, v0"); p("v_xor_b32 v14, v14, v15"); p("v_lshlrev_b32 v14, 4, v14")
        p("v_lshrrev_b32 v15, 3, v0"); p("v_lshlrev_b32 v15, 7, v15"); p("v_add_u32 v%d, v14, v15" % vPO)
        p("s_mul_i32 %s, s2, %d" % (sPO, O_PITCH)); p("s_add_u32 %s, %s, %d" % (sPO, sPO, O_BASE))
        p("v_lshrrev_b32 v13, 5, v0"); p("v_lshlrev_b32 v%d, 5, v13" % vLWR)
        p("v_lshlrev_b32 v%d, 4, v1" % vMLS); p("v_add_u32 v%d, 4096, v%d" % (vMLS, vMLS))
        p("v_lshrrev_b32 v12, 3, v1"); p("v_mul_u32_u24 v%d, %d, v12" % (vG0, O_PITCH))
        p("v_and_b32 v13, 7, v1"); p("v_lshlrev_b32 v13, 4, v13"); p("v_add_u32 v%d, v%d, v13" % (vG1, vG0))
        p("s_lshl_b32 %s, %s, 6" % (sA, sG)); p("s_mul_i32 %s, %s, %d" % (sA, sA, O_PITCH)); p("s_add_u32 %s, %s, %d" % (sA, sA, O_BASE))
        p("s_bfe_u32 %s, s2, 0x30003" % sB)
        p("s_lshl_b32 %s, %s, 4" % (sD, sB)); p("s_add_u32 %s, %s, %s" % (sGM, sA, sD)); p("s_add_u32 %s, %s, 4096" % (sGM, sGM))
        p("s_lshl_b32 %s, %s, 2" % (sB, sB)); p("s_bfe_u32 %s, s2, 0x20001" % sD); p("s_add_u32 %s, %s, %s" % (sB, sB, sD)); p("s_lshl_b32 %s, %s, 7" % (sB, sB))
        p("s_add_u32 %s, %s, %s" % (sB, sB, sA))
        p("s_mul_i32 %s, %s, %d" % (sD, sW, 16*O_PITCH))
        p("s_add_u32 %s, %s, %s" % (sGV, sB, sD)); p("s_add_u32 %s, %s, %s" % (sGA, sGM, sD))
    def tail_addresses_b():
        p("v_bfe_u32 v12, v1, 2, 2"); p("v_lshlrev_b32 v12, 14, v12")
        p("v_and_b32 v13, 3, v1"); p("v_lshlrev_b32 v13, 5, v13"); p("v_add_u32 v12, v12, v13")
        p("v_bfe_u32 v13, v1, 4, 1"); p("v_lshlrev_b32 v13, 4, v13"); p("v_add_u32 v%d, v12, v13" % vPC)
        p("s_lshl_b32 %s, %s, 18" % (sA, sCH)); p("s_lshl_b32 %s, %s, 16" % (sD, sW)); p("s_add_u32 %s, %s, %s" % (sA, sA, sD))
        p("s_lshl_b32 %s, %s, 7" % (sD, sRB)); p("s_add_u32 %s, %s, %s" % (sA, sA, sD))
        p("s_add_u32 %s, %s, %d" % (sPB, sA, BB_BASE)); p("s_add_u32 %s, %s, %d" % (sPS, sA, S_BASE))
        p("v_lshrrev_b32 v12, 4, v1"); p("v_and_b32 v13, 1, v12"); p("v_lshlrev_b32 v13, 1, v13"); p("v_lshrrev_b32 v12, 1, v12"); p("v_or_b32 v12, v12, v13")
        p("v_lshlrev_b32 v12, 5, v12"); p("v_and_b32 v13, 7, v1"); p("v_lshlrev_b32 v13, 2, v13"); p("v_add_u32 v12, v12, v13")
        p("s_lshl_b32 %s, %s, 7" % (sA, sW)); p("v_add_u32 v%d, %s, v12" % (vCPW, sA))
        p("v_lshrrev_b32 v13, 4, v1"); p("v_lshlrev_b32 v%d, 5, v13" % vCPR)
        p("s_lshl_b32 %s, %s, 3" % (sA, sW)); p("v_mov_b32 v%d, %s" % (vCM, sA)); p("v_mov_b32 v%d, 0" % vZ)
    n_pre = cfg.get("n_pre", 10)
    sCNT = "s76"
    def claim(reg, name):
        p("v_mov_b32 v%d, 1" % reg)
        p("s_mov_b32 exec_lo, 1"); p("s_mov_b32 exec_hi, 0")
        p.vmem("buffer_atomic_add v%d, off, %s, %s sc0" % (reg, SWS, sCNT), name)
        p("s_mov_b64 exec, -1")
    def claim_result(reg, name, miss):
        p.wait(name)
        p("v_readfirstlane_b32 %s, v%d" % (sX, reg))
        p("s_cmp_ge_u32 %s, 64" % sX); p("s_cbranch_scc1 %s" % miss)
        p("s_lshl_b32 %s, %s, 15" % (sX, sX)); p("s_add_u32 %s, %s, %s" % (sX, sX, sPOOL))
    def qk_dyn(t, slot):
        D = PERM; T = PERM + 16
        p.wait("K%d" % t)
        for lam in range(2):
            for h in range(2):
                for a_ in range(2):
                    d = D + 8*h + 4*a_
                    p("v_mfma_f32_16x16x32_bf16 %s, %s, %s, %s" % (vr(d, 4), ar(32*slot+16*h+8*a_+4*lam, 4), vr(QF+4*lam, 4), "0" if lam == 0 else vr(d, 4)))
        tl(1)
        for h in range(2):
            for r in range(4): p("v_permlane32_swap_b32 v%d, v%d" % (D+8*h+r, D+8*h+4+r))
        for h in range(2):
            for r in range(4): p("v_add_f32_dpp v%d, v%d, v%d row_ror:8%s" % (D+8*h+r, D+8*h+4+r, D+8*h+r, DPP))
        src = [D+0, D+1, D+2, D+3, D+8, D+9, D+10, D+11]
        pk = [D+4, D+5, D+6, D+7]
        for i in range(4): p("v_cvt_pk_bf16_f32 v%d, v%d, v%d" % (pk[i], src[2*i], src[2*i+1]))
        for i in range(4): unpack2(T+2*i, pk[i])
        for i in range(8): p("v_mul_f32 v%d, %s, v%d" % (T+i, sSCALE, T+i))
        for i in range(4): p("v_cvt_pk_bf16_f32 v%d, v%d, v%d" % (PX+i, T+2*i, T+2*i+1))
        p("v_max3_f32 v12, v%d, v%d, v%d" % (T, T+1, T+2)); p("v_max3_f32 v13, v%d, v%d, v%d" % (T+3, T+4, T+5))
        p("v_max3_f32 v12, v12, v%d, v%d" % (T+6, T+7)); p("v_max_f32 v12, v12, v13")
        allred(p, [12], [13], "v_max_f32", [16, 32])
        tl(1)
        p("v_cvt_pk_bf16_f32 v12, v12, v12"); p("v_lshlrev_b32 v12, 16, v12")
        p("v_max_f32 v12, v12, v%d" % vMAX)
        p("v_sub_f32 v14, v%d, v12" % vMAX); p("v_mul_f32 v14, %s, v14" % sLOG2E); p("v_exp_f32 v14, v14")
        p("v_mov_b32 v%d, v12" % vMAX)
        p("v_mul_f32 v15, %s, v12" % sLOG2E); p("v_sub_f32 v15, 0, v15")
        for i in range(4): unpack2(T+2*i, PX+i)
        for i in range(8): p("v_fma_f32 v%d, v%d, %s, v15" % (T+i, T+i, sLOG2E))
        for i in range(8): p("v_exp_f32 v%d, v%d" % (T+i, T+i))
        p("v_mul_f32 v%d, v%d, v14" % (vL0, vL0))
        for i in range(4): p("v_cvt_pk_bf16_f32 v%d, v%d, v%d" % (PX+i, T+2*i, T+2*i+1))
        for i in range(0, 8, 2): p("v_add_f32 v%d, v%d, v%d" % (T+i, T+i, T+i+1))
        p("v_add_f32 v%d, v%d, v%d" % (T, T, T+2)); p("v_add_f32 v%d, v%d, v%d" % (T+4, T+4, T+6))
        p("v_add_f32 v%d, v%d, v%d" % (T, T, T+4)); p("v_add_f32 v%d, v%d, v%d" % (vL0, vL0, T))
        p("v_mov_b32 v15, v14")
    def rescale():
        for r in range(0, 32, 2): p("v_pk_mul_f32 %s, %s, v[14:15]" % (vr(ACC+r, 2), vr(ACC+r, 2)))
    vMLR = vL0
    def ml_publish_lds():
        allred(p, [vL0], [12], "v_add_f32", [16, 32])
        p("v_mov_b32 v12, v%d" % vMAX); p("v_mov_b32 v13, v%d" % vL0)
        p("v_and_b32 v%d, 7, v1" % vMLR); p("v_lshlrev_b32 v%d, 5, v%d" % (vMLR, vMLR))
        p("s_lshl_b32 %s, %s, 3" % (sA, sW)); p("v_add_u32 v14, %s, v%d" % (sA, vMLR))
        p("s_mov_b32 exec_lo, 0x00ff00ff"); p("s_mov_b32 exec_hi, 0x00ff00ff")
        p("ds_write_b64 v14, v[12:13] offset:%d" % L_LW)
        p("s_mov_b64 exec, -1")
    def new_late():
        del late[:]
        late.extend(W2_loads() + O_loads())
    def flush_pre():
        while len(late) > 15 - n_pre: tl(1)
    TAIL = p.label("tail")
    if not dyn:
        pv(0); loadV(4)
        pv(1); h_issue(); loadV(5)
        pv(2); loadV(6)
        pv(3); loadV(7)
        late_addresses(); new_late()
        pv(4, True); tl(1); h_compute(); tl(1); pv(5, True); tl(1); tail_addresses_a(); ml_publish_lds(); tl(1); pv(6, True)
        flush_pre()
        pv(7)
    else:
        LEAF_A = p.label("leafA"); LEAF_B = p.label("leafB")
        p("s_lshl_b32 %s, %s, 2" % (sCNT, sG)); p("s_add_u32 %s, %s, %s" % (sCNT, sCNT, sW)); p("s_lshl_b32 %s, %s, 7" % (sCNT, sCNT)); p("s_add_u32 %s, %s, %d" % (sCNT, sCNT, CNT_BASE))
        pv(0); loadV(4); claim(60, "C1")
        pv(1); h_issue(); loadV(5)
        pv(2); loadV(6)
        claim_result(60, "C1", LEAF_A)
        vmA = list(p.vm)
        claim(61, "C2")
        for f in K_loads(7, slot=7): f()
        pv(3)
        for f in V_loads(7, True): f()
        pv(4); h_compute()
        claim_result(61, "C2", LEAF_B)
        vmB = list(p.vm)
        for f in K_loads(8, slot=6): f()
        for f in V_loads(8, True): f()
        if stamps: p("s_mov_b32 s101, 2")
        late_addresses(); tail_addresses_a(); new_late()
        pv(5, True); pv(6, True)
        qk_dyn(7, 7); rescale(); pv(7, True)
        qk_dyn(8, 6); rescale(); ml_publish_lds()
        flush_pre()
        pv(8)
        p("s_branch %s" % TAIL)
        p("%s:" % LEAF_B)
        if stamps: p("s_mov_b32 s101, 1")
        p.vm = list(vmB)
        late_addresses(); tail_addresses_a(); new_late()
        pv(5, True); tl(1); pv(6, True); tl(1)
        qk_dyn(7, 7); rescale(); ml_publish_lds()
        flush_pre()
        pv(7)
        p("s_branch %s" % TAIL)
        p("%s:" % LEAF_A)
        if stamps: p("s_mov_b32 s101, 0")
        p.vm = list(vmA)
        pv(3); late_addresses(); new_late()
        pv(4, True); tl(1); h_compute(); tl(1); tail_addresses_a(); tl(1); pv(5, True); ml_publish_lds()
        flush_pre()
        pv(6)
    p("%s:" % TAIL)
    p.vm = [("W2", False)]*7 + [("O", False)]*(n_pre-7)
    del late[:]; late.extend(O_loads()[n_pre-7:])
    stamp("pv_done")
    for j in range(8): p("v_xor_b32 v%d, %d, v%d" % (vAW+j, 16*j, vAWB))
    p("s_mov_b32 exec_lo, 0x00ff00ff"); p("s_mov_b32 exec_hi, 0x00ff00ff")
    for j in range(8):
        p("ds_write_b128 v%d, %s" % (vAW+j, vr(ACC+4*j, 4)))
    p("s_mov_b64 exec, -1")
    p("s_waitcnt lgkmcnt(0)")
    p("s_barrier")
    F = PERM + 16
    G_ = 104
    p("ds_read_b128 %s, v%d offset:%d" % (vr(F, 4), vLWR, L_LW)); p("ds_read_b128 %s, v%d offset:%d" % (vr(F+4, 4), vLWR, L_LW+16))
    for i in range(4): p("ds_read_b128 %s, v%d offset:%d" % (vr(PERM+4*i, 4), vRD, L_OP + 4096*i))
    p("ds_read_b128 %s, v%d offset:%d" % (vr(G_, 4), vMLR, L_LW)); p("ds_read_b128 %s, v%d offset:%d" % (vr(G_+4, 4), vMLR, L_LW+16))
    p("s_waitcnt lgkmcnt(6)")
    p("v_max3_f32 v12, v%d, v%d, v%d" % (F, F+2, F+4)); p("v_max_f32 v12, v12, v%d" % (F+6))
    for i in range(4): p("v_sub_f32 v%d, v%d, v12" % (F+2*i, F+2*i))
    for i in range(4): p("v_mul_f32 v%d, %s, v%d" % (F+2*i, sLOG2E, F+2*i))
    for i in range(4): p("v_exp_f32 v%d, v%d" % (F+2*i, F+2*i))
    for i in range(4): p("v_mov_b32 v%d, v%d" % (F+2*i+1, F+2*i))
    p("s_waitcnt lgkmcnt(5)")
    for r in range(0, 4, 2): p("v_pk_mul_f32 %s, %s, %s" % (vr(PERM+r, 2), vr(F, 2), vr(PERM+r, 2)))
    for i in range(1, 4):
        p("s_waitcnt lgkmcnt(%d)" % (5-i))
        for r in range(0, 4, 2): p("v_pk_fma_f32 %s, %s, %s, %s" % (vr(PERM+r, 2), vr(F+2*i, 2), vr(PERM+4*i+r, 2), vr(PERM+r, 2)))
    for r in range(4): p("v_bfi_b32 v%d, %s, v%d, v%d" % (PERM+r, sFF, vTAG, PERM+r))
    p.vmem("buffer_store_dwordx4 %s, v%d, %s, %s offen%s" % (vr(PERM, 4), vPO, SWS, sPO, HS), "PUBO")
    SKIP4 = p.label("ml")
    p("s_cmp_lg_u32 %s, 0" % sW); p("s_cbranch_scc1 %s" % SKIP4)
    p("s_waitcnt lgkmcnt(0)")
    p("v_max3_f32 v12, v%d, v%d, v%d" % (G_, G_+2, G_+4)); p("v_max_f32 v12, v12, v%d" % (G_+6))
    for i in range(4): p("v_sub_f32 v%d, v%d, v12" % (G_+2*i, G_+2*i))
    for i in range(4): p("v_mul_f32 v%d, %s, v%d" % (G_+2*i, sLOG2E, G_+2*i))
    for i in range(4): p("v_exp_f32 v%d, v%d" % (G_+2*i, G_+2*i))
    p("v_mul_f32 v13, v%d, v%d" % (G_, G_+1))
    for i in range(1, 4): p("v_fmac_f32 v13, v%d, v%d" % (G_+2*i, G_+2*i+1))
    p("v_bfi_b32 v%d, %s, v%d, v12" % (F, sFF, vTAG)); p("v_bfi_b32 v%d, %s, v%d, v13" % (F+1, sFF, vTAG))
    p("v_mov_b32 v%d, %s" % (F+2, sE)); p("v_mov_b32 v%d, %s" % (F+3, sE))
    p("s_mov_b32 exec_lo, 0xff"); p("s_mov_b32 exec_hi, 0")
    p.vmem("buffer_store_dwordx4 %s, v%d, %s, %s offen%s" % (vr(F, 4), vMLS, SWS, sPO, HS), "PUBML", cond=True)
    p("s_mov_b64 exec, -1")
    p("%s:" % SKIP4)
    p("s_waitcnt lgkmcnt(0)")
    stamp("o_pub")
    DD = 124
    def pub_cols(sb, name):
        for r in range(4): p("v_bfi_b32 v%d, %s, v%d, v%d" % (DD+r, sFF, vTAG, DD+r))
        p("s_mov_b32 exec_hi, 0")
        p.vmem("buffer_store_dwordx4 %s, v%d, %s, %s offen%s" % (vr(DD, 4), vPC, SWS, sb, HS), name)
        p("s_mov_b64 exec, -1")
    def diag_mult(src, n, breg):
        for t in range(n+1):
            if t < n:
                A = PERM + 4*(t % 4)
                for jj in range(4): p("v_and_b32 v%d, v%d, v%d" % (A+jj, src+t, vMASK+jj))
            if t >= 1:
                tt = t-1; AA = PERM + 4*(tt % 4)
                p("v_mfma_f32_16x16x32_bf16 %s, %s, %s, %s" % (vr(DD, 4), vr(AA, 4), ar(breg+4*tt, 4), "0" if tt == 0 else vr(DD, 4)))
    def w2_mult():
        p("v_lshrrev_b32 v13, 4, v1"); p("v_lshlrev_b32 v13, 5, v13")
        p("ds_read_b128 v[16:19], v13 offset:%d" % L_HL); p("ds_read_b128 v[20:23], v13 offset:%d" % (L_HL+16))
        p("s_waitcnt lgkmcnt(0)")
        p.wait("W2")
        diag_mult(16, 7, 0)
        pub_cols(sPB, "PUBB2")
        stamp("b_pub")
    def g2_loads(R, nm):
        f = (lambda t: p.vmem(t, nm)) if nm else p
        f("buffer_load_dwordx4 %s, v%d, %s, %s offen%s" % (vr(R, 4), vG1, SWS, sGV, HL))
        f("buffer_load_dwordx4 %s, v%d, %s, %s offen%s" % (vr(R+8, 4), vG0, SWS, sGA, HL))
        p("s_add_u32 %s, %s, %d" % (sT0, sGV, 8*O_PITCH))
        f("buffer_load_dwordx4 %s, v%d, %s, %s offen%s" % (vr(R+4, 4), vG1, SWS, sT0, HL))
        p("s_add_u32 %s, %s, %d" % (sT0, sGA, 8*O_PITCH))
        f("buffer_load_dwordx4 %s, v%d, %s, %s offen%s" % (vr(R+12, 4), vG0, SWS, sT0, HL))
    def g2_check():
        p("v_xor_b32 v14, %s, v106" % sE)
        for r in (107, 110, 111): p("v_bitop3_b32 v14, v%d, %s, v14 bitop3:0xbe" % (r, sE))
        regs = list(range(96, 106)) + [108, 109]
        p("v_xor_b32 v15, %s, v%d" % (sTAG, regs[0]))
        for r in regs[1:]: p("v_bitop3_b32 v15, v%d, %s, v15 bitop3:0xbe" % (r, sTAG))
        p("v_and_or_b32 v15, v15, %s, v14" % sFF)
        p("v_cmp_ne_u32 vcc, 0, v15")
        if cfg.get("nodep"): p("s_mov_b64 vcc, 0")
    g2_loads(96, "G2A")
    if cfg.get("tailorder", 0) == 0:
        tl(100); tail_addresses_b(); w2_mult()
    else:
        tail_addresses_b(); w2_mult(); tl(100)
    p.wait("G2A")
    stamp("g2_first")
    def rl2():
        if cfg.get("g2sleep", 0): p("s_sleep %d" % cfg["g2sleep"])
        g2_loads(96, None)
    retry_block(g2_check, rl2, "g2")
    stamp("g2_ok")
    if stamps: p("s_mov_b32 s3, %s" % sRETRY)
    p("v_and_b32 v104, 0xffffff00, v104"); p("v_and_b32 v108, 0xffffff00, v108")
    p("v_max_f32 v120, v104, v108")
    allred(p, [120], [121], "v_max_f32", [8, 16, 32])
    p("v_sub_f32 v104, v104, v120"); p("v_sub_f32 v108, v108, v120")
    p("v_mul_f32 v104, %s, v104" % sLOG2E); p("v_mul_f32 v108, %s, v108" % sLOG2E)
    p("v_exp_f32 v104, v104"); p("v_exp_f32 v108, v108")
    for r in range(4): p("v_mul_f32 v%d, v104, v%d" % (96+r, 96+r))
    p("v_mul_f32 v105, v104, v105")
    for r in range(4): p("v_fmac_f32 v%d, v108, v%d" % (96+r, 100+r))
    p("v_fmac_f32 v105, v108, v109")
    allred(p, [105], [121], "v_add_f32", [32, 16, 8])
    red4(p, [96, 97, 98, 99])
    p("v_mov_b32 v121, v105")
    p("ds_write_b32 v%d, v96 offset:%d" % (vCPW, L_CP))
    p("ds_write_b64 v%d, v[120:121] offset:%d" % (vCM, L_CM))
    p("s_waitcnt lgkmcnt(0)")
    p("s_barrier")
    p("ds_read_b128 v[100:103], v%d offset:%d" % (vZ, L_CM)); p("ds_read_b128 v[104:107], v%d offset:%d" % (vZ, L_CM+16))
    for w_ in range(4):
        p("ds_read_b128 %s, v%d offset:%d" % (vr(32+8*w_, 4), vCPR, L_CP + 128*w_)); p("ds_read_b128 %s, v%d offset:%d" % (vr(36+8*w_, 4), vCPR, L_CP + 128*w_ + 16))
    p("s_waitcnt lgkmcnt(8)")
    p("v_max3_f32 v120, v100, v102, v104"); p("v_max_f32 v120, v120, v106")
    for i in range(4): p("v_sub_f32 v%d, v%d, v120" % (100+2*i, 100+2*i))
    for i in range(4): p("v_mul_f32 v%d, %s, v%d" % (100+2*i, sLOG2E, 100+2*i))
    for i in range(4): p("v_exp_f32 v%d, v%d" % (100+2*i, 100+2*i))
    p("v_mul_f32 v121, v100, v101"); p("v_fmac_f32 v121, v102, v103"); p("v_fmac_f32 v121, v104, v105"); p("v_fmac_f32 v121, v106, v107")
    p("v_rcp_f32 v121, v121")
    for i in range(4): p("v_mul_f32 v%d, v%d, v121" % (100+2*i, 100+2*i))
    for i in range(4): p("v_mov_b32 v%d, v%d" % (101+2*i, 100+2*i))
    p("s_waitcnt lgkmcnt(6)")
    for r in range(0, 8, 2): p("v_pk_mul_f32 %s, v[100:101], %s" % (vr(32+r, 2), vr(32+r, 2)))
    p("s_waitcnt lgkmcnt(4)")
    for r in range(0, 8, 2): p("v_pk_fma_f32 %s, v[102:103], %s, %s" % (vr(32+r, 2), vr(40+r, 2), vr(32+r, 2)))
    p("s_waitcnt lgkmcnt(2)")
    for r in range(0, 8, 2): p("v_pk_fma_f32 %s, v[104:105], %s, %s" % (vr(32+r, 2), vr(48+r, 2), vr(32+r, 2)))
    p("s_waitcnt lgkmcnt(0)")
    for r in range(0, 8, 2): p("v_pk_fma_f32 %s, v[106:107], %s, %s" % (vr(32+r, 2), vr(56+r, 2), vr(32+r, 2)))
    for r in range(8): p("v_cvt_pk_bf16_f32 v%d, v%d, v%d" % (16+r, 32+r, 32+r))
    p.wait("O")
    diag_mult(16, 8, 32)
    pub_cols(sPS, "PUBS")
    stamp("s_pub")
    FIN = p.label("fin")
    p("s_cmp_ge_u32 s2, 32"); p("s_cbranch_scc1 %s" % FIN)
    p("s_lshl_b32 %s, s2, 14" % sA); p("s_lshl_b32 %s, %s, 12" % (sD, sW)); p("s_add_u32 %s, %s, %s" % (sA, sA, sD))
    p("s_add_u32 %s, %s, %d" % (sB, sA, S_BASE)); p("s_add_u32 %s, %s, %d" % (sA, sA, BB_BASE))
    p("v_lshrrev_b32 v12, 4, v1"); p("v_and_b32 v13, 1, v12"); p("v_lshlrev_b32 v13, 1, v13"); p("v_lshrrev_b32 v12, 1, v12"); p("v_or_b32 v12, v12, v13")
    p("v_and_b32 v14, 7, v1"); p("v_lshlrev_b32 v14, 2, v14"); p("v_add_u32 v14, v14, v12")
    p("v_lshlrev_b32 v179, 1, v14"); p("s_lshl_b32 %s, s2, 6" % sCc)
    p("v_lshlrev_b32 v13, 2, v14"); p("s_lshl_b32 %s, %s, 7" % (sD, sW)); p("v_add_u32 v12, %s, v13" % sD)
    def fl(sb):
        def f(R, nm):
            g = (lambda t: p.vmem(t, nm)) if nm else p
            for u in range(4):
                g("buffer_load_dwordx4 %s, v%d, %s, %s offen offset:%d%s" % (vr(R+4*u, 4), vL16, SWS, sb, 1024*u, HL))
        return f
    def fin_reduce(R, dst):
        for r in range(0, 4, 2):
            p("v_pk_add_f32 %s, %s, %s" % (vr(R+r, 2), vr(R+r, 2), vr(R+4+r, 2))); p("v_pk_add_f32 %s, %s, %s" % (vr(R+8+r, 2), vr(R+8+r, 2), vr(R+12+r, 2)))
        for r in range(0, 4, 2): p("v_pk_add_f32 %s, %s, %s" % (vr(R+r, 2), vr(R+r, 2), vr(R+8+r, 2)))
        red4(p, [R, R+1, R+2, R+3])
        p("ds_write_b32 v12, v%d offset:%d" % (R, dst))
        p("s_waitcnt lgkmcnt(0)")
        p("s_barrier")
        for w_ in range(4): p("ds_read_b32 v%d, v13 offset:%d" % (R+w_, dst + 128*w_))
        p("s_waitcnt lgkmcnt(0)")
        p("v_add_f32 v%d, v%d, v%d" % (R, R, R+1)); p("v_add_f32 v%d, v%d, v%d" % (R+2, R+2, R+3)); p("v_add_f32 v%d, v%d, v%d" % (R, R, R+2))
        p("v_cvt_pk_bf16_f32 v%d, v%d, v%d" % (R, R, R)); p("v_lshlrev_b32 v%d, 16, v%d" % (R, R))
    p.vmem("buffer_load_ushort v18, v179, %s, %s offen" % (SX, sCc), "XF")
    fl(sA)(128, "FB")
    p.wait("FB")
    retry_block(lambda: tagcheck(list(range(128, 144)), 15), lambda: fl(sA)(128, None), "fb")
    fl(sB)(144, "FS0")
    fin_reduce(128, L_FP)
    silu(128, 32, 40, 1)
    p("v_cvt_pk_bf16_f32 v32, v32, v32"); p("v_lshlrev_b32 v32, 16, v32")
    p("v_lshlrev_b32 v44, 16, v18")
    stamp("g_done")
    p.wait("FS0")
    retry_block(lambda: tagcheck(list(range(144, 160)), 15), lambda: fl(sB)(144, None), "fs")
    stamp("fs_ok")
    fin_reduce(144, L_FP + 512)
    p("v_mul_f32 v36, v144, v32")
    p("v_cvt_pk_bf16_f32 v36, v36, v36"); p("v_lshlrev_b32 v36, 16, v36")
    p("v_add_f32 v36, v36, v44")
    p("v_cvt_pk_bf16_f32 v40, v36, v36")
    SK5 = p.label("out")
    p("s_cmp_lg_u32 %s, 0" % sW); p("s_cbranch_scc1 %s" % SK5)
    p("s_mov_b32 exec_lo, 0x00ff00ff"); p("s_mov_b32 exec_hi, 0x00ff00ff")
    p.vmem("buffer_store_short v40, v179, %s, %s offen" % (SOUT, sCc), "OUT", cond=True)
    p("s_cmp_lg_u32 s2, 0"); p("s_cbranch_scc1 %s" % SK5)
    p("v_mov_b32 v12, %d" % EPOCH); p("v_mov_b32 v13, %s" % sE)
    p("s_mov_b32 exec_lo, 1"); p("s_mov_b32 exec_hi, 0")
    p.vmem("buffer_store_dword v13, v12, %s, 0 offen%s" % (SWS, HS), "EPO", cond=True)
    p("%s:" % SK5)
    p("s_mov_b64 exec, -1")
    p("%s:" % FIN)
    if stamps:
        stamp("end")
        p("s_getreg_b32 %s, hwreg(HW_REG_XCC_ID)" % sA)
        p("s_waitcnt lgkmcnt(0)")
        for k in range(16):
            p("v_mov_b32 v%d, %s" % (32+k, ("s%d" % (78+2*k)) if k < nst[0] else "0"))
        p("v_mov_b32 v48, %s" % sA); p("v_mov_b32 v49, s3"); p("s_getreg_b32 %s, hwreg(HW_REG_HW_ID)" % sD); p("v_mov_b32 v50, %s" % sD); p("v_mov_b32 v51, s101")
        p("s_lshl_b32 %s, s2, 2" % sB); p("s_add_u32 %s, %s, %s" % (sB, sB, sW)); p("s_lshl_b32 %s, %s, 7" % (sB, sB)); p("s_add_u32 %s, %s, %d" % (sB, sB, STAMP))
        p("v_mov_b32 v12, 0")
        p("s_mov_b32 exec_lo, 1"); p("s_mov_b32 exec_hi, 0")
        if not cfg.get("dbg"):
            for i in range(4): p("buffer_store_dwordx4 %s, v12, %s, %s offen offset:%d" % (vr(32+4*i, 4), SWS, sB, 16*i))
            p("buffer_store_dwordx4 v[48:51], v12, %s, %s offen offset:64" % (SWS, sB))
        p("s_mov_b64 exec, -1")
    if stamps and cfg.get("dbg"):
        NODBG = p.label("nodbg")
        p("s_cmp_ge_u32 s2, 32"); p("s_cbranch_scc1 %s" % NODBG)
        p("s_cmp_lg_u32 %s, 0" % sW); p("s_cbranch_scc1 %s" % NODBG)
        p("v_mov_b32 v60, 0")
        for k in range(min(8, nst[0])):
            p("v_cmp_eq_u32 vcc, %d, v1" % k); p("v_mov_b32 v61, s%d" % (78+2*k)); p("v_cndmask_b32 v60, v60, v61, vcc")
            p("v_cmp_eq_u32 vcc, %d, v1" % (8+k)); p("v_not_b32 v61, v61"); p("v_cndmask_b32 v60, v60, v61, vcc")
        p("v_lshlrev_b32 v62, 2, v1")
        p("s_mov_b32 exec_lo, 0xffff"); p("s_mov_b32 exec_hi, 0")
        p("buffer_atomic_umax v60, v62, %s, 0 offen" % SDBG)
        p("s_mov_b64 exec, -1")
        p("%s:" % NODBG)
    p("%s:" % END)
    p("s_endpgm")
    return p, names

HEADER = """; Fused decode step: layernorm -> {GQA attention over a 64K cache -> wo} * silu(SwiGLU FFN) + x.
; @launch grid=(256,1,1) block=(256,1,1) lds=%d
"""
def wrap(body, name=NAME, lds=LDS_BYTES, header=True):
    s = (HEADER % lds) if header else ""
    if header: s += '.amdgcn_target "amdgcn-amd-amdhsa--gfx950"\n'
    s += ".text\n.globl %s\n.p2align 8\n.type %s,@function\n%s:\n" % (name, name, name)
    s += body
    s += '.section .rodata,"a"\n.p2align 6\n.amdhsa_kernel %s\n' % name
    s += "  .amdhsa_next_free_vgpr 512\n  .amdhsa_next_free_sgpr 102\n  .amdhsa_accum_offset 256\n"
    s += "  .amdhsa_group_segment_fixed_size 0\n  .amdhsa_kernarg_size 96\n  .amdhsa_user_sgpr_count 2\n"
    s += "  .amdhsa_user_sgpr_kernarg_segment_ptr 1\n  .amdhsa_system_sgpr_workgroup_id_x 1\n"
    s += "  .amdhsa_float_denorm_mode_32 3\n"
    s += ".end_amdhsa_kernel\n"
    return s

if __name__ == "__main__":
    cfg = json.loads(sys.argv[2]) if len(sys.argv) > 2 else {}
    p, names = build(cfg)
    open(sys.argv[1], "w").write(wrap(p.text()))
    print("wrote", sys.argv[1], "stamps:", names)
```

```python
import sys, json
from sched import Prog

NAME = "recurrent_scan__gqa_block_cached__glu_gated_swiglu__decode_kernel"

EPOCH   = 0
Q_BASE  = 0x1000
FLAG_BASE = 0x14000
CNT_BASE = 0x1C000
BP_BASE = 0x20000
O_BASE  = 0x80000
O_PITCH = 4224
S_BASE  = 0x200000
BB_BASE = 0x280000
STAMP   = 0x400000
L_XN = 0
L_QP = 4096
L_BP = 6144
L_QL = 10240
L_HL = 12544
L_MX = 12800
L_LW = 13056
L_CP = 13312
L_FP = 13824
L_CM = 14848
L_OP = 16384
LDS_BYTES = 32768

SX, SK, SV, SWQ, SWO, SW1, SW3, SW2, SOUT, SDBG, SWS = [ "s[%d:%d]" % (4*i+4, 4*i+7) for i in range(11)]
sW, sG, sC, sT0, sKV = "s48", "s49", "s50", "s51", "s52"
sSELLO, sSELHI, sE, sTAG, sFF, sLOG2E, sSCALE, sHI = "s53", "s54", "s55", "s56", "s57", "s58", "s59", "s60"
sRETRY = "s61"
sA, sB, sCc, sD = "s62", "s63", "s64", "s65"
sRB, sCH = "s66", "s67"
sKC = "s68"
sCB1, sCB3, sW3B = "s69", "s70", "s71"
sVC, sROT = "s72", "s73"
sPOOL, sX = "s81", "s82"
sCL = "s80"
sPAR = "s77"
vTID, vLANE, vOFFK, vL16 = 0, 1, 2, 3
vMASK = 4
vTAG, vMAX, vL0, vL1 = 8, 9, 10, 11
vT = 12
QF, SP, PERM, ACC, RING = 16, 32, 64, 96, 128

def vr(b, n=1): return "v%d" % b if n == 1 else "v[%d:%d]" % (b, b+n-1)
def ar(b, n=1): return "a%d" % b if n == 1 else "a[%d:%d]" % (b, b+n-1)

DPP = " row_mask:0xf bank_mask:0xf"
def allred(p, regs, tmps, op, steps):
    for s in steps:
        if s in (1, 2, 4, 8):
            for r in regs: p("%s_dpp v%d, v%d, v%d row_ror:%d%s" % (op, r, r, r, s, DPP))
        else:
            for r, t in zip(regs, tmps): p("v_mov_b32 v%d, v%d" % (t, r))
            for r, t in zip(regs, tmps): p("v_permlane%d_swap_b32 v%d, v%d" % (s, r, t))
            for r, t in zip(regs, tmps): p("%s v%d, v%d, v%d" % (op, r, r, t))

def red4(p, a):
    p("v_permlane32_swap_b32 v%d, v%d" % (a[0], a[1])); p("v_permlane32_swap_b32 v%d, v%d" % (a[2], a[3]))
    p("v_add_f32 v%d, v%d, v%d" % (a[0], a[0], a[1])); p("v_add_f32 v%d, v%d, v%d" % (a[2], a[2], a[3]))
    p("v_permlane16_swap_b32 v%d, v%d" % (a[0], a[2]))
    p("v_add_f32 v%d, v%d, v%d" % (a[0], a[0], a[2]))
    p("v_add_f32_dpp v%d, v%d, v%d row_ror:8%s" % (a[0], a[0], a[0], DPP))

def build(cfg):
    pat = cfg.get("pat", "lin")
    nt = " nt" if cfg.get("nt", True) else ""
    ntw = " nt" if cfg.get("ntw", True) else ""
    stamps = cfg.get("stamps", False)
    poll_after = cfg.get("poll_after", 6)
    HS = cfg.get("hs", " sc1")
    HL = cfg.get("hl", " sc1")
    RETRIES = cfg.get("retries", 40000)
    R_ = cfg.get("R", 1)
    stride = {"lin": 1024, "str8": 8192, "w4": 4096 * R_, "glob": 262144}[pat]
    rot = cfg.get("rot", 0)
    dyn = cfg.get("dyn", False)
    NS = cfg.get("ns", 6 if dyn == 2 else 7) if dyn else 8
    ST0 = 84 if dyn == 2 else 78
    if dyn: assert pat == "w4" and R_ == 1 and not rot
    p = Prog()
    nst = [0]
    names = []
    def stamp(name):
        if not stamps or name in cfg.get("nostamp", []): return
        k = nst[0]; nst[0] += 1; names.append(name)
        assert ST0 + 2*k + 1 <= 99
        p("s_memrealtime s[%d:%d]" % (ST0+2*k, ST0+1+2*k))

    depth = cfg.get("depth", 0); dstep = cfg.get("dstep", 2); depth0 = cfg.get("depth0", depth)
    cnt = [0]
    thr = cfg.get("thr_even", 0); thr_par = cfg.get("thr_par", 0)
    def svmem(text, name, early=False):
        d = depth0 if early else depth
        if d and cnt[0] % dstep == 0: p("s_waitcnt vmcnt(%d)" % (d - dstep))
        if thr and not early and cnt[0] % dstep == 0 and name[0] in "KV":
            L = p.label("thr")
            p("s_cmp_eq_u32 %s, %d" % (sPAR, thr_par)); p("s_cbranch_scc0 %s" % L); p("s_waitcnt vmcnt(%d)" % (thr - dstep)); p("%s:" % L)
        cnt[0] += 1
        p.vmem(text, name)
    END = p.label("end")
    p("s_cmp_ge_u32 s2, 256")
    p("s_cbranch_scc1 %s" % END)
    stamp("start")
    if cfg.get("pf", 0):
        NPF = p.label("nopf")
        p("s_cmp_ge_u32 s2, %d" % cfg["pf"]); p("s_cbranch_scc1 %s" % NPF)
        p("v_cmp_gt_u32 vcc, 64, v0"); p("s_cbranch_vccz %s" % NPF)
        PFB = p.label("pfbase")
        p("s_getpc_b64 s[48:49]")
        p("%s:" % PFB)
        p("v_lshlrev_b32 v12, 7, v0")
        for i in range(cfg.get("pfn", 3)):
            p("v_min_u32 v13, %s-%s-4, v12" % (END, PFB))
            p.vmem("global_load_dword v%d, v13, s[48:49]" % (236+i), "PF", cond=True)
            p("v_add_u32 v12, 0x2000, v12")
        p("%s:" % NPF)
    for i, off in enumerate([0, 8, 16, 24, 32, 48, 56, 64, 72, 80, 88]):
        p("s_load_dwordx2 s[%d:%d], s[0:1], %d" % (4*i+4, 4*i+5, off))
    sizes = [2048, 1<<26, 1<<26, 1<<23, 1<<23, 1024*3584*2, 1024*3584*2, 1024*3584*2, 2048, 256, 1<<28]
    for i, sz in enumerate(sizes):
        p("s_mov_b32 s%d, 0x%x" % (4*i+6, sz)); p("s_mov_b32 s%d, 0x20000" % (4*i+7))
    p("s_cmp_lt_u32 s2, 224")
    p("s_cselect_b32 s26, s26, 0")
    p("s_cselect_b32 s30, s30, 0")
    p("v_lshrrev_b32 v12, 6, v0")
    p("v_and_b32 v1, 63, v0")
    p("v_readfirstlane_b32 %s, v12" % sW)
    if cfg.get("thr_even", 0): p("s_getreg_b32 %s, hwreg(HW_REG_XCC_ID)" % sPAR); p("s_and_b32 %s, %s, 1" % (sPAR, sPAR))
    p("s_lshr_b32 %s, s2, 6" % sG)
    p("s_and_b32 %s, s2, 63" % sC)
    p("s_mov_b32 %s, 0x05040100" % sSELLO); p("s_mov_b32 %s, 0x07060302" % sSELHI)
    p("s_mov_b32 %s, 0xff" % sFF); p("s_mov_b32 %s, 0x3fb8aa3b" % sLOG2E)
    p("s_mov_b32 %s, 0x3db504f3" % sSCALE); p("s_mov_b32 %s, 0xffff0000" % sHI)
    p("s_lshr_b32 %s, s2, 1" % sRB); p("s_and_b32 %s, s2, 1" % sCH)
    p("v_lshlrev_b32 v3, 4, v1")
    p("v_lshlrev_b32 v13, 5, v1")
    p("s_lshl_b32 %s, %s, 9" % (sA, sW))
    p("v_lshlrev_b32 v14, 3, v1")
    p("v_lshrrev_b32 v15, 3, v1"); p("v_lshlrev_b32 v15, 13, v15")
    p("v_and_b32 v16, 7, v1"); p("v_lshlrev_b32 v16, 4, v16"); p("v_add_u32 v15, v15, v16")
    p("v_lshrrev_b32 v17, 4, v1"); p("v_mul_u32_u24 v17, 7168, v17")
    p("v_and_b32 v18, 15, v1"); p("v_lshlrev_b32 v18, 4, v18"); p("v_add_u32 v17, v17, v18")
    p("s_and_b32 %s, %s, 3" % (sB, sC)); p("s_lshl_b32 %s, %s, 21" % (sB, sB))
    p("s_lshl_b32 %s, %s, 19" % (sCc, sW)); p("s_add_u32 %s, %s, %s" % (sB, sB, sCc))
    p("s_lshl_b32 %s, %s, 11" % (sCc, sG)); p("s_add_u32 %s, %s, %s" % (sB, sB, sCc))
    p("s_lshr_b32 %s, %s, 2" % (sCc, sC)); p("s_lshl_b32 %s, %s, 7" % (sCc, sCc)); p("s_add_u32 %s, %s, %s" % (sB, sB, sCc))
    p("s_and_b32 %s, s2, 7" % sCc); p("s_lshl_b32 %s, %s, 7" % (sCc, sCc))
    p("s_lshl_b32 %s, %s, 5" % (sD, sW)); p("s_add_u32 %s, %s, %s" % (sCc, sCc, sD)); p("s_mul_i32 %s, %s, 7168" % (sCc, sCc))
    r1, r3 = cfg.get("r1", 1), cfg.get("r3", 2)
    for dst, rr in ((sCB1, r1), (sCB3, r3)):
        p("s_lshr_b32 %s, s2, 3" % dst); p("s_add_u32 %s, %s, %d" % (dst, dst, rr))
        p("s_sub_u32 %s, %s, 28" % (sD, dst)); p("s_cselect_b32 %s, %s, %s" % (dst, dst, sD))
    p("s_lshl_b32 %s, %s, 8" % (sD, sCB3)); p("s_add_u32 %s, %s, %s" % (sW3B, sCc, sD))
    p("s_lshl_b32 %s, %s, 8" % (sD, sCB1)); p("s_add_u32 %s, %s, %s" % (sCc, sCc, sD))
    p("s_waitcnt lgkmcnt(0)")
    stamp("karg")
    p("s_load_dword %s, s[44:45], %d" % (sE, EPOCH))
    ntx = " nt" if cfg.get("ntx", False) else ""
    p.vmem("buffer_load_dwordx4 v[224:227], v13, %s, 0 offen%s" % (SX, ntx), "XA0")
    p.vmem("buffer_load_dwordx4 v[228:231], v13, %s, 0 offen offset:16%s" % (SX, ntx), "XA1")
    p.vmem("buffer_load_dwordx2 v[232:233], v14, %s, %s offen%s" % (SX, sA, ntx), "XB")
    if cfg.get("pbar", 1) >= 1: p("s_barrier")
    for t in range(8):
        p("s_add_u32 %s, %s, %d" % (sT0, sB, t*8*8192))
        svmem("buffer_load_dwordx4 %s, v15, %s, %s offen%s" % (vr(128+4*t, 4), SWQ, sT0, ntw), "Q%d" % t, True)
    if cfg.get("pbar", 1) >= 2: p("s_barrier")
    for t in range(8):
        p("s_add_u32 %s, %s, %d" % (sT0, sCc, t*4*7168))
        svmem("buffer_load_dwordx4 %s, v17, %s, %s offen%s" % (vr(160+4*t, 4), SW1, sT0, ntw), "W1_%d" % t, True)
    stamp("w1_issued")
    if pat == "lin":
        p("s_lshl_b32 %s, s2, 18" % sKV); p("s_lshl_b32 %s, %s, 16" % (sD, sW)); p("s_add_u32 %s, %s, %s" % (sKV, sKV, sD))
    elif pat == "str8":
        p("s_lshl_b32 %s, %s, 24" % (sKV, sG))
        p("s_lshr_b32 %s, %s, 3" % (sD, sC)); p("s_lshl_b32 %s, %s, 21" % (sD, sD)); p("s_add_u32 %s, %s, %s" % (sKV, sKV, sD))
        p("s_lshl_b32 %s, %s, 19" % (sD, sW)); p("s_add_u32 %s, %s, %s" % (sKV, sKV, sD))
        p("s_and_b32 %s, %s, 7" % (sD, sC)); p("s_lshl_b32 %s, %s, 10" % (sD, sD)); p("s_add_u32 %s, %s, %s" % (sKV, sKV, sD))
    elif pat == "w4" and dyn:
        p("s_lshl_b32 %s, %s, 24" % (sKV, sG)); p("s_lshl_b32 %s, %s, 10" % (sD, sW)); p("s_add_u32 %s, %s, %s" % (sKV, sKV, sD))
        p("s_add_u32 %s, %s, %d" % (sPOOL, sKV, 64*NS*32768))
        if cfg.get("dynlin"):
            p("s_mul_i32 %s, %s, %d" % (sD, sW, 7*1024)); p("s_add_u32 %s, %s, %s" % (sPOOL, sPOOL, sD))
        p("s_mul_i32 %s, %s, %d" % (sD, sC, NS*32768)); p("s_add_u32 %s, %s, %s" % (sKV, sKV, sD))
    elif pat == "w4":
        lg = R_.bit_length() - 1
        p("s_lshl_b32 %s, %s, 24" % (sKV, sG))
        p("s_lshr_b32 %s, %s, %d" % (sD, sC, lg)); p("s_lshl_b32 %s, %s, %d" % (sD, sD, 18 + lg)); p("s_add_u32 %s, %s, %s" % (sKV, sKV, sD))
        p("s_and_b32 %s, %s, %d" % (sD, sC, R_ - 1)); p("s_lshl_b32 %s, %s, 12" % (sD, sD)); p("s_add_u32 %s, %s, %s" % (sKV, sKV, sD))
        p("s_lshl_b32 %s, %s, 10" % (sD, sW)); p("s_add_u32 %s, %s, %s" % (sKV, sKV, sD))
    elif pat == "glob":
        p("s_lshl_b32 %s, %s, 24" % (sKV, sG))
        p("s_lshl_b32 %s, %s, 12" % (sD, sC)); p("s_add_u32 %s, %s, %s" % (sKV, sKV, sD))
        p("s_lshl_b32 %s, %s, 10" % (sD, sW)); p("s_add_u32 %s, %s, %s" % (sKV, sKV, sD))
    if rot == 1: p("s_and_b32 %s, %s, 7" % (sROT, sC))
    if rot == 2: p("s_lshr_b32 %s, %s, 3" % (sROT, sC))
    if rot == 3: p("s_lshr_b32 %s, %s, 3" % (sROT, sC)); p("s_add_u32 %s, %s, %s" % (sROT, sROT, sC))
    p("v_and_b32 v12, 3, v1"); p("v_lshlrev_b32 v12, %d, v12" % (stride.bit_length()-1))
    p("v_bfe_u32 v2, v1, 2, 1"); p("v_lshlrev_b32 v2, 8, v2"); p("v_add_u32 v2, v2, v12")
    p("v_bfe_u32 v12, v1, 3, 1"); p("v_lshlrev_b32 v12, 6, v12"); p("v_add_u32 v2, v2, v12")
    p("v_lshrrev_b32 v12, 4, v1"); p("v_lshlrev_b32 v12, 4, v12"); p("v_add_u32 v2, v2, v12")
    p("v_and_b32 v12, 1, v1"); p("v_lshlrev_b32 v12, 4, v12"); p("v_mov_b32 v13, 0xffff"); p("v_lshlrev_b32 v13, v12, v13")
    p("v_bfe_u32 v12, v1, 1, 2")
    for jj in range(4):
        p("v_cmp_eq_u32 vcc, %d, v12" % jj); p("v_cndmask_b32 v%d, 0, v13, vcc" % (vMASK+jj))
    def grp_base(dst, t, dynbase=False):
        if dynbase:
            p("s_mov_b32 %s, %s" % (dst, sX))
        elif not rot:
            p("s_add_u32 %s, %s, %d" % (dst, sKV, 8*t*stride))
        else:
            p("s_add_u32 %s, %s, %d" % (dst, sROT, t)); p("s_and_b32 %s, %s, 7" % (dst, dst))
            p("s_mul_i32 %s, %s, %d" % (dst, dst, 8*stride)); p("s_add_u32 %s, %s, %s" % (dst, dst, sKV))
    vOFFK2 = 56
    def K_loads(t, slot=None, name=None):
        L = []
        db = slot is not None
        st_ = 1024 if (db and cfg.get("dynlin")) else stride
        vo = vOFFK2 if (db and cfg.get("dynlin")) else vOFFK
        sl = slot if db else t
        name = name or "K%d" % t
        for h in range(2):
            for a_ in range(2):
                for lam in range(2):
                    def f(h=h, a_=a_, lam=lam):
                        if a_ == 0 and lam == 0:
                            if h == 0: grp_base(sKC, t, db)
                            else: p("s_add_u32 %s, %s, %d" % (sKC, sKC, 4*st_))
                        svmem("buffer_load_dwordx4 %s, v%d, %s, %s offen offset:%d%s" % (ar(32*sl+16*h+8*a_+4*lam, 4), vo, SK, sKC, 512*a_+128*lam, nt), name)
                    L.append(f)
        return L
    def V_loads(t, db=False, name=None):
        base = RING + 32*(t % 4)
        name = name or "V%d" % t
        st_ = 1024 if (db and cfg.get("dynlin")) else stride
        L = []
        for i in range(8):
            def f(i=i):
                if i == 0: grp_base(sVC, t, db)
                else: p("s_add_u32 %s, %s, %d" % (sVC, sVC, st_))
                svmem("buffer_load_dwordx4 %s, v%d, %s, %s offen%s" % (vr(base+4*i, 4), vL16, SV, sVC, nt), name)
            L.append(f)
        return L
    def loadK(t):
        for f in K_loads(t): f()
    def loadV(t):
        for f in V_loads(t): f()
    def tagcheck(regs, acc):
        p("v_xor_b32 v%d, %s, v%d" % (acc, sTAG, regs[0]))
        for r in regs[1:]: p("v_bitop3_b32 v%d, v%d, %s, v%d bitop3:0xbe" % (acc, r, sTAG, acc))
        p("v_and_b32 v%d, 0xff, v%d" % (acc, acc))
        p("v_cmp_ne_u32 vcc, 0, v%d" % acc)
        if cfg.get("nodep"): p("s_mov_b64 vcc, 0")
    p.wait("XA1")
    stamp("x_landed")
    for i in range(8):
        p("v_lshlrev_b32 v%d, 16, v%d" % (32+2*i, 224+i)); p("v_and_b32 v%d, 0xffff0000, v%d" % (33+2*i, 224+i))
    for i in range(8): p("v_add_f32 v%d, v%d, v%d" % (48+i, 32+2*i, 33+2*i))
    p("v_add_f32 v48, v48, v49"); p("v_add_f32 v50, v50, v51"); p("v_add_f32 v52, v52, v53"); p("v_add_f32 v54, v54, v55")
    p("v_add_f32 v48, v48, v50"); p("v_add_f32 v52, v52, v54"); p("v_add_f32 v48, v48, v52")
    allred(p, [48], [49], "v_add_f32", [8, 4, 2, 1, 16, 32])
    p("v_mul_f32 v49, 0x3a800000, v48")
    for i in range(16): p("v_sub_f32 v%d, v%d, v49" % (32+i, 32+i))
    for i in range(4): p("v_mul_f32 v%d, v%d, v%d" % (50+i, 32+i, 32+i))
    for i in range(4, 16): p("v_fmac_f32 v%d, v%d, v%d" % (50+(i % 4), 32+i, 32+i))
    p("v_add_f32 v50, v50, v51"); p("v_add_f32 v52, v52, v53"); p("v_add_f32 v50, v50, v52")
    allred(p, [50], [51], "v_add_f32", [8, 4, 2, 1, 16, 32])
    p("v_mul_f32 v50, 0x3a800000, v50")
    p("v_cvt_pk_bf16_f32 v51, v49, v50")
    p("v_lshlrev_b32 v52, 16, v51")
    p("v_and_b32 v53, 0xffff0000, v51")
    p("v_add_f32 v53, 0x3727c5ac, v53")
    p("v_cvt_pk_bf16_f32 v53, v53, v53"); p("v_lshlrev_b32 v53, 16, v53")
    p("v_sqrt_f32 v53, v53")
    p("v_cvt_pk_bf16_f32 v53, v53, v53"); p("v_lshlrev_b32 v53, 16, v53")
    p("v_rcp_f32 v54, v53")
    p.wait("XB")
    p("v_lshlrev_b32 v32, 16, v232"); p("v_and_b32 v33, 0xffff0000, v232")
    p("v_lshlrev_b32 v34, 16, v233"); p("v_and_b32 v35, 0xffff0000, v233")
    for i in range(4): p("v_sub_f32 v%d, v%d, v52" % (32+i, 32+i))
    p("v_cvt_pk_bf16_f32 v36, v32, v33"); p("v_cvt_pk_bf16_f32 v37, v34, v35")
    p("v_lshlrev_b32 v32, 16, v36"); p("v_and_b32 v33, 0xffff0000, v36")
    p("v_lshlrev_b32 v34, 16, v37"); p("v_and_b32 v35, 0xffff0000, v37")
    for i in range(4): p("v_mul_f32 v%d, v%d, v54" % (40+i, 32+i))
    for i in range(4): p("v_fma_f32 v%d, -v%d, v53, v%d" % (44+i, 40+i, 32+i))
    for i in range(4): p("v_fma_f32 v%d, v%d, v54, v%d" % (40+i, 44+i, 40+i))
    for i in range(4): p("v_cvt_pk_bf16_f32 v%d, v%d, v%d" % (36+i, 40+i, 40+i))
    p("v_lshlrev_b32 v12, 4, v0")
    p("ds_write_b128 v12, v[36:39] offset:%d" % L_XN)
    p("s_waitcnt lgkmcnt(0)")
    p("s_barrier")
    stamp("ln_done")
    p("s_add_u32 %s, %s, 1" % (sE, sE)); p("s_and_b32 %s, %s, 0xff" % (sTAG, sE)); p("v_mov_b32 v%d, %s" % (vTAG, sTAG))
    p("s_and_b32 %s, %s, 3" % (sA, sC)); p("s_lshl_b32 %s, %s, 8" % (sA, sA)); p("s_lshl_b32 %s, %s, 6" % (sD, sW)); p("s_add_u32 %s, %s, %s" % (sA, sA, sD))
    p("v_lshrrev_b32 v12, 3, v1"); p("v_add_u32 v12, %s, v12" % sA); p("v_lshlrev_b32 v12, 2, v12")
    p("s_and_b32 %s, s2, 7" % sA); p("s_lshl_b32 %s, %s, 7" % (sA, sA)); p("s_lshl_b32 %s, %s, 5" % (sD, sW)); p("s_add_u32 %s, %s, %s" % (sA, sA, sD))
    p("v_lshrrev_b32 v13, 4, v1"); p("v_add_u32 v13, %s, v13" % sA); p("v_lshlrev_b32 v13, 2, v13")
    for t in range(0, 8, 2):
        p("ds_read2_b32 v[%d:%d], v12 offset0:%d offset1:%d" % (96+t, 97+t, 8*t, 8*t+8))
    for t in range(0, 8, 2):
        p("ds_read2_b32 v[%d:%d], v13 offset0:%d offset1:%d" % (104+t, 105+t, 4*t, 4*t+4))
    for t in range(8):
        p("s_add_u32 %s, %s, %d" % (sT0, sW3B, t*4*7168))
        svmem("buffer_load_dwordx4 %s, v17, %s, %s offen%s" % (vr(192+4*t, 4), SW3, sT0, ntw), "W3_%d" % t, True)
    p("s_waitcnt lgkmcnt(0)")
    for t in range(8):
        A = 48 + 4*(t % 2)
        for jj in range(4): p("v_and_b32 v%d, v%d, v%d" % (A+jj, 96+t, vMASK+jj))
        if t == 0: p.wait("Q7")
        p("v_mfma_f32_16x16x32_bf16 v[56:59], %s, %s, %s" % (vr(A, 4), vr(128+4*t, 4), "0" if t == 0 else "v[56:59]"))
    for t in range(8):
        for jj in range(4): p("v_and_b32 v%d, v%d, v%d" % (PERM+4*t+jj, 104+t, vMASK+jj))
    p("v_and_b32 v12, 7, v1"); p("v_lshlrev_b32 v12, 5, v12")
    p("v_bfe_u32 v13, v1, 4, 1"); p("v_lshlrev_b32 v13, 4, v13"); p("v_add_u32 v12, v12, v13")
    p("v_lshrrev_b32 v13, 5, v1"); p("v_lshlrev_b32 v13, 8, v13"); p("v_add_u32 v12, v12, v13")
    p("s_lshl_b32 %s, %s, 9" % (sA, sW)); p("v_add_u32 v12, %s, v12" % sA)
    p("s_mov_b32 exec_lo, 0x00ff00ff"); p("s_mov_b32 exec_hi, 0xff00ff00")
    p("ds_write_b128 v12, v[56:59] offset:%d" % L_QP)
    p("s_mov_b64 exec, -1")
    p("s_waitcnt lgkmcnt(0)")
    p("s_barrier")
    stamp("q_gemv")
    SKIP0 = p.label("pubq")
    p("s_cmp_lg_u32 %s, 0" % sW); p("s_cbranch_scc1 %s" % SKIP0)
    p("v_lshlrev_b32 v12, 4, v1")
    for i in range(8): p("ds_read_b128 %s, v12 offset:%d" % (vr(32+4*i, 4) if i < 4 else vr(112+4*(i-4), 4), L_QP + 256*i))
    p("s_lshl_b32 %s, %s, 2" % (sB, sG)); p("s_and_b32 %s, %s, 3" % (sD, sC)); p("s_add_u32 %s, %s, %s" % (sB, sB, sD)); p("s_lshl_b32 %s, %s, 12" % (sB, sB))
    p("s_lshr_b32 %s, %s, 2" % (sD, sC)); p("s_lshl_b32 %s, %s, 8" % (sD, sD)); p("s_add_u32 %s, %s, %s" % (sB, sB, sD))
    p("s_add_u32 %s, %s, %d" % (sB, sB, Q_BASE))
    p("s_waitcnt lgkmcnt(0)")
    for r in range(4):
        p("v_add_f32 v%d, v%d, v%d" % (32+r, 32+r, 36+r)); p("v_add_f32 v%d, v%d, v%d" % (40+r, 40+r, 44+r))
        p("v_add_f32 v%d, v%d, v%d" % (112+r, 112+r, 116+r)); p("v_add_f32 v%d, v%d, v%d" % (120+r, 120+r, 124+r))
    for r in range(4):
        p("v_add_f32 v%d, v%d, v%d" % (32+r, 32+r, 40+r)); p("v_add_f32 v%d, v%d, v%d" % (112+r, 112+r, 120+r))
    for r in range(4): p("v_add_f32 v%d, v%d, v%d" % (32+r, 32+r, 112+r))
    if dyn:
        NOZ = p.label("nozero")
        p("s_cmp_lg_u32 %s, 0" % sC); p("s_cbranch_scc1 %s" % NOZ)
        for r in range(4): p("v_mov_b32 v%d, 0" % (36+r))
        p("s_lshl_b32 %s, %s, 9" % (sD, sG)); p("s_add_u32 %s, %s, %d" % (sD, sD, CNT_BASE))
        p("s_mov_b32 exec_hi, 0")
        p.vmem("buffer_store_dwordx4 v[36:39], v12, %s, %s offen%s" % (SWS, sD, HS), "ZCNT", cond=True)
        p("s_mov_b64 exec, -1")
        p("%s:" % NOZ)
    p("s_mov_b32 exec_lo, 0xffff"); p("s_mov_b32 exec_hi, 0")
    p.vmem("buffer_store_dwordx4 v[32:35], v12, %s, %s offen%s" % (SWS, sB, HS), "PUBQ", cond=True)
    p("s_mov_b64 exec, -1")
    p("%s:" % SKIP0)
    loadK(0)
    p.wait("W1_7")
    stamp("w1_landed")
    for t in range(8):
        p("v_mfma_f32_16x16x32_bf16 v[60:63], %s, %s, %s" % (vr(PERM+4*t, 4), vr(160+4*t, 4), "0" if t == 0 else "v[60:63]"))
    loadK(1)
    p.wait("W3_7")
    stamp("w3_landed")
    for t in range(8):
        p("v_mfma_f32_16x16x32_bf16 v[96:99], %s, %s, %s" % (vr(PERM+4*t, 4), vr(192+4*t, 4), "0" if t == 0 else "v[96:99]"))
    SKIP2 = p.label("flag")
    p("s_cmp_lg_u32 %s, 0" % sW); p("s_cbranch_scc1 %s" % SKIP2)
    p("v_lshlrev_b32 v12, 2, v1"); p("v_mov_b32 v13, %s" % sE)
    p("s_lshl_b32 %s, s2, 7" % sA); p("s_add_u32 %s, %s, %d" % (sA, sA, FLAG_BASE))
    p.wait("PUBQ")
    p("s_mov_b32 exec_hi, 0")
    p.vmem("buffer_store_dword v13, v12, %s, %s offen%s" % (SWS, sA, HS), "FLAG", cond=True)
    p("s_mov_b64 exec, -1")
    p("%s:" % SKIP2)
    stamp("flag")
    p("v_and_b32 v12, 15, v1"); p("v_lshlrev_b32 v12, 5, v12")
    p("v_bfe_u32 v13, v1, 4, 1"); p("v_lshlrev_b32 v13, 4, v13"); p("v_add_u32 v12, v12, v13")
    p("s_lshl_b32 %s, %s, 10" % (sA, sW)); p("v_add_u32 v12, %s, v12" % sA)
    p("s_mov_b32 exec_hi, 0")
    p("ds_write_b128 v12, v[60:63] offset:%d" % L_BP)
    p("ds_write_b128 v12, v[96:99] offset:%d" % (L_BP+512))
    p("s_mov_b64 exec, -1")
    loadK(2)
    p("s_waitcnt lgkmcnt(0)")
    p("s_barrier")
    stamp("b_gemv")
    SKIP1 = p.label("pub1")
    p("s_cmp_lg_u32 %s, 1" % sW); p("s_cbranch_scc1 %s" % SKIP1)
    p("s_cmp_ge_u32 s2, 224"); p("s_cbranch_scc1 %s" % SKIP1)
    p("v_lshlrev_b32 v12, 4, v1")
    for i in range(4): p("ds_read_b128 %s, v12 offset:%d" % (vr(32+4*i, 4), L_BP + 1024*i))
    p("s_and_b32 %s, s2, 7" % sA); p("s_mul_i32 %s, %s, %d" % (sA, sA, 3584*4)); p("s_add_u32 %s, %s, %d" % (sA, sA, BP_BASE))
    p("s_lshl_b32 %s, %s, 9" % (sD, sCB1)); p("s_lshl_b32 %s, %s, 9" % (sB, sCB3)); p("s_add_u32 %s, %s, %d" % (sB, sB, 8*3584*4))
    p("v_mov_b32 v13, %s" % sD); p("v_mov_b32 v14, %s" % sB); p("v_cmp_gt_u32 vcc, 32, v1"); p("v_cndmask_b32 v13, v14, v13, vcc")
    p("v_and_b32 v14, 31, v1"); p("v_lshlrev_b32 v14, 4, v14"); p("v_add_u32 v13, v13, v14")
    p("s_waitcnt lgkmcnt(0)")
    for r in range(4):
        p("v_add_f32 v%d, v%d, v%d" % (32+r, 32+r, 36+r)); p("v_add_f32 v%d, v%d, v%d" % (40+r, 40+r, 44+r))
    for r in range(4): p("v_add_f32 v%d, v%d, v%d" % (32+r, 32+r, 40+r))
    for r in range(4): p("v_bfi_b32 v%d, %s, v%d, v%d" % (32+r, sFF, vTAG, 32+r))
    p.vmem("buffer_store_dwordx4 v[32:35], v13, %s, %s offen%s" % (SWS, sA, HS), "PUBB", cond=True)
    p("%s:" % SKIP1)
    for t in range(3, poll_after): loadK(t)
    SKIPP = p.label("nopoll")
    p("v_lshlrev_b32 v14, 7, v1")
    p("s_lshl_b32 %s, %s, 13" % (sB, sG)); p("s_add_u32 %s, %s, %d" % (sB, sB, FLAG_BASE))
    p("s_cmp_lg_u32 %s, 0" % sW); p("s_cbranch_scc1 %s" % SKIPP)
    p.vmem("buffer_load_dword v15, v14, %s, %s offen%s" % (SWS, sB, HL), "POLL", cond=True)
    p("%s:" % SKIPP)
    pend = []
    for t in range(poll_after, NS): pend += K_loads(t)
    for t in range(4): pend += V_loads(t)
    def tr(n):
        for _ in range(min(n, len(pend))): pend.pop(0)()
    tr(cfg.get("n_after_poll", 16))
    OKP = p.label("okpoll")
    p("s_cmp_lg_u32 %s, 0" % sW); p("s_cbranch_scc1 %s" % OKP)
    p.wait("POLL")
    p("s_mov_b32 %s, %d" % (sRETRY, RETRIES))
    RP = p.label("rpoll")
    p("%s:" % RP)
    p("v_cmp_ne_u32 vcc, %s, v15" % sE)
    if cfg.get("nodep"): p("s_branch %s" % OKP)
    p("s_cbranch_vccz %s" % OKP)
    p("s_sub_u32 %s, %s, 1" % (sRETRY, sRETRY)); p("s_cbranch_scc1 %s" % OKP)
    p("s_sleep %d" % cfg.get("sleep", 8))
    p("buffer_load_dword v15, v14, %s, %s offen%s" % (SWS, sB, HL))
    p("s_waitcnt vmcnt(0)")
    p("s_branch %s" % RP)
    p("%s:" % OKP)
    p("s_barrier")
    stamp("poll_ok")
    p("s_lshl_b32 %s, %s, 14" % (sA, sG)); p("s_lshl_b32 %s, %s, 10" % (sD, sW)); p("s_add_u32 %s, %s, %s" % (sA, sA, sD)); p("s_add_u32 %s, %s, %d" % (sA, sA, Q_BASE))
    for kq in range(4):
        p("s_add_u32 %s, %s, %d" % (sT0, sA, kq*4096))
        p.vmem("buffer_load_dwordx4 %s, v%d, %s, %s offen%s" % (vr(96+4*kq, 4), vL16, SWS, sT0, HL), "QG")
    tr(cfg.get("n_after_qg", 16))
    p("v_lshrrev_b32 v12, 5, v1"); p("s_lshl_b32 %s, %s, 1" % (sA, sW)); p("v_add_u32 v12, %s, v12" % sA); p("v_mul_u32_u24 v12, 272, v12")
    p("v_and_b32 v13, 31, v1"); p("v_lshlrev_b32 v13, 3, v13"); p("v_add_u32 v12, v12, v13")
    p("v_and_b32 v14, 7, v1"); p("v_mul_u32_u24 v14, 272, v14"); p("v_lshrrev_b32 v13, 4, v1"); p("v_lshlrev_b32 v13, 4, v13"); p("v_add_u32 v14, v14, v13")
    p("v_bfe_u32 v13, v1, 3, 1"); p("v_lshlrev_b32 v13, 6, v13"); p("v_add_u32 v14, v14, v13")
    p("v_mov_b32 v%d, 0xff800000" % vMAX)
    p.wait("QG")
    for r in range(4):
        p("v_add_f32 v%d, v%d, v%d" % (96+r, 96+r, 100+r)); p("v_add_f32 v%d, v%d, v%d" % (104+r, 104+r, 108+r))
    for r in range(4): p("v_add_f32 v%d, v%d, v%d" % (96+r, 96+r, 104+r))
    p("v_cvt_pk_bf16_f32 v96, v96, v97"); p("v_cvt_pk_bf16_f32 v97, v98, v99")
    p("ds_write_b64 v12, v[96:97] offset:%d" % L_QL)
    p("s_waitcnt lgkmcnt(0)")
    p("s_barrier")
    stamp("q_ready")
    for lam in range(2): p("ds_read_b128 %s, v14 offset:%d" % (vr(QF+4*lam, 4), L_QL + 128*lam))
    tr(1)
    p("s_waitcnt lgkmcnt(0)")
    def qk_mfma(t):
        D = PERM + 16*(t % 2)
        p.wait("K%d" % t)
        for lam in range(2):
            for h in range(2):
                for a_ in range(2):
                    d = D + 8*h + 4*a_
                    p("v_mfma_f32_16x16x32_bf16 %s, %s, %s, %s" % (vr(d, 4), ar(32*t+16*h+8*a_+4*lam, 4), vr(QF+4*lam, 4), "0" if lam == 0 else vr(d, 4)))
    def qk_post(t):
        D = PERM + 16*(t % 2); T = QF + 8
        for h in range(2):
            for r in range(4): p("v_permlane32_swap_b32 v%d, v%d" % (D+8*h+r, D+8*h+4+r))
        for h in range(2):
            for r in range(4): p("v_add_f32_dpp v%d, v%d, v%d row_ror:8%s" % (D+8*h+r, D+8*h+4+r, D+8*h+r, DPP))
        tr(1)
        src = [D+0, D+1, D+2, D+3, D+8, D+9, D+10, D+11]
        pk = [D+4, D+5, D+6, D+7]
        for i in range(4): p("v_cvt_pk_bf16_f32 v%d, v%d, v%d" % (pk[i], src[2*i], src[2*i+1]))
        for i in range(4):
            p("v_lshlrev_b32 v%d, 16, v%d" % (T+2*i, pk[i])); p("v_and_b32 v%d, 0xffff0000, v%d" % (T+2*i+1, pk[i]))
        for i in range(8): p("v_mul_f32 v%d, %s, v%d" % (T+i, sSCALE, T+i))
        tr(1)
        for i in range(4):
            p("v_cvt_pk_bf16_f32 v%d, v%d, v%d" % (SP+4*t+i, T+2*i, T+2*i+1))
            p("v_max3_f32 v%d, v%d, v%d, v%d" % (vMAX, vMAX, T+2*i, T+2*i+1))
    qk_mfma(0)
    for t in range(1, NS):
        qk_mfma(t)
        qk_post(t-1)
    qk_post(NS-1)
    allred(p, [vMAX], [12], "v_max_f32", [16, 32])
    p("v_cvt_pk_bf16_f32 v12, v%d, v%d" % (vMAX, vMAX)); p("v_lshlrev_b32 v%d, 16, v12" % vMAX)
    p("v_mul_f32 v14, %s, v%d" % (sLOG2E, vMAX)); p("v_sub_f32 v14, 0, v14")
    stamp("qk_done")
    p("v_mov_b32 v%d, 0" % vL0); p("v_mov_b32 v%d, 0" % vL1)
    for b_ in range(NS):
        T = PERM + 8*(b_ % 2)
        for i in range(4):
            p("v_lshlrev_b32 v%d, 16, v%d" % (T+2*i, SP+4*b_+i)); p("v_and_b32 v%d, 0xffff0000, v%d" % (T+2*i+1, SP+4*b_+i))
        for i in range(8): p("v_fma_f32 v%d, v%d, %s, v14" % (T+i, T+i, sLOG2E))
        for i in range(8): p("v_exp_f32 v%d, v%d" % (T+i, T+i))
        for i in range(4):
            p("v_cvt_pk_bf16_f32 v%d, v%d, v%d" % (SP+4*b_+i, T+2*i, T+2*i+1))
            p("v_add_f32 v%d, v%d, v%d" % (vL0, vL0, T+2*i)); p("v_add_f32 v%d, v%d, v%d" % (vL1, vL1, T+2*i+1))
        tr(1)
    tr(100)
    p("v_add_f32 v%d, v%d, v%d" % (vL0, vL0, vL1))
    stamp("p_done")
    if cfg.get("touch", 0):
        T0_ = p.label("t0"); T1_ = p.label("t1"); TE = p.label("te")
        p("s_cmp_eq_u32 %s, 3" % sW); p("s_cbranch_scc1 %s" % TE)
        p("s_cmp_lg_u32 %s, 0" % sW); p("s_cbranch_scc1 %s" % T0_)
        p("v_min_u32 v12, 32, v1"); p("v_lshlrev_b32 v12, 7, v12")
        p("s_mul_i32 %s, s2, %d" % (sA, O_PITCH)); p("s_add_u32 %s, %s, %d" % (sA, sA, O_BASE))
        p("s_branch %s" % T1_)
        p("%s:" % T0_)
        p("v_and_b32 v12, 15, v1"); p("v_lshlrev_b32 v12, 14, v12")
        p("s_lshl_b32 %s, %s, 18" % (sA, sCH)); p("s_lshl_b32 %s, %s, 7" % (sD, sRB)); p("s_add_u32 %s, %s, %s" % (sA, sA, sD))
        p("s_sub_u32 %s, %s, 1" % (sD, sW)); p("s_mul_i32 %s, %s, %d" % (sD, sD, BB_BASE - S_BASE)); p("s_add_u32 %s, %s, %s" % (sA, sA, sD)); p("s_add_u32 %s, %s, %d" % (sA, sA, S_BASE))
        p("%s:" % T1_)
        p.vmem("buffer_load_dword a255, v12, %s, %s offen%s" % (SWS, sA, cfg.get("touchpol", "")), "TOUCH", cond=True)
        p("%s:" % TE)
    def silu(src, dst, tmp, n):
        for r in range(n): p("v_mul_f32 v%d, %s, v%d" % (tmp+r, sLOG2E, src+r))
        for r in range(n): p("v_exp_f32 v%d, -v%d" % (tmp+r, tmp+r))
        for r in range(n): p("v_add_f32 v%d, 1.0, v%d" % (tmp+r, tmp+r))
        for r in range(n): p("v_rcp_f32 v%d, v%d" % (tmp+r, tmp+r))
        for r in range(n): p("v_mul_f32 v%d, v%d, v%d" % (dst+r, src+r, tmp+r))
    def unpack2(dst, src):
        p("v_lshlrev_b32 v%d, 16, v%d" % (dst, src)); p("v_and_b32 v%d, 0xffff0000, v%d" % (dst+1, src))
    sH0, sH1 = "s69", "s70"
    def h_issue():
        p("v_lshrrev_b32 v15, 3, v1"); p("v_mul_u32_u24 v15, 14336, v15"); p("v_and_b32 v13, 7, v1"); p("v_min_u32 v13, 6, v13"); p("v_lshlrev_b32 v13, 4, v13"); p("v_add_u32 v15, v15, v13")
        p("s_mul_i32 %s, %s, 112" % (sH0, sRB)); p("s_add_u32 %s, %s, %d" % (sH0, sH0, BP_BASE)); p("s_add_u32 %s, %s, %d" % (sH1, sH0, 8*14336))
        p.vmem("buffer_load_dwordx4 v[32:35], v15, %s, %s offen%s" % (SWS, sH0, HL), "HG")
        p.vmem("buffer_load_dwordx4 v[36:39], v15, %s, %s offen%s" % (SWS, sH1, HL), "HG")
    def retry_block(check, reload, base):
        R = p.label("r" + base); OK = p.label("ok" + base)
        p("s_mov_b32 %s, %d" % (sRETRY, RETRIES))
        p("%s:" % R)
        check()
        p("s_cbranch_vccz %s" % OK)
        p("s_sub_u32 %s, %s, 1" % (sRETRY, sRETRY)); p("s_cbranch_scc1 %s" % OK)
        reload()
        p("s_waitcnt vmcnt(0)")
        p("s_branch %s" % R)
        p("%s:" % OK)
    def h_compute():
        p.wait("HG")
        def rl():
            p("s_sleep %d" % cfg.get("sleep", 8))
            p("buffer_load_dwordx4 v[32:35], v15, %s, %s offen%s" % (SWS, sH0, HL))
            p("buffer_load_dwordx4 v[36:39], v15, %s, %s offen%s" % (SWS, sH1, HL))
        retry_block(lambda: tagcheck(list(range(32, 40)), 14), rl, "h")
        red4(p, [32, 33, 34, 35]); red4(p, [36, 37, 38, 39])
        p("v_cvt_pk_bf16_f32 v40, v32, v36")
        unpack2(32, 40)
        silu(32, 32, 40, 1)
        p("v_cvt_pk_bf16_f32 v40, v32, v32"); p("v_lshlrev_b32 v32, 16, v40")
        p("v_mul_f32 v32, v32, v33")
        p("v_cvt_pk_bf16_f32 v32, v32, v32")
        p("v_lshrrev_b32 v12, 4, v1"); p("v_and_b32 v13, 1, v12"); p("v_lshlrev_b32 v13, 1, v13"); p("v_lshrrev_b32 v12, 1, v12"); p("v_or_b32 v12, v12, v13")
        p("v_lshlrev_b32 v12, 5, v12"); p("v_and_b32 v13, 7, v1"); p("v_lshlrev_b32 v13, 2, v13"); p("v_add_u32 v13, v13, v12")
        p("ds_write_b32 v13, v32 offset:%d" % L_HL)
    sOB = "s77"
    late = []
    floor_ = [0]
    def tl(n=1):
        for _ in range(min(n, max(0, len(late) - floor_[0]))): late.pop(0)()
    PX = 60
    def pv(t, trickle=False, name=None):
        base = RING + 32*(t % 4)
        Preg = SP + 4*t if (t < NS and name is None) else PX
        p.wait(name or "V%d" % t)
        def perm(j):
            c, h = j >> 1, j & 1
            for tt in range(4):
                p("v_perm_b32 v%d, v%d, v%d, %s" % (PERM+4*j+tt, base+4*(2*tt+1)+c, base+4*(2*tt)+c, sSELHI if h else sSELLO))
        def mm(j):
            p("v_mfma_f32_16x16x32_bf16 %s, %s, %s, %s" % (vr(ACC+4*j, 4), vr(PERM+4*j, 4), vr(Preg, 4), "0" if (t == 0 and name is None) else vr(ACC+4*j, 4)))
        perm(0)
        for j in range(1, 8):
            perm(j); mm(j-1)
            if trickle and j in (2, 5): tl(1)
        mm(7)
    vW2O, vOO = 31, 11
    sW2B = "s3"
    def late_addresses():
        p("v_lshrrev_b32 v12, 4, v1"); p("v_and_b32 v13, 15, v1"); p("v_lshlrev_b32 v13, 4, v13")
        p("v_lshlrev_b32 v%d, 11, v12" % vW2O); p("v_add_u32 v%d, v%d, v13" % (vW2O, vW2O))
        p("v_lshlrev_b32 v%d, 14, v12" % vOO); p("v_add_u32 v%d, v%d, v13" % (vOO, vOO))
        p("s_lshl_b32 %s, %s, 10" % (sD, sCH)); p("s_lshl_b32 %s, %s, 8" % (sA, sW)); p("s_add_u32 %s, %s, %s" % (sD, sD, sA))
        p("s_mul_i32 %s, %s, %d" % (sW2B, sRB, 28*2048)); p("s_add_u32 %s, %s, %s" % (sW2B, sW2B, sD))
        p("s_lshl_b32 %s, %s, 16" % (sOB, sRB)); p("s_add_u32 %s, %s, %s" % (sOB, sOB, sD))
    def W2_loads():
        L = []
        for t in range(7):
            def f(t=t):
                p("s_add_u32 %s, %s, %d" % (sT0, sW2B, t*4*2048))
                svmem("buffer_load_dwordx4 %s, v%d, %s, %s offen%s" % (ar(4*t, 4), vW2O, SW2, sT0, ntw), "W2")
            L.append(f)
        return L
    def O_loads():
        L = []
        for t in range(8):
            def f(t=t):
                p("s_add_u32 %s, %s, %d" % (sT0, sOB, t*2048))
                svmem("buffer_load_dwordx4 %s, v%d, %s, %s offen%s" % (ar(32+4*t, 4), vOO, SWO, sT0, ntw), "O")
            L.append(f)
        return L
    vAWB, vRD, vPO, vLWR, vMLS, vG0, vG1 = 24, 25, 26, 27, 28, 29, 30
    vPC, vCM, vCPW, vCPR, vZ = 160, 161, 162, 163, 165
    vAW = PERM + 24
    sPO, sPB, sPS, sGV, sGM, sGA = "s71", "s72", "s73", "s74", "s75", "s76"
    def tail_addresses_a():
        p("v_and_b32 v12, 7, v1"); p("v_lshlrev_b32 v13, 9, v12"); p("v_lshlrev_b32 v12, 4, v12"); p("v_add_u32 v12, v12, v13")
        p("v_lshrrev_b32 v13, 4, v1"); p("v_lshlrev_b32 v13, 7, v13"); p("v_add_u32 v12, v12, v13")
        p("s_lshl_b32 %s, %s, 12" % (sA, sW)); p("s_add_u32 %s, %s, %d" % (sA, sA, L_OP)); p("v_add_u32 v%d, %s, v12" % (vAWB, sA))
        p("v_lshlrev_b32 v%d, 4, v0" % vRD)
        p("v_lshrrev_b32 v14, 5, v0"); p("v_and_b32 v15, 7, v0"); p("v_xor_b32 v14, v14, v15"); p("v_lshlrev_b32 v14, 4, v14")
        p("v_lshrrev_b32 v15, 3, v0"); p("v_lshlrev_b32 v15, 7, v15"); p("v_add_u32 v%d, v14, v15" % vPO)
        p("s_mul_i32 %s, s2, %d" % (sPO, O_PITCH)); p("s_add_u32 %s, %s, %d" % (sPO, sPO, O_BASE))
        p("v_lshrrev_b32 v13, 5, v0"); p("v_lshlrev_b32 v%d, 5, v13" % vLWR)
        p("v_lshlrev_b32 v%d, 4, v1" % vMLS); p("v_add_u32 v%d, 4096, v%d" % (vMLS, vMLS))
        p("v_lshrrev_b32 v12, 3, v1"); p("v_mul_u32_u24 v%d, %d, v12" % (vG0, O_PITCH))
        p("v_and_b32 v13, 7, v1"); p("v_lshlrev_b32 v13, 4, v13"); p("v_add_u32 v%d, v%d, v13" % (vG1, vG0))
        p("s_lshl_b32 %s, %s, 6" % (sA, sG)); p("s_mul_i32 %s, %s, %d" % (sA, sA, O_PITCH)); p("s_add_u32 %s, %s, %d" % (sA, sA, O_BASE))
        p("s_bfe_u32 %s, s2, 0x30003" % sB)
        p("s_lshl_b32 %s, %s, 4" % (sD, sB)); p("s_add_u32 %s, %s, %s" % (sGM, sA, sD)); p("s_add_u32 %s, %s, 4096" % (sGM, sGM))
        p("s_lshl_b32 %s, %s, 2" % (sB, sB)); p("s_bfe_u32 %s, s2, 0x20001" % sD); p("s_add_u32 %s, %s, %s" % (sB, sB, sD)); p("s_lshl_b32 %s, %s, 7" % (sB, sB))
        p("s_add_u32 %s, %s, %s" % (sB, sB, sA))
        p("s_mul_i32 %s, %s, %d" % (sD, sW, 16*O_PITCH))
        p("s_add_u32 %s, %s, %s" % (sGV, sB, sD)); p("s_add_u32 %s, %s, %s" % (sGA, sGM, sD))
    def tail_addresses_b():
        p("v_bfe_u32 v12, v1, 2, 2"); p("v_lshlrev_b32 v12, 14, v12")
        p("v_and_b32 v13, 3, v1"); p("v_lshlrev_b32 v13, 5, v13"); p("v_add_u32 v12, v12, v13")
        p("v_bfe_u32 v13, v1, 4, 1"); p("v_lshlrev_b32 v13, 4, v13"); p("v_add_u32 v%d, v12, v13" % vPC)
        p("s_lshl_b32 %s, %s, 18" % (sA, sCH)); p("s_lshl_b32 %s, %s, 16" % (sD, sW)); p("s_add_u32 %s, %s, %s" % (sA, sA, sD))
        p("s_lshl_b32 %s, %s, 7" % (sD, sRB)); p("s_add_u32 %s, %s, %s" % (sA, sA, sD))
        p("s_add_u32 %s, %s, %d" % (sPB, sA, BB_BASE)); p("s_add_u32 %s, %s, %d" % (sPS, sA, S_BASE))
        p("v_lshrrev_b32 v12, 4, v1"); p("v_and_b32 v13, 1, v12"); p("v_lshlrev_b32 v13, 1, v13"); p("v_lshrrev_b32 v12, 1, v12"); p("v_or_b32 v12, v12, v13")
        p("v_lshlrev_b32 v12, 5, v12"); p("v_and_b32 v13, 7, v1"); p("v_lshlrev_b32 v13, 2, v13"); p("v_add_u32 v12, v12, v13")
        p("s_lshl_b32 %s, %s, 7" % (sA, sW)); p("v_add_u32 v%d, %s, v12" % (vCPW, sA))
        p("v_lshrrev_b32 v13, 4, v1"); p("v_lshlrev_b32 v%d, 5, v13" % vCPR)
        p("s_lshl_b32 %s, %s, 3" % (sA, sW)); p("v_mov_b32 v%d, %s" % (vCM, sA)); p("v_mov_b32 v%d, 0" % vZ)
    n_pre = cfg.get("n_pre", 10)
    sCNT = "s76"
    def claim(reg, name):
        p("v_mov_b32 v%d, 1" % reg)
        p("s_mov_b32 exec_lo, 1"); p("s_mov_b32 exec_hi, 0")
        p.vmem("buffer_atomic_add v%d, off, %s, %s sc0" % (reg, SWS, sCNT), name)
        p("s_mov_b64 exec, -1")
    def claim_result(reg, name, miss):
        p.wait(name)
        p("v_readfirstlane_b32 %s, v%d" % (sX, reg))
        p("s_cmp_ge_u32 %s, 64" % sX); p("s_cbranch_scc1 %s" % miss)
        p("s_lshl_b32 %s, %s, 15" % (sX, sX)); p("s_add_u32 %s, %s, %s" % (sX, sX, sPOOL))
    def qk_dyn(t, slot, name=None):
        D = PERM; T = PERM + 16
        p.wait(name or "K%d" % t)
        for lam in range(2):
            for h in range(2):
                for a_ in range(2):
                    d = D + 8*h + 4*a_
                    p("v_mfma_f32_16x16x32_bf16 %s, %s, %s, %s" % (vr(d, 4), ar(32*slot+16*h+8*a_+4*lam, 4), vr(QF+4*lam, 4), "0" if lam == 0 else vr(d, 4)))
        tl(1)
        for h in range(2):
            for r in range(4): p("v_permlane32_swap_b32 v%d, v%d" % (D+8*h+r, D+8*h+4+r))
        for h in range(2):
            for r in range(4): p("v_add_f32_dpp v%d, v%d, v%d row_ror:8%s" % (D+8*h+r, D+8*h+4+r, D+8*h+r, DPP))
        src = [D+0, D+1, D+2, D+3, D+8, D+9, D+10, D+11]
        pk = [D+4, D+5, D+6, D+7]
        for i in range(4): p("v_cvt_pk_bf16_f32 v%d, v%d, v%d" % (pk[i], src[2*i], src[2*i+1]))
        for i in range(4): unpack2(T+2*i, pk[i])
        for i in range(8): p("v_mul_f32 v%d, %s, v%d" % (T+i, sSCALE, T+i))
        for i in range(4): p("v_cvt_pk_bf16_f32 v%d, v%d, v%d" % (PX+i, T+2*i, T+2*i+1))
        p("v_max3_f32 v12, v%d, v%d, v%d" % (T, T+1, T+2)); p("v_max3_f32 v13, v%d, v%d, v%d" % (T+3, T+4, T+5))
        p("v_max3_f32 v12, v12, v%d, v%d" % (T+6, T+7)); p("v_max_f32 v12, v12, v13")
        allred(p, [12], [13], "v_max_f32", [16, 32])
        tl(1)
        p("v_cvt_pk_bf16_f32 v12, v12, v12"); p("v_lshlrev_b32 v12, 16, v12")
        p("v_max_f32 v12, v12, v%d" % vMAX)
        p("v_sub_f32 v14, v%d, v12" % vMAX); p("v_mul_f32 v14, %s, v14" % sLOG2E); p("v_exp_f32 v14, v14")
        p("v_mov_b32 v%d, v12" % vMAX)
        p("v_mul_f32 v15, %s, v12" % sLOG2E); p("v_sub_f32 v15, 0, v15")
        for i in range(4): unpack2(T+2*i, PX+i)
        for i in range(8): p("v_fma_f32 v%d, v%d, %s, v15" % (T+i, T+i, sLOG2E))
        for i in range(8): p("v_exp_f32 v%d, v%d" % (T+i, T+i))
        p("v_mul_f32 v%d, v%d, v14" % (vL0, vL0))
        for i in range(4): p("v_cvt_pk_bf16_f32 v%d, v%d, v%d" % (PX+i, T+2*i, T+2*i+1))
        for i in range(0, 8, 2): p("v_add_f32 v%d, v%d, v%d" % (T+i, T+i, T+i+1))
        p("v_add_f32 v%d, v%d, v%d" % (T, T, T+2)); p("v_add_f32 v%d, v%d, v%d" % (T+4, T+4, T+6))
        p("v_add_f32 v%d, v%d, v%d" % (T, T, T+4)); p("v_add_f32 v%d, v%d, v%d" % (vL0, vL0, T))
        p("v_mov_b32 v15, v14")
    def rescale():
        for r in range(0, 32, 2): p("v_pk_mul_f32 %s, %s, v[14:15]" % (vr(ACC+r, 2), vr(ACC+r, 2)))
    vMLR = vL0
    def ml_publish_lds():
        allred(p, [vL0], [12], "v_add_f32", [16, 32])
        p("v_mov_b32 v12, v%d" % vMAX); p("v_mov_b32 v13, v%d" % vL0)
        p("v_and_b32 v%d, 7, v1" % vMLR); p("v_lshlrev_b32 v%d, 5, v%d" % (vMLR, vMLR))
        p("s_lshl_b32 %s, %s, 3" % (sA, sW)); p("v_add_u32 v14, %s, v%d" % (sA, vMLR))
        p("s_mov_b32 exec_lo, 0x00ff00ff"); p("s_mov_b32 exec_hi, 0x00ff00ff")
        p("ds_write_b64 v14, v[12:13] offset:%d" % L_LW)
        p("s_mov_b64 exec, -1")
    def new_late():
        del late[:]
        late.extend(W2_loads() + O_loads())
        floor_[0] = 15 - n_pre
    def flush_pre():
        while len(late) > 15 - n_pre: tl(1)
    TAIL = p.label("tail")
    o_pos = cfg.get("o_pos", -1)
    w2_pos = cfg.get("w2_pos", -1)
    if not dyn:
        if w2_pos >= 0:
            late_addresses()
            def maybe_w2(t):
                if w2_pos == t:
                    for f in W2_loads(): f()
            pv(0); maybe_w2(4); loadV(4)
            pv(1); h_issue(); maybe_w2(5); loadV(5)
            pv(2); maybe_w2(6); loadV(6)
            pv(3); maybe_w2(7); loadV(7)
            del late[:]; late.extend(O_loads()); floor_[0] = 8 - n_pre
            pv(4, True); tl(1); h_compute(); tl(1); pv(5, True); tl(1); tail_addresses_a(); ml_publish_lds(); tl(1); pv(6, True)
            while len(late) > 8 - n_pre: tl(1)
            pv(7)
        elif o_pos < 0:
            pv(0); loadV(4)
            pv(1); h_issue(); loadV(5)
            pv(2); loadV(6)
            pv(3); loadV(7)
            late_addresses(); new_late()
            pv(4, True); tl(1); h_compute(); tl(1); pv(5, True); tl(1); tail_addresses_a(); ml_publish_lds(); tl(1); pv(6, True)
            flush_pre()
            pv(7)
        else:
            late_addresses()
            pv(0); loadV(4)
            pv(1); h_issue(); loadV(5)
            pv(2)
            if o_pos == 6:
                for f in O_loads(): f()
            loadV(6)
            pv(3)
            if o_pos == 7:
                for f in O_loads(): f()
            loadV(7)
            del late[:]; late.extend(W2_loads())
            pv(4, True); tl(1); h_compute(); tl(1); pv(5, True); tl(1); tail_addresses_a(); ml_publish_lds(); tl(1); pv(6, True)
            tl(100)
            pv(7)
    elif dyn == 2:
        NPOOL = 64*(8-NS)
        EXIT_S = p.label("exitS"); EXIT_A = p.label("exitA"); EXIT_B = p.label("exitB"); LOOP_A = p.label("loopA")
        def claim2():
            p("s_mov_b32 %s, 1" % sCL)
            p("s_atomic_add %s, s[78:79], 0 glc" % sCL)
        def claim2_result(miss):
            p("s_waitcnt lgkmcnt(0)")
            p("s_cmp_ge_u32 %s, %d" % (sCL, NPOOL)); p("s_cbranch_scc1 %s" % miss)
            p("s_lshl_b32 %s, %s, 15" % (sX, sCL)); p("s_add_u32 %s, %s, %s" % (sX, sX, sPOOL))
        p("s_lshl_b32 %s, %s, 2" % (sA, sG)); p("s_add_u32 %s, %s, %s" % (sA, sA, sW)); p("s_lshl_b32 %s, %s, 7" % (sA, sA)); p("s_add_u32 %s, %s, %d" % (sA, sA, CNT_BASE))
        p("s_add_u32 s78, s44, %s" % sA); p("s_addc_u32 s79, s45, 0")
        if cfg.get("dynlin"):
            p("v_and_b32 v12, 3, v1"); p("v_mul_u32_u24 v12, %d, v12" % (stride - 1024)); p("v_sub_u32 v%d, v%d, v12" % (vOFFK2, vOFFK))
        assert NS == 6
        late_claim = cfg.get("late_claim", 1)
        if late_claim:
            pv(0); loadV(4)
            pv(1); h_issue(); claim2(); loadV(5)
        else:
            pv(0); loadV(4); claim2()
            pv(1); h_issue(); loadV(5)
        claim2_result(EXIT_S)
        vmS = list(p.vm)
        if not late_claim: claim2()
        for f in K_loads(0, slot=6, name="KA"): f()
        pv(2)
        for f in V_loads(2, True, name="VA"): f()
        pv(3); h_compute(); late_addresses(); tail_addresses_a()
        pv(4)
        if late_claim: p("s_waitcnt lgkmcnt(0)"); claim2()
        pv(5)
        if stamps: p("s_mov_b32 s101, 0")
        p("%s:" % LOOP_A)
        p.vm = [("KA", False)]*8 + [("VA", False)]*8
        if stamps: p("s_add_u32 s101, s101, 1")
        claim2_result(EXIT_A)
        if not late_claim: claim2()
        for f in K_loads(0, slot=7, name="KB"): f()
        for f in V_loads(3, True, name="VB"): f()
        if late_claim: claim2()
        qk_dyn(0, 6, "KA"); rescale(); pv(2, False, "VA")
        p.vm = [("KB", False)]*8 + [("VB", False)]*8
        if stamps: p("s_add_u32 s101, s101, 1")
        claim2_result(EXIT_B)
        if not late_claim: claim2()
        for f in K_loads(0, slot=6, name="KA"): f()
        for f in V_loads(2, True, name="VA"): f()
        if late_claim: claim2()
        qk_dyn(0, 7, "KB"); rescale(); pv(3, False, "VB")
        p("s_branch %s" % LOOP_A)
        p("%s:" % EXIT_A)
        p.vm = [("KA", False)]*8 + [("VA", False)]*8
        new_late(); tl(3)
        qk_dyn(0, 6, "KA"); rescale(); ml_publish_lds()
        flush_pre()
        pv(2, False, "VA")
        p("s_branch %s" % TAIL)
        p("%s:" % EXIT_B)
        p.vm = [("KB", False)]*8 + [("VB", False)]*8
        new_late(); tl(3)
        qk_dyn(0, 7, "KB"); rescale(); ml_publish_lds()
        flush_pre()
        pv(3, False, "VB")
        p("s_branch %s" % TAIL)
        p("%s:" % EXIT_S)
        if stamps: p("s_mov_b32 s101, 0")
        p.vm = list(vmS)
        pv(2); late_addresses(); new_late()
        pv(3, True); tl(1); h_compute(); tl(1); tail_addresses_a(); tl(1); pv(4, True); ml_publish_lds()
        flush_pre()
        pv(5)
    else:
        LEAF_A = p.label("leafA"); LEAF_B = p.label("leafB")
        p("s_lshl_b32 %s, %s, 2" % (sCNT, sG)); p("s_add_u32 %s, %s, %s" % (sCNT, sCNT, sW)); p("s_lshl_b32 %s, %s, 7" % (sCNT, sCNT)); p("s_add_u32 %s, %s, %d" % (sCNT, sCNT, CNT_BASE))
        pv(0); loadV(4); claim(60, "C1")
        pv(1); h_issue(); loadV(5)
        pv(2); loadV(6)
        claim_result(60, "C1", LEAF_A)
        vmA = list(p.vm)
        claim(61, "C2")
        for f in K_loads(7, slot=7): f()
        pv(3)
        for f in V_loads(7, True): f()
        pv(4); h_compute()
        claim_result(61, "C2", LEAF_B)
        vmB = list(p.vm)
        for f in K_loads(8, slot=6): f()
        for f in V_loads(8, True): f()
        if stamps: p("s_mov_b32 s101, 2")
        late_addresses(); tail_addresses_a(); new_late()
        pv(5, True); pv(6, True)
        qk_dyn(7, 7); rescale(); pv(7, True)
        qk_dyn(8, 6); rescale(); ml_publish_lds()
        flush_pre()
        pv(8)
        p("s_branch %s" % TAIL)
        p("%s:" % LEAF_B)
        if stamps: p("s_mov_b32 s101, 1")
        p.vm = list(vmB)
        late_addresses(); tail_addresses_a(); new_late()
        pv(5, True); tl(1); pv(6, True); tl(1)
        qk_dyn(7, 7); rescale(); ml_publish_lds()
        flush_pre()
        pv(7)
        p("s_branch %s" % TAIL)
        p("%s:" % LEAF_A)
        if stamps: p("s_mov_b32 s101, 0")
        p.vm = list(vmA)
        pv(3); late_addresses(); new_late()
        pv(4, True); tl(1); h_compute(); tl(1); tail_addresses_a(); tl(1); pv(5, True); ml_publish_lds()
        flush_pre()
        pv(6)
    p("%s:" % TAIL)
    if dyn or (o_pos < 0 and w2_pos < 0):
        p.vm = ([("W2", False)]*7 + [("O", False)]*8)[:n_pre]
        del late[:]; late.extend((W2_loads() + O_loads())[n_pre:])
    floor_[0] = 0
    stamp("pv_done")
    def g2_loads(R, nm):
        f = (lambda t: p.vmem(t, nm)) if nm else p
        f("buffer_load_dwordx4 %s, v%d, %s, %s offen%s" % (vr(R, 4), vG1, SWS, sGV, HL))
        f("buffer_load_dwordx4 %s, v%d, %s, %s offen%s" % (vr(R+8, 4), vG0, SWS, sGA, HL))
        p("s_add_u32 %s, %s, %d" % (sT0, sGV, 8*O_PITCH))
        f("buffer_load_dwordx4 %s, v%d, %s, %s offen%s" % (vr(R+4, 4), vG1, SWS, sT0, HL))
        p("s_add_u32 %s, %s, %d" % (sT0, sGA, 8*O_PITCH))
        f("buffer_load_dwordx4 %s, v%d, %s, %s offen%s" % (vr(R+12, 4), vG0, SWS, sT0, HL))
    for j in range(8): p("v_xor_b32 v%d, %d, v%d" % (vAW+j, 16*j, vAWB))
    p("s_mov_b32 exec_lo, 0x00ff00ff"); p("s_mov_b32 exec_hi, 0x00ff00ff")
    for j in range(8):
        p("ds_write_b128 v%d, %s" % (vAW+j, vr(ACC+4*j, 4)))
    p("s_mov_b64 exec, -1")
    p("s_waitcnt lgkmcnt(0)")
    p("s_barrier")
    if cfg.get("g2first", 0) == 2: g2_loads(96, "G2A")
    F = PERM + 16
    G_ = 112
    p("ds_read_b128 %s, v%d offset:%d" % (vr(F, 4), vLWR, L_LW)); p("ds_read_b128 %s, v%d offset:%d" % (vr(F+4, 4), vLWR, L_LW+16))
    for i in range(4): p("ds_read_b128 %s, v%d offset:%d" % (vr(PERM+4*i, 4), vRD, L_OP + 4096*i))
    p("ds_read_b128 %s, v%d offset:%d" % (vr(G_, 4), vMLR, L_LW)); p("ds_read_b128 %s, v%d offset:%d" % (vr(G_+4, 4), vMLR, L_LW+16))
    p("s_waitcnt lgkmcnt(6)")
    p("v_max3_f32 v12, v%d, v%d, v%d" % (F, F+2, F+4)); p("v_max_f32 v12, v12, v%d" % (F+6))
    for i in range(4): p("v_sub_f32 v%d, v%d, v12" % (F+2*i, F+2*i))
    for i in range(4): p("v_mul_f32 v%d, %s, v%d" % (F+2*i, sLOG2E, F+2*i))
    for i in range(4): p("v_exp_f32 v%d, v%d" % (F+2*i, F+2*i))
    for i in range(4): p("v_mov_b32 v%d, v%d" % (F+2*i+1, F+2*i))
    p("s_waitcnt lgkmcnt(5)")
    for r in range(0, 4, 2): p("v_pk_mul_f32 %s, %s, %s" % (vr(PERM+r, 2), vr(F, 2), vr(PERM+r, 2)))
    for i in range(1, 4):
        p("s_waitcnt lgkmcnt(%d)" % (5-i))
        for r in range(0, 4, 2): p("v_pk_fma_f32 %s, %s, %s, %s" % (vr(PERM+r, 2), vr(F+2*i, 2), vr(PERM+4*i+r, 2), vr(PERM+r, 2)))
    for r in range(4): p("v_bfi_b32 v%d, %s, v%d, v%d" % (PERM+r, sFF, vTAG, PERM+r))
    g2first = cfg.get("g2first", 0)
    if g2first == 1: g2_loads(96, "G2A")
    p.vmem("buffer_store_dwordx4 %s, v%d, %s, %s offen%s" % (vr(PERM, 4), vPO, SWS, sPO, HS), "PUBO")
    SKIP4 = p.label("ml")
    p("s_cmp_lg_u32 %s, 0" % sW); p("s_cbranch_scc1 %s" % SKIP4)
    p("s_waitcnt lgkmcnt(0)")
    p("v_max3_f32 v12, v%d, v%d, v%d" % (G_, G_+2, G_+4)); p("v_max_f32 v12, v12, v%d" % (G_+6))
    for i in range(4): p("v_sub_f32 v%d, v%d, v12" % (G_+2*i, G_+2*i))
    for i in range(4): p("v_mul_f32 v%d, %s, v%d" % (G_+2*i, sLOG2E, G_+2*i))
    for i in range(4): p("v_exp_f32 v%d, v%d" % (G_+2*i, G_+2*i))
    p("v_mul_f32 v13, v%d, v%d" % (G_, G_+1))
    for i in range(1, 4): p("v_fmac_f32 v13, v%d, v%d" % (G_+2*i, G_+2*i+1))
    p("v_bfi_b32 v%d, %s, v%d, v12" % (F, sFF, vTAG)); p("v_bfi_b32 v%d, %s, v%d, v13" % (F+1, sFF, vTAG))
    p("v_mov_b32 v%d, %s" % (F+2, sE)); p("v_mov_b32 v%d, %s" % (F+3, sE))
    p("s_mov_b32 exec_lo, 0xff"); p("s_mov_b32 exec_hi, 0")
    p.vmem("buffer_store_dwordx4 %s, v%d, %s, %s offen%s" % (vr(F, 4), vMLS, SWS, sPO, HS), "PUBML", cond=True)
    p("s_mov_b64 exec, -1")
    p("%s:" % SKIP4)
    p("s_waitcnt lgkmcnt(0)")
    stamp("o_pub")
    DD = 124
    def pub_cols(sb, name):
        for r in range(4): p("v_bfi_b32 v%d, %s, v%d, v%d" % (DD+r, sFF, vTAG, DD+r))
        p("s_mov_b32 exec_hi, 0")
        p.vmem("buffer_store_dwordx4 %s, v%d, %s, %s offen%s" % (vr(DD, 4), vPC, SWS, sb, HS), name)
        p("s_mov_b64 exec, -1")
    def diag_mult(src, n, breg):
        for t in range(n+1):
            if t < n:
                A = PERM + 4*(t % 4)
                for jj in range(4): p("v_and_b32 v%d, v%d, v%d" % (A+jj, src+t, vMASK+jj))
            if t >= 1:
                tt = t-1; AA = PERM + 4*(tt % 4)
                p("v_mfma_f32_16x16x32_bf16 %s, %s, %s, %s" % (vr(DD, 4), vr(AA, 4), ar(breg+4*tt, 4), "0" if tt == 0 else vr(DD, 4)))
    def w2_mult(st=True):
        p("v_lshrrev_b32 v13, 4, v1"); p("v_lshlrev_b32 v13, 5, v13")
        p("ds_read_b128 v[16:19], v13 offset:%d" % L_HL); p("ds_read_b128 v[20:23], v13 offset:%d" % (L_HL+16))
        p("s_waitcnt lgkmcnt(0)")
        p.wait("W2")
        diag_mult(16, 7, 0)
        pub_cols(sPB, "PUBB2")
        if st: stamp("b_pub")
    def g2_check():
        p("v_xor_b32 v14, %s, v106" % sE)
        for r in (107, 110, 111): p("v_bitop3_b32 v14, v%d, %s, v14 bitop3:0xbe" % (r, sE))
        regs = list(range(96, 106)) + [108, 109]
        p("v_xor_b32 v15, %s, v%d" % (sTAG, regs[0]))
        for r in regs[1:]: p("v_bitop3_b32 v15, v%d, %s, v15 bitop3:0xbe" % (r, sTAG))
        p("v_and_or_b32 v15, v15, %s, v14" % sFF)
        p("v_cmp_ne_u32 vcc, 0, v15")
        if cfg.get("nodep"): p("s_mov_b64 vcc, 0")
    tail2 = cfg.get("tail2", 0)
    def rl2():
        if cfg.get("g2sleep", 0): p("s_sleep %d" % cfg["g2sleep"])
        g2_loads(96, None)
    if not g2first: g2_loads(96, "G2A")
    sBD = "s68"
    if not tail2:
        if cfg.get("tailorder", 0) == 0:
            tl(100); tail_addresses_b(); w2_mult()
        else:
            tail_addresses_b(); w2_mult(); tl(100)
        p.wait("G2A")
        stamp("g2_first")
        retry_block(g2_check, rl2, "g2")
    else:
        assert n_pre <= 7
        tl(7 - n_pre)
        tail_addresses_b()
        p.wait("G2A")
        stamp("g2_first")
        OK1 = p.label("g2ok1"); COMB = p.label("comb"); RL = p.label("g2rl")
        g2_check()
        p("s_cbranch_vccz %s" % OK1)
        vm0 = list(p.vm); late0 = list(late)
        tl(100)
        w2_mult()
        p("s_mov_b32 %s, 1" % sBD)
        p("s_mov_b32 %s, %d" % (sRETRY, RETRIES))
        p("%s:" % RL)
        rl2()
        p("s_waitcnt vmcnt(0)")
        g2_check()
        p("s_cbranch_vccz %s" % COMB)
        p("s_sub_u32 %s, %s, 1" % (sRETRY, sRETRY)); p("s_cbranch_scc0 %s" % RL)
        p("s_branch %s" % COMB)
        p("%s:" % OK1)
        p.vm = list(vm0); del late[:]; late.extend(O_loads())
        tl(100)
        p("s_mov_b32 %s, 0" % sBD); p("s_mov_b32 %s, %d" % (sRETRY, RETRIES))
        p("%s:" % COMB)
    stamp("g2_ok")
    if stamps: p("s_mov_b32 s3, %s" % sRETRY)
    p("v_and_b32 v104, 0xffffff00, v104"); p("v_and_b32 v108, 0xffffff00, v108")
    p("v_max_f32 v120, v104, v108")
    allred(p, [120], [121], "v_max_f32", [8, 16, 32])
    p("v_sub_f32 v104, v104, v120"); p("v_sub_f32 v108, v108, v120")
    p("v_mul_f32 v104, %s, v104" % sLOG2E); p("v_mul_f32 v108, %s, v108" % sLOG2E)
    p("v_exp_f32 v104, v104"); p("v_exp_f32 v108, v108")
    for r in range(4): p("v_mul_f32 v%d, v104, v%d" % (96+r, 96+r))
    p("v_mul_f32 v105, v104, v105")
    for r in range(4): p("v_fmac_f32 v%d, v108, v%d" % (96+r, 100+r))
    p("v_fmac_f32 v105, v108, v109")
    allred(p, [105], [121], "v_add_f32", [32, 16, 8])
    red4(p, [96, 97, 98, 99])
    p("v_mov_b32 v121, v105")
    p("ds_write_b32 v%d, v96 offset:%d" % (vCPW, L_CP))
    p("ds_write_b64 v%d, v[120:121] offset:%d" % (vCM, L_CM))
    p("s_waitcnt lgkmcnt(0)")
    p("s_barrier")
    if tail2:
        BD = p.label("bdone")
        p("s_cmp_lg_u32 %s, 0" % sBD); p("s_cbranch_scc1 %s" % BD)
        w2_mult(False)
        p("%s:" % BD)
    p("ds_read_b128 v[100:103], v%d offset:%d" % (vZ, L_CM)); p("ds_read_b128 v[104:107], v%d offset:%d" % (vZ, L_CM+16))
    for w_ in range(4):
        p("ds_read_b128 %s, v%d offset:%d" % (vr(32+8*w_, 4), vCPR, L_CP + 128*w_)); p("ds_read_b128 %s, v%d offset:%d" % (vr(36+8*w_, 4), vCPR, L_CP + 128*w_ + 16))
    p("s_waitcnt lgkmcnt(8)")
    p("v_max3_f32 v120, v100, v102, v104"); p("v_max_f32 v120, v120, v106")
    for i in range(4): p("v_sub_f32 v%d, v%d, v120" % (100+2*i, 100+2*i))
    for i in range(4): p("v_mul_f32 v%d, %s, v%d" % (100+2*i, sLOG2E, 100+2*i))
    for i in range(4): p("v_exp_f32 v%d, v%d" % (100+2*i, 100+2*i))
    p("v_mul_f32 v121, v100, v101"); p("v_fmac_f32 v121, v102, v103"); p("v_fmac_f32 v121, v104, v105"); p("v_fmac_f32 v121, v106, v107")
    p("v_rcp_f32 v121, v121")
    for i in range(4): p("v_mul_f32 v%d, v%d, v121" % (100+2*i, 100+2*i))
    for i in range(4): p("v_mov_b32 v%d, v%d" % (101+2*i, 100+2*i))
    p("s_waitcnt lgkmcnt(6)")
    for r in range(0, 8, 2): p("v_pk_mul_f32 %s, v[100:101], %s" % (vr(32+r, 2), vr(32+r, 2)))
    p("s_waitcnt lgkmcnt(4)")
    for r in range(0, 8, 2): p("v_pk_fma_f32 %s, v[102:103], %s, %s" % (vr(32+r, 2), vr(40+r, 2), vr(32+r, 2)))
    p("s_waitcnt lgkmcnt(2)")
    for r in range(0, 8, 2): p("v_pk_fma_f32 %s, v[104:105], %s, %s" % (vr(32+r, 2), vr(48+r, 2), vr(32+r, 2)))
    p("s_waitcnt lgkmcnt(0)")
    for r in range(0, 8, 2): p("v_pk_fma_f32 %s, v[106:107], %s, %s" % (vr(32+r, 2), vr(56+r, 2), vr(32+r, 2)))
    for r in range(8): p("v_cvt_pk_bf16_f32 v%d, v%d, v%d" % (16+r, 32+r, 32+r))
    if tail2: p("s_waitcnt vmcnt(1)")
    else: p.wait("O")
    diag_mult(16, 8, 32)
    pub_cols(sPS, "PUBS")
    stamp("s_pub")
    FIN = p.label("fin")
    p("s_cmp_ge_u32 s2, 32"); p("s_cbranch_scc1 %s" % FIN)
    p("s_lshl_b32 %s, s2, 14" % sA); p("s_lshl_b32 %s, %s, 12" % (sD, sW)); p("s_add_u32 %s, %s, %s" % (sA, sA, sD))
    p("s_add_u32 %s, %s, %d" % (sB, sA, S_BASE)); p("s_add_u32 %s, %s, %d" % (sA, sA, BB_BASE))
    p("v_lshrrev_b32 v12, 4, v1"); p("v_and_b32 v13, 1, v12"); p("v_lshlrev_b32 v13, 1, v13"); p("v_lshrrev_b32 v12, 1, v12"); p("v_or_b32 v12, v12, v13")
    p("v_and_b32 v14, 7, v1"); p("v_lshlrev_b32 v14, 2, v14"); p("v_add_u32 v14, v14, v12")
    p("v_lshlrev_b32 v179, 1, v14"); p("s_lshl_b32 %s, s2, 6" % sCc)
    p("v_lshlrev_b32 v13, 2, v14"); p("s_lshl_b32 %s, %s, 7" % (sD, sW)); p("v_add_u32 v12, %s, v13" % sD)
    def fl(sb):
        def f(R, nm):
            g = (lambda t: p.vmem(t, nm)) if nm else p
            for u in range(4):
                g("buffer_load_dwordx4 %s, v%d, %s, %s offen offset:%d%s" % (vr(R+4*u, 4), vL16, SWS, sb, 1024*u, HL))
        return f
    def fin_reduce(R, dst):
        for r in range(0, 4, 2):
            p("v_pk_add_f32 %s, %s, %s" % (vr(R+r, 2), vr(R+r, 2), vr(R+4+r, 2))); p("v_pk_add_f32 %s, %s, %s" % (vr(R+8+r, 2), vr(R+8+r, 2), vr(R+12+r, 2)))
        for r in range(0, 4, 2): p("v_pk_add_f32 %s, %s, %s" % (vr(R+r, 2), vr(R+r, 2), vr(R+8+r, 2)))
        red4(p, [R, R+1, R+2, R+3])
        p("ds_write_b32 v12, v%d offset:%d" % (R, dst))
        p("s_waitcnt lgkmcnt(0)")
        p("s_barrier")
        for w_ in range(4): p("ds_read_b32 v%d, v13 offset:%d" % (R+w_, dst + 128*w_))
        p("s_waitcnt lgkmcnt(0)")
        p("v_add_f32 v%d, v%d, v%d" % (R, R, R+1)); p("v_add_f32 v%d, v%d, v%d" % (R+2, R+2, R+3)); p("v_add_f32 v%d, v%d, v%d" % (R, R, R+2))
        p("v_cvt_pk_bf16_f32 v%d, v%d, v%d" % (R, R, R)); p("v_lshlrev_b32 v%d, 16, v%d" % (R, R))
    p.vmem("buffer_load_ushort v18, v179, %s, %s offen" % (SX, sCc), "XF")
    fl(sA)(128, "FB")
    p.wait("FB")
    retry_block(lambda: tagcheck(list(range(128, 144)), 15), lambda: fl(sA)(128, None), "fb")
    fl(sB)(144, "FS0")
    fin_reduce(128, L_FP)
    silu(128, 32, 40, 1)
    p("v_cvt_pk_bf16_f32 v32, v32, v32"); p("v_lshlrev_b32 v32, 16, v32")
    p("v_lshlrev_b32 v44, 16, v18")
    stamp("g_done")
    p.wait("FS0")
    retry_block(lambda: tagcheck(list(range(144, 160)), 15), lambda: fl(sB)(144, None), "fs")
    stamp("fs_ok")
    fin_reduce(144, L_FP + 512)
    p("v_mul_f32 v36, v144, v32")
    p("v_cvt_pk_bf16_f32 v36, v36, v36"); p("v_lshlrev_b32 v36, 16, v36")
    p("v_add_f32 v36, v36, v44")
    p("v_cvt_pk_bf16_f32 v40, v36, v36")
    SK5 = p.label("out")
    p("s_cmp_lg_u32 %s, 0" % sW); p("s_cbranch_scc1 %s" % SK5)
    p("s_mov_b32 exec_lo, 0x00ff00ff"); p("s_mov_b32 exec_hi, 0x00ff00ff")
    p.vmem("buffer_store_short v40, v179, %s, %s offen" % (SOUT, sCc), "OUT", cond=True)
    p("s_cmp_lg_u32 s2, 0"); p("s_cbranch_scc1 %s" % SK5)
    p("v_mov_b32 v12, %d" % EPOCH); p("v_mov_b32 v13, %s" % sE)
    p("s_mov_b32 exec_lo, 1"); p("s_mov_b32 exec_hi, 0")
    p.vmem("buffer_store_dword v13, v12, %s, 0 offen%s" % (SWS, HS), "EPO", cond=True)
    p("%s:" % SK5)
    p("s_mov_b64 exec, -1")
    p("%s:" % FIN)
    if stamps:
        stamp("end")
        p("s_getreg_b32 %s, hwreg(HW_REG_XCC_ID)" % sA)
        p("s_waitcnt lgkmcnt(0)")
        for k in range(16):
            p("v_mov_b32 v%d, %s" % (32+k, ("s%d" % (ST0+2*k)) if k < nst[0] else "0"))
        p("v_mov_b32 v48, %s" % sA); p("v_mov_b32 v49, s3"); p("s_getreg_b32 %s, hwreg(HW_REG_HW_ID)" % sD); p("v_mov_b32 v50, %s" % sD); p("v_mov_b32 v51, s101")
        p("s_lshl_b32 %s, s2, 2" % sB); p("s_add_u32 %s, %s, %s" % (sB, sB, sW)); p("s_lshl_b32 %s, %s, 7" % (sB, sB)); p("s_add_u32 %s, %s, %d" % (sB, sB, STAMP))
        p("v_mov_b32 v12, 0")
        p("s_mov_b32 exec_lo, 1"); p("s_mov_b32 exec_hi, 0")
        if not cfg.get("dbg"):
            for i in range(4): p("buffer_store_dwordx4 %s, v12, %s, %s offen offset:%d" % (vr(32+4*i, 4), SWS, sB, 16*i))
            p("buffer_store_dwordx4 v[48:51], v12, %s, %s offen offset:64" % (SWS, sB))
        p("s_mov_b64 exec, -1")
    if stamps and cfg.get("dbg"):
        NODBG = p.label("nodbg")
        p("s_cmp_ge_u32 s2, 32"); p("s_cbranch_scc1 %s" % NODBG)
        p("s_cmp_lg_u32 %s, 0" % sW); p("s_cbranch_scc1 %s" % NODBG)
        p("v_mov_b32 v60, 0")
        for k in range(min(8, nst[0])):
            p("v_cmp_eq_u32 vcc, %d, v1" % k); p("v_mov_b32 v61, s%d" % (78+2*k)); p("v_cndmask_b32 v60, v60, v61, vcc")
            p("v_cmp_eq_u32 vcc, %d, v1" % (8+k)); p("v_not_b32 v61, v61"); p("v_cndmask_b32 v60, v60, v61, vcc")
        p("v_lshlrev_b32 v62, 2, v1")
        p("s_mov_b32 exec_lo, 0xffff"); p("s_mov_b32 exec_hi, 0")
        p("buffer_atomic_umax v60, v62, %s, 0 offen" % SDBG)
        p("s_mov_b64 exec, -1")
        p("%s:" % NODBG)
    p("%s:" % END)
    p("s_endpgm")
    return p, names

HEADER = """; Fused decode step: layernorm -> {GQA attention over a 64K cache -> wo} * silu(SwiGLU FFN) + x.
; @launch grid=(256,1,1) block=(256,1,1) lds=%d
"""
def wrap(body, name=NAME, lds=LDS_BYTES, header=True):
    s = (HEADER % lds) if header else ""
    if header: s += '.amdgcn_target "amdgcn-amd-amdhsa--gfx950"\n'
    s += ".text\n.globl %s\n.p2align 8\n.type %s,@function\n%s:\n" % (name, name, name)
    s += body
    s += '.section .rodata,"a"\n.p2align 6\n.amdhsa_kernel %s\n' % name
    s += "  .amdhsa_next_free_vgpr 512\n  .amdhsa_next_free_sgpr 102\n  .amdhsa_accum_offset 256\n"
    s += "  .amdhsa_group_segment_fixed_size 0\n  .amdhsa_kernarg_size 96\n  .amdhsa_user_sgpr_count 2\n"
    s += "  .amdhsa_user_sgpr_kernarg_segment_ptr 1\n  .amdhsa_system_sgpr_workgroup_id_x 1\n"
    s += "  .amdhsa_float_denorm_mode_32 3\n"
    s += ".end_amdhsa_kernel\n"
    return s

if __name__ == "__main__":
    cfg = json.loads(sys.argv[2]) if len(sys.argv) > 2 else {}
    p, names = build(cfg)
    open(sys.argv[1], "w").write(wrap(p.text()))
    print("wrote", sys.argv[1], "stamps:", names)
```

```python
import sys, json
from sched import Prog

NAME = "recurrent_scan__gqa_block_cached__glu_gated_swiglu__decode_kernel"

EPOCH   = 0
Q_BASE  = 0x1000
FLAG_BASE = 0x14000
CNT_BASE = 0x1C000
BP_BASE = 0x20000
O_BASE  = 0x80000
O_PITCH = 4224
S_BASE  = 0x200000
BB_BASE = 0x280000
STAMP   = 0x400000
L_XN = 0
L_QP = 4096
L_BP = 6144
L_QL = 10240
L_HL = 12544
L_MX = 12800
L_LW = 13056
L_CP = 13312
L_FP = 13824
L_CM = 14848
L_OP = 16384
LDS_BYTES = 32768

SX, SK, SV, SWQ, SWO, SW1, SW3, SW2, SOUT, SDBG, SWS = [ "s[%d:%d]" % (4*i+4, 4*i+7) for i in range(11)]
sW, sG, sC, sT0, sKV = "s48", "s49", "s50", "s51", "s52"
sSELLO, sSELHI, sE, sTAG, sFF, sLOG2E, sSCALE, sHI = "s53", "s54", "s55", "s56", "s57", "s58", "s59", "s60"
sRETRY = "s61"
sA, sB, sCc, sD = "s62", "s63", "s64", "s65"
sRB, sCH = "s66", "s67"
sKC = "s68"
sCB1, sCB3, sW3B = "s69", "s70", "s71"
sVC, sROT = "s72", "s73"
sPOOL, sX = "s81", "s82"
sCL = "s80"
sPAR = "s77"
vTID, vLANE, vOFFK, vL16 = 0, 1, 2, 3
vMASK = 4
vTAG, vMAX, vL0, vL1 = 8, 9, 10, 11
vT = 12
QF, SP, PERM, ACC, RING = 16, 32, 64, 96, 128

def vr(b, n=1): return "v%d" % b if n == 1 else "v[%d:%d]" % (b, b+n-1)
def ar(b, n=1): return "a%d" % b if n == 1 else "a[%d:%d]" % (b, b+n-1)

DPP = " row_mask:0xf bank_mask:0xf"
def allred(p, regs, tmps, op, steps):
    for s in steps:
        if s in (1, 2, 4, 8):
            for r in regs: p("%s_dpp v%d, v%d, v%d row_ror:%d%s" % (op, r, r, r, s, DPP))
        else:
            for r, t in zip(regs, tmps): p("v_mov_b32 v%d, v%d" % (t, r))
            for r, t in zip(regs, tmps): p("v_permlane%d_swap_b32 v%d, v%d" % (s, r, t))
            for r, t in zip(regs, tmps): p("%s v%d, v%d, v%d" % (op, r, r, t))

def red4(p, a):
    p("v_permlane32_swap_b32 v%d, v%d" % (a[0], a[1])); p("v_permlane32_swap_b32 v%d, v%d" % (a[2], a[3]))
    p("v_add_f32 v%d, v%d, v%d" % (a[0], a[0], a[1])); p("v_add_f32 v%d, v%d, v%d" % (a[2], a[2], a[3]))
    p("v_permlane16_swap_b32 v%d, v%d" % (a[0], a[2]))
    p("v_add_f32 v%d, v%d, v%d" % (a[0], a[0], a[2]))
    p("v_add_f32_dpp v%d, v%d, v%d row_ror:8%s" % (a[0], a[0], a[0], DPP))

def build(cfg):
    pat = cfg.get("pat", "lin")
    nt = " nt" if cfg.get("nt", True) else ""
    ntw = " nt" if cfg.get("ntw", True) else ""
    stamps = cfg.get("stamps", False)
    poll_after = cfg.get("poll_after", 6)
    HS = cfg.get("hs", " sc1")
    HL = cfg.get("hl", " sc1")
    RETRIES = cfg.get("retries", 40000)
    R_ = cfg.get("R", 1)
    stride = {"lin": 1024, "str8": 8192, "w4": 4096 * R_, "glob": 262144}[pat]
    rot = cfg.get("rot", 0)
    dyn = cfg.get("dyn", False)
    NS = cfg.get("ns", 6 if dyn == 2 else 7) if dyn else 8
    ST0 = 84 if dyn == 2 else 78
    if dyn: assert pat == "w4" and R_ == 1 and not rot
    p = Prog()
    nst = [0]
    names = []
    def stamp(name):
        if not stamps or name in cfg.get("nostamp", []): return
        k = nst[0]; nst[0] += 1; names.append(name)
        assert ST0 + 2*k + 1 <= 99
        p("s_memrealtime s[%d:%d]" % (ST0+2*k, ST0+1+2*k))

    depth = cfg.get("depth", 0); dstep = cfg.get("dstep", 2); depth0 = cfg.get("depth0", depth)
    cnt = [0]
    thr = cfg.get("thr_even", 0); thr_par = cfg.get("thr_par", 0)
    def svmem(text, name, early=False):
        d = depth0 if early else depth
        if d and cnt[0] % dstep == 0: p("s_waitcnt vmcnt(%d)" % (d - dstep))
        if thr and not early and cnt[0] % dstep == 0 and name[0] in "KV":
            L = p.label("thr")
            p("s_cmp_eq_u32 %s, %d" % (sPAR, thr_par)); p("s_cbranch_scc0 %s" % L); p("s_waitcnt vmcnt(%d)" % (thr - dstep)); p("%s:" % L)
        cnt[0] += 1
        p.vmem(text, name)
    END = p.label("end")
    p("s_cmp_ge_u32 s2, 256")
    p("s_cbranch_scc1 %s" % END)
    stamp("start")
    if cfg.get("pf", 0):
        NPF = p.label("nopf")
        p("s_cmp_ge_u32 s2, %d" % cfg["pf"]); p("s_cbranch_scc1 %s" % NPF)
        p("v_cmp_gt_u32 vcc, 64, v0"); p("s_cbranch_vccz %s" % NPF)
        PFB = p.label("pfbase")
        p("s_getpc_b64 s[48:49]")
        p("%s:" % PFB)
        p("v_lshlrev_b32 v12, 7, v0")
        for i in range(cfg.get("pfn", 3)):
            p("v_min_u32 v13, %s-%s-4, v12" % (END, PFB))
            p.vmem("global_load_dword v%d, v13, s[48:49]" % (236+i), "PF", cond=True)
            p("v_add_u32 v12, 0x2000, v12")
        p("%s:" % NPF)
    for i, off in enumerate([0, 8, 16, 24, 32, 48, 56, 64, 72, 80, 88]):
        p("s_load_dwordx2 s[%d:%d], s[0:1], %d" % (4*i+4, 4*i+5, off))
    sizes = [2048, 1<<26, 1<<26, 1<<23, 1<<23, 1024*3584*2, 1024*3584*2, 1024*3584*2, 2048, 256, 1<<28]
    for i, sz in enumerate(sizes):
        p("s_mov_b32 s%d, 0x%x" % (4*i+6, sz)); p("s_mov_b32 s%d, 0x20000" % (4*i+7))
    p("s_cmp_lt_u32 s2, 224")
    p("s_cselect_b32 s26, s26, 0")
    p("s_cselect_b32 s30, s30, 0")
    p("v_lshrrev_b32 v12, 6, v0")
    p("v_and_b32 v1, 63, v0")
    p("v_readfirstlane_b32 %s, v12" % sW)
    if cfg.get("thr_even", 0): p("s_getreg_b32 %s, hwreg(HW_REG_XCC_ID)" % sPAR); p("s_and_b32 %s, %s, 1" % (sPAR, sPAR))
    p("s_lshr_b32 %s, s2, 6" % sG)
    p("s_and_b32 %s, s2, 63" % sC)
    p("s_mov_b32 %s, 0x05040100" % sSELLO); p("s_mov_b32 %s, 0x07060302" % sSELHI)
    p("s_mov_b32 %s, 0xff" % sFF); p("s_mov_b32 %s, 0x3fb8aa3b" % sLOG2E)
    p("s_mov_b32 %s, 0x3db504f3" % sSCALE); p("s_mov_b32 %s, 0xffff0000" % sHI)
    p("s_lshr_b32 %s, s2, 1" % sRB); p("s_and_b32 %s, s2, 1" % sCH)
    p("v_lshlrev_b32 v3, 4, v1")
    p("v_lshlrev_b32 v13, 5, v1")
    p("s_lshl_b32 %s, %s, 9" % (sA, sW))
    p("v_lshlrev_b32 v14, 3, v1")
    p("v_lshrrev_b32 v15, 3, v1"); p("v_lshlrev_b32 v15, 13, v15")
    p("v_and_b32 v16, 7, v1"); p("v_lshlrev_b32 v16, 4, v16"); p("v_add_u32 v15, v15, v16")
    p("v_lshrrev_b32 v17, 4, v1"); p("v_mul_u32_u24 v17, 7168, v17")
    p("v_and_b32 v18, 15, v1"); p("v_lshlrev_b32 v18, 4, v18"); p("v_add_u32 v17, v17, v18")
    p("s_and_b32 %s, %s, 3" % (sB, sC)); p("s_lshl_b32 %s, %s, 21" % (sB, sB))
    p("s_lshl_b32 %s, %s, 19" % (sCc, sW)); p("s_add_u32 %s, %s, %s" % (sB, sB, sCc))
    p("s_lshl_b32 %s, %s, 11" % (sCc, sG)); p("s_add_u32 %s, %s, %s" % (sB, sB, sCc))
    p("s_lshr_b32 %s, %s, 2" % (sCc, sC)); p("s_lshl_b32 %s, %s, 7" % (sCc, sCc)); p("s_add_u32 %s, %s, %s" % (sB, sB, sCc))
    p("s_and_b32 %s, s2, 7" % sCc); p("s_lshl_b32 %s, %s, 7" % (sCc, sCc))
    p("s_lshl_b32 %s, %s, 5" % (sD, sW)); p("s_add_u32 %s, %s, %s" % (sCc, sCc, sD)); p("s_mul_i32 %s, %s, 7168" % (sCc, sCc))
    r1, r3 = cfg.get("r1", 1), cfg.get("r3", 2)
    for dst, rr in ((sCB1, r1), (sCB3, r3)):
        p("s_lshr_b32 %s, s2, 3" % dst); p("s_add_u32 %s, %s, %d" % (dst, dst, rr))
        p("s_sub_u32 %s, %s, 28" % (sD, dst)); p("s_cselect_b32 %s, %s, %s" % (dst, dst, sD))
    p("s_lshl_b32 %s, %s, 8" % (sD, sCB3)); p("s_add_u32 %s, %s, %s" % (sW3B, sCc, sD))
    p("s_lshl_b32 %s, %s, 8" % (sD, sCB1)); p("s_add_u32 %s, %s, %s" % (sCc, sCc, sD))
    p("s_waitcnt lgkmcnt(0)")
    stamp("karg")
    p("s_load_dword %s, s[44:45], %d" % (sE, EPOCH))
    ntx = " nt" if cfg.get("ntx", False) else ""
    p.vmem("buffer_load_dwordx4 v[224:227], v13, %s, 0 offen%s" % (SX, ntx), "XA0")
    p.vmem("buffer_load_dwordx4 v[228:231], v13, %s, 0 offen offset:16%s" % (SX, ntx), "XA1")
    p.vmem("buffer_load_dwordx2 v[232:233], v14, %s, %s offen%s" % (SX, sA, ntx), "XB")
    if cfg.get("pbar", 1) >= 1: p("s_barrier")
    for t in range(8):
        p("s_add_u32 %s, %s, %d" % (sT0, sB, t*8*8192))
        svmem("buffer_load_dwordx4 %s, v15, %s, %s offen%s" % (vr(128+4*t, 4), SWQ, sT0, ntw), "Q%d" % t, True)
    if cfg.get("pbar", 1) >= 2: p("s_barrier")
    for t in range(8):
        p("s_add_u32 %s, %s, %d" % (sT0, sCc, t*4*7168))
        svmem("buffer_load_dwordx4 %s, v17, %s, %s offen%s" % (vr(160+4*t, 4), SW1, sT0, ntw), "W1_%d" % t, True)
    stamp("w1_issued")
    if pat == "lin":
        p("s_lshl_b32 %s, s2, 18" % sKV); p("s_lshl_b32 %s, %s, 16" % (sD, sW)); p("s_add_u32 %s, %s, %s" % (sKV, sKV, sD))
    elif pat == "str8":
        p("s_lshl_b32 %s, %s, 24" % (sKV, sG))
        p("s_lshr_b32 %s, %s, 3" % (sD, sC)); p("s_lshl_b32 %s, %s, 21" % (sD, sD)); p("s_add_u32 %s, %s, %s" % (sKV, sKV, sD))
        p("s_lshl_b32 %s, %s, 19" % (sD, sW)); p("s_add_u32 %s, %s, %s" % (sKV, sKV, sD))
        p("s_and_b32 %s, %s, 7" % (sD, sC)); p("s_lshl_b32 %s, %s, 10" % (sD, sD)); p("s_add_u32 %s, %s, %s" % (sKV, sKV, sD))
    elif pat == "w4" and dyn:
        p("s_lshl_b32 %s, %s, 24" % (sKV, sG)); p("s_lshl_b32 %s, %s, 10" % (sD, sW)); p("s_add_u32 %s, %s, %s" % (sKV, sKV, sD))
        p("s_add_u32 %s, %s, %d" % (sPOOL, sKV, 64*NS*32768))
        if cfg.get("dynlin"):
            p("s_mul_i32 %s, %s, %d" % (sD, sW, 7*1024)); p("s_add_u32 %s, %s, %s" % (sPOOL, sPOOL, sD))
        p("s_mul_i32 %s, %s, %d" % (sD, sC, NS*32768)); p("s_add_u32 %s, %s, %s" % (sKV, sKV, sD))
    elif pat == "w4":
        lg = R_.bit_length() - 1
        p("s_lshl_b32 %s, %s, 24" % (sKV, sG))
        p("s_lshr_b32 %s, %s, %d" % (sD, sC, lg)); p("s_lshl_b32 %s, %s, %d" % (sD, sD, 18 + lg)); p("s_add_u32 %s, %s, %s" % (sKV, sKV, sD))
        p("s_and_b32 %s, %s, %d" % (sD, sC, R_ - 1)); p("s_lshl_b32 %s, %s, 12" % (sD, sD)); p("s_add_u32 %s, %s, %s" % (sKV, sKV, sD))
        p("s_lshl_b32 %s, %s, 10" % (sD, sW)); p("s_add_u32 %s, %s, %s" % (sKV, sKV, sD))
    elif pat == "glob":
        p("s_lshl_b32 %s, %s, 24" % (sKV, sG))
        p("s_lshl_b32 %s, %s, 12" % (sD, sC)); p("s_add_u32 %s, %s, %s" % (sKV, sKV, sD))
        p("s_lshl_b32 %s, %s, 10" % (sD, sW)); p("s_add_u32 %s, %s, %s" % (sKV, sKV, sD))
    if rot == 1: p("s_and_b32 %s, %s, 7" % (sROT, sC))
    if rot == 2: p("s_lshr_b32 %s, %s, 3" % (sROT, sC))
    if rot == 3: p("s_lshr_b32 %s, %s, 3" % (sROT, sC)); p("s_add_u32 %s, %s, %s" % (sROT, sROT, sC))
    p("v_and_b32 v12, 3, v1"); p("v_lshlrev_b32 v12, %d, v12" % (stride.bit_length()-1))
    p("v_bfe_u32 v2, v1, 2, 1"); p("v_lshlrev_b32 v2, 8, v2"); p("v_add_u32 v2, v2, v12")
    p("v_bfe_u32 v12, v1, 3, 1"); p("v_lshlrev_b32 v12, 6, v12"); p("v_add_u32 v2, v2, v12")
    p("v_lshrrev_b32 v12, 4, v1"); p("v_lshlrev_b32 v12, 4, v12"); p("v_add_u32 v2, v2, v12")
    p("v_and_b32 v12, 1, v1"); p("v_lshlrev_b32 v12, 4, v12"); p("v_mov_b32 v13, 0xffff"); p("v_lshlrev_b32 v13, v12, v13")
    p("v_bfe_u32 v12, v1, 1, 2")
    for jj in range(4):
        p("v_cmp_eq_u32 vcc, %d, v12" % jj); p("v_cndmask_b32 v%d, 0, v13, vcc" % (vMASK+jj))
    def grp_base(dst, t, dynbase=False):
        if dynbase:
            p("s_mov_b32 %s, %s" % (dst, sX))
        elif not rot:
            p("s_add_u32 %s, %s, %d" % (dst, sKV, 8*t*stride))
        else:
            p("s_add_u32 %s, %s, %d" % (dst, sROT, t)); p("s_and_b32 %s, %s, 7" % (dst, dst))
            p("s_mul_i32 %s, %s, %d" % (dst, dst, 8*stride)); p("s_add_u32 %s, %s, %s" % (dst, dst, sKV))
    vOFFK2 = 56
    def K_loads(t, slot=None, name=None):
        L = []
        db = slot is not None
        st_ = 1024 if (db and cfg.get("dynlin")) else stride
        vo = vOFFK2 if (db and cfg.get("dynlin")) else vOFFK
        sl = slot if db else t
        name = name or "K%d" % t
        for h in range(2):
            for a_ in range(2):
                for lam in range(2):
                    def f(h=h, a_=a_, lam=lam):
                        if a_ == 0 and lam == 0:
                            if h == 0: grp_base(sKC, t, db)
                            else: p("s_add_u32 %s, %s, %d" % (sKC, sKC, 4*st_))
                        svmem("buffer_load_dwordx4 %s, v%d, %s, %s offen offset:%d%s" % (ar(32*sl+16*h+8*a_+4*lam, 4), vo, SK, sKC, 512*a_+128*lam, nt), name)
                    L.append(f)
        return L
    def V_loads(t, db=False, name=None):
        base = RING + 32*(t % 4)
        name = name or "V%d" % t
        st_ = 1024 if (db and cfg.get("dynlin")) else stride
        L = []
        for i in range(8):
            def f(i=i):
                if i == 0: grp_base(sVC, t, db)
                else: p("s_add_u32 %s, %s, %d" % (sVC, sVC, st_))
                svmem("buffer_load_dwordx4 %s, v%d, %s, %s offen%s" % (vr(base+4*i, 4), vL16, SV, sVC, nt), name)
            L.append(f)
        return L
    def loadK(t):
        for f in K_loads(t): f()
    def loadV(t):
        for f in V_loads(t): f()
    def tagcheck(regs, acc):
        p("v_xor_b32 v%d, %s, v%d" % (acc, sTAG, regs[0]))
        for r in regs[1:]: p("v_bitop3_b32 v%d, v%d, %s, v%d bitop3:0xbe" % (acc, r, sTAG, acc))
        p("v_and_b32 v%d, 0xff, v%d" % (acc, acc))
        p("v_cmp_ne_u32 vcc, 0, v%d" % acc)
        if cfg.get("nodep"): p("s_mov_b64 vcc, 0")
    p.wait("XA1")
    stamp("x_landed")
    for i in range(8):
        p("v_lshlrev_b32 v%d, 16, v%d" % (32+2*i, 224+i)); p("v_and_b32 v%d, 0xffff0000, v%d" % (33+2*i, 224+i))
    for i in range(8): p("v_add_f32 v%d, v%d, v%d" % (48+i, 32+2*i, 33+2*i))
    p("v_add_f32 v48, v48, v49"); p("v_add_f32 v50, v50, v51"); p("v_add_f32 v52, v52, v53"); p("v_add_f32 v54, v54, v55")
    p("v_add_f32 v48, v48, v50"); p("v_add_f32 v52, v52, v54"); p("v_add_f32 v48, v48, v52")
    allred(p, [48], [49], "v_add_f32", [8, 4, 2, 1, 16, 32])
    p("v_mul_f32 v49, 0x3a800000, v48")
    for i in range(16): p("v_sub_f32 v%d, v%d, v49" % (32+i, 32+i))
    for i in range(4): p("v_mul_f32 v%d, v%d, v%d" % (50+i, 32+i, 32+i))
    for i in range(4, 16): p("v_fmac_f32 v%d, v%d, v%d" % (50+(i % 4), 32+i, 32+i))
    p("v_add_f32 v50, v50, v51"); p("v_add_f32 v52, v52, v53"); p("v_add_f32 v50, v50, v52")
    allred(p, [50], [51], "v_add_f32", [8, 4, 2, 1, 16, 32])
    p("v_mul_f32 v50, 0x3a800000, v50")
    p("v_cvt_pk_bf16_f32 v51, v49, v50")
    p("v_lshlrev_b32 v52, 16, v51")
    p("v_and_b32 v53, 0xffff0000, v51")
    p("v_add_f32 v53, 0x3727c5ac, v53")
    p("v_cvt_pk_bf16_f32 v53, v53, v53"); p("v_lshlrev_b32 v53, 16, v53")
    p("v_sqrt_f32 v53, v53")
    p("v_cvt_pk_bf16_f32 v53, v53, v53"); p("v_lshlrev_b32 v53, 16, v53")
    p("v_rcp_f32 v54, v53")
    p.wait("XB")
    p("v_lshlrev_b32 v32, 16, v232"); p("v_and_b32 v33, 0xffff0000, v232")
    p("v_lshlrev_b32 v34, 16, v233"); p("v_and_b32 v35, 0xffff0000, v233")
    for i in range(4): p("v_sub_f32 v%d, v%d, v52" % (32+i, 32+i))
    p("v_cvt_pk_bf16_f32 v36, v32, v33"); p("v_cvt_pk_bf16_f32 v37, v34, v35")
    p("v_lshlrev_b32 v32, 16, v36"); p("v_and_b32 v33, 0xffff0000, v36")
    p("v_lshlrev_b32 v34, 16, v37"); p("v_and_b32 v35, 0xffff0000, v37")
    for i in range(4): p("v_mul_f32 v%d, v%d, v54" % (40+i, 32+i))
    for i in range(4): p("v_fma_f32 v%d, -v%d, v53, v%d" % (44+i, 40+i, 32+i))
    for i in range(4): p("v_fma_f32 v%d, v%d, v54, v%d" % (40+i, 44+i, 40+i))
    for i in range(4): p("v_cvt_pk_bf16_f32 v%d, v%d, v%d" % (36+i, 40+i, 40+i))
    p("v_lshlrev_b32 v12, 4, v0")
    p("ds_write_b128 v12, v[36:39] offset:%d" % L_XN)
    p("s_waitcnt lgkmcnt(0)")
    p("s_barrier")
    stamp("ln_done")
    p("s_add_u32 %s, %s, 1" % (sE, sE)); p("s_and_b32 %s, %s, 0xff" % (sTAG, sE)); p("v_mov_b32 v%d, %s" % (vTAG, sTAG))
    p("s_and_b32 %s, %s, 3" % (sA, sC)); p("s_lshl_b32 %s, %s, 8" % (sA, sA)); p("s_lshl_b32 %s, %s, 6" % (sD, sW)); p("s_add_u32 %s, %s, %s" % (sA, sA, sD))
    p("v_lshrrev_b32 v12, 3, v1"); p("v_add_u32 v12, %s, v12" % sA); p("v_lshlrev_b32 v12, 2, v12")
    p("s_and_b32 %s, s2, 7" % sA); p("s_lshl_b32 %s, %s, 7" % (sA, sA)); p("s_lshl_b32 %s, %s, 5" % (sD, sW)); p("s_add_u32 %s, %s, %s" % (sA, sA, sD))
    p("v_lshrrev_b32 v13, 4, v1"); p("v_add_u32 v13, %s, v13" % sA); p("v_lshlrev_b32 v13, 2, v13")
    for t in range(0, 8, 2):
        p("ds_read2_b32 v[%d:%d], v12 offset0:%d offset1:%d" % (96+t, 97+t, 8*t, 8*t+8))
    for t in range(0, 8, 2):
        p("ds_read2_b32 v[%d:%d], v13 offset0:%d offset1:%d" % (104+t, 105+t, 4*t, 4*t+4))
    for t in range(8):
        p("s_add_u32 %s, %s, %d" % (sT0, sW3B, t*4*7168))
        svmem("buffer_load_dwordx4 %s, v17, %s, %s offen%s" % (vr(192+4*t, 4), SW3, sT0, ntw), "W3_%d" % t, True)
    p("s_waitcnt lgkmcnt(0)")
    for t in range(8):
        A = 48 + 4*(t % 2)
        for jj in range(4): p("v_and_b32 v%d, v%d, v%d" % (A+jj, 96+t, vMASK+jj))
        if t == 0: p.wait("Q7")
        p("v_mfma_f32_16x16x32_bf16 v[56:59], %s, %s, %s" % (vr(A, 4), vr(128+4*t, 4), "0" if t == 0 else "v[56:59]"))
    for t in range(8):
        for jj in range(4): p("v_and_b32 v%d, v%d, v%d" % (PERM+4*t+jj, 104+t, vMASK+jj))
    p("v_and_b32 v12, 7, v1"); p("v_lshlrev_b32 v12, 5, v12")
    p("v_bfe_u32 v13, v1, 4, 1"); p("v_lshlrev_b32 v13, 4, v13"); p("v_add_u32 v12, v12, v13")
    p("v_lshrrev_b32 v13, 5, v1"); p("v_lshlrev_b32 v13, 8, v13"); p("v_add_u32 v12, v12, v13")
    p("s_lshl_b32 %s, %s, 9" % (sA, sW)); p("v_add_u32 v12, %s, v12" % sA)
    p("s_mov_b32 exec_lo, 0x00ff00ff"); p("s_mov_b32 exec_hi, 0xff00ff00")
    p("ds_write_b128 v12, v[56:59] offset:%d" % L_QP)
    p("s_mov_b64 exec, -1")
    p("s_waitcnt lgkmcnt(0)")
    p("s_barrier")
    stamp("q_gemv")
    SKIP0 = p.label("pubq")
    p("s_cmp_lg_u32 %s, 0" % sW); p("s_cbranch_scc1 %s" % SKIP0)
    p("v_lshlrev_b32 v12, 4, v1")
    for i in range(8): p("ds_read_b128 %s, v12 offset:%d" % (vr(32+4*i, 4) if i < 4 else vr(112+4*(i-4), 4), L_QP + 256*i))
    p("s_lshl_b32 %s, %s, 2" % (sB, sG)); p("s_and_b32 %s, %s, 3" % (sD, sC)); p("s_add_u32 %s, %s, %s" % (sB, sB, sD)); p("s_lshl_b32 %s, %s, 12" % (sB, sB))
    p("s_lshr_b32 %s, %s, 2" % (sD, sC)); p("s_lshl_b32 %s, %s, 8" % (sD, sD)); p("s_add_u32 %s, %s, %s" % (sB, sB, sD))
    p("s_add_u32 %s, %s, %d" % (sB, sB, Q_BASE))
    p("s_waitcnt lgkmcnt(0)")
    for r in range(4):
        p("v_add_f32 v%d, v%d, v%d" % (32+r, 32+r, 36+r)); p("v_add_f32 v%d, v%d, v%d" % (40+r, 40+r, 44+r))
        p("v_add_f32 v%d, v%d, v%d" % (112+r, 112+r, 116+r)); p("v_add_f32 v%d, v%d, v%d" % (120+r, 120+r, 124+r))
    for r in range(4):
        p("v_add_f32 v%d, v%d, v%d" % (32+r, 32+r, 40+r)); p("v_add_f32 v%d, v%d, v%d" % (112+r, 112+r, 120+r))
    for r in range(4): p("v_add_f32 v%d, v%d, v%d" % (32+r, 32+r, 112+r))
    if dyn:
        NOZ = p.label("nozero")
        p("s_cmp_lg_u32 %s, 0" % sC); p("s_cbranch_scc1 %s" % NOZ)
        for r in range(4): p("v_mov_b32 v%d, 0" % (36+r))
        p("s_lshl_b32 %s, %s, 9" % (sD, sG)); p("s_add_u32 %s, %s, %d" % (sD, sD, CNT_BASE))
        p("s_mov_b32 exec_hi, 0")
        p.vmem("buffer_store_dwordx4 v[36:39], v12, %s, %s offen%s" % (SWS, sD, HS), "ZCNT", cond=True)
        p("s_mov_b64 exec, -1")
        p("%s:" % NOZ)
    p("s_mov_b32 exec_lo, 0xffff"); p("s_mov_b32 exec_hi, 0")
    p.vmem("buffer_store_dwordx4 v[32:35], v12, %s, %s offen%s" % (SWS, sB, HS), "PUBQ", cond=True)
    p("s_mov_b64 exec, -1")
    p("%s:" % SKIP0)
    loadK(0)
    p.wait("W1_7")
    stamp("w1_landed")
    for t in range(8):
        p("v_mfma_f32_16x16x32_bf16 v[60:63], %s, %s, %s" % (vr(PERM+4*t, 4), vr(160+4*t, 4), "0" if t == 0 else "v[60:63]"))
    loadK(1)
    p.wait("W3_7")
    stamp("w3_landed")
    for t in range(8):
        p("v_mfma_f32_16x16x32_bf16 v[96:99], %s, %s, %s" % (vr(PERM+4*t, 4), vr(192+4*t, 4), "0" if t == 0 else "v[96:99]"))
    SKIP2 = p.label("flag")
    p("s_cmp_lg_u32 %s, 0" % sW); p("s_cbranch_scc1 %s" % SKIP2)
    p("v_lshlrev_b32 v12, 2, v1"); p("v_mov_b32 v13, %s" % sE)
    p("s_lshl_b32 %s, s2, 7" % sA); p("s_add_u32 %s, %s, %d" % (sA, sA, FLAG_BASE))
    p.wait("PUBQ")
    p("s_mov_b32 exec_hi, 0")
    p.vmem("buffer_store_dword v13, v12, %s, %s offen%s" % (SWS, sA, HS), "FLAG", cond=True)
    p("s_mov_b64 exec, -1")
    p("%s:" % SKIP2)
    stamp("flag")
    p("v_and_b32 v12, 15, v1"); p("v_lshlrev_b32 v12, 5, v12")
    p("v_bfe_u32 v13, v1, 4, 1"); p("v_lshlrev_b32 v13, 4, v13"); p("v_add_u32 v12, v12, v13")
    p("s_lshl_b32 %s, %s, 10" % (sA, sW)); p("v_add_u32 v12, %s, v12" % sA)
    p("s_mov_b32 exec_hi, 0")
    p("ds_write_b128 v12, v[60:63] offset:%d" % L_BP)
    p("ds_write_b128 v12, v[96:99] offset:%d" % (L_BP+512))
    p("s_mov_b64 exec, -1")
    loadK(2)
    p("s_waitcnt lgkmcnt(0)")
    p("s_barrier")
    stamp("b_gemv")
    SKIP1 = p.label("pub1")
    p("s_cmp_lg_u32 %s, 1" % sW); p("s_cbranch_scc1 %s" % SKIP1)
    p("s_cmp_ge_u32 s2, 224"); p("s_cbranch_scc1 %s" % SKIP1)
    p("v_lshlrev_b32 v12, 4, v1")
    for i in range(4): p("ds_read_b128 %s, v12 offset:%d" % (vr(32+4*i, 4), L_BP + 1024*i))
    p("s_and_b32 %s, s2, 7" % sA); p("s_mul_i32 %s, %s, %d" % (sA, sA, 3584*4)); p("s_add_u32 %s, %s, %d" % (sA, sA, BP_BASE))
    p("s_lshl_b32 %s, %s, 9" % (sD, sCB1)); p("s_lshl_b32 %s, %s, 9" % (sB, sCB3)); p("s_add_u32 %s, %s, %d" % (sB, sB, 8*3584*4))
    p("v_mov_b32 v13, %s" % sD); p("v_mov_b32 v14, %s" % sB); p("v_cmp_gt_u32 vcc, 32, v1"); p("v_cndmask_b32 v13, v14, v13, vcc")
    p("v_and_b32 v14, 31, v1"); p("v_lshlrev_b32 v14, 4, v14"); p("v_add_u32 v13, v13, v14")
    p("s_waitcnt lgkmcnt(0)")
    for r in range(4):
        p("v_add_f32 v%d, v%d, v%d" % (32+r, 32+r, 36+r)); p("v_add_f32 v%d, v%d, v%d" % (40+r, 40+r, 44+r))
    for r in range(4): p("v_add_f32 v%d, v%d, v%d" % (32+r, 32+r, 40+r))
    for r in range(4): p("v_bfi_b32 v%d, %s, v%d, v%d" % (32+r, sFF, vTAG, 32+r))
    p.vmem("buffer_store_dwordx4 v[32:35], v13, %s, %s offen%s" % (SWS, sA, HS), "PUBB", cond=True)
    p("%s:" % SKIP1)
    for t in range(3, poll_after): loadK(t)
    SKIPP = p.label("nopoll")
    p("v_lshlrev_b32 v14, 7, v1")
    p("s_lshl_b32 %s, %s, 13" % (sB, sG)); p("s_add_u32 %s, %s, %d" % (sB, sB, FLAG_BASE))
    p("s_cmp_lg_u32 %s, 0" % sW); p("s_cbranch_scc1 %s" % SKIPP)
    p.vmem("buffer_load_dword v15, v14, %s, %s offen%s" % (SWS, sB, HL), "POLL", cond=True)
    p("%s:" % SKIPP)
    pend = []
    for t in range(poll_after, NS): pend += K_loads(t)
    for t in range(4): pend += V_loads(t)
    def tr(n):
        for _ in range(min(n, len(pend))): pend.pop(0)()
    tr(cfg.get("n_after_poll", 16))
    OKP = p.label("okpoll")
    p("s_cmp_lg_u32 %s, 0" % sW); p("s_cbranch_scc1 %s" % OKP)
    p.wait("POLL")
    p("s_mov_b32 %s, %d" % (sRETRY, RETRIES))
    RP = p.label("rpoll")
    p("%s:" % RP)
    p("v_cmp_ne_u32 vcc, %s, v15" % sE)
    if cfg.get("nodep"): p("s_branch %s" % OKP)
    p("s_cbranch_vccz %s" % OKP)
    p("s_sub_u32 %s, %s, 1" % (sRETRY, sRETRY)); p("s_cbranch_scc1 %s" % OKP)
    p("s_sleep %d" % cfg.get("sleep", 8))
    p("buffer_load_dword v15, v14, %s, %s offen%s" % (SWS, sB, HL))
    p("s_waitcnt vmcnt(0)")
    p("s_branch %s" % RP)
    p("%s:" % OKP)
    p("s_barrier")
    stamp("poll_ok")
    p("s_lshl_b32 %s, %s, 14" % (sA, sG)); p("s_lshl_b32 %s, %s, 10" % (sD, sW)); p("s_add_u32 %s, %s, %s" % (sA, sA, sD)); p("s_add_u32 %s, %s, %d" % (sA, sA, Q_BASE))
    for kq in range(4):
        p("s_add_u32 %s, %s, %d" % (sT0, sA, kq*4096))
        p.vmem("buffer_load_dwordx4 %s, v%d, %s, %s offen%s" % (vr(96+4*kq, 4), vL16, SWS, sT0, HL), "QG")
    tr(cfg.get("n_after_qg", 16))
    p("v_lshrrev_b32 v12, 5, v1"); p("s_lshl_b32 %s, %s, 1" % (sA, sW)); p("v_add_u32 v12, %s, v12" % sA); p("v_mul_u32_u24 v12, 272, v12")
    p("v_and_b32 v13, 31, v1"); p("v_lshlrev_b32 v13, 3, v13"); p("v_add_u32 v12, v12, v13")
    p("v_and_b32 v14, 7, v1"); p("v_mul_u32_u24 v14, 272, v14"); p("v_lshrrev_b32 v13, 4, v1"); p("v_lshlrev_b32 v13, 4, v13"); p("v_add_u32 v14, v14, v13")
    p("v_bfe_u32 v13, v1, 3, 1"); p("v_lshlrev_b32 v13, 6, v13"); p("v_add_u32 v14, v14, v13")
    p("v_mov_b32 v%d, 0xff800000" % vMAX)
    p.wait("QG")
    for r in range(4):
        p("v_add_f32 v%d, v%d, v%d" % (96+r, 96+r, 100+r)); p("v_add_f32 v%d, v%d, v%d" % (104+r, 104+r, 108+r))
    for r in range(4): p("v_add_f32 v%d, v%d, v%d" % (96+r, 96+r, 104+r))
    p("v_cvt_pk_bf16_f32 v96, v96, v97"); p("v_cvt_pk_bf16_f32 v97, v98, v99")
    p("ds_write_b64 v12, v[96:97] offset:%d" % L_QL)
    p("s_waitcnt lgkmcnt(0)")
    p("s_barrier")
    stamp("q_ready")
    for lam in range(2): p("ds_read_b128 %s, v14 offset:%d" % (vr(QF+4*lam, 4), L_QL + 128*lam))
    tr(1)
    p("s_waitcnt lgkmcnt(0)")
    def qk_mfma(t):
        D = PERM + 16*(t % 2)
        p.wait("K%d" % t)
        for lam in range(2):
            for h in range(2):
                for a_ in range(2):
                    d = D + 8*h + 4*a_
                    p("v_mfma_f32_16x16x32_bf16 %s, %s, %s, %s" % (vr(d, 4), ar(32*t+16*h+8*a_+4*lam, 4), vr(QF+4*lam, 4), "0" if lam == 0 else vr(d, 4)))
    def qk_post(t):
        D = PERM + 16*(t % 2); T = QF + 8
        for h in range(2):
            for r in range(4): p("v_permlane32_swap_b32 v%d, v%d" % (D+8*h+r, D+8*h+4+r))
        for h in range(2):
            for r in range(4): p("v_add_f32_dpp v%d, v%d, v%d row_ror:8%s" % (D+8*h+r, D+8*h+4+r, D+8*h+r, DPP))
        tr(1)
        src = [D+0, D+1, D+2, D+3, D+8, D+9, D+10, D+11]
        pk = [D+4, D+5, D+6, D+7]
        for i in range(4): p("v_cvt_pk_bf16_f32 v%d, v%d, v%d" % (pk[i], src[2*i], src[2*i+1]))
        for i in range(4):
            p("v_lshlrev_b32 v%d, 16, v%d" % (T+2*i, pk[i])); p("v_and_b32 v%d, 0xffff0000, v%d" % (T+2*i+1, pk[i]))
        for i in range(8): p("v_mul_f32 v%d, %s, v%d" % (T+i, sSCALE, T+i))
        tr(1)
        for i in range(4):
            p("v_cvt_pk_bf16_f32 v%d, v%d, v%d" % (SP+4*t+i, T+2*i, T+2*i+1))
            p("v_max3_f32 v%d, v%d, v%d, v%d" % (vMAX, vMAX, T+2*i, T+2*i+1))
    qk_mfma(0)
    for t in range(1, NS):
        qk_mfma(t)
        qk_post(t-1)
    qk_post(NS-1)
    allred(p, [vMAX], [12], "v_max_f32", [16, 32])
    p("v_cvt_pk_bf16_f32 v12, v%d, v%d" % (vMAX, vMAX)); p("v_lshlrev_b32 v%d, 16, v12" % vMAX)
    p("v_mul_f32 v14, %s, v%d" % (sLOG2E, vMAX)); p("v_sub_f32 v14, 0, v14")
    stamp("qk_done")
    p("v_mov_b32 v%d, 0" % vL0); p("v_mov_b32 v%d, 0" % vL1)
    for b_ in range(NS):
        T = PERM + 8*(b_ % 2)
        for i in range(4):
            p("v_lshlrev_b32 v%d, 16, v%d" % (T+2*i, SP+4*b_+i)); p("v_and_b32 v%d, 0xffff0000, v%d" % (T+2*i+1, SP+4*b_+i))
        for i in range(8): p("v_fma_f32 v%d, v%d, %s, v14" % (T+i, T+i, sLOG2E))
        for i in range(8): p("v_exp_f32 v%d, v%d" % (T+i, T+i))
        for i in range(4):
            p("v_cvt_pk_bf16_f32 v%d, v%d, v%d" % (SP+4*b_+i, T+2*i, T+2*i+1))
            p("v_add_f32 v%d, v%d, v%d" % (vL0, vL0, T+2*i)); p("v_add_f32 v%d, v%d, v%d" % (vL1, vL1, T+2*i+1))
        tr(1)
    tr(100)
    p("v_add_f32 v%d, v%d, v%d" % (vL0, vL0, vL1))
    stamp("p_done")
    if cfg.get("touch", 0):
        T0_ = p.label("t0"); T1_ = p.label("t1"); TE = p.label("te")
        p("s_cmp_eq_u32 %s, 3" % sW); p("s_cbranch_scc1 %s" % TE)
        p("s_cmp_lg_u32 %s, 0" % sW); p("s_cbranch_scc1 %s" % T0_)
        p("v_min_u32 v12, 32, v1"); p("v_lshlrev_b32 v12, 7, v12")
        p("s_mul_i32 %s, s2, %d" % (sA, O_PITCH)); p("s_add_u32 %s, %s, %d" % (sA, sA, O_BASE))
        p("s_branch %s" % T1_)
        p("%s:" % T0_)
        p("v_and_b32 v12, 15, v1"); p("v_lshlrev_b32 v12, 14, v12")
        p("s_lshl_b32 %s, %s, 18" % (sA, sCH)); p("s_lshl_b32 %s, %s, 7" % (sD, sRB)); p("s_add_u32 %s, %s, %s" % (sA, sA, sD))
        p("s_sub_u32 %s, %s, 1" % (sD, sW)); p("s_mul_i32 %s, %s, %d" % (sD, sD, BB_BASE - S_BASE)); p("s_add_u32 %s, %s, %s" % (sA, sA, sD)); p("s_add_u32 %s, %s, %d" % (sA, sA, S_BASE))
        p("%s:" % T1_)
        p.vmem("buffer_load_dword a255, v12, %s, %s offen%s" % (SWS, sA, cfg.get("touchpol", "")), "TOUCH", cond=True)
        p("%s:" % TE)
    def silu(src, dst, tmp, n):
        for r in range(n): p("v_mul_f32 v%d, %s, v%d" % (tmp+r, sLOG2E, src+r))
        for r in range(n): p("v_exp_f32 v%d, -v%d" % (tmp+r, tmp+r))
        for r in range(n): p("v_add_f32 v%d, 1.0, v%d" % (tmp+r, tmp+r))
        for r in range(n): p("v_rcp_f32 v%d, v%d" % (tmp+r, tmp+r))
        for r in range(n): p("v_mul_f32 v%d, v%d, v%d" % (dst+r, src+r, tmp+r))
    def unpack2(dst, src):
        p("v_lshlrev_b32 v%d, 16, v%d" % (dst, src)); p("v_and_b32 v%d, 0xffff0000, v%d" % (dst+1, src))
    sH0, sH1 = "s69", "s70"
    def h_issue():
        p("v_lshrrev_b32 v15, 3, v1"); p("v_mul_u32_u24 v15, 14336, v15"); p("v_and_b32 v13, 7, v1"); p("v_min_u32 v13, 6, v13"); p("v_lshlrev_b32 v13, 4, v13"); p("v_add_u32 v15, v15, v13")
        p("s_mul_i32 %s, %s, 112" % (sH0, sRB)); p("s_add_u32 %s, %s, %d" % (sH0, sH0, BP_BASE)); p("s_add_u32 %s, %s, %d" % (sH1, sH0, 8*14336))
        p.vmem("buffer_load_dwordx4 v[32:35], v15, %s, %s offen%s" % (SWS, sH0, HL), "HG")
        p.vmem("buffer_load_dwordx4 v[36:39], v15, %s, %s offen%s" % (SWS, sH1, HL), "HG")
    def retry_block(check, reload, base):
        R = p.label("r" + base); OK = p.label("ok" + base)
        p("s_mov_b32 %s, %d" % (sRETRY, RETRIES))
        p("%s:" % R)
        check()
        p("s_cbranch_vccz %s" % OK)
        p("s_sub_u32 %s, %s, 1" % (sRETRY, sRETRY)); p("s_cbranch_scc1 %s" % OK)
        reload()
        p("s_waitcnt vmcnt(0)")
        p("s_branch %s" % R)
        p("%s:" % OK)
    def h_compute():
        p.wait("HG")
        def rl():
            p("s_sleep %d" % cfg.get("sleep", 8))
            p("buffer_load_dwordx4 v[32:35], v15, %s, %s offen%s" % (SWS, sH0, HL))
            p("buffer_load_dwordx4 v[36:39], v15, %s, %s offen%s" % (SWS, sH1, HL))
        retry_block(lambda: tagcheck(list(range(32, 40)), 14), rl, "h")
        red4(p, [32, 33, 34, 35]); red4(p, [36, 37, 38, 39])
        p("v_cvt_pk_bf16_f32 v40, v32, v36")
        unpack2(32, 40)
        silu(32, 32, 40, 1)
        p("v_cvt_pk_bf16_f32 v40, v32, v32"); p("v_lshlrev_b32 v32, 16, v40")
        p("v_mul_f32 v32, v32, v33")
        p("v_cvt_pk_bf16_f32 v32, v32, v32")
        p("v_lshrrev_b32 v12, 4, v1"); p("v_and_b32 v13, 1, v12"); p("v_lshlrev_b32 v13, 1, v13"); p("v_lshrrev_b32 v12, 1, v12"); p("v_or_b32 v12, v12, v13")
        p("v_lshlrev_b32 v12, 5, v12"); p("v_and_b32 v13, 7, v1"); p("v_lshlrev_b32 v13, 2, v13"); p("v_add_u32 v13, v13, v12")
        p("ds_write_b32 v13, v32 offset:%d" % L_HL)
    sOB = "s77"
    late = []
    floor_ = [0]
    def tl(n=1):
        for _ in range(min(n, max(0, len(late) - floor_[0]))): late.pop(0)()
    PX = 60
    def pv(t, trickle=False, name=None):
        base = RING + 32*(t % 4)
        Preg = SP + 4*t if (t < NS and name is None) else PX
        p.wait(name or "V%d" % t)
        def perm(j):
            c, h = j >> 1, j & 1
            for tt in range(4):
                p("v_perm_b32 v%d, v%d, v%d, %s" % (PERM+4*j+tt, base+4*(2*tt+1)+c, base+4*(2*tt)+c, sSELHI if h else sSELLO))
        def mm(j):
            p("v_mfma_f32_16x16x32_bf16 %s, %s, %s, %s" % (vr(ACC+4*j, 4), vr(PERM+4*j, 4), vr(Preg, 4), "0" if (t == 0 and name is None) else vr(ACC+4*j, 4)))
        perm(0)
        for j in range(1, 8):
            perm(j); mm(j-1)
            if trickle and j in (2, 5): tl(1)
        mm(7)
    vW2O, vOO = 31, 11
    sW2B = "s3"
    def late_addresses():
        p("v_lshrrev_b32 v12, 4, v1"); p("v_and_b32 v13, 15, v1"); p("v_lshlrev_b32 v13, 4, v13")
        p("v_lshlrev_b32 v%d, 11, v12" % vW2O); p("v_add_u32 v%d, v%d, v13" % (vW2O, vW2O))
        p("v_lshlrev_b32 v%d, 14, v12" % vOO); p("v_add_u32 v%d, v%d, v13" % (vOO, vOO))
        p("s_lshl_b32 %s, %s, 10" % (sD, sCH)); p("s_lshl_b32 %s, %s, 8" % (sA, sW)); p("s_add_u32 %s, %s, %s" % (sD, sD, sA))
        p("s_mul_i32 %s, %s, %d" % (sW2B, sRB, 28*2048)); p("s_add_u32 %s, %s, %s" % (sW2B, sW2B, sD))
        p("s_lshl_b32 %s, %s, 16" % (sOB, sRB)); p("s_add_u32 %s, %s, %s" % (sOB, sOB, sD))
    def W2_loads():
        L = []
        for t in range(7):
            def f(t=t):
                p("s_add_u32 %s, %s, %d" % (sT0, sW2B, t*4*2048))
                svmem("buffer_load_dwordx4 %s, v%d, %s, %s offen%s" % (ar(4*t, 4), vW2O, SW2, sT0, ntw), "W2")
            L.append(f)
        return L
    def O_loads():
        L = []
        for t in range(8):
            def f(t=t):
                p("s_add_u32 %s, %s, %d" % (sT0, sOB, t*2048))
                svmem("buffer_load_dwordx4 %s, v%d, %s, %s offen%s" % (ar(32+4*t, 4), vOO, SWO, sT0, ntw), "O")
            L.append(f)
        return L
    vAWB, vRD, vPO, vLWR, vMLS, vG0, vG1 = 24, 25, 26, 27, 28, 29, 30
    vPC, vCM, vCPW, vCPR, vZ = 160, 161, 162, 163, 165
    vAW = PERM + 24
    sPO, sPB, sPS, sGV, sGM, sGA = "s71", "s72", "s73", "s74", "s75", "s76"
    def tail_addresses_a():
        p("v_and_b32 v12, 7, v1"); p("v_lshlrev_b32 v13, 9, v12"); p("v_lshlrev_b32 v12, 4, v12"); p("v_add_u32 v12, v12, v13")
        p("v_lshrrev_b32 v13, 4, v1"); p("v_lshlrev_b32 v13, 7, v13"); p("v_add_u32 v12, v12, v13")
        p("s_lshl_b32 %s, %s, 12" % (sA, sW)); p("s_add_u32 %s, %s, %d" % (sA, sA, L_OP)); p("v_add_u32 v%d, %s, v12" % (vAWB, sA))
        p("v_lshlrev_b32 v%d, 4, v0" % vRD)
        p("v_lshrrev_b32 v14, 5, v0"); p("v_and_b32 v15, 7, v0"); p("v_xor_b32 v14, v14, v15"); p("v_lshlrev_b32 v14, 4, v14")
        p("v_lshrrev_b32 v15, 3, v0"); p("v_lshlrev_b32 v15, 7, v15"); p("v_add_u32 v%d, v14, v15" % vPO)
        p("s_mul_i32 %s, s2, %d" % (sPO, O_PITCH)); p("s_add_u32 %s, %s, %d" % (sPO, sPO, O_BASE))
        p("v_lshrrev_b32 v13, 5, v0"); p("v_lshlrev_b32 v%d, 5, v13" % vLWR)
        p("v_lshlrev_b32 v%d, 4, v1" % vMLS); p("v_add_u32 v%d, 4096, v%d" % (vMLS, vMLS))
        p("v_lshrrev_b32 v12, 3, v1"); p("v_mul_u32_u24 v%d, %d, v12" % (vG0, O_PITCH))
        p("v_and_b32 v13, 7, v1"); p("v_lshlrev_b32 v13, 4, v13"); p("v_add_u32 v%d, v%d, v13" % (vG1, vG0))
        p("s_lshl_b32 %s, %s, 6" % (sA, sG)); p("s_mul_i32 %s, %s, %d" % (sA, sA, O_PITCH)); p("s_add_u32 %s, %s, %d" % (sA, sA, O_BASE))
        p("s_bfe_u32 %s, s2, 0x30003" % sB)
        p("s_lshl_b32 %s, %s, 4" % (sD, sB)); p("s_add_u32 %s, %s, %s" % (sGM, sA, sD)); p("s_add_u32 %s, %s, 4096" % (sGM, sGM))
        p("s_lshl_b32 %s, %s, 2" % (sB, sB)); p("s_bfe_u32 %s, s2, 0x20001" % sD); p("s_add_u32 %s, %s, %s" % (sB, sB, sD)); p("s_lshl_b32 %s, %s, 7" % (sB, sB))
        p("s_add_u32 %s, %s, %s" % (sB, sB, sA))
        p("s_mul_i32 %s, %s, %d" % (sD, sW, 16*O_PITCH))
        p("s_add_u32 %s, %s, %s" % (sGV, sB, sD)); p("s_add_u32 %s, %s, %s" % (sGA, sGM, sD))
    def tail_addresses_b():
        p("v_bfe_u32 v12, v1, 2, 2"); p("v_lshlrev_b32 v12, 14, v12")
        p("v_and_b32 v13, 3, v1"); p("v_lshlrev_b32 v13, 5, v13"); p("v_add_u32 v12, v12, v13")
        p("v_bfe_u32 v13, v1, 4, 1"); p("v_lshlrev_b32 v13, 4, v13"); p("v_add_u32 v%d, v12, v13" % vPC)
        p("s_lshl_b32 %s, %s, 18" % (sA, sCH)); p("s_lshl_b32 %s, %s, 16" % (sD, sW)); p("s_add_u32 %s, %s, %s" % (sA, sA, sD))
        p("s_lshl_b32 %s, %s, 7" % (sD, sRB)); p("s_add_u32 %s, %s, %s" % (sA, sA, sD))
        p("s_add_u32 %s, %s, %d" % (sPB, sA, BB_BASE)); p("s_add_u32 %s, %s, %d" % (sPS, sA, S_BASE))
        p("v_lshrrev_b32 v12, 4, v1"); p("v_and_b32 v13, 1, v12"); p("v_lshlrev_b32 v13, 1, v13"); p("v_lshrrev_b32 v12, 1, v12"); p("v_or_b32 v12, v12, v13")
        p("v_lshlrev_b32 v12, 5, v12"); p("v_and_b32 v13, 7, v1"); p("v_lshlrev_b32 v13, 2, v13"); p("v_add_u32 v12, v12, v13")
        p("s_lshl_b32 %s, %s, 7" % (sA, sW)); p("v_add_u32 v%d, %s, v12" % (vCPW, sA))
        p("v_lshrrev_b32 v13, 4, v1"); p("v_lshlrev_b32 v%d, 5, v13" % vCPR)
        p("s_lshl_b32 %s, %s, 3" % (sA, sW)); p("v_mov_b32 v%d, %s" % (vCM, sA)); p("v_mov_b32 v%d, 0" % vZ)
    n_pre = cfg.get("n_pre", 10)
    sCNT = "s76"
    def claim(reg, name):
        p("v_mov_b32 v%d, 1" % reg)
        p("s_mov_b32 exec_lo, 1"); p("s_mov_b32 exec_hi, 0")
        p.vmem("buffer_atomic_add v%d, off, %s, %s sc0" % (reg, SWS, sCNT), name)
        p("s_mov_b64 exec, -1")
    def claim_result(reg, name, miss):
        p.wait(name)
        p("v_readfirstlane_b32 %s, v%d" % (sX, reg))
        p("s_cmp_ge_u32 %s, 64" % sX); p("s_cbranch_scc1 %s" % miss)
        p("s_lshl_b32 %s, %s, 15" % (sX, sX)); p("s_add_u32 %s, %s, %s" % (sX, sX, sPOOL))
    def qk_dyn(t, slot, name=None):
        D = PERM; T = PERM + 16
        p.wait(name or "K%d" % t)
        for lam in range(2):
            for h in range(2):
                for a_ in range(2):
                    d = D + 8*h + 4*a_
                    p("v_mfma_f32_16x16x32_bf16 %s, %s, %s, %s" % (vr(d, 4), ar(32*slot+16*h+8*a_+4*lam, 4), vr(QF+4*lam, 4), "0" if lam == 0 else vr(d, 4)))
        tl(1)
        for h in range(2):
            for r in range(4): p("v_permlane32_swap_b32 v%d, v%d" % (D+8*h+r, D+8*h+4+r))
        for h in range(2):
            for r in range(4): p("v_add_f32_dpp v%d, v%d, v%d row_ror:8%s" % (D+8*h+r, D+8*h+4+r, D+8*h+r, DPP))
        src = [D+0, D+1, D+2, D+3, D+8, D+9, D+10, D+11]
        pk = [D+4, D+5, D+6, D+7]
        for i in range(4): p("v_cvt_pk_bf16_f32 v%d, v%d, v%d" % (pk[i], src[2*i], src[2*i+1]))
        for i in range(4): unpack2(T+2*i, pk[i])
        for i in range(8): p("v_mul_f32 v%d, %s, v%d" % (T+i, sSCALE, T+i))
        for i in range(4): p("v_cvt_pk_bf16_f32 v%d, v%d, v%d" % (PX+i, T+2*i, T+2*i+1))
        p("v_max3_f32 v12, v%d, v%d, v%d" % (T, T+1, T+2)); p("v_max3_f32 v13, v%d, v%d, v%d" % (T+3, T+4, T+5))
        p("v_max3_f32 v12, v12, v%d, v%d" % (T+6, T+7)); p("v_max_f32 v12, v12, v13")
        allred(p, [12], [13], "v_max_f32", [16, 32])
        tl(1)
        p("v_cvt_pk_bf16_f32 v12, v12, v12"); p("v_lshlrev_b32 v12, 16, v12")
        p("v_max_f32 v12, v12, v%d" % vMAX)
        p("v_sub_f32 v14, v%d, v12" % vMAX); p("v_mul_f32 v14, %s, v14" % sLOG2E); p("v_exp_f32 v14, v14")
        p("v_mov_b32 v%d, v12" % vMAX)
        p("v_mul_f32 v15, %s, v12" % sLOG2E); p("v_sub_f32 v15, 0, v15")
        for i in range(4): unpack2(T+2*i, PX+i)
        for i in range(8): p("v_fma_f32 v%d, v%d, %s, v15" % (T+i, T+i, sLOG2E))
        for i in range(8): p("v_exp_f32 v%d, v%d" % (T+i, T+i))
        p("v_mul_f32 v%d, v%d, v14" % (vL0, vL0))
        for i in range(4): p("v_cvt_pk_bf16_f32 v%d, v%d, v%d" % (PX+i, T+2*i, T+2*i+1))
        for i in range(0, 8, 2): p("v_add_f32 v%d, v%d, v%d" % (T+i, T+i, T+i+1))
        p("v_add_f32 v%d, v%d, v%d" % (T, T, T+2)); p("v_add_f32 v%d, v%d, v%d" % (T+4, T+4, T+6))
        p("v_add_f32 v%d, v%d, v%d" % (T, T, T+4)); p("v_add_f32 v%d, v%d, v%d" % (vL0, vL0, T))
        p("v_mov_b32 v15, v14")
    def rescale():
        for r in range(0, 32, 2): p("v_pk_mul_f32 %s, %s, v[14:15]" % (vr(ACC+r, 2), vr(ACC+r, 2)))
    vMLR = vL0
    def ml_publish_lds():
        allred(p, [vL0], [12], "v_add_f32", [16, 32])
        p("v_mov_b32 v12, v%d" % vMAX); p("v_mov_b32 v13, v%d" % vL0)
        p("v_and_b32 v%d, 7, v1" % vMLR); p("v_lshlrev_b32 v%d, 5, v%d" % (vMLR, vMLR))
        p("s_lshl_b32 %s, %s, 3" % (sA, sW)); p("v_add_u32 v14, %s, v%d" % (sA, vMLR))
        p("s_mov_b32 exec_lo, 0x00ff00ff"); p("s_mov_b32 exec_hi, 0x00ff00ff")
        p("ds_write_b64 v14, v[12:13] offset:%d" % L_LW)
        p("s_mov_b64 exec, -1")
    def new_late():
        del late[:]
        late.extend(W2_loads() + O_loads())
        floor_[0] = 15 - n_pre
    def flush_pre():
        while len(late) > 15 - n_pre: tl(1)
    TAIL = p.label("tail")
    o_pos = cfg.get("o_pos", -1)
    w2_pos = cfg.get("w2_pos", -1)
    if not dyn:
        if w2_pos >= 0:
            late_addresses()
            def maybe_w2(t):
                if w2_pos == t:
                    for f in W2_loads(): f()
            pv(0); maybe_w2(4); loadV(4)
            pv(1); h_issue(); maybe_w2(5); loadV(5)
            pv(2); maybe_w2(6); loadV(6)
            pv(3); maybe_w2(7); loadV(7)
            del late[:]; late.extend(O_loads()); floor_[0] = 8 - n_pre
            pv(4, True); tl(1); h_compute(); tl(1); pv(5, True); tl(1); tail_addresses_a(); ml_publish_lds(); tl(1); pv(6, True)
            while len(late) > 8 - n_pre: tl(1)
            pv(7)
        elif o_pos < 0:
            pv(0); loadV(4)
            pv(1); h_issue(); loadV(5)
            pv(2); loadV(6)
            pv(3); loadV(7)
            late_addresses(); new_late()
            pv(4, True); tl(1); h_compute(); tl(1); pv(5, True); tl(1); tail_addresses_a(); ml_publish_lds(); tl(1); pv(6, True)
            flush_pre()
            pv(7)
        else:
            late_addresses()
            pv(0); loadV(4)
            pv(1); h_issue(); loadV(5)
            pv(2)
            if o_pos == 6:
                for f in O_loads(): f()
            loadV(6)
            pv(3)
            if o_pos == 7:
                for f in O_loads(): f()
            loadV(7)
            del late[:]; late.extend(W2_loads())
            pv(4, True); tl(1); h_compute(); tl(1); pv(5, True); tl(1); tail_addresses_a(); ml_publish_lds(); tl(1); pv(6, True)
            tl(100)
            pv(7)
    elif dyn == 2:
        NPOOL = 64*(8-NS)
        EXIT_S = p.label("exitS"); EXIT_A = p.label("exitA"); EXIT_B = p.label("exitB"); LOOP_A = p.label("loopA")
        def claim2():
            p("s_mov_b32 %s, 1" % sCL)
            p("s_atomic_add %s, s[78:79], 0 glc" % sCL)
        def claim2_result(miss):
            p("s_waitcnt lgkmcnt(0)")
            p("s_cmp_ge_u32 %s, %d" % (sCL, NPOOL)); p("s_cbranch_scc1 %s" % miss)
            p("s_lshl_b32 %s, %s, 15" % (sX, sCL)); p("s_add_u32 %s, %s, %s" % (sX, sX, sPOOL))
        p("s_lshl_b32 %s, %s, 2" % (sA, sG)); p("s_add_u32 %s, %s, %s" % (sA, sA, sW)); p("s_lshl_b32 %s, %s, 7" % (sA, sA)); p("s_add_u32 %s, %s, %d" % (sA, sA, CNT_BASE))
        p("s_add_u32 s78, s44, %s" % sA); p("s_addc_u32 s79, s45, 0")
        if cfg.get("dynlin"):
            p("v_and_b32 v12, 3, v1"); p("v_mul_u32_u24 v12, %d, v12" % (stride - 1024)); p("v_sub_u32 v%d, v%d, v12" % (vOFFK2, vOFFK))
        assert NS == 6
        late_claim = cfg.get("late_claim", 1)
        if late_claim:
            pv(0); loadV(4)
            pv(1); h_issue(); claim2(); loadV(5)
        else:
            pv(0); loadV(4); claim2()
            pv(1); h_issue(); loadV(5)
        claim2_result(EXIT_S)
        vmS = list(p.vm)
        if not late_claim: claim2()
        for f in K_loads(0, slot=6, name="KA"): f()
        pv(2)
        for f in V_loads(2, True, name="VA"): f()
        pv(3); h_compute(); late_addresses(); tail_addresses_a()
        pv(4)
        if late_claim: p("s_waitcnt lgkmcnt(0)"); claim2()
        pv(5)
        if stamps: p("s_mov_b32 s101, 0")
        p("%s:" % LOOP_A)
        p.vm = [("KA", False)]*8 + [("VA", False)]*8
        if stamps: p("s_add_u32 s101, s101, 1")
        claim2_result(EXIT_A)
        if not late_claim: claim2()
        for f in K_loads(0, slot=7, name="KB"): f()
        for f in V_loads(3, True, name="VB"): f()
        if late_claim: claim2()
        qk_dyn(0, 6, "KA"); rescale(); pv(2, False, "VA")
        p.vm = [("KB", False)]*8 + [("VB", False)]*8
        if stamps: p("s_add_u32 s101, s101, 1")
        claim2_result(EXIT_B)
        if not late_claim: claim2()
        for f in K_loads(0, slot=6, name="KA"): f()
        for f in V_loads(2, True, name="VA"): f()
        if late_claim: claim2()
        qk_dyn(0, 7, "KB"); rescale(); pv(3, False, "VB")
        p("s_branch %s" % LOOP_A)
        p("%s:" % EXIT_A)
        p.vm = [("KA", False)]*8 + [("VA", False)]*8
        new_late(); tl(3)
        qk_dyn(0, 6, "KA"); rescale(); ml_publish_lds()
        flush_pre()
        pv(2, False, "VA")
        p("s_branch %s" % TAIL)
        p("%s:" % EXIT_B)
        p.vm = [("KB", False)]*8 + [("VB", False)]*8
        new_late(); tl(3)
        qk_dyn(0, 7, "KB"); rescale(); ml_publish_lds()
        flush_pre()
        pv(3, False, "VB")
        p("s_branch %s" % TAIL)
        p("%s:" % EXIT_S)
        if stamps: p("s_mov_b32 s101, 0")
        p.vm = list(vmS)
        pv(2); late_addresses(); new_late()
        pv(3, True); tl(1); h_compute(); tl(1); tail_addresses_a(); tl(1); pv(4, True); ml_publish_lds()
        flush_pre()
        pv(5)
    else:
        LEAF_A = p.label("leafA"); LEAF_B = p.label("leafB")
        p("s_lshl_b32 %s, %s, 2" % (sCNT, sG)); p("s_add_u32 %s, %s, %s" % (sCNT, sCNT, sW)); p("s_lshl_b32 %s, %s, 7" % (sCNT, sCNT)); p("s_add_u32 %s, %s, %d" % (sCNT, sCNT, CNT_BASE))
        pv(0); loadV(4); claim(60, "C1")
        pv(1); h_issue(); loadV(5)
        pv(2); loadV(6)
        claim_result(60, "C1", LEAF_A)
        vmA = list(p.vm)
        claim(61, "C2")
        for f in K_loads(7, slot=7): f()
        pv(3)
        for f in V_loads(7, True): f()
        pv(4); h_compute()
        claim_result(61, "C2", LEAF_B)
        vmB = list(p.vm)
        for f in K_loads(8, slot=6): f()
        for f in V_loads(8, True): f()
        if stamps: p("s_mov_b32 s101, 2")
        late_addresses(); tail_addresses_a(); new_late()
        pv(5, True); pv(6, True)
        qk_dyn(7, 7); rescale(); pv(7, True)
        qk_dyn(8, 6); rescale(); ml_publish_lds()
        flush_pre()
        pv(8)
        p("s_branch %s" % TAIL)
        p("%s:" % LEAF_B)
        if stamps: p("s_mov_b32 s101, 1")
        p.vm = list(vmB)
        late_addresses(); tail_addresses_a(); new_late()
        pv(5, True); tl(1); pv(6, True); tl(1)
        qk_dyn(7, 7); rescale(); ml_publish_lds()
        flush_pre()
        pv(7)
        p("s_branch %s" % TAIL)
        p("%s:" % LEAF_A)
        if stamps: p("s_mov_b32 s101, 0")
        p.vm = list(vmA)
        pv(3); late_addresses(); new_late()
        pv(4, True); tl(1); h_compute(); tl(1); tail_addresses_a(); tl(1); pv(5, True); ml_publish_lds()
        flush_pre()
        pv(6)
    p("%s:" % TAIL)
    if dyn or (o_pos < 0 and w2_pos < 0):
        p.vm = ([("W2", False)]*7 + [("O", False)]*8)[:n_pre]
        del late[:]; late.extend((W2_loads() + O_loads())[n_pre:])
    floor_[0] = 0
    stamp("pv_done")
    def g2_loads(R, nm):
        f = (lambda t: p.vmem(t, nm)) if nm else p
        f("buffer_load_dwordx4 %s, v%d, %s, %s offen%s" % (vr(R, 4), vG1, SWS, sGV, HL))
        f("buffer_load_dwordx4 %s, v%d, %s, %s offen%s" % (vr(R+8, 4), vG0, SWS, sGA, HL))
        p("s_add_u32 %s, %s, %d" % (sT0, sGV, 8*O_PITCH))
        f("buffer_load_dwordx4 %s, v%d, %s, %s offen%s" % (vr(R+4, 4), vG1, SWS, sT0, HL))
        p("s_add_u32 %s, %s, %d" % (sT0, sGA, 8*O_PITCH))
        f("buffer_load_dwordx4 %s, v%d, %s, %s offen%s" % (vr(R+12, 4), vG0, SWS, sT0, HL))
    for j in range(8): p("v_xor_b32 v%d, %d, v%d" % (vAW+j, 16*j, vAWB))
    p("s_mov_b32 exec_lo, 0x00ff00ff"); p("s_mov_b32 exec_hi, 0x00ff00ff")
    for j in range(8):
        p("ds_write_b128 v%d, %s" % (vAW+j, vr(ACC+4*j, 4)))
    p("s_mov_b64 exec, -1")
    p("s_waitcnt lgkmcnt(0)")
    p("s_barrier")
    if cfg.get("g2first", 0) == 2: g2_loads(96, "G2A")
    F = PERM + 16
    G_ = 112
    p("ds_read_b128 %s, v%d offset:%d" % (vr(F, 4), vLWR, L_LW)); p("ds_read_b128 %s, v%d offset:%d" % (vr(F+4, 4), vLWR, L_LW+16))
    for i in range(4): p("ds_read_b128 %s, v%d offset:%d" % (vr(PERM+4*i, 4), vRD, L_OP + 4096*i))
    p("ds_read_b128 %s, v%d offset:%d" % (vr(G_, 4), vMLR, L_LW)); p("ds_read_b128 %s, v%d offset:%d" % (vr(G_+4, 4), vMLR, L_LW+16))
    p("s_waitcnt lgkmcnt(6)")
    p("v_max3_f32 v12, v%d, v%d, v%d" % (F, F+2, F+4)); p("v_max_f32 v12, v12, v%d" % (F+6))
    for i in range(4): p("v_sub_f32 v%d, v%d, v12" % (F+2*i, F+2*i))
    for i in range(4): p("v_mul_f32 v%d, %s, v%d" % (F+2*i, sLOG2E, F+2*i))
    for i in range(4): p("v_exp_f32 v%d, v%d" % (F+2*i, F+2*i))
    for i in range(4): p("v_mov_b32 v%d, v%d" % (F+2*i+1, F+2*i))
    p("s_waitcnt lgkmcnt(5)")
    for r in range(0, 4, 2): p("v_pk_mul_f32 %s, %s, %s" % (vr(PERM+r, 2), vr(F, 2), vr(PERM+r, 2)))
    for i in range(1, 4):
        p("s_waitcnt lgkmcnt(%d)" % (5-i))
        for r in range(0, 4, 2): p("v_pk_fma_f32 %s, %s, %s, %s" % (vr(PERM+r, 2), vr(F+2*i, 2), vr(PERM+4*i+r, 2), vr(PERM+r, 2)))
    for r in range(4): p("v_bfi_b32 v%d, %s, v%d, v%d" % (PERM+r, sFF, vTAG, PERM+r))
    g2first = cfg.get("g2first", 0)
    if g2first == 1: g2_loads(96, "G2A")
    p.vmem("buffer_store_dwordx4 %s, v%d, %s, %s offen%s" % (vr(PERM, 4), vPO, SWS, sPO, HS), "PUBO")
    SKIP4 = p.label("ml")
    p("s_cmp_lg_u32 %s, 0" % sW); p("s_cbranch_scc1 %s" % SKIP4)
    p("s_waitcnt lgkmcnt(0)")
    p("v_max3_f32 v12, v%d, v%d, v%d" % (G_, G_+2, G_+4)); p("v_max_f32 v12, v12, v%d" % (G_+6))
    for i in range(4): p("v_sub_f32 v%d, v%d, v12" % (G_+2*i, G_+2*i))
    for i in range(4): p("v_mul_f32 v%d, %s, v%d" % (G_+2*i, sLOG2E, G_+2*i))
    for i in range(4): p("v_exp_f32 v%d, v%d" % (G_+2*i, G_+2*i))
    p("v_mul_f32 v13, v%d, v%d" % (G_, G_+1))
    for i in range(1, 4): p("v_fmac_f32 v13, v%d, v%d" % (G_+2*i, G_+2*i+1))
    p("v_bfi_b32 v%d, %s, v%d, v12" % (F, sFF, vTAG)); p("v_bfi_b32 v%d, %s, v%d, v13" % (F+1, sFF, vTAG))
    p("v_mov_b32 v%d, %s" % (F+2, sE)); p("v_mov_b32 v%d, %s" % (F+3, sE))
    p("s_mov_b32 exec_lo, 0xff"); p("s_mov_b32 exec_hi, 0")
    p.vmem("buffer_store_dwordx4 %s, v%d, %s, %s offen%s" % (vr(F, 4), vMLS, SWS, sPO, HS), "PUBML", cond=True)
    p("s_mov_b64 exec, -1")
    p("%s:" % SKIP4)
    p("s_waitcnt lgkmcnt(0)")
    stamp("o_pub")
    DD = 124
    def pub_cols(sb, name):
        for r in range(4): p("v_bfi_b32 v%d, %s, v%d, v%d" % (DD+r, sFF, vTAG, DD+r))
        p("s_mov_b32 exec_hi, 0")
        p.vmem("buffer_store_dwordx4 %s, v%d, %s, %s offen%s" % (vr(DD, 4), vPC, SWS, sb, HS), name)
        p("s_mov_b64 exec, -1")
    def diag_mult(src, n, breg):
        for t in range(n+1):
            if t < n:
                A = PERM + 4*(t % 4)
                for jj in range(4): p("v_and_b32 v%d, v%d, v%d" % (A+jj, src+t, vMASK+jj))
            if t >= 1:
                tt = t-1; AA = PERM + 4*(tt % 4)
                p("v_mfma_f32_16x16x32_bf16 %s, %s, %s, %s" % (vr(DD, 4), vr(AA, 4), ar(breg+4*tt, 4), "0" if tt == 0 else vr(DD, 4)))
    def w2_mult(st=True):
        p("v_lshrrev_b32 v13, 4, v1"); p("v_lshlrev_b32 v13, 5, v13")
        p("ds_read_b128 v[16:19], v13 offset:%d" % L_HL); p("ds_read_b128 v[20:23], v13 offset:%d" % (L_HL+16))
        p("s_waitcnt lgkmcnt(0)")
        p.wait("W2")
        diag_mult(16, 7, 0)
        pub_cols(sPB, "PUBB2")
        if st: stamp("b_pub")
    def g2_check():
        p("v_xor_b32 v14, %s, v106" % sE)
        for r in (107, 110, 111): p("v_bitop3_b32 v14, v%d, %s, v14 bitop3:0xbe" % (r, sE))
        regs = list(range(96, 106)) + [108, 109]
        p("v_xor_b32 v15, %s, v%d" % (sTAG, regs[0]))
        for r in regs[1:]: p("v_bitop3_b32 v15, v%d, %s, v15 bitop3:0xbe" % (r, sTAG))
        p("v_and_or_b32 v15, v15, %s, v14" % sFF)
        p("v_cmp_ne_u32 vcc, 0, v15")
        if cfg.get("nodep"): p("s_mov_b64 vcc, 0")
    tail2 = cfg.get("tail2", 0)
    def rl2():
        if cfg.get("g2sleep", 0): p("s_sleep %d" % cfg["g2sleep"])
        g2_loads(96, None)
    if not g2first: g2_loads(96, "G2A")
    sBD = "s68"
    if not tail2:
        if cfg.get("tailorder", 0) == 0:
            tl(100); tail_addresses_b(); w2_mult()
        else:
            tail_addresses_b(); w2_mult(); tl(100)
        p.wait("G2A")
        stamp("g2_first")
        retry_block(g2_check, rl2, "g2")
    else:
        assert n_pre <= 7
        tl(7 - n_pre)
        tail_addresses_b()
        p.wait("G2A")
        stamp("g2_first")
        OK1 = p.label("g2ok1"); COMB = p.label("comb"); RL = p.label("g2rl")
        g2_check()
        p("s_cbranch_vccz %s" % OK1)
        vm0 = list(p.vm); late0 = list(late)
        tl(100)
        w2_mult()
        p("s_mov_b32 %s, 1" % sBD)
        p("s_mov_b32 %s, %d" % (sRETRY, RETRIES))
        p("%s:" % RL)
        rl2()
        p("s_waitcnt vmcnt(0)")
        g2_check()
        p("s_cbranch_vccz %s" % COMB)
        p("s_sub_u32 %s, %s, 1" % (sRETRY, sRETRY)); p("s_cbranch_scc0 %s" % RL)
        p("s_branch %s" % COMB)
        p("%s:" % OK1)
        p.vm = list(vm0); del late[:]; late.extend(O_loads())
        tl(100)
        p("s_mov_b32 %s, 0" % sBD); p("s_mov_b32 %s, %d" % (sRETRY, RETRIES))
        p("%s:" % COMB)
    stamp("g2_ok")
    if stamps: p("s_mov_b32 s3, %s" % sRETRY)
    p("v_and_b32 v104, 0xffffff00, v104"); p("v_and_b32 v108, 0xffffff00, v108")
    p("v_max_f32 v120, v104, v108")
    allred(p, [120], [121], "v_max_f32", [8, 16, 32])
    p("v_sub_f32 v104, v104, v120"); p("v_sub_f32 v108, v108, v120")
    p("v_mul_f32 v104, %s, v104" % sLOG2E); p("v_mul_f32 v108, %s, v108" % sLOG2E)
    p("v_exp_f32 v104, v104"); p("v_exp_f32 v108, v108")
    for r in range(4): p("v_mul_f32 v%d, v104, v%d" % (96+r, 96+r))
    p("v_mul_f32 v105, v104, v105")
    for r in range(4): p("v_fmac_f32 v%d, v108, v%d" % (96+r, 100+r))
    p("v_fmac_f32 v105, v108, v109")
    allred(p, [105], [121], "v_add_f32", [32, 16, 8])
    red4(p, [96, 97, 98, 99])
    p("v_mov_b32 v121, v105")
    p("ds_write_b32 v%d, v96 offset:%d" % (vCPW, L_CP))
    p("ds_write_b64 v%d, v[120:121] offset:%d" % (vCM, L_CM))
    p("s_waitcnt lgkmcnt(0)")
    p("s_barrier")
    if tail2:
        BD = p.label("bdone")
        p("s_cmp_lg_u32 %s, 0" % sBD); p("s_cbranch_scc1 %s" % BD)
        w2_mult(False)
        p("%s:" % BD)
    p("ds_read_b128 v[100:103], v%d offset:%d" % (vZ, L_CM)); p("ds_read_b128 v[104:107], v%d offset:%d" % (vZ, L_CM+16))
    for w_ in range(4):
        p("ds_read_b128 %s, v%d offset:%d" % (vr(32+8*w_, 4), vCPR, L_CP + 128*w_)); p("ds_read_b128 %s, v%d offset:%d" % (vr(36+8*w_, 4), vCPR, L_CP + 128*w_ + 16))
    p("s_waitcnt lgkmcnt(8)")
    p("v_max3_f32 v120, v100, v102, v104"); p("v_max_f32 v120, v120, v106")
    for i in range(4): p("v_sub_f32 v%d, v%d, v120" % (100+2*i, 100+2*i))
    for i in range(4): p("v_mul_f32 v%d, %s, v%d" % (100+2*i, sLOG2E, 100+2*i))
    for i in range(4): p("v_exp_f32 v%d, v%d" % (100+2*i, 100+2*i))
    p("v_mul_f32 v121, v100, v101"); p("v_fmac_f32 v121, v102, v103"); p("v_fmac_f32 v121, v104, v105"); p("v_fmac_f32 v121, v106, v107")
    p("v_rcp_f32 v121, v121")
    for i in range(4): p("v_mul_f32 v%d, v%d, v121" % (100+2*i, 100+2*i))
    for i in range(4): p("v_mov_b32 v%d, v%d" % (101+2*i, 100+2*i))
    p("s_waitcnt lgkmcnt(6)")
    for r in range(0, 8, 2): p("v_pk_mul_f32 %s, v[100:101], %s" % (vr(32+r, 2), vr(32+r, 2)))
    p("s_waitcnt lgkmcnt(4)")
    for r in range(0, 8, 2): p("v_pk_fma_f32 %s, v[102:103], %s, %s" % (vr(32+r, 2), vr(40+r, 2), vr(32+r, 2)))
    p("s_waitcnt lgkmcnt(2)")
    for r in range(0, 8, 2): p("v_pk_fma_f32 %s, v[104:105], %s, %s" % (vr(32+r, 2), vr(48+r, 2), vr(32+r, 2)))
    p("s_waitcnt lgkmcnt(0)")
    for r in range(0, 8, 2): p("v_pk_fma_f32 %s, v[106:107], %s, %s" % (vr(32+r, 2), vr(56+r, 2), vr(32+r, 2)))
    for r in range(8): p("v_cvt_pk_bf16_f32 v%d, v%d, v%d" % (16+r, 32+r, 32+r))
    fb_early = cfg.get("fb_early", 0)
    sFB, sFS, sFX = "s69", "s70", "s74"
    vXF, vFW, vFR = 181, 182, 183
    def fl(sb):
        def f(R, nm, cond=False):
            g = (lambda t: p.vmem(t, nm, cond)) if nm else p
            for u in range(4):
                g("buffer_load_dwordx4 %s, v%d, %s, %s offen offset:%d%s" % (vr(R+4*u, 4), vL16, SWS, sb, 1024*u, HL))
        return f
    def fin_addresses():
        p("s_lshl_b32 %s, s2, 14" % sA); p("s_lshl_b32 %s, %s, 12" % (sD, sW)); p("s_add_u32 %s, %s, %s" % (sA, sA, sD))
        p("s_add_u32 %s, %s, %d" % (sFS, sA, S_BASE)); p("s_add_u32 %s, %s, %d" % (sFB, sA, BB_BASE))
        p("v_lshrrev_b32 v12, 4, v1"); p("v_and_b32 v13, 1, v12"); p("v_lshlrev_b32 v13, 1, v13"); p("v_lshrrev_b32 v12, 1, v12"); p("v_or_b32 v12, v12, v13")
        p("v_and_b32 v14, 7, v1"); p("v_lshlrev_b32 v14, 2, v14"); p("v_add_u32 v14, v14, v12")
        p("v_lshlrev_b32 v179, 1, v14"); p("s_lshl_b32 %s, s2, 6" % sFX)
        p("v_lshlrev_b32 v%d, 2, v14" % vFR); p("s_lshl_b32 %s, %s, 7" % (sD, sW)); p("v_add_u32 v%d, %s, v%d" % (vFW, sD, vFR))
    def fb_issue(cond):
        p.vmem("buffer_load_ushort v%d, v179, %s, %s offen" % (vXF, SX, sFX), "XF", cond)
        fl(sFB)(128, "FB", cond)
    def fin_reduce(R, dst):
        for r in range(0, 4, 2):
            p("v_pk_add_f32 %s, %s, %s" % (vr(R+r, 2), vr(R+r, 2), vr(R+4+r, 2))); p("v_pk_add_f32 %s, %s, %s" % (vr(R+8+r, 2), vr(R+8+r, 2), vr(R+12+r, 2)))
        for r in range(0, 4, 2): p("v_pk_add_f32 %s, %s, %s" % (vr(R+r, 2), vr(R+r, 2), vr(R+8+r, 2)))
        red4(p, [R, R+1, R+2, R+3])
        p("ds_write_b32 v%d, v%d offset:%d" % (vFW, R, dst))
        p("s_waitcnt lgkmcnt(0)")
        p("s_barrier")
        for w_ in range(4): p("ds_read_b32 v%d, v%d offset:%d" % (R+w_, vFR, dst + 128*w_))
        p("s_waitcnt lgkmcnt(0)")
        p("v_add_f32 v%d, v%d, v%d" % (R, R, R+1)); p("v_add_f32 v%d, v%d, v%d" % (R+2, R+2, R+3)); p("v_add_f32 v%d, v%d, v%d" % (R, R, R+2))
        p("v_cvt_pk_bf16_f32 v%d, v%d, v%d" % (R, R, R)); p("v_lshlrev_b32 v%d, 16, v%d" % (R, R))
    if fb_early:
        NF0 = p.label("nf0")
        p("s_cmp_ge_u32 s2, 32"); p("s_cbranch_scc1 %s" % NF0)
        fin_addresses()
        p("%s:" % NF0)
    if tail2: p("s_waitcnt vmcnt(1)")
    else: p.wait("O")
    if fb_early:
        NF1 = p.label("nf1")
        p("s_cmp_ge_u32 s2, 32"); p("s_cbranch_scc1 %s" % NF1)
        fb_issue(True)
        p("%s:" % NF1)
    diag_mult(16, 8, 32)
    pub_cols(sPS, "PUBS")
    stamp("s_pub")
    FIN = p.label("fin")
    p("s_cmp_ge_u32 s2, 32"); p("s_cbranch_scc1 %s" % FIN)
    if not fb_early:
        fin_addresses(); fb_issue(False)
    p.wait("FB")
    retry_block(lambda: tagcheck(list(range(128, 144)), 15), lambda: fl(sFB)(128, None), "fb")
    fl(sFS)(144, "FS0")
    fin_reduce(128, L_FP)
    silu(128, 32, 40, 1)
    p("v_cvt_pk_bf16_f32 v32, v32, v32"); p("v_lshlrev_b32 v32, 16, v32")
    p("v_lshlrev_b32 v44, 16, v%d" % vXF)
    stamp("g_done")
    p.wait("FS0")
    retry_block(lambda: tagcheck(list(range(144, 160)), 15), lambda: fl(sFS)(144, None), "fs")
    stamp("fs_ok")
    fin_reduce(144, L_FP + 512)
    p("v_mul_f32 v36, v144, v32")
    p("v_cvt_pk_bf16_f32 v36, v36, v36"); p("v_lshlrev_b32 v36, 16, v36")
    p("v_add_f32 v36, v36, v44")
    p("v_cvt_pk_bf16_f32 v40, v36, v36")
    SK5 = p.label("out")
    p("s_cmp_lg_u32 %s, 0" % sW); p("s_cbranch_scc1 %s" % SK5)
    p("s_mov_b32 exec_lo, 0x00ff00ff"); p("s_mov_b32 exec_hi, 0x00ff00ff")
    p.vmem("buffer_store_short v40, v179, %s, %s offen" % (SOUT, sFX), "OUT", cond=True)
    p("s_cmp_lg_u32 s2, 0"); p("s_cbranch_scc1 %s" % SK5)
    p("v_mov_b32 v12, %d" % EPOCH); p("v_mov_b32 v13, %s" % sE)
    p("s_mov_b32 exec_lo, 1"); p("s_mov_b32 exec_hi, 0")
    p.vmem("buffer_store_dword v13, v12, %s, 0 offen%s" % (SWS, HS), "EPO", cond=True)
    p("%s:" % SK5)
    p("s_mov_b64 exec, -1")
    p("%s:" % FIN)
    if stamps:
        stamp("end")
        p("s_getreg_b32 %s, hwreg(HW_REG_XCC_ID)" % sA)
        p("s_waitcnt lgkmcnt(0)")
        for k in range(16):
            p("v_mov_b32 v%d, %s" % (32+k, ("s%d" % (ST0+2*k)) if k < nst[0] else "0"))
        p("v_mov_b32 v48, %s" % sA); p("v_mov_b32 v49, s3"); p("s_getreg_b32 %s, hwreg(HW_REG_HW_ID)" % sD); p("v_mov_b32 v50, %s" % sD); p("v_mov_b32 v51, s101")
        p("s_lshl_b32 %s, s2, 2" % sB); p("s_add_u32 %s, %s, %s" % (sB, sB, sW)); p("s_lshl_b32 %s, %s, 7" % (sB, sB)); p("s_add_u32 %s, %s, %d" % (sB, sB, STAMP))
        p("v_mov_b32 v12, 0")
        p("s_mov_b32 exec_lo, 1"); p("s_mov_b32 exec_hi, 0")
        if not cfg.get("dbg"):
            for i in range(4): p("buffer_store_dwordx4 %s, v12, %s, %s offen offset:%d" % (vr(32+4*i, 4), SWS, sB, 16*i))
            p("buffer_store_dwordx4 v[48:51], v12, %s, %s offen offset:64" % (SWS, sB))
        p("s_mov_b64 exec, -1")
    if stamps and cfg.get("dbg"):
        NODBG = p.label("nodbg")
        p("s_cmp_ge_u32 s2, 32"); p("s_cbranch_scc1 %s" % NODBG)
        p("s_cmp_lg_u32 %s, 0" % sW); p("s_cbranch_scc1 %s" % NODBG)
        p("v_mov_b32 v60, 0")
        for k in range(min(8, nst[0])):
            p("v_cmp_eq_u32 vcc, %d, v1" % k); p("v_mov_b32 v61, s%d" % (78+2*k)); p("v_cndmask_b32 v60, v60, v61, vcc")
            p("v_cmp_eq_u32 vcc, %d, v1" % (8+k)); p("v_not_b32 v61, v61"); p("v_cndmask_b32 v60, v60, v61, vcc")
        p("v_lshlrev_b32 v62, 2, v1")
        p("s_mov_b32 exec_lo, 0xffff"); p("s_mov_b32 exec_hi, 0")
        p("buffer_atomic_umax v60, v62, %s, 0 offen" % SDBG)
        p("s_mov_b64 exec, -1")
        p("%s:" % NODBG)
    p("%s:" % END)
    p("s_endpgm")
    return p, names

HEADER = """; Fused decode step: layernorm -> {GQA attention over a 64K cache -> wo} * silu(SwiGLU FFN) + x.
; @launch grid=(256,1,1) block=(256,1,1) lds=%d
"""
def wrap(body, name=NAME, lds=LDS_BYTES, header=True):
    s = (HEADER % lds) if header else ""
    if header: s += '.amdgcn_target "amdgcn-amd-amdhsa--gfx950"\n'
    s += ".text\n.globl %s\n.p2align 8\n.type %s,@function\n%s:\n" % (name, name, name)
    s += body
    s += '.section .rodata,"a"\n.p2align 6\n.amdhsa_kernel %s\n' % name
    s += "  .amdhsa_next_free_vgpr 512\n  .amdhsa_next_free_sgpr 102\n  .amdhsa_accum_offset 256\n"
    s += "  .amdhsa_group_segment_fixed_size 0\n  .amdhsa_kernarg_size 96\n  .amdhsa_user_sgpr_count 2\n"
    s += "  .amdhsa_user_sgpr_kernarg_segment_ptr 1\n  .amdhsa_system_sgpr_workgroup_id_x 1\n"
    s += "  .amdhsa_float_denorm_mode_32 3\n"
    s += ".end_amdhsa_kernel\n"
    return s

if __name__ == "__main__":
    cfg = json.loads(sys.argv[2]) if len(sys.argv) > 2 else {}
    p, names = build(cfg)
    open(sys.argv[1], "w").write(wrap(p.text()))
    print("wrote", sys.argv[1], "stamps:", names)
```

```python
import sys, json
from sched import Prog

NAME = "recurrent_scan__gqa_block_cached__glu_gated_swiglu__decode_kernel"

EPOCH   = 0
Q_BASE  = 0x1000
FLAG_BASE = 0x14000
CNT_BASE = 0x1C000
BP_BASE = 0x20000
O_BASE  = 0x80000
O_PITCH = 4224
S_BASE  = 0x200000
BB_BASE = 0x280000
STAMP   = 0x400000
L_XN = 0
L_QP = 4096
L_BP = 6144
L_QL = 10240
L_HL = 12544
L_MX = 12800
L_LW = 13056
L_CP = 13312
L_FP = 13824
L_CM = 14848
L_ROLE = 14912
L_OP = 16384
LDS_BYTES = 32768

SX, SK, SV, SWQ, SWO, SW1, SW3, SW2, SOUT, SDBG, SWS = [ "s[%d:%d]" % (4*i+4, 4*i+7) for i in range(11)]
sW, sG, sC, sT0, sKV = "s48", "s49", "s50", "s51", "s52"
sSELLO, sSELHI, sE, sTAG, sFF, sLOG2E, sSCALE, sHI = "s53", "s54", "s55", "s56", "s57", "s58", "s59", "s60"
sRETRY = "s61"
sA, sB, sCc, sD = "s62", "s63", "s64", "s65"
sRB, sCH = "s66", "s67"
sKC = "s68"
sCB1, sCB3, sW3B = "s69", "s70", "s71"
sVC, sROT = "s72", "s73"
sPOOL, sX = "s81", "s82"
sCL = "s80"
sPAR = "s77"
vTID, vLANE, vOFFK, vL16 = 0, 1, 2, 3
vMASK = 4
vTAG, vMAX, vL0, vL1 = 8, 9, 10, 11
vT = 12
QF, SP, PERM, ACC, RING = 16, 32, 64, 96, 128

def vr(b, n=1): return "v%d" % b if n == 1 else "v[%d:%d]" % (b, b+n-1)
def ar(b, n=1): return "a%d" % b if n == 1 else "a[%d:%d]" % (b, b+n-1)

DPP = " row_mask:0xf bank_mask:0xf"
def allred(p, regs, tmps, op, steps):
    for s in steps:
        if s in (1, 2, 4, 8):
            for r in regs: p("%s_dpp v%d, v%d, v%d row_ror:%d%s" % (op, r, r, r, s, DPP))
        else:
            for r, t in zip(regs, tmps): p("v_mov_b32 v%d, v%d" % (t, r))
            for r, t in zip(regs, tmps): p("v_permlane%d_swap_b32 v%d, v%d" % (s, r, t))
            for r, t in zip(regs, tmps): p("%s v%d, v%d, v%d" % (op, r, r, t))

def red4(p, a):
    p("v_permlane32_swap_b32 v%d, v%d" % (a[0], a[1])); p("v_permlane32_swap_b32 v%d, v%d" % (a[2], a[3]))
    p("v_add_f32 v%d, v%d, v%d" % (a[0], a[0], a[1])); p("v_add_f32 v%d, v%d, v%d" % (a[2], a[2], a[3]))
    p("v_permlane16_swap_b32 v%d, v%d" % (a[0], a[2]))
    p("v_add_f32 v%d, v%d, v%d" % (a[0], a[0], a[2]))
    p("v_add_f32_dpp v%d, v%d, v%d row_ror:8%s" % (a[0], a[0], a[0], DPP))

def build(cfg):
    pat = cfg.get("pat", "lin")
    nt = " nt" if cfg.get("nt", True) else ""
    ntw = " nt" if cfg.get("ntw", True) else ""
    stamps = cfg.get("stamps", False)
    poll_after = cfg.get("poll_after", 6)
    HS = cfg.get("hs", " sc1")
    HL = cfg.get("hl", " sc1")
    RETRIES = cfg.get("retries", 40000)
    R_ = cfg.get("R", 1)
    stride = {"lin": 1024, "str8": 8192, "w4": 4096 * R_, "glob": 262144}[pat]
    rot = cfg.get("rot", 0)
    dyn = cfg.get("dyn", False)
    NS = cfg.get("ns", 6 if dyn == 2 else 7) if dyn else 8
    ST0 = 84
    if dyn: assert pat == "w4" and R_ == 1 and not rot
    p = Prog()
    nst = [0]
    names = []
    def stamp(name):
        if not stamps or name in cfg.get("nostamp", []): return
        if name in names:
            k = names.index(name)
        else:
            k = nst[0]; nst[0] += 1; names.append(name)
        assert ST0 + 2*k + 1 <= 99
        p("s_memrealtime s[%d:%d]" % (ST0+2*k, ST0+1+2*k))

    depth = cfg.get("depth", 0); dstep = cfg.get("dstep", 2); depth0 = cfg.get("depth0", depth)
    cnt = [0]
    thr = cfg.get("thr_even", 0); thr_par = cfg.get("thr_par", 0)
    def svmem(text, name, early=False):
        d = depth0 if early else depth
        if d and cnt[0] % dstep == 0: p("s_waitcnt vmcnt(%d)" % (d - dstep))
        if thr and not early and cnt[0] % dstep == 0 and name[0] in "KV":
            L = p.label("thr")
            p("s_cmp_eq_u32 %s, %d" % (sPAR, thr_par)); p("s_cbranch_scc0 %s" % L); p("s_waitcnt vmcnt(%d)" % (thr - dstep)); p("%s:" % L)
        cnt[0] += 1
        p.vmem(text, name)
    END = p.label("end")
    p("s_cmp_ge_u32 s2, 256")
    p("s_cbranch_scc1 %s" % END)
    stamp("start")
    if cfg.get("pf", 0):
        NPF = p.label("nopf")
        p("s_cmp_ge_u32 s2, %d" % cfg["pf"]); p("s_cbranch_scc1 %s" % NPF)
        p("v_cmp_gt_u32 vcc, 64, v0"); p("s_cbranch_vccz %s" % NPF)
        PFB = p.label("pfbase")
        p("s_getpc_b64 s[48:49]")
        p("%s:" % PFB)
        p("v_lshlrev_b32 v12, 7, v0")
        for i in range(cfg.get("pfn", 3)):
            p("v_min_u32 v13, %s-%s-4, v12" % (END, PFB))
            p.vmem("global_load_dword v%d, v13, s[48:49]" % (236+i), "PF", cond=True)
            p("v_add_u32 v12, 0x2000, v12")
        p("%s:" % NPF)
    for i, off in enumerate([0, 8, 16, 24, 32, 48, 56, 64, 72, 80, 88]):
        p("s_load_dwordx2 s[%d:%d], s[0:1], %d" % (4*i+4, 4*i+5, off))
    sizes = [2048, 1<<26, 1<<26, 1<<23, 1<<23, 1024*3584*2, 1024*3584*2, 1024*3584*2, 2048, 256, 1<<28]
    for i, sz in enumerate(sizes):
        p("s_mov_b32 s%d, 0x%x" % (4*i+6, sz)); p("s_mov_b32 s%d, 0x20000" % (4*i+7))
    p("s_cmp_lt_u32 s2, 224")
    p("s_cselect_b32 s26, s26, 0")
    p("s_cselect_b32 s30, s30, 0")
    p("v_lshrrev_b32 v12, 6, v0")
    p("v_and_b32 v1, 63, v0")
    p("v_readfirstlane_b32 %s, v12" % sW)
    if cfg.get("thr_even", 0): p("s_getreg_b32 %s, hwreg(HW_REG_XCC_ID)" % sPAR); p("s_and_b32 %s, %s, 1" % (sPAR, sPAR))
    p("s_lshr_b32 %s, s2, 6" % sG)
    p("s_and_b32 %s, s2, 63" % sC)
    p("s_mov_b32 %s, 0x05040100" % sSELLO); p("s_mov_b32 %s, 0x07060302" % sSELHI)
    p("s_mov_b32 %s, 0xff" % sFF); p("s_mov_b32 %s, 0x3fb8aa3b" % sLOG2E)
    p("s_mov_b32 %s, 0x3db504f3" % sSCALE); p("s_mov_b32 %s, 0xffff0000" % sHI)
    p("s_lshr_b32 %s, s2, 1" % sRB); p("s_and_b32 %s, s2, 1" % sCH)
    p("v_lshlrev_b32 v3, 4, v1")
    p("v_lshlrev_b32 v13, 5, v1")
    p("s_lshl_b32 %s, %s, 9" % (sA, sW))
    p("v_lshlrev_b32 v14, 3, v1")
    p("v_lshrrev_b32 v15, 3, v1"); p("v_lshlrev_b32 v15, 13, v15")
    p("v_and_b32 v16, 7, v1"); p("v_lshlrev_b32 v16, 4, v16"); p("v_add_u32 v15, v15, v16")
    p("v_lshrrev_b32 v17, 4, v1"); p("v_mul_u32_u24 v17, 7168, v17")
    p("v_and_b32 v18, 15, v1"); p("v_lshlrev_b32 v18, 4, v18"); p("v_add_u32 v17, v17, v18")
    p("s_and_b32 %s, %s, 3" % (sB, sC)); p("s_lshl_b32 %s, %s, 21" % (sB, sB))
    p("s_lshl_b32 %s, %s, 19" % (sCc, sW)); p("s_add_u32 %s, %s, %s" % (sB, sB, sCc))
    p("s_lshl_b32 %s, %s, 11" % (sCc, sG)); p("s_add_u32 %s, %s, %s" % (sB, sB, sCc))
    p("s_lshr_b32 %s, %s, 2" % (sCc, sC)); p("s_lshl_b32 %s, %s, 7" % (sCc, sCc)); p("s_add_u32 %s, %s, %s" % (sB, sB, sCc))
    p("s_and_b32 %s, s2, 7" % sCc); p("s_lshl_b32 %s, %s, 7" % (sCc, sCc))
    p("s_lshl_b32 %s, %s, 5" % (sD, sW)); p("s_add_u32 %s, %s, %s" % (sCc, sCc, sD)); p("s_mul_i32 %s, %s, 7168" % (sCc, sCc))
    r1, r3 = cfg.get("r1", 1), cfg.get("r3", 2)
    for dst, rr in ((sCB1, r1), (sCB3, r3)):
        p("s_lshr_b32 %s, s2, 3" % dst); p("s_add_u32 %s, %s, %d" % (dst, dst, rr))
        p("s_sub_u32 %s, %s, 28" % (sD, dst)); p("s_cselect_b32 %s, %s, %s" % (dst, dst, sD))
    p("s_lshl_b32 %s, %s, 8" % (sD, sCB3)); p("s_add_u32 %s, %s, %s" % (sW3B, sCc, sD))
    p("s_lshl_b32 %s, %s, 8" % (sD, sCB1)); p("s_add_u32 %s, %s, %s" % (sCc, sCc, sD))
    p("s_waitcnt lgkmcnt(0)")
    stamp("karg")
    p("s_load_dword %s, s[44:45], %d" % (sE, EPOCH))
    ntx = " nt" if cfg.get("ntx", False) else ""
    p.vmem("buffer_load_dwordx4 v[224:227], v13, %s, 0 offen%s" % (SX, ntx), "XA0")
    p.vmem("buffer_load_dwordx4 v[228:231], v13, %s, 0 offen offset:16%s" % (SX, ntx), "XA1")
    p.vmem("buffer_load_dwordx2 v[232:233], v14, %s, %s offen%s" % (SX, sA, ntx), "XB")
    if cfg.get("pbar", 1) >= 1: p("s_barrier")
    for t in range(8):
        p("s_add_u32 %s, %s, %d" % (sT0, sB, t*8*8192))
        svmem("buffer_load_dwordx4 %s, v15, %s, %s offen%s" % (vr(128+4*t, 4), SWQ, sT0, ntw), "Q%d" % t, True)
    if cfg.get("pbar", 1) >= 2: p("s_barrier")
    for t in range(8):
        p("s_add_u32 %s, %s, %d" % (sT0, sCc, t*4*7168))
        svmem("buffer_load_dwordx4 %s, v17, %s, %s offen%s" % (vr(160+4*t, 4), SW1, sT0, ntw), "W1_%d" % t, True)
    stamp("w1_issued")
    if pat == "lin":
        p("s_lshl_b32 %s, s2, 18" % sKV); p("s_lshl_b32 %s, %s, 16" % (sD, sW)); p("s_add_u32 %s, %s, %s" % (sKV, sKV, sD))
    elif pat == "str8":
        p("s_lshl_b32 %s, %s, 24" % (sKV, sG))
        p("s_lshr_b32 %s, %s, 3" % (sD, sC)); p("s_lshl_b32 %s, %s, 21" % (sD, sD)); p("s_add_u32 %s, %s, %s" % (sKV, sKV, sD))
        p("s_lshl_b32 %s, %s, 19" % (sD, sW)); p("s_add_u32 %s, %s, %s" % (sKV, sKV, sD))
        p("s_and_b32 %s, %s, 7" % (sD, sC)); p("s_lshl_b32 %s, %s, 10" % (sD, sD)); p("s_add_u32 %s, %s, %s" % (sKV, sKV, sD))
    elif pat == "w4" and dyn:
        p("s_lshl_b32 %s, %s, 24" % (sKV, sG)); p("s_lshl_b32 %s, %s, 10" % (sD, sW)); p("s_add_u32 %s, %s, %s" % (sKV, sKV, sD))
        p("s_add_u32 %s, %s, %d" % (sPOOL, sKV, 64*NS*32768))
        if cfg.get("dynlin"):
            p("s_mul_i32 %s, %s, %d" % (sD, sW, 7*1024)); p("s_add_u32 %s, %s, %s" % (sPOOL, sPOOL, sD))
        p("s_mul_i32 %s, %s, %d" % (sD, sC, NS*32768)); p("s_add_u32 %s, %s, %s" % (sKV, sKV, sD))
    elif pat == "w4":
        lg = R_.bit_length() - 1
        p("s_lshl_b32 %s, %s, 24" % (sKV, sG))
        p("s_lshr_b32 %s, %s, %d" % (sD, sC, lg)); p("s_lshl_b32 %s, %s, %d" % (sD, sD, 18 + lg)); p("s_add_u32 %s, %s, %s" % (sKV, sKV, sD))
        p("s_and_b32 %s, %s, %d" % (sD, sC, R_ - 1)); p("s_lshl_b32 %s, %s, 12" % (sD, sD)); p("s_add_u32 %s, %s, %s" % (sKV, sKV, sD))
        p("s_lshl_b32 %s, %s, 10" % (sD, sW)); p("s_add_u32 %s, %s, %s" % (sKV, sKV, sD))
    elif pat == "glob":
        p("s_lshl_b32 %s, %s, 24" % (sKV, sG))
        p("s_lshl_b32 %s, %s, 12" % (sD, sC)); p("s_add_u32 %s, %s, %s" % (sKV, sKV, sD))
        p("s_lshl_b32 %s, %s, 10" % (sD, sW)); p("s_add_u32 %s, %s, %s" % (sKV, sKV, sD))
    if rot == 1: p("s_and_b32 %s, %s, 7" % (sROT, sC))
    if rot == 2: p("s_lshr_b32 %s, %s, 3" % (sROT, sC))
    if rot == 3: p("s_lshr_b32 %s, %s, 3" % (sROT, sC)); p("s_add_u32 %s, %s, %s" % (sROT, sROT, sC))
    p("v_and_b32 v12, 3, v1"); p("v_lshlrev_b32 v12, %d, v12" % (stride.bit_length()-1))
    p("v_bfe_u32 v2, v1, 2, 1"); p("v_lshlrev_b32 v2, 8, v2"); p("v_add_u32 v2, v2, v12")
    p("v_bfe_u32 v12, v1, 3, 1"); p("v_lshlrev_b32 v12, 6, v12"); p("v_add_u32 v2, v2, v12")
    p("v_lshrrev_b32 v12, 4, v1"); p("v_lshlrev_b32 v12, 4, v12"); p("v_add_u32 v2, v2, v12")
    p("v_and_b32 v12, 1, v1"); p("v_lshlrev_b32 v12, 4, v12"); p("v_mov_b32 v13, 0xffff"); p("v_lshlrev_b32 v13, v12, v13")
    p("v_bfe_u32 v12, v1, 1, 2")
    for jj in range(4):
        p("v_cmp_eq_u32 vcc, %d, v12" % jj); p("v_cndmask_b32 v%d, 0, v13, vcc" % (vMASK+jj))
    def grp_base(dst, t, dynbase=False):
        if dynbase:
            p("s_mov_b32 %s, %s" % (dst, sX))
        elif not rot:
            p("s_add_u32 %s, %s, %d" % (dst, sKV, 8*t*stride))
        else:
            p("s_add_u32 %s, %s, %d" % (dst, sROT, t)); p("s_and_b32 %s, %s, 7" % (dst, dst))
            p("s_mul_i32 %s, %s, %d" % (dst, dst, 8*stride)); p("s_add_u32 %s, %s, %s" % (dst, dst, sKV))
    vOFFK2 = 56
    def K_loads(t, slot=None, name=None):
        L = []
        db = slot is not None
        st_ = 1024 if (db and cfg.get("dynlin")) else stride
        vo = vOFFK2 if (db and cfg.get("dynlin")) else vOFFK
        sl = slot if db else t
        name = name or "K%d" % t
        for h in range(2):
            for a_ in range(2):
                for lam in range(2):
                    def f(h=h, a_=a_, lam=lam):
                        if a_ == 0 and lam == 0:
                            if h == 0: grp_base(sKC, t, db)
                            else: p("s_add_u32 %s, %s, %d" % (sKC, sKC, 4*st_))
                        svmem("buffer_load_dwordx4 %s, v%d, %s, %s offen offset:%d%s" % (ar(32*sl+16*h+8*a_+4*lam, 4), vo, SK, sKC, 512*a_+128*lam, nt), name)
                    L.append(f)
        return L
    def V_loads(t, db=False, name=None):
        base = RING + 32*(t % 4)
        name = name or "V%d" % t
        st_ = 1024 if (db and cfg.get("dynlin")) else stride
        L = []
        for i in range(8):
            def f(i=i):
                if i == 0: grp_base(sVC, t, db)
                else: p("s_add_u32 %s, %s, %d" % (sVC, sVC, st_))
                svmem("buffer_load_dwordx4 %s, v%d, %s, %s offen%s" % (vr(base+4*i, 4), vL16, SV, sVC, nt), name)
            L.append(f)
        return L
    def loadK(t):
        for f in K_loads(t): f()
    def loadV(t):
        for f in V_loads(t): f()
    def tagcheck(regs, acc):
        p("v_xor_b32 v%d, %s, v%d" % (acc, sTAG, regs[0]))
        for r in regs[1:]: p("v_bitop3_b32 v%d, v%d, %s, v%d bitop3:0xbe" % (acc, r, sTAG, acc))
        p("v_and_b32 v%d, 0xff, v%d" % (acc, acc))
        p("v_cmp_ne_u32 vcc, 0, v%d" % acc)
        if cfg.get("nodep"): p("s_mov_b64 vcc, 0")
    p.wait("XA1")
    stamp("x_landed")
    for i in range(8):
        p("v_lshlrev_b32 v%d, 16, v%d" % (32+2*i, 224+i)); p("v_and_b32 v%d, 0xffff0000, v%d" % (33+2*i, 224+i))
    for i in range(8): p("v_add_f32 v%d, v%d, v%d" % (48+i, 32+2*i, 33+2*i))
    p("v_add_f32 v48, v48, v49"); p("v_add_f32 v50, v50, v51"); p("v_add_f32 v52, v52, v53"); p("v_add_f32 v54, v54, v55")
    p("v_add_f32 v48, v48, v50"); p("v_add_f32 v52, v52, v54"); p("v_add_f32 v48, v48, v52")
    allred(p, [48], [49], "v_add_f32", [8, 4, 2, 1, 16, 32])
    p("v_mul_f32 v49, 0x3a800000, v48")
    for i in range(16): p("v_sub_f32 v%d, v%d, v49" % (32+i, 32+i))
    for i in range(4): p("v_mul_f32 v%d, v%d, v%d" % (50+i, 32+i, 32+i))
    for i in range(4, 16): p("v_fmac_f32 v%d, v%d, v%d" % (50+(i % 4), 32+i, 32+i))
    p("v_add_f32 v50, v50, v51"); p("v_add_f32 v52, v52, v53"); p("v_add_f32 v50, v50, v52")
    allred(p, [50], [51], "v_add_f32", [8, 4, 2, 1, 16, 32])
    p("v_mul_f32 v50, 0x3a800000, v50")
    p("v_cvt_pk_bf16_f32 v51, v49, v50")
    p("v_lshlrev_b32 v52, 16, v51")
    p("v_and_b32 v53, 0xffff0000, v51")
    p("v_add_f32 v53, 0x3727c5ac, v53")
    p("v_cvt_pk_bf16_f32 v53, v53, v53"); p("v_lshlrev_b32 v53, 16, v53")
    p("v_sqrt_f32 v53, v53")
    p("v_cvt_pk_bf16_f32 v53, v53, v53"); p("v_lshlrev_b32 v53, 16, v53")
    p("v_rcp_f32 v54, v53")
    p.wait("XB")
    p("v_lshlrev_b32 v32, 16, v232"); p("v_and_b32 v33, 0xffff0000, v232")
    p("v_lshlrev_b32 v34, 16, v233"); p("v_and_b32 v35, 0xffff0000, v233")
    for i in range(4): p("v_sub_f32 v%d, v%d, v52" % (32+i, 32+i))
    p("v_cvt_pk_bf16_f32 v36, v32, v33"); p("v_cvt_pk_bf16_f32 v37, v34, v35")
    p("v_lshlrev_b32 v32, 16, v36"); p("v_and_b32 v33, 0xffff0000, v36")
    p("v_lshlrev_b32 v34, 16, v37"); p("v_and_b32 v35, 0xffff0000, v37")
    for i in range(4): p("v_mul_f32 v%d, v%d, v54" % (40+i, 32+i))
    for i in range(4): p("v_fma_f32 v%d, -v%d, v53, v%d" % (44+i, 40+i, 32+i))
    for i in range(4): p("v_fma_f32 v%d, v%d, v54, v%d" % (40+i, 44+i, 40+i))
    for i in range(4): p("v_cvt_pk_bf16_f32 v%d, v%d, v%d" % (36+i, 40+i, 40+i))
    p("v_lshlrev_b32 v12, 4, v0")
    p("ds_write_b128 v12, v[36:39] offset:%d" % L_XN)
    p("s_waitcnt lgkmcnt(0)")
    p("s_barrier")
    stamp("ln_done")
    p("s_add_u32 %s, %s, 1" % (sE, sE)); p("s_and_b32 %s, %s, 0xff" % (sTAG, sE)); p("v_mov_b32 v%d, %s" % (vTAG, sTAG))
    p("s_and_b32 %s, %s, 3" % (sA, sC)); p("s_lshl_b32 %s, %s, 8" % (sA, sA)); p("s_lshl_b32 %s, %s, 6" % (sD, sW)); p("s_add_u32 %s, %s, %s" % (sA, sA, sD))
    p("v_lshrrev_b32 v12, 3, v1"); p("v_add_u32 v12, %s, v12" % sA); p("v_lshlrev_b32 v12, 2, v12")
    p("s_and_b32 %s, s2, 7" % sA); p("s_lshl_b32 %s, %s, 7" % (sA, sA)); p("s_lshl_b32 %s, %s, 5" % (sD, sW)); p("s_add_u32 %s, %s, %s" % (sA, sA, sD))
    p("v_lshrrev_b32 v13, 4, v1"); p("v_add_u32 v13, %s, v13" % sA); p("v_lshlrev_b32 v13, 2, v13")
    for t in range(0, 8, 2):
        p("ds_read2_b32 v[%d:%d], v12 offset0:%d offset1:%d" % (96+t, 97+t, 8*t, 8*t+8))
    for t in range(0, 8, 2):
        p("ds_read2_b32 v[%d:%d], v13 offset0:%d offset1:%d" % (104+t, 105+t, 4*t, 4*t+4))
    for t in range(8):
        p("s_add_u32 %s, %s, %d" % (sT0, sW3B, t*4*7168))
        svmem("buffer_load_dwordx4 %s, v17, %s, %s offen%s" % (vr(192+4*t, 4), SW3, sT0, ntw), "W3_%d" % t, True)
    p("s_waitcnt lgkmcnt(0)")
    for t in range(8):
        A = 48 + 4*(t % 2)
        for jj in range(4): p("v_and_b32 v%d, v%d, v%d" % (A+jj, 96+t, vMASK+jj))
        if t == 0: p.wait("Q7")
        p("v_mfma_f32_16x16x32_bf16 v[56:59], %s, %s, %s" % (vr(A, 4), vr(128+4*t, 4), "0" if t == 0 else "v[56:59]"))
    for t in range(8):
        for jj in range(4): p("v_and_b32 v%d, v%d, v%d" % (PERM+4*t+jj, 104+t, vMASK+jj))
    p("v_and_b32 v12, 7, v1"); p("v_lshlrev_b32 v12, 5, v12")
    p("v_bfe_u32 v13, v1, 4, 1"); p("v_lshlrev_b32 v13, 4, v13"); p("v_add_u32 v12, v12, v13")
    p("v_lshrrev_b32 v13, 5, v1"); p("v_lshlrev_b32 v13, 8, v13"); p("v_add_u32 v12, v12, v13")
    p("s_lshl_b32 %s, %s, 9" % (sA, sW)); p("v_add_u32 v12, %s, v12" % sA)
    p("s_mov_b32 exec_lo, 0x00ff00ff"); p("s_mov_b32 exec_hi, 0xff00ff00")
    p("ds_write_b128 v12, v[56:59] offset:%d" % L_QP)
    p("s_mov_b64 exec, -1")
    p("s_waitcnt lgkmcnt(0)")
    p("s_barrier")
    stamp("q_gemv")
    SKIP0 = p.label("pubq")
    p("s_cmp_lg_u32 %s, 0" % sW); p("s_cbranch_scc1 %s" % SKIP0)
    p("v_lshlrev_b32 v12, 4, v1")
    for i in range(8): p("ds_read_b128 %s, v12 offset:%d" % (vr(32+4*i, 4) if i < 4 else vr(112+4*(i-4), 4), L_QP + 256*i))
    p("s_lshl_b32 %s, %s, 2" % (sB, sG)); p("s_and_b32 %s, %s, 3" % (sD, sC)); p("s_add_u32 %s, %s, %s" % (sB, sB, sD)); p("s_lshl_b32 %s, %s, 12" % (sB, sB))
    p("s_lshr_b32 %s, %s, 2" % (sD, sC)); p("s_lshl_b32 %s, %s, 8" % (sD, sD)); p("s_add_u32 %s, %s, %s" % (sB, sB, sD))
    p("s_add_u32 %s, %s, %d" % (sB, sB, Q_BASE))
    p("s_waitcnt lgkmcnt(0)")
    for r in range(4):
        p("v_add_f32 v%d, v%d, v%d" % (32+r, 32+r, 36+r)); p("v_add_f32 v%d, v%d, v%d" % (40+r, 40+r, 44+r))
        p("v_add_f32 v%d, v%d, v%d" % (112+r, 112+r, 116+r)); p("v_add_f32 v%d, v%d, v%d" % (120+r, 120+r, 124+r))
    for r in range(4):
        p("v_add_f32 v%d, v%d, v%d" % (32+r, 32+r, 40+r)); p("v_add_f32 v%d, v%d, v%d" % (112+r, 112+r, 120+r))
    for r in range(4): p("v_add_f32 v%d, v%d, v%d" % (32+r, 32+r, 112+r))
    if True:
        NOZ = p.label("nozero")
        p("s_cmp_lg_u32 %s, 0" % sC); p("s_cbranch_scc1 %s" % NOZ)
        for r in range(4): p("v_mov_b32 v%d, 0" % (36+r))
        p("s_lshl_b32 %s, %s, 9" % (sD, sG)); p("s_add_u32 %s, %s, %d" % (sD, sD, CNT_BASE))
        p("s_mov_b32 exec_hi, 0")
        p.vmem("buffer_store_dwordx4 v[36:39], v12, %s, %s offen%s" % (SWS, sD, HS), "ZCNT", cond=True)
        p("s_mov_b64 exec, -1")
        p("%s:" % NOZ)
    p("s_mov_b32 exec_lo, 0xffff"); p("s_mov_b32 exec_hi, 0")
    p.vmem("buffer_store_dwordx4 v[32:35], v12, %s, %s offen%s" % (SWS, sB, HS), "PUBQ", cond=True)
    p("s_mov_b64 exec, -1")
    p("%s:" % SKIP0)
    loadK(0)
    p.wait("W1_7")
    stamp("w1_landed")
    for t in range(8):
        p("v_mfma_f32_16x16x32_bf16 v[60:63], %s, %s, %s" % (vr(PERM+4*t, 4), vr(160+4*t, 4), "0" if t == 0 else "v[60:63]"))
    loadK(1)
    p.wait("W3_7")
    stamp("w3_landed")
    for t in range(8):
        p("v_mfma_f32_16x16x32_bf16 v[96:99], %s, %s, %s" % (vr(PERM+4*t, 4), vr(192+4*t, 4), "0" if t == 0 else "v[96:99]"))
    SKIP2 = p.label("flag")
    p("s_cmp_lg_u32 %s, 0" % sW); p("s_cbranch_scc1 %s" % SKIP2)
    p("v_lshlrev_b32 v12, 2, v1"); p("v_mov_b32 v13, %s" % sE)
    p("s_lshl_b32 %s, s2, 7" % sA); p("s_add_u32 %s, %s, %d" % (sA, sA, FLAG_BASE))
    p.wait("PUBQ")
    p("s_mov_b32 exec_hi, 0")
    p.vmem("buffer_store_dword v13, v12, %s, %s offen%s" % (SWS, sA, HS), "FLAG", cond=True)
    p("s_mov_b64 exec, -1")
    p("%s:" % SKIP2)
    stamp("flag")
    p("v_and_b32 v12, 15, v1"); p("v_lshlrev_b32 v12, 5, v12")
    p("v_bfe_u32 v13, v1, 4, 1"); p("v_lshlrev_b32 v13, 4, v13"); p("v_add_u32 v12, v12, v13")
    p("s_lshl_b32 %s, %s, 10" % (sA, sW)); p("v_add_u32 v12, %s, v12" % sA)
    p("s_mov_b32 exec_hi, 0")
    p("ds_write_b128 v12, v[60:63] offset:%d" % L_BP)
    p("ds_write_b128 v12, v[96:99] offset:%d" % (L_BP+512))
    p("s_mov_b64 exec, -1")
    loadK(2)
    p("s_waitcnt lgkmcnt(0)")
    p("s_barrier")
    stamp("b_gemv")
    SKIP1 = p.label("pub1")
    p("s_cmp_lg_u32 %s, 1" % sW); p("s_cbranch_scc1 %s" % SKIP1)
    p("s_cmp_ge_u32 s2, 224"); p("s_cbranch_scc1 %s" % SKIP1)
    p("v_lshlrev_b32 v12, 4, v1")
    for i in range(4): p("ds_read_b128 %s, v12 offset:%d" % (vr(32+4*i, 4), L_BP + 1024*i))
    p("s_and_b32 %s, s2, 7" % sA); p("s_mul_i32 %s, %s, %d" % (sA, sA, 3584*4)); p("s_add_u32 %s, %s, %d" % (sA, sA, BP_BASE))
    p("s_lshl_b32 %s, %s, 9" % (sD, sCB1)); p("s_lshl_b32 %s, %s, 9" % (sB, sCB3)); p("s_add_u32 %s, %s, %d" % (sB, sB, 8*3584*4))
    p("v_mov_b32 v13, %s" % sD); p("v_mov_b32 v14, %s" % sB); p("v_cmp_gt_u32 vcc, 32, v1"); p("v_cndmask_b32 v13, v14, v13, vcc")
    p("v_and_b32 v14, 31, v1"); p("v_lshlrev_b32 v14, 4, v14"); p("v_add_u32 v13, v13, v14")
    p("s_waitcnt lgkmcnt(0)")
    for r in range(4):
        p("v_add_f32 v%d, v%d, v%d" % (32+r, 32+r, 36+r)); p("v_add_f32 v%d, v%d, v%d" % (40+r, 40+r, 44+r))
    for r in range(4): p("v_add_f32 v%d, v%d, v%d" % (32+r, 32+r, 40+r))
    for r in range(4): p("v_bfi_b32 v%d, %s, v%d, v%d" % (32+r, sFF, vTAG, 32+r))
    p.vmem("buffer_store_dwordx4 v[32:35], v13, %s, %s offen%s" % (SWS, sA, HS), "PUBB", cond=True)
    p("%s:" % SKIP1)
    for t in range(3, poll_after): loadK(t)
    SKIPP = p.label("nopoll")
    p("v_lshlrev_b32 v14, 7, v1")
    p("s_lshl_b32 %s, %s, 13" % (sB, sG)); p("s_add_u32 %s, %s, %d" % (sB, sB, FLAG_BASE))
    p("s_cmp_lg_u32 %s, 0" % sW); p("s_cbranch_scc1 %s" % SKIPP)
    p.vmem("buffer_load_dword v15, v14, %s, %s offen%s" % (SWS, sB, HL), "POLL", cond=True)
    p("%s:" % SKIPP)
    pend = []
    for t in range(poll_after, NS): pend += K_loads(t)
    for t in range(4): pend += V_loads(t)
    def tr(n):
        for _ in range(min(n, len(pend))): pend.pop(0)()
    tr(cfg.get("n_after_poll", 16))
    OKP = p.label("okpoll")
    p("s_cmp_lg_u32 %s, 0" % sW); p("s_cbranch_scc1 %s" % OKP)
    p.wait("POLL")
    p("s_mov_b32 %s, %d" % (sRETRY, RETRIES))
    RP = p.label("rpoll")
    p("%s:" % RP)
    p("v_cmp_ne_u32 vcc, %s, v15" % sE)
    if cfg.get("nodep"): p("s_branch %s" % OKP)
    p("s_cbranch_vccz %s" % OKP)
    p("s_sub_u32 %s, %s, 1" % (sRETRY, sRETRY)); p("s_cbranch_scc1 %s" % OKP)
    p("s_sleep %d" % cfg.get("sleep", 8))
    p("buffer_load_dword v15, v14, %s, %s offen%s" % (SWS, sB, HL))
    p("s_waitcnt vmcnt(0)")
    p("s_branch %s" % RP)
    p("%s:" % OKP)
    p("s_barrier")
    stamp("poll_ok")
    p("s_lshl_b32 %s, %s, 14" % (sA, sG)); p("s_lshl_b32 %s, %s, 10" % (sD, sW)); p("s_add_u32 %s, %s, %s" % (sA, sA, sD)); p("s_add_u32 %s, %s, %d" % (sA, sA, Q_BASE))
    for kq in range(4):
        p("s_add_u32 %s, %s, %d" % (sT0, sA, kq*4096))
        p.vmem("buffer_load_dwordx4 %s, v%d, %s, %s offen%s" % (vr(96+4*kq, 4), vL16, SWS, sT0, HL), "QG")
    tr(cfg.get("n_after_qg", 16))
    p("v_lshrrev_b32 v12, 5, v1"); p("s_lshl_b32 %s, %s, 1" % (sA, sW)); p("v_add_u32 v12, %s, v12" % sA); p("v_mul_u32_u24 v12, 272, v12")
    p("v_and_b32 v13, 31, v1"); p("v_lshlrev_b32 v13, 3, v13"); p("v_add_u32 v12, v12, v13")
    p("v_and_b32 v14, 7, v1"); p("v_mul_u32_u24 v14, 272, v14"); p("v_lshrrev_b32 v13, 4, v1"); p("v_lshlrev_b32 v13, 4, v13"); p("v_add_u32 v14, v14, v13")
    p("v_bfe_u32 v13, v1, 3, 1"); p("v_lshlrev_b32 v13, 6, v13"); p("v_add_u32 v14, v14, v13")
    p("v_mov_b32 v%d, 0xff800000" % vMAX)
    p.wait("QG")
    for r in range(4):
        p("v_add_f32 v%d, v%d, v%d" % (96+r, 96+r, 100+r)); p("v_add_f32 v%d, v%d, v%d" % (104+r, 104+r, 108+r))
    for r in range(4): p("v_add_f32 v%d, v%d, v%d" % (96+r, 96+r, 104+r))
    p("v_cvt_pk_bf16_f32 v96, v96, v97"); p("v_cvt_pk_bf16_f32 v97, v98, v99")
    p("ds_write_b64 v12, v[96:97] offset:%d" % L_QL)
    p("s_waitcnt lgkmcnt(0)")
    p("s_barrier")
    stamp("q_ready")
    for lam in range(2): p("ds_read_b128 %s, v14 offset:%d" % (vr(QF+4*lam, 4), L_QL + 128*lam))
    tr(1)
    p("s_waitcnt lgkmcnt(0)")
    def qk_mfma(t):
        D = PERM + 16*(t % 2)
        p.wait("K%d" % t)
        for lam in range(2):
            for h in range(2):
                for a_ in range(2):
                    d = D + 8*h + 4*a_
                    p("v_mfma_f32_16x16x32_bf16 %s, %s, %s, %s" % (vr(d, 4), ar(32*t+16*h+8*a_+4*lam, 4), vr(QF+4*lam, 4), "0" if lam == 0 else vr(d, 4)))
    def qk_post(t):
        D = PERM + 16*(t % 2); T = QF + 8
        for h in range(2):
            for r in range(4): p("v_permlane32_swap_b32 v%d, v%d" % (D+8*h+r, D+8*h+4+r))
        for h in range(2):
            for r in range(4): p("v_add_f32_dpp v%d, v%d, v%d row_ror:8%s" % (D+8*h+r, D+8*h+4+r, D+8*h+r, DPP))
        tr(1)
        src = [D+0, D+1, D+2, D+3, D+8, D+9, D+10, D+11]
        pk = [D+4, D+5, D+6, D+7]
        for i in range(4): p("v_cvt_pk_bf16_f32 v%d, v%d, v%d" % (pk[i], src[2*i], src[2*i+1]))
        for i in range(4):
            p("v_lshlrev_b32 v%d, 16, v%d" % (T+2*i, pk[i])); p("v_and_b32 v%d, 0xffff0000, v%d" % (T+2*i+1, pk[i]))
        for i in range(8): p("v_mul_f32 v%d, %s, v%d" % (T+i, sSCALE, T+i))
        tr(1)
        for i in range(4):
            p("v_cvt_pk_bf16_f32 v%d, v%d, v%d" % (SP+4*t+i, T+2*i, T+2*i+1))
            p("v_max3_f32 v%d, v%d, v%d, v%d" % (vMAX, vMAX, T+2*i, T+2*i+1))
    qk_mfma(0)
    for t in range(1, NS):
        qk_mfma(t)
        qk_post(t-1)
    qk_post(NS-1)
    allred(p, [vMAX], [12], "v_max_f32", [16, 32])
    p("v_cvt_pk_bf16_f32 v12, v%d, v%d" % (vMAX, vMAX)); p("v_lshlrev_b32 v%d, 16, v12" % vMAX)
    p("v_mul_f32 v14, %s, v%d" % (sLOG2E, vMAX)); p("v_sub_f32 v14, 0, v14")
    stamp("qk_done")
    p("v_mov_b32 v%d, 0" % vL0); p("v_mov_b32 v%d, 0" % vL1)
    for b_ in range(NS):
        T = PERM + 8*(b_ % 2)
        for i in range(4):
            p("v_lshlrev_b32 v%d, 16, v%d" % (T+2*i, SP+4*b_+i)); p("v_and_b32 v%d, 0xffff0000, v%d" % (T+2*i+1, SP+4*b_+i))
        for i in range(8): p("v_fma_f32 v%d, v%d, %s, v14" % (T+i, T+i, sLOG2E))
        for i in range(8): p("v_exp_f32 v%d, v%d" % (T+i, T+i))
        for i in range(4):
            p("v_cvt_pk_bf16_f32 v%d, v%d, v%d" % (SP+4*b_+i, T+2*i, T+2*i+1))
            p("v_add_f32 v%d, v%d, v%d" % (vL0, vL0, T+2*i)); p("v_add_f32 v%d, v%d, v%d" % (vL1, vL1, T+2*i+1))
        tr(1)
    tr(100)
    p("v_add_f32 v%d, v%d, v%d" % (vL0, vL0, vL1))
    stamp("p_done")
    def silu(src, dst, tmp, n):
        for r in range(n): p("v_mul_f32 v%d, %s, v%d" % (tmp+r, sLOG2E, src+r))
        for r in range(n): p("v_exp_f32 v%d, -v%d" % (tmp+r, tmp+r))
        for r in range(n): p("v_add_f32 v%d, 1.0, v%d" % (tmp+r, tmp+r))
        for r in range(n): p("v_rcp_f32 v%d, v%d" % (tmp+r, tmp+r))
        for r in range(n): p("v_mul_f32 v%d, v%d, v%d" % (dst+r, src+r, tmp+r))
    def unpack2(dst, src):
        p("v_lshlrev_b32 v%d, 16, v%d" % (dst, src)); p("v_and_b32 v%d, 0xffff0000, v%d" % (dst+1, src))
    def retry_block(check, reload, base):
        R = p.label("r" + base); OK = p.label("ok" + base)
        p("s_mov_b32 %s, %d" % (sRETRY, RETRIES))
        p("%s:" % R)
        check()
        p("s_cbranch_vccz %s" % OK)
        p("s_sub_u32 %s, %s, 1" % (sRETRY, sRETRY)); p("s_cbranch_scc1 %s" % OK)
        reload()
        p("s_waitcnt vmcnt(0)")
        p("s_branch %s" % R)
        p("%s:" % OK)
    sH0, sH1 = "s69", "s70"
    vHG = 47
    def h_issue():
        p("v_lshrrev_b32 v%d, 3, v1" % vHG); p("v_mul_u32_u24 v%d, 14336, v%d" % (vHG, vHG)); p("v_and_b32 v13, 7, v1"); p("v_min_u32 v13, 6, v13"); p("v_lshlrev_b32 v13, 4, v13"); p("v_add_u32 v%d, v%d, v13" % (vHG, vHG))
        p("s_mul_i32 %s, %s, 112" % (sH0, sRB)); p("s_add_u32 %s, %s, %d" % (sH0, sH0, BP_BASE)); p("s_add_u32 %s, %s, %d" % (sH1, sH0, 8*14336))
        p.vmem("buffer_load_dwordx4 v[32:35], v%d, %s, %s offen%s" % (vHG, SWS, sH0, HL), "HG")
        p.vmem("buffer_load_dwordx4 v[36:39], v%d, %s, %s offen%s" % (vHG, SWS, sH1, HL), "HG")
    def h_compute():
        p.wait("HG")
        def rl():
            p("s_sleep %d" % cfg.get("sleep", 8))
            p("buffer_load_dwordx4 v[32:35], v%d, %s, %s offen%s" % (vHG, SWS, sH0, HL))
            p("buffer_load_dwordx4 v[36:39], v%d, %s, %s offen%s" % (vHG, SWS, sH1, HL))
        retry_block(lambda: tagcheck(list(range(32, 40)), 14), rl, "h")
        red4(p, [32, 33, 34, 35]); red4(p, [36, 37, 38, 39])
        p("v_cvt_pk_bf16_f32 v40, v32, v36")
        unpack2(32, 40)
        silu(32, 32, 40, 1)
        p("v_cvt_pk_bf16_f32 v40, v32, v32"); p("v_lshlrev_b32 v32, 16, v40")
        p("v_mul_f32 v32, v32, v33")
        p("v_cvt_pk_bf16_f32 v32, v32, v32")
        p("v_lshrrev_b32 v12, 4, v1"); p("v_and_b32 v13, 1, v12"); p("v_lshlrev_b32 v13, 1, v13"); p("v_lshrrev_b32 v12, 1, v12"); p("v_or_b32 v12, v12, v13")
        p("v_lshlrev_b32 v12, 5, v12"); p("v_and_b32 v13, 7, v1"); p("v_lshlrev_b32 v13, 2, v13"); p("v_add_u32 v13, v13, v12")
        p("ds_write_b32 v13, v32 offset:%d" % L_HL)
    sOB = "s77"
    late = []
    floor_ = [0]
    def tl(n=1):
        for _ in range(min(n, max(0, len(late) - floor_[0]))): late.pop(0)()
    def pv(t, trickle=False):
        base = RING + 32*(t % 4)
        p.wait("V%d" % t)
        def perm(j):
            c, h = j >> 1, j & 1
            for tt in range(4):
                p("v_perm_b32 v%d, v%d, v%d, %s" % (PERM+4*j+tt, base+4*(2*tt+1)+c, base+4*(2*tt)+c, sSELHI if h else sSELLO))
        def mm(j):
            p("v_mfma_f32_16x16x32_bf16 %s, %s, %s, %s" % (vr(ACC+4*j, 4), vr(PERM+4*j, 4), vr(SP+4*t, 4), "0" if t == 0 else vr(ACC+4*j, 4)))
        perm(0)
        for j in range(1, 8):
            perm(j); mm(j-1)
            if trickle and j in (2, 5): tl(1)
        mm(7)
    vW2O, vOO = 31, 11
    sW2B = "s3"
    AW2, AWO = 0, 64
    def late_addresses(NH):
        p("v_lshrrev_b32 v12, 4, v1"); p("v_and_b32 v13, 15, v1"); p("v_lshlrev_b32 v13, 4, v13")
        p("v_lshlrev_b32 v%d, 11, v12" % vW2O); p("v_add_u32 v%d, v%d, v13" % (vW2O, vW2O))
        p("v_lshlrev_b32 v%d, 14, v12" % vOO); p("v_add_u32 v%d, v%d, v13" % (vOO, vOO))
        if NH == 2: p("s_lshl_b32 %s, %s, 9" % (sD, sW))
        else: p("s_lshl_b32 %s, %s, 10" % (sD, sCH)); p("s_lshl_b32 %s, %s, 8" % (sA, sW)); p("s_add_u32 %s, %s, %s" % (sD, sD, sA))
        p("s_mul_i32 %s, %s, %d" % (sW2B, sRB, 28*2048)); p("s_add_u32 %s, %s, %s" % (sW2B, sW2B, sD))
        p("s_lshl_b32 %s, %s, 16" % (sOB, sRB)); p("s_add_u32 %s, %s, %s" % (sOB, sOB, sD))
    def W2_loads(NH):
        L = []
        for t in range(7):
            for hc in range(NH):
                def f(t=t, hc=hc):
                    if hc == 0: p("s_add_u32 %s, %s, %d" % (sT0, sW2B, t*4*2048))
                    svmem("buffer_load_dwordx4 %s, v%d, %s, %s offen offset:%d%s" % (ar(AW2+28*hc+4*t, 4), vW2O, SW2, sT0, 256*hc, ntw), "W2")
                L.append(f)
        return L
    def O_loads(NH):
        L = []
        for t in range(8):
            for hc in range(NH):
                def f(t=t, hc=hc):
                    if hc == 0: p("s_add_u32 %s, %s, %d" % (sT0, sOB, t*2048))
                    svmem("buffer_load_dwordx4 %s, v%d, %s, %s offen offset:%d%s" % (ar(AWO+32*hc+4*t, 4), vOO, SWO, sT0, 256*hc, ntw), "O")
                L.append(f)
        return L
    vAWB, vRD, vPO, vLWR, vMLS, vG0, vG1 = 24, 25, 26, 27, 28, 29, 30
    vPC, vCM, vCPW, vCPR, vZ = 160, 161, 162, 163, 165
    vAW = PERM + 24
    sPO, sPB, sPS, sGV, sGM, sGA = "s71", "s72", "s73", "s74", "s75", "s76"
    def producer_addresses():
        p("v_and_b32 v12, 7, v1"); p("v_lshlrev_b32 v13, 9, v12"); p("v_lshlrev_b32 v12, 4, v12"); p("v_add_u32 v12, v12, v13")
        p("v_lshrrev_b32 v13, 4, v1"); p("v_lshlrev_b32 v13, 7, v13"); p("v_add_u32 v12, v12, v13")
        p("s_lshl_b32 %s, %s, 12" % (sA, sW)); p("s_add_u32 %s, %s, %d" % (sA, sA, L_OP)); p("v_add_u32 v%d, %s, v12" % (vAWB, sA))
        p("v_lshlrev_b32 v%d, 4, v0" % vRD)
        p("v_lshrrev_b32 v14, 5, v0"); p("v_and_b32 v15, 7, v0"); p("v_xor_b32 v14, v14, v15"); p("v_lshlrev_b32 v14, 4, v14")
        p("v_lshrrev_b32 v15, 3, v0"); p("v_lshlrev_b32 v15, 7, v15"); p("v_add_u32 v%d, v14, v15" % vPO)
        p("s_mul_i32 %s, s2, %d" % (sPO, O_PITCH)); p("s_add_u32 %s, %s, %d" % (sPO, sPO, O_BASE))
        p("v_lshrrev_b32 v13, 5, v0"); p("v_lshlrev_b32 v%d, 5, v13" % vLWR)
        p("v_lshlrev_b32 v%d, 4, v1" % vMLS); p("v_add_u32 v%d, 4096, v%d" % (vMLS, vMLS))
    def gather_addresses():
        p("v_lshrrev_b32 v12, 3, v1"); p("v_mul_u32_u24 v%d, %d, v12" % (vG0, O_PITCH))
        p("v_and_b32 v13, 7, v1"); p("v_lshlrev_b32 v13, 4, v13"); p("v_add_u32 v%d, v%d, v13" % (vG1, vG0))
        p("s_lshr_b32 %s, %s, 5" % (sA, sRB)); p("s_mul_i32 %s, %s, %d" % (sA, sA, 64*O_PITCH)); p("s_add_u32 %s, %s, %d" % (sA, sA, O_BASE))
        p("s_bfe_u32 %s, %s, 0x30002" % (sB, sRB))
        p("s_lshl_b32 %s, %s, 4" % (sD, sB)); p("s_add_u32 %s, %s, %s" % (sGM, sA, sD)); p("s_add_u32 %s, %s, 4096" % (sGM, sGM))
        p("s_and_b32 %s, %s, 31" % (sB, sRB)); p("s_lshl_b32 %s, %s, 7" % (sB, sB))
        p("s_add_u32 %s, %s, %s" % (sB, sB, sA))
        p("s_mul_i32 %s, %s, %d" % (sD, sW, 16*O_PITCH))
        p("s_add_u32 %s, %s, %s" % (sGV, sB, sD)); p("s_add_u32 %s, %s, %s" % (sGA, sGM, sD))
    def tail_addresses_b(NH):
        p("v_bfe_u32 v12, v1, 2, 2"); p("v_lshlrev_b32 v12, 14, v12")
        p("v_and_b32 v13, 3, v1"); p("v_lshlrev_b32 v13, 5, v13"); p("v_add_u32 v12, v12, v13")
        p("v_bfe_u32 v13, v1, 4, 1"); p("v_lshlrev_b32 v13, 4, v13"); p("v_add_u32 v%d, v12, v13" % vPC)
        if NH == 2: p("s_lshl_b32 %s, %s, 17" % (sA, sW))
        else: p("s_lshl_b32 %s, %s, 18" % (sA, sCH)); p("s_lshl_b32 %s, %s, 16" % (sD, sW)); p("s_add_u32 %s, %s, %s" % (sA, sA, sD))
        p("s_lshl_b32 %s, %s, 7" % (sD, sRB)); p("s_add_u32 %s, %s, %s" % (sA, sA, sD))
        p("s_add_u32 %s, %s, %d" % (sPB, sA, BB_BASE)); p("s_add_u32 %s, %s, %d" % (sPS, sA, S_BASE))
        p("v_lshrrev_b32 v12, 4, v1"); p("v_and_b32 v13, 1, v12"); p("v_lshlrev_b32 v13, 1, v13"); p("v_lshrrev_b32 v12, 1, v12"); p("v_or_b32 v12, v12, v13")
        p("v_lshlrev_b32 v12, 5, v12"); p("v_and_b32 v13, 7, v1"); p("v_lshlrev_b32 v13, 2, v13"); p("v_add_u32 v12, v12, v13")
        p("s_lshl_b32 %s, %s, 7" % (sA, sW)); p("v_add_u32 v%d, %s, v12" % (vCPW, sA))
        p("v_lshrrev_b32 v13, 4, v1"); p("v_lshlrev_b32 v%d, 5, v13" % vCPR)
        p("s_lshl_b32 %s, %s, 3" % (sA, sW)); p("v_mov_b32 v%d, %s" % (vCM, sA)); p("v_mov_b32 v%d, 0" % vZ)
    n_pre = cfg.get("n_pre", 5)
    vMLR = vL0
    def ml_publish_lds():
        allred(p, [vL0], [12], "v_add_f32", [16, 32])
        p("v_mov_b32 v12, v%d" % vMAX); p("v_mov_b32 v13, v%d" % vL0)
        p("v_and_b32 v%d, 7, v1" % vMLR); p("v_lshlrev_b32 v%d, 5, v%d" % (vMLR, vMLR))
        p("s_lshl_b32 %s, %s, 3" % (sA, sW)); p("v_add_u32 v14, %s, v%d" % (sA, vMLR))
        p("s_mov_b32 exec_lo, 0x00ff00ff"); p("s_mov_b32 exec_hi, 0x00ff00ff")
        p("ds_write_b64 v14, v[12:13] offset:%d" % L_LW)
        p("s_mov_b64 exec, -1")
    def o_publish():
        for j in range(8): p("v_xor_b32 v%d, %d, v%d" % (vAW+j, 16*j, vAWB))
        p("s_mov_b32 exec_lo, 0x00ff00ff"); p("s_mov_b32 exec_hi, 0x00ff00ff")
        for j in range(8):
            p("ds_write_b128 v%d, %s" % (vAW+j, vr(ACC+4*j, 4)))
        p("s_mov_b64 exec, -1")
        p("s_waitcnt lgkmcnt(0)")
        p("s_barrier")
        F = PERM + 16
        G_ = 112
        p("ds_read_b128 %s, v%d offset:%d" % (vr(F, 4), vLWR, L_LW)); p("ds_read_b128 %s, v%d offset:%d" % (vr(F+4, 4), vLWR, L_LW+16))
        for i in range(4): p("ds_read_b128 %s, v%d offset:%d" % (vr(PERM+4*i, 4), vRD, L_OP + 4096*i))
        p("ds_read_b128 %s, v%d offset:%d" % (vr(G_, 4), vMLR, L_LW)); p("ds_read_b128 %s, v%d offset:%d" % (vr(G_+4, 4), vMLR, L_LW+16))
        p("s_waitcnt lgkmcnt(6)")
        p("v_max3_f32 v12, v%d, v%d, v%d" % (F, F+2, F+4)); p("v_max_f32 v12, v12, v%d" % (F+6))
        for i in range(4): p("v_sub_f32 v%d, v%d, v12" % (F+2*i, F+2*i))
        for i in range(4): p("v_mul_f32 v%d, %s, v%d" % (F+2*i, sLOG2E, F+2*i))
        for i in range(4): p("v_exp_f32 v%d, v%d" % (F+2*i, F+2*i))
        for i in range(4): p("v_mov_b32 v%d, v%d" % (F+2*i+1, F+2*i))
        p("s_waitcnt lgkmcnt(5)")
        for r in range(0, 4, 2): p("v_pk_mul_f32 %s, %s, %s" % (vr(PERM+r, 2), vr(F, 2), vr(PERM+r, 2)))
        for i in range(1, 4):
            p("s_waitcnt lgkmcnt(%d)" % (5-i))
            for r in range(0, 4, 2): p("v_pk_fma_f32 %s, %s, %s, %s" % (vr(PERM+r, 2), vr(F+2*i, 2), vr(PERM+4*i+r, 2), vr(PERM+r, 2)))
        for r in range(4): p("v_bfi_b32 v%d, %s, v%d, v%d" % (PERM+r, sFF, vTAG, PERM+r))
        p.vmem("buffer_store_dwordx4 %s, v%d, %s, %s offen%s" % (vr(PERM, 4), vPO, SWS, sPO, HS), "PUBO")
        SKIP4 = p.label("ml")
        p("s_cmp_lg_u32 %s, 0" % sW); p("s_cbranch_scc1 %s" % SKIP4)
        p("s_waitcnt lgkmcnt(0)")
        p("v_max3_f32 v12, v%d, v%d, v%d" % (G_, G_+2, G_+4)); p("v_max_f32 v12, v12, v%d" % (G_+6))
        for i in range(4): p("v_sub_f32 v%d, v%d, v12" % (G_+2*i, G_+2*i))
        for i in range(4): p("v_mul_f32 v%d, %s, v%d" % (G_+2*i, sLOG2E, G_+2*i))
        for i in range(4): p("v_exp_f32 v%d, v%d" % (G_+2*i, G_+2*i))
        p("v_mul_f32 v13, v%d, v%d" % (G_, G_+1))
        for i in range(1, 4): p("v_fmac_f32 v13, v%d, v%d" % (G_+2*i, G_+2*i+1))
        p("v_bfi_b32 v%d, %s, v%d, v12" % (F, sFF, vTAG)); p("v_bfi_b32 v%d, %s, v%d, v13" % (F+1, sFF, vTAG))
        p("v_mov_b32 v%d, %s" % (F+2, sE)); p("v_mov_b32 v%d, %s" % (F+3, sE))
        p("s_mov_b32 exec_lo, 0xff"); p("s_mov_b32 exec_hi, 0")
        p.vmem("buffer_store_dwordx4 %s, v%d, %s, %s offen%s" % (vr(F, 4), vMLS, SWS, sPO, HS), "PUBML", cond=True)
        p("s_mov_b64 exec, -1")
        p("%s:" % SKIP4)
        p("s_waitcnt lgkmcnt(0)")
    sROLE = "s68"
    claim_at = cfg.get("claim_at", 2)
    def claim():
        SK = p.label("noclaim")
        p("s_cmp_lg_u32 %s, 0" % sW); p("s_cbranch_scc1 %s" % SK)
        p("s_lshl_b32 %s, %s, 9" % (sA, sG)); p("s_add_u32 %s, %s, %d" % (sA, sA, CNT_BASE))
        p("s_add_u32 s82, s44, %s" % sA); p("s_addc_u32 s83, s45, 0")
        p("s_mov_b32 %s, 1" % sROLE)
        p("s_atomic_add %s, s[82:83], 0 glc" % sROLE)
        p("%s:" % SK)
    def claim_broadcast():
        SK = p.label("nobc")
        p("s_cmp_lg_u32 %s, 0" % sW); p("s_cbranch_scc1 %s" % SK)
        p("s_waitcnt lgkmcnt(0)")
        p("v_mov_b32 v12, %s" % sROLE); p("v_mov_b32 v13, 0")
        p("ds_write_b32 v13, v12 offset:%d" % L_ROLE)
        p("%s:" % SK)
        p("s_waitcnt lgkmcnt(0)")
        p("s_barrier")
        p("v_mov_b32 v13, 0")
        p("ds_read_b32 v12, v13 offset:%d" % L_ROLE)
        p("s_waitcnt lgkmcnt(0)")
        p("v_readfirstlane_b32 %s, v12" % sRB)
    pv(0); loadV(4)
    if claim_at == 0: claim()
    pv(1); loadV(5)
    if claim_at == 1: claim()
    pv(2); loadV(6)
    if claim_at == 2: claim()
    pv(3); loadV(7)
    if claim_at == 3: claim()
    claim_broadcast()
    NOROLE = p.label("norole"); FINAL = p.label("final"); HALF = p.label("half")
    N2 = cfg.get("n2", 32); N1 = 64 - 2*N2
    def role_path(NH, npre):
        h_issue()
        late_addresses(NH)
        del late[:]; late.extend(W2_loads(NH) + O_loads(NH)); floor_[0] = len(late) - npre
        pv(4, True); tl(1); producer_addresses(); tl(1); pv(5, True); tl(1); gather_addresses(); ml_publish_lds(); tl(1); pv(6, True)
        while len(late) > floor_[0]: tl(1)
        pv(7)
        stamp("pv_done")
        o_publish()
        stamp("o_pub")
        floor_[0] = 0
        DD0, DD1 = 124, 116
        def pub_cols(sb, name):
            for D in (DD0, DD1)[:NH]:
                for r in range(4): p("v_bfi_b32 v%d, %s, v%d, v%d" % (D+r, sFF, vTAG, D+r))
            p("s_add_u32 %s, %s, %d" % (sT0, sb, 4*16384))
            p("s_mov_b32 exec_hi, 0")
            p.vmem("buffer_store_dwordx4 %s, v%d, %s, %s offen%s" % (vr(DD0, 4), vPC, SWS, sb, HS), name)
            if NH == 2: p.vmem("buffer_store_dwordx4 %s, v%d, %s, %s offen%s" % (vr(DD1, 4), vPC, SWS, sT0, HS), name)
            p("s_mov_b64 exec, -1")
        def diag_mult(src, n, b0, b1):
            for t in range(n+1):
                if t < n:
                    A = PERM + 4*(t % 4)
                    for jj in range(4): p("v_and_b32 v%d, v%d, v%d" % (A+jj, src+t, vMASK+jj))
                if t >= 1:
                    tt = t-1; AA = PERM + 4*(tt % 4)
                    p("v_mfma_f32_16x16x32_bf16 %s, %s, %s, %s" % (vr(DD0, 4), vr(AA, 4), ar(b0+4*tt, 4), "0" if tt == 0 else vr(DD0, 4)))
                    if NH == 2: p("v_mfma_f32_16x16x32_bf16 %s, %s, %s, %s" % (vr(DD1, 4), vr(AA, 4), ar(b1+4*tt, 4), "0" if tt == 0 else vr(DD1, 4)))
        def g2_loads(R, nm):
            f = (lambda t: p.vmem(t, nm)) if nm else p
            f("buffer_load_dwordx4 %s, v%d, %s, %s offen%s" % (vr(R, 4), vG1, SWS, sGV, HL))
            f("buffer_load_dwordx4 %s, v%d, %s, %s offen%s" % (vr(R+8, 4), vG0, SWS, sGA, HL))
            p("s_add_u32 %s, %s, %d" % (sT0, sGV, 8*O_PITCH))
            f("buffer_load_dwordx4 %s, v%d, %s, %s offen%s" % (vr(R+4, 4), vG1, SWS, sT0, HL))
            p("s_add_u32 %s, %s, %d" % (sT0, sGA, 8*O_PITCH))
            f("buffer_load_dwordx4 %s, v%d, %s, %s offen%s" % (vr(R+12, 4), vG0, SWS, sT0, HL))
        def g2_check():
            p("v_xor_b32 v14, %s, v106" % sE)
            for r in (107, 110, 111): p("v_bitop3_b32 v14, v%d, %s, v14 bitop3:0xbe" % (r, sE))
            regs = list(range(96, 106)) + [108, 109]
            p("v_xor_b32 v15, %s, v%d" % (sTAG, regs[0]))
            for r in regs[1:]: p("v_bitop3_b32 v15, v%d, %s, v15 bitop3:0xbe" % (r, sTAG))
            p("v_and_or_b32 v15, v15, %s, v14" % sFF)
            p("v_cmp_ne_u32 vcc, 0, v15")
            if cfg.get("nodep"): p("s_mov_b64 vcc, 0")
        tl(100)
        g2_loads(96, "G2A")
        tail_addresses_b(NH)
        h_compute()
        p("v_lshrrev_b32 v13, 4, v1"); p("v_lshlrev_b32 v13, 5, v13")
        p("s_waitcnt lgkmcnt(0)")
        p("ds_read_b128 v[16:19], v13 offset:%d" % L_HL); p("ds_read_b128 v[20:23], v13 offset:%d" % (L_HL+16))
        p("s_waitcnt lgkmcnt(0)")
        p.wait("W2")
        diag_mult(16, 7, AW2, AW2+28)
        pub_cols(sPB, "PUBB2")
        stamp("b_pub")
        p.wait("G2A")
        stamp("g2_first")
        retry_block(g2_check, lambda: g2_loads(96, None), "g2")
        stamp("g2_ok")
        if stamps: p("s_mov_b32 s3, %s" % sRETRY)
        p("v_and_b32 v104, 0xffffff00, v104"); p("v_and_b32 v108, 0xffffff00, v108")
        p("v_max_f32 v120, v104, v108")
        allred(p, [120], [121], "v_max_f32", [8, 16, 32])
        p("v_sub_f32 v104, v104, v120"); p("v_sub_f32 v108, v108, v120")
        p("v_mul_f32 v104, %s, v104" % sLOG2E); p("v_mul_f32 v108, %s, v108" % sLOG2E)
        p("v_exp_f32 v104, v104"); p("v_exp_f32 v108, v108")
        for r in range(4): p("v_mul_f32 v%d, v104, v%d" % (96+r, 96+r))
        p("v_mul_f32 v105, v104, v105")
        for r in range(4): p("v_fmac_f32 v%d, v108, v%d" % (96+r, 100+r))
        p("v_fmac_f32 v105, v108, v109")
        allred(p, [105], [121], "v_add_f32", [32, 16, 8])
        red4(p, [96, 97, 98, 99])
        p("v_mov_b32 v121, v105")
        p("ds_write_b32 v%d, v96 offset:%d" % (vCPW, L_CP))
        p("ds_write_b64 v%d, v[120:121] offset:%d" % (vCM, L_CM))
        p("s_waitcnt lgkmcnt(0)")
        p("s_barrier")
        p("ds_read_b128 v[100:103], v%d offset:%d" % (vZ, L_CM)); p("ds_read_b128 v[104:107], v%d offset:%d" % (vZ, L_CM+16))
        for w_ in range(4):
            p("ds_read_b128 %s, v%d offset:%d" % (vr(32+8*w_, 4), vCPR, L_CP + 128*w_)); p("ds_read_b128 %s, v%d offset:%d" % (vr(36+8*w_, 4), vCPR, L_CP + 128*w_ + 16))
        p("s_waitcnt lgkmcnt(8)")
        p("v_max3_f32 v120, v100, v102, v104"); p("v_max_f32 v120, v120, v106")
        for i in range(4): p("v_sub_f32 v%d, v%d, v120" % (100+2*i, 100+2*i))
        for i in range(4): p("v_mul_f32 v%d, %s, v%d" % (100+2*i, sLOG2E, 100+2*i))
        for i in range(4): p("v_exp_f32 v%d, v%d" % (100+2*i, 100+2*i))
        p("v_mul_f32 v121, v100, v101"); p("v_fmac_f32 v121, v102, v103"); p("v_fmac_f32 v121, v104, v105"); p("v_fmac_f32 v121, v106, v107")
        p("v_rcp_f32 v121, v121")
        for i in range(4): p("v_mul_f32 v%d, v%d, v121" % (100+2*i, 100+2*i))
        for i in range(4): p("v_mov_b32 v%d, v%d" % (101+2*i, 100+2*i))
        p("s_waitcnt lgkmcnt(6)")
        for r in range(0, 8, 2): p("v_pk_mul_f32 %s, v[100:101], %s" % (vr(32+r, 2), vr(32+r, 2)))
        p("s_waitcnt lgkmcnt(4)")
        for r in range(0, 8, 2): p("v_pk_fma_f32 %s, v[102:103], %s, %s" % (vr(32+r, 2), vr(40+r, 2), vr(32+r, 2)))
        p("s_waitcnt lgkmcnt(2)")
        for r in range(0, 8, 2): p("v_pk_fma_f32 %s, v[104:105], %s, %s" % (vr(32+r, 2), vr(48+r, 2), vr(32+r, 2)))
        p("s_waitcnt lgkmcnt(0)")
        for r in range(0, 8, 2): p("v_pk_fma_f32 %s, v[106:107], %s, %s" % (vr(32+r, 2), vr(56+r, 2), vr(32+r, 2)))
        for r in range(8): p("v_cvt_pk_bf16_f32 v%d, v%d, v%d" % (16+r, 32+r, 32+r))
        p.wait("O")
        diag_mult(16, 8, AWO, AWO+32)
        pub_cols(sPS, "PUBS")
        stamp("s_pub")
        p("s_branch %s" % FINAL)

    vm_role = list(p.vm)
    p("s_cmp_ge_u32 %s, %d" % (sRB, N2 + N1)); p("s_cbranch_scc1 %s" % NOROLE)
    if N1:
        p("s_cmp_ge_u32 %s, %d" % (sRB, N2)); p("s_cbranch_scc1 %s" % HALF)
    if N2:
        if stamps: p("s_mov_b32 s101, 2")
        p("s_lshl_b32 %s, %s, 5" % (sA, sG)); p("s_add_u32 %s, %s, %s" % (sRB, sRB, sA))
        role_path(2, n_pre)
    if N1:
        p("%s:" % HALF)
        p.vm = list(vm_role)
        if stamps: p("s_mov_b32 s101, 1")
        p("s_sub_u32 %s, %s, %d" % (sRB, sRB, N2)); p("s_and_b32 %s, %s, 1" % (sCH, sRB)); p("s_lshr_b32 %s, %s, 1" % (sRB, sRB)); p("s_add_u32 %s, %s, %d" % (sRB, sRB, N2))
        p("s_lshl_b32 %s, %s, 5" % (sA, sG)); p("s_add_u32 %s, %s, %s" % (sRB, sRB, sA))
        role_path(1, cfg.get("n_pre1", n_pre))
    p("%s:" % NOROLE)
    p.vm = list(vm_role)
    if stamps: p("s_mov_b32 s101, 0")
    pv(4); producer_addresses(); pv(5); ml_publish_lds(); pv(6)
    pv(7)
    stamp("pv_done")
    o_publish()
    stamp("o_pub")
    p("%s:" % FINAL)
    p.vm = []
    sFB, sFS, sFX = "s69", "s70", "s74"
    vXF, vFW, vFR = 181, 182, 183
    def fl(sb):
        def f(R, nm):
            g = (lambda t: p.vmem(t, nm)) if nm else p
            for u in range(4):
                g("buffer_load_dwordx4 %s, v%d, %s, %s offen offset:%d%s" % (vr(R+4*u, 4), vL16, SWS, sb, 1024*u, HL))
        return f
    def fin_reduce(R, dst):
        for r in range(0, 4, 2):
            p("v_pk_add_f32 %s, %s, %s" % (vr(R+r, 2), vr(R+r, 2), vr(R+4+r, 2))); p("v_pk_add_f32 %s, %s, %s" % (vr(R+8+r, 2), vr(R+8+r, 2), vr(R+12+r, 2)))
        for r in range(0, 4, 2): p("v_pk_add_f32 %s, %s, %s" % (vr(R+r, 2), vr(R+r, 2), vr(R+8+r, 2)))
        red4(p, [R, R+1, R+2, R+3])
        p("ds_write_b32 v%d, v%d offset:%d" % (vFW, R, dst))
        p("s_waitcnt lgkmcnt(0)")
        p("s_barrier")
        for w_ in range(4): p("ds_read_b32 v%d, v%d offset:%d" % (R+w_, vFR, dst + 128*w_))
        p("s_waitcnt lgkmcnt(0)")
        p("v_add_f32 v%d, v%d, v%d" % (R, R, R+1)); p("v_add_f32 v%d, v%d, v%d" % (R+2, R+2, R+3)); p("v_add_f32 v%d, v%d, v%d" % (R, R, R+2))
        p("v_cvt_pk_bf16_f32 v%d, v%d, v%d" % (R, R, R)); p("v_lshlrev_b32 v%d, 16, v%d" % (R, R))
    FIN = p.label("fin")
    p("s_cmp_ge_u32 s2, 32"); p("s_cbranch_scc1 %s" % FIN)
    p("s_lshl_b32 %s, s2, 14" % sA); p("s_lshl_b32 %s, %s, 12" % (sD, sW)); p("s_add_u32 %s, %s, %s" % (sA, sA, sD))
    p("s_add_u32 %s, %s, %d" % (sFS, sA, S_BASE)); p("s_add_u32 %s, %s, %d" % (sFB, sA, BB_BASE))
    p("v_lshrrev_b32 v12, 4, v1"); p("v_and_b32 v13, 1, v12"); p("v_lshlrev_b32 v13, 1, v13"); p("v_lshrrev_b32 v12, 1, v12"); p("v_or_b32 v12, v12, v13")
    p("v_and_b32 v14, 7, v1"); p("v_lshlrev_b32 v14, 2, v14"); p("v_add_u32 v14, v14, v12")
    p("v_lshlrev_b32 v179, 1, v14"); p("s_lshl_b32 %s, s2, 6" % sFX)
    p("v_lshlrev_b32 v%d, 2, v14" % vFR); p("s_lshl_b32 %s, %s, 7" % (sD, sW)); p("v_add_u32 v%d, %s, v%d" % (vFW, sD, vFR))
    p.vmem("buffer_load_ushort v%d, v179, %s, %s offen" % (vXF, SX, sFX), "XF")
    fl(sFB)(128, "FB")
    p.wait("FB")
    def rlb():
        if cfg.get("fbsleep", 2): p("s_sleep %d" % cfg.get("fbsleep", 2))
        fl(sFB)(128, None)
    retry_block(lambda: tagcheck(list(range(128, 144)), 15), rlb, "fb")
    fl(sFS)(144, "FS0")
    fin_reduce(128, L_FP)
    silu(128, 32, 40, 1)
    p("v_cvt_pk_bf16_f32 v32, v32, v32"); p("v_lshlrev_b32 v32, 16, v32")
    p("v_lshlrev_b32 v44, 16, v%d" % vXF)
    stamp("g_done")
    p.wait("FS0")
    retry_block(lambda: tagcheck(list(range(144, 160)), 15), lambda: fl(sFS)(144, None), "fs")
    stamp("fs_ok")
    fin_reduce(144, L_FP + 512)
    p("v_mul_f32 v36, v144, v32")
    p("v_cvt_pk_bf16_f32 v36, v36, v36"); p("v_lshlrev_b32 v36, 16, v36")
    p("v_add_f32 v36, v36, v44")
    p("v_cvt_pk_bf16_f32 v40, v36, v36")
    SK5 = p.label("out")
    p("s_cmp_lg_u32 %s, 0" % sW); p("s_cbranch_scc1 %s" % SK5)
    p("s_mov_b32 exec_lo, 0x00ff00ff"); p("s_mov_b32 exec_hi, 0x00ff00ff")
    p.vmem("buffer_store_short v40, v179, %s, %s offen" % (SOUT, sFX), "OUT", cond=True)
    p("s_cmp_lg_u32 s2, 0"); p("s_cbranch_scc1 %s" % SK5)
    p("v_mov_b32 v12, %d" % EPOCH); p("v_mov_b32 v13, %s" % sE)
    p("s_mov_b32 exec_lo, 1"); p("s_mov_b32 exec_hi, 0")
    p.vmem("buffer_store_dword v13, v12, %s, 0 offen%s" % (SWS, HS), "EPO", cond=True)
    p("%s:" % SK5)
    p("s_mov_b64 exec, -1")
    p("%s:" % FIN)
    if stamps:
        stamp("end")
        p("s_getreg_b32 %s, hwreg(HW_REG_XCC_ID)" % sA)
        p("s_waitcnt lgkmcnt(0)")
        for k in range(16):
            p("v_mov_b32 v%d, %s" % (32+k, ("s%d" % (ST0+2*k)) if k < nst[0] else "0"))
        p("v_mov_b32 v48, %s" % sA); p("v_mov_b32 v49, s3"); p("s_getreg_b32 %s, hwreg(HW_REG_HW_ID)" % sD); p("v_mov_b32 v50, %s" % sD); p("v_mov_b32 v51, s101")
        p("s_lshl_b32 %s, s2, 2" % sB); p("s_add_u32 %s, %s, %s" % (sB, sB, sW)); p("s_lshl_b32 %s, %s, 7" % (sB, sB)); p("s_add_u32 %s, %s, %d" % (sB, sB, STAMP))
        p("v_mov_b32 v12, 0")
        p("s_mov_b32 exec_lo, 1"); p("s_mov_b32 exec_hi, 0")
        if not cfg.get("dbg"):
            for i in range(4): p("buffer_store_dwordx4 %s, v12, %s, %s offen offset:%d" % (vr(32+4*i, 4), SWS, sB, 16*i))
            p("buffer_store_dwordx4 v[48:51], v12, %s, %s offen offset:64" % (SWS, sB))
        p("s_mov_b64 exec, -1")
    if stamps and cfg.get("dbg"):
        NODBG = p.label("nodbg")
        p("s_cmp_ge_u32 s2, 32"); p("s_cbranch_scc1 %s" % NODBG)
        p("s_cmp_lg_u32 %s, 0" % sW); p("s_cbranch_scc1 %s" % NODBG)
        p("v_mov_b32 v60, 0")
        for k in range(min(8, nst[0])):
            p("v_cmp_eq_u32 vcc, %d, v1" % k); p("v_mov_b32 v61, s%d" % (78+2*k)); p("v_cndmask_b32 v60, v60, v61, vcc")
            p("v_cmp_eq_u32 vcc, %d, v1" % (8+k)); p("v_not_b32 v61, v61"); p("v_cndmask_b32 v60, v60, v61, vcc")
        p("v_lshlrev_b32 v62, 2, v1")
        p("s_mov_b32 exec_lo, 0xffff"); p("s_mov_b32 exec_hi, 0")
        p("buffer_atomic_umax v60, v62, %s, 0 offen" % SDBG)
        p("s_mov_b64 exec, -1")
        p("%s:" % NODBG)
    p("%s:" % END)
    p("s_endpgm")
    return p, names

HEADER = """; Fused decode step: layernorm -> {GQA attention over a 64K cache -> wo} * silu(SwiGLU FFN) + x.
; @launch grid=(256,1,1) block=(256,1,1) lds=%d
"""
def wrap(body, name=NAME, lds=LDS_BYTES, header=True):
    s = (HEADER % lds) if header else ""
    if header: s += '.amdgcn_target "amdgcn-amd-amdhsa--gfx950"\n'
    s += ".text\n.globl %s\n.p2align 8\n.type %s,@function\n%s:\n" % (name, name, name)
    s += body
    s += '.section .rodata,"a"\n.p2align 6\n.amdhsa_kernel %s\n' % name
    s += "  .amdhsa_next_free_vgpr 512\n  .amdhsa_next_free_sgpr 102\n  .amdhsa_accum_offset 256\n"
    s += "  .amdhsa_group_segment_fixed_size 0\n  .amdhsa_kernarg_size 96\n  .amdhsa_user_sgpr_count 2\n"
    s += "  .amdhsa_user_sgpr_kernarg_segment_ptr 1\n  .amdhsa_system_sgpr_workgroup_id_x 1\n"
    s += "  .amdhsa_float_denorm_mode_32 3\n"
    s += ".end_amdhsa_kernel\n"
    return s

if __name__ == "__main__":
    cfg = json.loads(sys.argv[2]) if len(sys.argv) > 2 else {}
    p, names = build(cfg)
    open(sys.argv[1], "w").write(wrap(p.text()))
    print("wrote", sys.argv[1], "stamps:", names)
```

```python
import sys, json
from sched import Prog

NAME = "recurrent_scan__gqa_block_cached__glu_gated_swiglu__decode_kernel"

EPOCH   = 0
Q_BASE  = 0x1000
FLAG_BASE = 0x14000
CNT_BASE = 0x1C000
BP_BASE = 0x20000
O_BASE  = 0x80000
O_PITCH = 4224
S_BASE  = 0x200000
BB_BASE = 0x280000
STAMP   = 0x400000
L_XN = 0
L_QP = 4096
L_BP = 6144
L_QL = 10240
L_HL = 12544
L_MX = 12800
L_LW = 13056
L_CP = 13312
L_FP = 13824
L_CM = 14848
L_ROLE = 14912
L_OP = 16384
LDS_BYTES = 32768

SX, SK, SV, SWQ, SWO, SW1, SW3, SW2, SOUT, SDBG, SWS = [ "s[%d:%d]" % (4*i+4, 4*i+7) for i in range(11)]
sW, sG, sC, sT0, sKV = "s48", "s49", "s50", "s51", "s52"
sSELLO, sSELHI, sE, sTAG, sFF, sLOG2E, sSCALE, sHI = "s53", "s54", "s55", "s56", "s57", "s58", "s59", "s60"
sRETRY = "s61"
sA, sB, sCc, sD = "s62", "s63", "s64", "s65"
sRB, sCH = "s66", "s67"
sKC = "s68"
sCB1, sCB3, sW3B = "s69", "s70", "s71"
sVC, sROT = "s72", "s73"
sPOOL, sX = "s81", "s82"
sCL = "s80"
sPAR = "s77"
vTID, vLANE, vOFFK, vL16 = 0, 1, 2, 3
vMASK = 4
vTAG, vMAX, vL0, vL1 = 8, 9, 10, 11
vT = 12
QF, SP, PERM, ACC, RING = 16, 32, 64, 96, 128

def vr(b, n=1): return "v%d" % b if n == 1 else "v[%d:%d]" % (b, b+n-1)
def ar(b, n=1): return "a%d" % b if n == 1 else "a[%d:%d]" % (b, b+n-1)

DPP = " row_mask:0xf bank_mask:0xf"
def allred(p, regs, tmps, op, steps):
    for s in steps:
        if s in (1, 2, 4, 8):
            for r in regs: p("%s_dpp v%d, v%d, v%d row_ror:%d%s" % (op, r, r, r, s, DPP))
        else:
            for r, t in zip(regs, tmps): p("v_mov_b32 v%d, v%d" % (t, r))
            for r, t in zip(regs, tmps): p("v_permlane%d_swap_b32 v%d, v%d" % (s, r, t))
            for r, t in zip(regs, tmps): p("%s v%d, v%d, v%d" % (op, r, r, t))

def red4(p, a):
    p("v_permlane32_swap_b32 v%d, v%d" % (a[0], a[1])); p("v_permlane32_swap_b32 v%d, v%d" % (a[2], a[3]))
    p("v_add_f32 v%d, v%d, v%d" % (a[0], a[0], a[1])); p("v_add_f32 v%d, v%d, v%d" % (a[2], a[2], a[3]))
    p("v_permlane16_swap_b32 v%d, v%d" % (a[0], a[2]))
    p("v_add_f32 v%d, v%d, v%d" % (a[0], a[0], a[2]))
    p("v_add_f32_dpp v%d, v%d, v%d row_ror:8%s" % (a[0], a[0], a[0], DPP))

def build(cfg):
    pat = cfg.get("pat", "lin")
    nt = " nt" if cfg.get("nt", True) else ""
    ntw = " nt" if cfg.get("ntw", True) else ""
    stamps = cfg.get("stamps", False)
    poll_after = cfg.get("poll_after", 6)
    HS = cfg.get("hs", " sc1")
    HL = cfg.get("hl", " sc1")
    RETRIES = cfg.get("retries", 40000)
    R_ = cfg.get("R", 1)
    stride = {"lin": 1024, "str8": 8192, "w4": 4096 * R_, "glob": 262144}[pat]
    rot = cfg.get("rot", 0)
    dyn = cfg.get("dyn", False)
    NS = cfg.get("ns", 6 if dyn == 2 else 7) if dyn else 8
    ST0 = 84
    if dyn: assert pat == "w4" and R_ == 1 and not rot
    p = Prog()
    nst = [0]
    names = []
    def stamp(name):
        if not stamps or name in cfg.get("nostamp", []): return
        if name in names:
            k = names.index(name)
        else:
            k = nst[0]; nst[0] += 1; names.append(name)
        assert ST0 + 2*k + 1 <= 99
        p("s_memrealtime s[%d:%d]" % (ST0+2*k, ST0+1+2*k))

    depth = cfg.get("depth", 0); dstep = cfg.get("dstep", 2); depth0 = cfg.get("depth0", depth)
    cnt = [0]
    thr = cfg.get("thr_even", 0); thr_par = cfg.get("thr_par", 0)
    def svmem(text, name, early=False):
        d = depth0 if early else depth
        if d and cnt[0] % dstep == 0: p("s_waitcnt vmcnt(%d)" % (d - dstep))
        if thr and not early and cnt[0] % dstep == 0 and name[0] in "KV":
            L = p.label("thr")
            p("s_cmp_eq_u32 %s, %d" % (sPAR, thr_par)); p("s_cbranch_scc0 %s" % L); p("s_waitcnt vmcnt(%d)" % (thr - dstep)); p("%s:" % L)
        cnt[0] += 1
        p.vmem(text, name)
    END = p.label("end")
    p("s_cmp_ge_u32 s2, 256")
    p("s_cbranch_scc1 %s" % END)
    stamp("start")
    if cfg.get("pf", 0):
        NPF = p.label("nopf")
        p("s_cmp_ge_u32 s2, %d" % cfg["pf"]); p("s_cbranch_scc1 %s" % NPF)
        p("v_cmp_gt_u32 vcc, 64, v0"); p("s_cbranch_vccz %s" % NPF)
        PFB = p.label("pfbase")
        p("s_getpc_b64 s[48:49]")
        p("%s:" % PFB)
        p("v_lshlrev_b32 v12, 7, v0")
        for i in range(cfg.get("pfn", 3)):
            p("v_min_u32 v13, %s-%s-4, v12" % (END, PFB))
            p.vmem("global_load_dword v%d, v13, s[48:49]" % (236+i), "PF", cond=True)
            p("v_add_u32 v12, 0x2000, v12")
        p("%s:" % NPF)
    for i, off in enumerate([0, 8, 16, 24, 32, 48, 56, 64, 72, 80, 88]):
        p("s_load_dwordx2 s[%d:%d], s[0:1], %d" % (4*i+4, 4*i+5, off))
    sizes = [2048, 1<<26, 1<<26, 1<<23, 1<<23, 1024*3584*2, 1024*3584*2, 1024*3584*2, 2048, 256, 1<<28]
    for i, sz in enumerate(sizes):
        p("s_mov_b32 s%d, 0x%x" % (4*i+6, sz)); p("s_mov_b32 s%d, 0x20000" % (4*i+7))
    p("s_cmp_lt_u32 s2, 224")
    p("s_cselect_b32 s26, s26, 0")
    p("s_cselect_b32 s30, s30, 0")
    p("v_lshrrev_b32 v12, 6, v0")
    p("v_and_b32 v1, 63, v0")
    p("v_readfirstlane_b32 %s, v12" % sW)
    if cfg.get("thr_even", 0): p("s_getreg_b32 %s, hwreg(HW_REG_XCC_ID)" % sPAR); p("s_and_b32 %s, %s, 1" % (sPAR, sPAR))
    p("s_lshr_b32 %s, s2, 6" % sG)
    p("s_and_b32 %s, s2, 63" % sC)
    p("s_mov_b32 %s, 0x05040100" % sSELLO); p("s_mov_b32 %s, 0x07060302" % sSELHI)
    p("s_mov_b32 %s, 0xff" % sFF); p("s_mov_b32 %s, 0x3fb8aa3b" % sLOG2E)
    p("s_mov_b32 %s, 0x3db504f3" % sSCALE); p("s_mov_b32 %s, 0xffff0000" % sHI)
    p("s_lshr_b32 %s, s2, 1" % sRB); p("s_and_b32 %s, s2, 1" % sCH)
    p("v_lshlrev_b32 v3, 4, v1")
    p("v_lshlrev_b32 v13, 5, v1")
    p("s_lshl_b32 %s, %s, 9" % (sA, sW))
    p("v_lshlrev_b32 v14, 3, v1")
    p("v_lshrrev_b32 v15, 3, v1"); p("v_lshlrev_b32 v15, 13, v15")
    p("v_and_b32 v16, 7, v1"); p("v_lshlrev_b32 v16, 4, v16"); p("v_add_u32 v15, v15, v16")
    p("v_lshrrev_b32 v17, 4, v1"); p("v_mul_u32_u24 v17, 7168, v17")
    p("v_and_b32 v18, 15, v1"); p("v_lshlrev_b32 v18, 4, v18"); p("v_add_u32 v17, v17, v18")
    p("s_and_b32 %s, %s, 3" % (sB, sC)); p("s_lshl_b32 %s, %s, 21" % (sB, sB))
    p("s_lshl_b32 %s, %s, 19" % (sCc, sW)); p("s_add_u32 %s, %s, %s" % (sB, sB, sCc))
    p("s_lshl_b32 %s, %s, 11" % (sCc, sG)); p("s_add_u32 %s, %s, %s" % (sB, sB, sCc))
    p("s_lshr_b32 %s, %s, 2" % (sCc, sC)); p("s_lshl_b32 %s, %s, 7" % (sCc, sCc)); p("s_add_u32 %s, %s, %s" % (sB, sB, sCc))
    p("s_and_b32 %s, s2, 7" % sCc); p("s_lshl_b32 %s, %s, 7" % (sCc, sCc))
    p("s_lshl_b32 %s, %s, 5" % (sD, sW)); p("s_add_u32 %s, %s, %s" % (sCc, sCc, sD)); p("s_mul_i32 %s, %s, 7168" % (sCc, sCc))
    r1, r3 = cfg.get("r1", 1), cfg.get("r3", 2)
    for dst, rr in ((sCB1, r1), (sCB3, r3)):
        p("s_lshr_b32 %s, s2, 3" % dst); p("s_add_u32 %s, %s, %d" % (dst, dst, rr))
        p("s_sub_u32 %s, %s, 28" % (sD, dst)); p("s_cselect_b32 %s, %s, %s" % (dst, dst, sD))
    p("s_lshl_b32 %s, %s, 8" % (sD, sCB3)); p("s_add_u32 %s, %s, %s" % (sW3B, sCc, sD))
    p("s_lshl_b32 %s, %s, 8" % (sD, sCB1)); p("s_add_u32 %s, %s, %s" % (sCc, sCc, sD))
    p("s_waitcnt lgkmcnt(0)")
    stamp("karg")
    p("s_load_dword %s, s[44:45], %d" % (sE, EPOCH))
    ntx = " nt" if cfg.get("ntx", False) else ""
    p.vmem("buffer_load_dwordx4 v[224:227], v13, %s, 0 offen%s" % (SX, ntx), "XA0")
    p.vmem("buffer_load_dwordx4 v[228:231], v13, %s, 0 offen offset:16%s" % (SX, ntx), "XA1")
    p.vmem("buffer_load_dwordx2 v[232:233], v14, %s, %s offen%s" % (SX, sA, ntx), "XB")
    if cfg.get("pbar", 1) >= 1: p("s_barrier")
    for t in range(8):
        p("s_add_u32 %s, %s, %d" % (sT0, sB, t*8*8192))
        svmem("buffer_load_dwordx4 %s, v15, %s, %s offen%s" % (vr(128+4*t, 4), SWQ, sT0, ntw), "Q%d" % t, True)
    if cfg.get("pbar", 1) >= 2: p("s_barrier")
    for t in range(8):
        p("s_add_u32 %s, %s, %d" % (sT0, sCc, t*4*7168))
        svmem("buffer_load_dwordx4 %s, v17, %s, %s offen%s" % (vr(160+4*t, 4), SW1, sT0, ntw), "W1_%d" % t, True)
    stamp("w1_issued")
    if pat == "lin":
        p("s_lshl_b32 %s, s2, 18" % sKV); p("s_lshl_b32 %s, %s, 16" % (sD, sW)); p("s_add_u32 %s, %s, %s" % (sKV, sKV, sD))
    elif pat == "str8":
        p("s_lshl_b32 %s, %s, 24" % (sKV, sG))
        p("s_lshr_b32 %s, %s, 3" % (sD, sC)); p("s_lshl_b32 %s, %s, 21" % (sD, sD)); p("s_add_u32 %s, %s, %s" % (sKV, sKV, sD))
        p("s_lshl_b32 %s, %s, 19" % (sD, sW)); p("s_add_u32 %s, %s, %s" % (sKV, sKV, sD))
        p("s_and_b32 %s, %s, 7" % (sD, sC)); p("s_lshl_b32 %s, %s, 10" % (sD, sD)); p("s_add_u32 %s, %s, %s" % (sKV, sKV, sD))
    elif pat == "w4" and dyn:
        p("s_lshl_b32 %s, %s, 24" % (sKV, sG)); p("s_lshl_b32 %s, %s, 10" % (sD, sW)); p("s_add_u32 %s, %s, %s" % (sKV, sKV, sD))
        p("s_add_u32 %s, %s, %d" % (sPOOL, sKV, 64*NS*32768))
        if cfg.get("dynlin"):
            p("s_mul_i32 %s, %s, %d" % (sD, sW, 7*1024)); p("s_add_u32 %s, %s, %s" % (sPOOL, sPOOL, sD))
        p("s_mul_i32 %s, %s, %d" % (sD, sC, NS*32768)); p("s_add_u32 %s, %s, %s" % (sKV, sKV, sD))
    elif pat == "w4":
        lg = R_.bit_length() - 1
        p("s_lshl_b32 %s, %s, 24" % (sKV, sG))
        p("s_lshr_b32 %s, %s, %d" % (sD, sC, lg)); p("s_lshl_b32 %s, %s, %d" % (sD, sD, 18 + lg)); p("s_add_u32 %s, %s, %s" % (sKV, sKV, sD))
        p("s_and_b32 %s, %s, %d" % (sD, sC, R_ - 1)); p("s_lshl_b32 %s, %s, 12" % (sD, sD)); p("s_add_u32 %s, %s, %s" % (sKV, sKV, sD))
        p("s_lshl_b32 %s, %s, 10" % (sD, sW)); p("s_add_u32 %s, %s, %s" % (sKV, sKV, sD))
    elif pat == "glob":
        p("s_lshl_b32 %s, %s, 24" % (sKV, sG))
        p("s_lshl_b32 %s, %s, 12" % (sD, sC)); p("s_add_u32 %s, %s, %s" % (sKV, sKV, sD))
        p("s_lshl_b32 %s, %s, 10" % (sD, sW)); p("s_add_u32 %s, %s, %s" % (sKV, sKV, sD))
    if rot == 1: p("s_and_b32 %s, %s, 7" % (sROT, sC))
    if rot == 2: p("s_lshr_b32 %s, %s, 3" % (sROT, sC))
    if rot == 3: p("s_lshr_b32 %s, %s, 3" % (sROT, sC)); p("s_add_u32 %s, %s, %s" % (sROT, sROT, sC))
    p("v_and_b32 v12, 3, v1"); p("v_lshlrev_b32 v12, %d, v12" % (stride.bit_length()-1))
    p("v_bfe_u32 v2, v1, 2, 1"); p("v_lshlrev_b32 v2, 8, v2"); p("v_add_u32 v2, v2, v12")
    p("v_bfe_u32 v12, v1, 3, 1"); p("v_lshlrev_b32 v12, 6, v12"); p("v_add_u32 v2, v2, v12")
    p("v_lshrrev_b32 v12, 4, v1"); p("v_lshlrev_b32 v12, 4, v12"); p("v_add_u32 v2, v2, v12")
    p("v_and_b32 v12, 1, v1"); p("v_lshlrev_b32 v12, 4, v12"); p("v_mov_b32 v13, 0xffff"); p("v_lshlrev_b32 v13, v12, v13")
    p("v_bfe_u32 v12, v1, 1, 2")
    for jj in range(4):
        p("v_cmp_eq_u32 vcc, %d, v12" % jj); p("v_cndmask_b32 v%d, 0, v13, vcc" % (vMASK+jj))
    def grp_base(dst, t, dynbase=False):
        if dynbase:
            p("s_mov_b32 %s, %s" % (dst, sX))
        elif not rot:
            p("s_add_u32 %s, %s, %d" % (dst, sKV, 8*t*stride))
        else:
            p("s_add_u32 %s, %s, %d" % (dst, sROT, t)); p("s_and_b32 %s, %s, 7" % (dst, dst))
            p("s_mul_i32 %s, %s, %d" % (dst, dst, 8*stride)); p("s_add_u32 %s, %s, %s" % (dst, dst, sKV))
    vOFFK2 = 56
    def K_loads(t, slot=None, name=None):
        L = []
        db = slot is not None
        st_ = 1024 if (db and cfg.get("dynlin")) else stride
        vo = vOFFK2 if (db and cfg.get("dynlin")) else vOFFK
        sl = slot if db else t
        name = name or "K%d" % t
        for h in range(2):
            for a_ in range(2):
                for lam in range(2):
                    def f(h=h, a_=a_, lam=lam):
                        if a_ == 0 and lam == 0:
                            if h == 0: grp_base(sKC, t, db)
                            else: p("s_add_u32 %s, %s, %d" % (sKC, sKC, 4*st_))
                        svmem("buffer_load_dwordx4 %s, v%d, %s, %s offen offset:%d%s" % (ar(32*sl+16*h+8*a_+4*lam, 4), vo, SK, sKC, 512*a_+128*lam, nt), name)
                    L.append(f)
        return L
    def V_loads(t, db=False, name=None):
        base = RING + 32*(t % 4)
        name = name or "V%d" % t
        st_ = 1024 if (db and cfg.get("dynlin")) else stride
        L = []
        for i in range(8):
            def f(i=i):
                if i == 0: grp_base(sVC, t, db)
                else: p("s_add_u32 %s, %s, %d" % (sVC, sVC, st_))
                svmem("buffer_load_dwordx4 %s, v%d, %s, %s offen%s" % (vr(base+4*i, 4), vL16, SV, sVC, nt), name)
            L.append(f)
        return L
    def loadK(t):
        for f in K_loads(t): f()
    def loadV(t):
        for f in V_loads(t): f()
    def tagcheck(regs, acc):
        p("v_xor_b32 v%d, %s, v%d" % (acc, sTAG, regs[0]))
        for r in regs[1:]: p("v_bitop3_b32 v%d, v%d, %s, v%d bitop3:0xbe" % (acc, r, sTAG, acc))
        p("v_and_b32 v%d, 0xff, v%d" % (acc, acc))
        p("v_cmp_ne_u32 vcc, 0, v%d" % acc)
        if cfg.get("nodep"): p("s_mov_b64 vcc, 0")
    p.wait("XA1")
    stamp("x_landed")
    for i in range(8):
        p("v_lshlrev_b32 v%d, 16, v%d" % (32+2*i, 224+i)); p("v_and_b32 v%d, 0xffff0000, v%d" % (33+2*i, 224+i))
    for i in range(8): p("v_add_f32 v%d, v%d, v%d" % (48+i, 32+2*i, 33+2*i))
    p("v_add_f32 v48, v48, v49"); p("v_add_f32 v50, v50, v51"); p("v_add_f32 v52, v52, v53"); p("v_add_f32 v54, v54, v55")
    p("v_add_f32 v48, v48, v50"); p("v_add_f32 v52, v52, v54"); p("v_add_f32 v48, v48, v52")
    allred(p, [48], [49], "v_add_f32", [8, 4, 2, 1, 16, 32])
    p("v_mul_f32 v49, 0x3a800000, v48")
    for i in range(16): p("v_sub_f32 v%d, v%d, v49" % (32+i, 32+i))
    for i in range(4): p("v_mul_f32 v%d, v%d, v%d" % (50+i, 32+i, 32+i))
    for i in range(4, 16): p("v_fmac_f32 v%d, v%d, v%d" % (50+(i % 4), 32+i, 32+i))
    p("v_add_f32 v50, v50, v51"); p("v_add_f32 v52, v52, v53"); p("v_add_f32 v50, v50, v52")
    allred(p, [50], [51], "v_add_f32", [8, 4, 2, 1, 16, 32])
    p("v_mul_f32 v50, 0x3a800000, v50")
    p("v_cvt_pk_bf16_f32 v51, v49, v50")
    p("v_lshlrev_b32 v52, 16, v51")
    p("v_and_b32 v53, 0xffff0000, v51")
    p("v_add_f32 v53, 0x3727c5ac, v53")
    p("v_cvt_pk_bf16_f32 v53, v53, v53"); p("v_lshlrev_b32 v53, 16, v53")
    p("v_sqrt_f32 v53, v53")
    p("v_cvt_pk_bf16_f32 v53, v53, v53"); p("v_lshlrev_b32 v53, 16, v53")
    p("v_rcp_f32 v54, v53")
    p.wait("XB")
    p("v_lshlrev_b32 v32, 16, v232"); p("v_and_b32 v33, 0xffff0000, v232")
    p("v_lshlrev_b32 v34, 16, v233"); p("v_and_b32 v35, 0xffff0000, v233")
    for i in range(4): p("v_sub_f32 v%d, v%d, v52" % (32+i, 32+i))
    p("v_cvt_pk_bf16_f32 v36, v32, v33"); p("v_cvt_pk_bf16_f32 v37, v34, v35")
    p("v_lshlrev_b32 v32, 16, v36"); p("v_and_b32 v33, 0xffff0000, v36")
    p("v_lshlrev_b32 v34, 16, v37"); p("v_and_b32 v35, 0xffff0000, v37")
    for i in range(4): p("v_mul_f32 v%d, v%d, v54" % (40+i, 32+i))
    for i in range(4): p("v_fma_f32 v%d, -v%d, v53, v%d" % (44+i, 40+i, 32+i))
    for i in range(4): p("v_fma_f32 v%d, v%d, v54, v%d" % (40+i, 44+i, 40+i))
    for i in range(4): p("v_cvt_pk_bf16_f32 v%d, v%d, v%d" % (36+i, 40+i, 40+i))
    p("v_lshlrev_b32 v12, 4, v0")
    p("ds_write_b128 v12, v[36:39] offset:%d" % L_XN)
    p("s_waitcnt lgkmcnt(0)")
    p("s_barrier")
    stamp("ln_done")
    p("s_add_u32 %s, %s, 1" % (sE, sE)); p("s_and_b32 %s, %s, 0xff" % (sTAG, sE)); p("v_mov_b32 v%d, %s" % (vTAG, sTAG))
    p("s_and_b32 %s, %s, 3" % (sA, sC)); p("s_lshl_b32 %s, %s, 8" % (sA, sA)); p("s_lshl_b32 %s, %s, 6" % (sD, sW)); p("s_add_u32 %s, %s, %s" % (sA, sA, sD))
    p("v_lshrrev_b32 v12, 3, v1"); p("v_add_u32 v12, %s, v12" % sA); p("v_lshlrev_b32 v12, 2, v12")
    p("s_and_b32 %s, s2, 7" % sA); p("s_lshl_b32 %s, %s, 7" % (sA, sA)); p("s_lshl_b32 %s, %s, 5" % (sD, sW)); p("s_add_u32 %s, %s, %s" % (sA, sA, sD))
    p("v_lshrrev_b32 v13, 4, v1"); p("v_add_u32 v13, %s, v13" % sA); p("v_lshlrev_b32 v13, 2, v13")
    for t in range(0, 8, 2):
        p("ds_read2_b32 v[%d:%d], v12 offset0:%d offset1:%d" % (96+t, 97+t, 8*t, 8*t+8))
    for t in range(0, 8, 2):
        p("ds_read2_b32 v[%d:%d], v13 offset0:%d offset1:%d" % (104+t, 105+t, 4*t, 4*t+4))
    for t in range(8):
        p("s_add_u32 %s, %s, %d" % (sT0, sW3B, t*4*7168))
        svmem("buffer_load_dwordx4 %s, v17, %s, %s offen%s" % (vr(192+4*t, 4), SW3, sT0, ntw), "W3_%d" % t, True)
    p("s_waitcnt lgkmcnt(0)")
    for t in range(8):
        A = 48 + 4*(t % 2)
        for jj in range(4): p("v_and_b32 v%d, v%d, v%d" % (A+jj, 96+t, vMASK+jj))
        if t == 0: p.wait("Q7")
        p("v_mfma_f32_16x16x32_bf16 v[56:59], %s, %s, %s" % (vr(A, 4), vr(128+4*t, 4), "0" if t == 0 else "v[56:59]"))
    for t in range(8):
        for jj in range(4): p("v_and_b32 v%d, v%d, v%d" % (PERM+4*t+jj, 104+t, vMASK+jj))
    p("v_and_b32 v12, 7, v1"); p("v_lshlrev_b32 v12, 5, v12")
    p("v_bfe_u32 v13, v1, 4, 1"); p("v_lshlrev_b32 v13, 4, v13"); p("v_add_u32 v12, v12, v13")
    p("v_lshrrev_b32 v13, 5, v1"); p("v_lshlrev_b32 v13, 8, v13"); p("v_add_u32 v12, v12, v13")
    p("s_lshl_b32 %s, %s, 9" % (sA, sW)); p("v_add_u32 v12, %s, v12" % sA)
    p("s_mov_b32 exec_lo, 0x00ff00ff"); p("s_mov_b32 exec_hi, 0xff00ff00")
    p("ds_write_b128 v12, v[56:59] offset:%d" % L_QP)
    p("s_mov_b64 exec, -1")
    p("s_waitcnt lgkmcnt(0)")
    p("s_barrier")
    stamp("q_gemv")
    SKIP0 = p.label("pubq")
    p("s_cmp_lg_u32 %s, 0" % sW); p("s_cbranch_scc1 %s" % SKIP0)
    p("v_lshlrev_b32 v12, 4, v1")
    for i in range(8): p("ds_read_b128 %s, v12 offset:%d" % (vr(32+4*i, 4) if i < 4 else vr(112+4*(i-4), 4), L_QP + 256*i))
    p("s_lshl_b32 %s, %s, 2" % (sB, sG)); p("s_and_b32 %s, %s, 3" % (sD, sC)); p("s_add_u32 %s, %s, %s" % (sB, sB, sD)); p("s_lshl_b32 %s, %s, 12" % (sB, sB))
    p("s_lshr_b32 %s, %s, 2" % (sD, sC)); p("s_lshl_b32 %s, %s, 8" % (sD, sD)); p("s_add_u32 %s, %s, %s" % (sB, sB, sD))
    p("s_add_u32 %s, %s, %d" % (sB, sB, Q_BASE))
    p("s_waitcnt lgkmcnt(0)")
    for r in range(4):
        p("v_add_f32 v%d, v%d, v%d" % (32+r, 32+r, 36+r)); p("v_add_f32 v%d, v%d, v%d" % (40+r, 40+r, 44+r))
        p("v_add_f32 v%d, v%d, v%d" % (112+r, 112+r, 116+r)); p("v_add_f32 v%d, v%d, v%d" % (120+r, 120+r, 124+r))
    for r in range(4):
        p("v_add_f32 v%d, v%d, v%d" % (32+r, 32+r, 40+r)); p("v_add_f32 v%d, v%d, v%d" % (112+r, 112+r, 120+r))
    for r in range(4): p("v_add_f32 v%d, v%d, v%d" % (32+r, 32+r, 112+r))
    if True:
        NOZ = p.label("nozero")
        p("s_cmp_lg_u32 %s, 0" % sC); p("s_cbranch_scc1 %s" % NOZ)
        for r in range(4): p("v_mov_b32 v%d, 0" % (36+r))
        p("s_lshl_b32 %s, %s, 9" % (sD, sG)); p("s_add_u32 %s, %s, %d" % (sD, sD, CNT_BASE))
        p("s_mov_b32 exec_hi, 0")
        p.vmem("buffer_store_dwordx4 v[36:39], v12, %s, %s offen%s" % (SWS, sD, HS), "ZCNT", cond=True)
        p("s_mov_b64 exec, -1")
        p("%s:" % NOZ)
    p("s_mov_b32 exec_lo, 0xffff"); p("s_mov_b32 exec_hi, 0")
    p.vmem("buffer_store_dwordx4 v[32:35], v12, %s, %s offen%s" % (SWS, sB, HS), "PUBQ", cond=True)
    p("s_mov_b64 exec, -1")
    p("%s:" % SKIP0)
    loadK(0)
    p.wait("W1_7")
    stamp("w1_landed")
    for t in range(8):
        p("v_mfma_f32_16x16x32_bf16 v[60:63], %s, %s, %s" % (vr(PERM+4*t, 4), vr(160+4*t, 4), "0" if t == 0 else "v[60:63]"))
    loadK(1)
    p.wait("W3_7")
    stamp("w3_landed")
    for t in range(8):
        p("v_mfma_f32_16x16x32_bf16 v[96:99], %s, %s, %s" % (vr(PERM+4*t, 4), vr(192+4*t, 4), "0" if t == 0 else "v[96:99]"))
    SKIP2 = p.label("flag")
    p("s_cmp_lg_u32 %s, 0" % sW); p("s_cbranch_scc1 %s" % SKIP2)
    p("v_lshlrev_b32 v12, 2, v1"); p("v_mov_b32 v13, %s" % sE)
    p("s_lshl_b32 %s, s2, 7" % sA); p("s_add_u32 %s, %s, %d" % (sA, sA, FLAG_BASE))
    p.wait("PUBQ")
    p("s_mov_b32 exec_hi, 0")
    p.vmem("buffer_store_dword v13, v12, %s, %s offen%s" % (SWS, sA, HS), "FLAG", cond=True)
    p("s_mov_b64 exec, -1")
    p("%s:" % SKIP2)
    stamp("flag")
    p("v_and_b32 v12, 15, v1"); p("v_lshlrev_b32 v12, 5, v12")
    p("v_bfe_u32 v13, v1, 4, 1"); p("v_lshlrev_b32 v13, 4, v13"); p("v_add_u32 v12, v12, v13")
    p("s_lshl_b32 %s, %s, 10" % (sA, sW)); p("v_add_u32 v12, %s, v12" % sA)
    p("s_mov_b32 exec_hi, 0")
    p("ds_write_b128 v12, v[60:63] offset:%d" % L_BP)
    p("ds_write_b128 v12, v[96:99] offset:%d" % (L_BP+512))
    p("s_mov_b64 exec, -1")
    loadK(2)
    p("s_waitcnt lgkmcnt(0)")
    p("s_barrier")
    stamp("b_gemv")
    SKIP1 = p.label("pub1")
    p("s_cmp_lg_u32 %s, 1" % sW); p("s_cbranch_scc1 %s" % SKIP1)
    p("s_cmp_ge_u32 s2, 224"); p("s_cbranch_scc1 %s" % SKIP1)
    p("v_lshlrev_b32 v12, 4, v1")
    for i in range(4): p("ds_read_b128 %s, v12 offset:%d" % (vr(32+4*i, 4), L_BP + 1024*i))
    p("s_and_b32 %s, s2, 7" % sA); p("s_mul_i32 %s, %s, %d" % (sA, sA, 3584*4)); p("s_add_u32 %s, %s, %d" % (sA, sA, BP_BASE))
    p("s_lshl_b32 %s, %s, 9" % (sD, sCB1)); p("s_lshl_b32 %s, %s, 9" % (sB, sCB3)); p("s_add_u32 %s, %s, %d" % (sB, sB, 8*3584*4))
    p("v_mov_b32 v13, %s" % sD); p("v_mov_b32 v14, %s" % sB); p("v_cmp_gt_u32 vcc, 32, v1"); p("v_cndmask_b32 v13, v14, v13, vcc")
    p("v_and_b32 v14, 31, v1"); p("v_lshlrev_b32 v14, 4, v14"); p("v_add_u32 v13, v13, v14")
    p("s_waitcnt lgkmcnt(0)")
    for r in range(4):
        p("v_add_f32 v%d, v%d, v%d" % (32+r, 32+r, 36+r)); p("v_add_f32 v%d, v%d, v%d" % (40+r, 40+r, 44+r))
    for r in range(4): p("v_add_f32 v%d, v%d, v%d" % (32+r, 32+r, 40+r))
    for r in range(4): p("v_bfi_b32 v%d, %s, v%d, v%d" % (32+r, sFF, vTAG, 32+r))
    p.vmem("buffer_store_dwordx4 v[32:35], v13, %s, %s offen%s" % (SWS, sA, HS), "PUBB", cond=True)
    p("%s:" % SKIP1)
    for t in range(3, poll_after): loadK(t)
    SKIPP = p.label("nopoll")
    p("v_lshlrev_b32 v14, 7, v1")
    p("s_lshl_b32 %s, %s, 13" % (sB, sG)); p("s_add_u32 %s, %s, %d" % (sB, sB, FLAG_BASE))
    p("s_cmp_lg_u32 %s, 0" % sW); p("s_cbranch_scc1 %s" % SKIPP)
    p.vmem("buffer_load_dword v15, v14, %s, %s offen%s" % (SWS, sB, HL), "POLL", cond=True)
    p("%s:" % SKIPP)
    pend = []
    for t in range(poll_after, NS): pend += K_loads(t)
    for t in range(4): pend += V_loads(t)
    def tr(n):
        for _ in range(min(n, len(pend))): pend.pop(0)()
    tr(cfg.get("n_after_poll", 16))
    OKP = p.label("okpoll")
    p("s_cmp_lg_u32 %s, 0" % sW); p("s_cbranch_scc1 %s" % OKP)
    p.wait("POLL")
    p("s_mov_b32 %s, %d" % (sRETRY, RETRIES))
    RP = p.label("rpoll")
    p("%s:" % RP)
    p("v_cmp_ne_u32 vcc, %s, v15" % sE)
    if cfg.get("nodep"): p("s_branch %s" % OKP)
    p("s_cbranch_vccz %s" % OKP)
    p("s_sub_u32 %s, %s, 1" % (sRETRY, sRETRY)); p("s_cbranch_scc1 %s" % OKP)
    p("s_sleep %d" % cfg.get("sleep", 8))
    p("buffer_load_dword v15, v14, %s, %s offen%s" % (SWS, sB, HL))
    p("s_waitcnt vmcnt(0)")
    p("s_branch %s" % RP)
    p("%s:" % OKP)
    p("s_barrier")
    stamp("poll_ok")
    p("s_lshl_b32 %s, %s, 14" % (sA, sG)); p("s_lshl_b32 %s, %s, 10" % (sD, sW)); p("s_add_u32 %s, %s, %s" % (sA, sA, sD)); p("s_add_u32 %s, %s, %d" % (sA, sA, Q_BASE))
    for kq in range(4):
        p("s_add_u32 %s, %s, %d" % (sT0, sA, kq*4096))
        p.vmem("buffer_load_dwordx4 %s, v%d, %s, %s offen%s" % (vr(96+4*kq, 4), vL16, SWS, sT0, HL), "QG")
    tr(cfg.get("n_after_qg", 16))
    p("v_lshrrev_b32 v12, 5, v1"); p("s_lshl_b32 %s, %s, 1" % (sA, sW)); p("v_add_u32 v12, %s, v12" % sA); p("v_mul_u32_u24 v12, 272, v12")
    p("v_and_b32 v13, 31, v1"); p("v_lshlrev_b32 v13, 3, v13"); p("v_add_u32 v12, v12, v13")
    p("v_and_b32 v14, 7, v1"); p("v_mul_u32_u24 v14, 272, v14"); p("v_lshrrev_b32 v13, 4, v1"); p("v_lshlrev_b32 v13, 4, v13"); p("v_add_u32 v14, v14, v13")
    p("v_bfe_u32 v13, v1, 3, 1"); p("v_lshlrev_b32 v13, 6, v13"); p("v_add_u32 v14, v14, v13")
    p("v_mov_b32 v%d, 0xff800000" % vMAX)
    p.wait("QG")
    for r in range(4):
        p("v_add_f32 v%d, v%d, v%d" % (96+r, 96+r, 100+r)); p("v_add_f32 v%d, v%d, v%d" % (104+r, 104+r, 108+r))
    for r in range(4): p("v_add_f32 v%d, v%d, v%d" % (96+r, 96+r, 104+r))
    p("v_cvt_pk_bf16_f32 v96, v96, v97"); p("v_cvt_pk_bf16_f32 v97, v98, v99")
    p("ds_write_b64 v12, v[96:97] offset:%d" % L_QL)
    p("s_waitcnt lgkmcnt(0)")
    p("s_barrier")
    stamp("q_ready")
    for lam in range(2): p("ds_read_b128 %s, v14 offset:%d" % (vr(QF+4*lam, 4), L_QL + 128*lam))
    tr(1)
    p("s_waitcnt lgkmcnt(0)")
    p("; ---- scores: full-line K loads give 8 keys x 64 dims per MFMA; columns = (half, head); halves merged by permlane/DPP ----")
    def qk_mfma(t):
        D = PERM + 16*(t % 2)
        p.wait("K%d" % t)
        for lam in range(2):
            for h in range(2):
                for a_ in range(2):
                    d = D + 8*h + 4*a_
                    p("v_mfma_f32_16x16x32_bf16 %s, %s, %s, %s" % (vr(d, 4), ar(32*t+16*h+8*a_+4*lam, 4), vr(QF+4*lam, 4), "0" if lam == 0 else vr(d, 4)))
    def qk_post(t):
        D = PERM + 16*(t % 2); T = QF + 8
        for h in range(2):
            for r in range(4): p("v_permlane32_swap_b32 v%d, v%d" % (D+8*h+r, D+8*h+4+r))
        for h in range(2):
            for r in range(4): p("v_add_f32_dpp v%d, v%d, v%d row_ror:8%s" % (D+8*h+r, D+8*h+4+r, D+8*h+r, DPP))
        tr(1)
        src = [D+0, D+1, D+2, D+3, D+8, D+9, D+10, D+11]
        pk = [D+4, D+5, D+6, D+7]
        for i in range(4): p("v_cvt_pk_bf16_f32 v%d, v%d, v%d" % (pk[i], src[2*i], src[2*i+1]))
        for i in range(4):
            p("v_lshlrev_b32 v%d, 16, v%d" % (T+2*i, pk[i])); p("v_and_b32 v%d, 0xffff0000, v%d" % (T+2*i+1, pk[i]))
        for i in range(8): p("v_mul_f32 v%d, %s, v%d" % (T+i, sSCALE, T+i))
        tr(1)
        for i in range(4):
            p("v_cvt_pk_bf16_f32 v%d, v%d, v%d" % (SP+4*t+i, T+2*i, T+2*i+1))
            p("v_max3_f32 v%d, v%d, v%d, v%d" % (vMAX, vMAX, T+2*i, T+2*i+1))
    qk_mfma(0)
    for t in range(1, NS):
        qk_mfma(t)
        qk_post(t-1)
    qk_post(NS-1)
    allred(p, [vMAX], [12], "v_max_f32", [16, 32])
    p("v_cvt_pk_bf16_f32 v12, v%d, v%d" % (vMAX, vMAX)); p("v_lshlrev_b32 v%d, 16, v12" % vMAX)
    p("v_mul_f32 v14, %s, v%d" % (sLOG2E, vMAX)); p("v_sub_f32 v14, 0, v14")
    stamp("qk_done")
    p("v_mov_b32 v%d, 0" % vL0); p("v_mov_b32 v%d, 0" % vL1)
    for b_ in range(NS):
        T = PERM + 8*(b_ % 2)
        for i in range(4):
            p("v_lshlrev_b32 v%d, 16, v%d" % (T+2*i, SP+4*b_+i)); p("v_and_b32 v%d, 0xffff0000, v%d" % (T+2*i+1, SP+4*b_+i))
        for i in range(8): p("v_fma_f32 v%d, v%d, %s, v14" % (T+i, T+i, sLOG2E))
        for i in range(8): p("v_exp_f32 v%d, v%d" % (T+i, T+i))
        for i in range(4):
            p("v_cvt_pk_bf16_f32 v%d, v%d, v%d" % (SP+4*b_+i, T+2*i, T+2*i+1))
            p("v_add_f32 v%d, v%d, v%d" % (vL0, vL0, T+2*i)); p("v_add_f32 v%d, v%d, v%d" % (vL1, vL1, T+2*i+1))
        tr(1)
    tr(100)
    p("v_add_f32 v%d, v%d, v%d" % (vL0, vL0, vL1))
    stamp("p_done")
    def silu(src, dst, tmp, n):
        for r in range(n): p("v_mul_f32 v%d, %s, v%d" % (tmp+r, sLOG2E, src+r))
        for r in range(n): p("v_exp_f32 v%d, -v%d" % (tmp+r, tmp+r))
        for r in range(n): p("v_add_f32 v%d, 1.0, v%d" % (tmp+r, tmp+r))
        for r in range(n): p("v_rcp_f32 v%d, v%d" % (tmp+r, tmp+r))
        for r in range(n): p("v_mul_f32 v%d, v%d, v%d" % (dst+r, src+r, tmp+r))
    def unpack2(dst, src):
        p("v_lshlrev_b32 v%d, 16, v%d" % (dst, src)); p("v_and_b32 v%d, 0xffff0000, v%d" % (dst+1, src))
    def retry_block(check, reload, base):
        R = p.label("r" + base); OK = p.label("ok" + base)
        p("s_mov_b32 %s, %d" % (sRETRY, RETRIES))
        p("%s:" % R)
        check()
        p("s_cbranch_vccz %s" % OK)
        p("s_sub_u32 %s, %s, 1" % (sRETRY, sRETRY)); p("s_cbranch_scc1 %s" % OK)
        if cfg.get("maskretry", 0): p("s_mov_b64 exec, vcc")
        reload()
        if cfg.get("maskretry", 0): p("s_mov_b64 exec, -1")
        p("s_waitcnt vmcnt(0)")
        p("s_branch %s" % R)
        p("%s:" % OK)
    sH0, sH1 = "s69", "s70"
    vHG = 47
    def h_issue():
        p("v_lshrrev_b32 v%d, 3, v1" % vHG); p("v_mul_u32_u24 v%d, 14336, v%d" % (vHG, vHG)); p("v_and_b32 v13, 7, v1"); p("v_min_u32 v13, 6, v13"); p("v_lshlrev_b32 v13, 4, v13"); p("v_add_u32 v%d, v%d, v13" % (vHG, vHG))
        p("s_mul_i32 %s, %s, 112" % (sH0, sRB)); p("s_add_u32 %s, %s, %d" % (sH0, sH0, BP_BASE)); p("s_add_u32 %s, %s, %d" % (sH1, sH0, 8*14336))
        p.vmem("buffer_load_dwordx4 v[32:35], v%d, %s, %s offen%s" % (vHG, SWS, sH0, HL), "HG")
        p.vmem("buffer_load_dwordx4 v[36:39], v%d, %s, %s offen%s" % (vHG, SWS, sH1, HL), "HG")
    def h_compute():
        p.wait("HG")
        def rl():
            p("s_sleep %d" % cfg.get("sleep", 8))
            p("buffer_load_dwordx4 v[32:35], v%d, %s, %s offen%s" % (vHG, SWS, sH0, HL))
            p("buffer_load_dwordx4 v[36:39], v%d, %s, %s offen%s" % (vHG, SWS, sH1, HL))
        retry_block(lambda: tagcheck(list(range(32, 40)), 14), rl, "h")
        red4(p, [32, 33, 34, 35]); red4(p, [36, 37, 38, 39])
        p("v_cvt_pk_bf16_f32 v40, v32, v36")
        unpack2(32, 40)
        silu(32, 32, 40, 1)
        p("v_cvt_pk_bf16_f32 v40, v32, v32"); p("v_lshlrev_b32 v32, 16, v40")
        p("v_mul_f32 v32, v32, v33")
        p("v_cvt_pk_bf16_f32 v32, v32, v32")
        p("v_lshrrev_b32 v12, 4, v1"); p("v_and_b32 v13, 1, v12"); p("v_lshlrev_b32 v13, 1, v13"); p("v_lshrrev_b32 v12, 1, v12"); p("v_or_b32 v12, v12, v13")
        p("v_lshlrev_b32 v12, 5, v12"); p("v_and_b32 v13, 7, v1"); p("v_lshlrev_b32 v13, 2, v13"); p("v_add_u32 v13, v13, v12")
        p("ds_write_b32 v13, v32 offset:%d" % L_HL)
    sOB = "s77"
    late = []
    floor_ = [0]
    def tl(n=1):
        for _ in range(min(n, max(0, len(late) - floor_[0]))): late.pop(0)()
    def pv(t, trickle=False):
        base = RING + 32*(t % 4)
        p.wait("V%d" % t)
        def perm(j):
            c, h = j >> 1, j & 1
            for tt in range(4):
                p("v_perm_b32 v%d, v%d, v%d, %s" % (PERM+4*j+tt, base+4*(2*tt+1)+c, base+4*(2*tt)+c, sSELHI if h else sSELLO))
        def mm(j):
            p("v_mfma_f32_16x16x32_bf16 %s, %s, %s, %s" % (vr(ACC+4*j, 4), vr(PERM+4*j, 4), vr(SP+4*t, 4), "0" if t == 0 else vr(ACC+4*j, 4)))
        perm(0)
        for j in range(1, 8):
            perm(j); mm(j-1)
            if trickle and j in (2, 5): tl(1)
        mm(7)
    vW2O, vOO = 31, 11
    ocons = cfg.get("ocons", 0)
    sW2B = "s3"
    AW2, AWO = 0, 64
    def late_addresses(NH):
        p("v_lshrrev_b32 v12, 4, v1"); p("v_and_b32 v13, 15, v1"); p("v_lshlrev_b32 v13, 4, v13")
        p("v_lshlrev_b32 v%d, 11, v12" % vW2O); p("v_add_u32 v%d, v%d, v13" % (vW2O, vW2O))
        p("v_lshlrev_b32 v%d, %d, v12" % (vOO, 11 if ocons else 14)); p("v_add_u32 v%d, v%d, v13" % (vOO, vOO))
        if NH == 2: p("s_lshl_b32 %s, %s, 9" % (sD, sW))
        else: p("s_lshl_b32 %s, %s, 10" % (sD, sCH)); p("s_lshl_b32 %s, %s, 8" % (sA, sW)); p("s_add_u32 %s, %s, %s" % (sD, sD, sA))
        p("s_mul_i32 %s, %s, %d" % (sW2B, sRB, 28*2048)); p("s_add_u32 %s, %s, %s" % (sW2B, sW2B, sD))
        p("s_lshl_b32 %s, %s, 16" % (sOB, sRB)); p("s_add_u32 %s, %s, %s" % (sOB, sOB, sD))
    def W2_loads(NH):
        L = []
        for t in range(7):
            for hc in range(NH):
                def f(t=t, hc=hc):
                    if hc == 0: p("s_add_u32 %s, %s, %d" % (sT0, sW2B, t*4*2048))
                    svmem("buffer_load_dwordx4 %s, v%d, %s, %s offen offset:%d%s" % (ar(AW2+28*hc+4*t, 4), vW2O, SW2, sT0, 256*hc, ntw), "W2")
                L.append(f)
        return L
    def O_loads(NH):
        L = []
        for t in range(8):
            for hc in range(NH):
                def f(t=t, hc=hc):
                    if hc == 0: p("s_add_u32 %s, %s, %d" % (sT0, sOB, t*(4*2048 if ocons else 2048)))
                    svmem("buffer_load_dwordx4 %s, v%d, %s, %s offen offset:%d%s" % (ar(AWO+32*hc+4*t, 4), vOO, SWO, sT0, 256*hc, ntw), "O")
                L.append(f)
        return L
    vAWB, vRD, vPO, vLWR, vMLS, vG0, vG1 = 24, 25, 26, 27, 28, 29, 30
    vPC, vCM, vCPW, vCPR, vZ = 160, 161, 162, 163, 165
    vAW = PERM + 24
    sPO, sPB, sPS, sGV, sGM, sGA = "s71", "s72", "s73", "s74", "s75", "s76"
    def producer_addresses():
        p("v_and_b32 v12, 7, v1"); p("v_lshlrev_b32 v13, 9, v12"); p("v_lshlrev_b32 v12, 4, v12"); p("v_add_u32 v12, v12, v13")
        p("v_lshrrev_b32 v13, 4, v1"); p("v_lshlrev_b32 v13, 7, v13"); p("v_add_u32 v12, v12, v13")
        p("s_lshl_b32 %s, %s, 12" % (sA, sW)); p("s_add_u32 %s, %s, %d" % (sA, sA, L_OP)); p("v_add_u32 v%d, %s, v12" % (vAWB, sA))
        p("v_lshlrev_b32 v%d, 4, v0" % vRD)
        p("v_lshrrev_b32 v14, 5, v0"); p("v_and_b32 v15, 7, v0"); p("v_xor_b32 v14, v14, v15"); p("v_lshlrev_b32 v14, 4, v14")
        p("v_lshrrev_b32 v15, 3, v0"); p("v_lshlrev_b32 v15, 7, v15"); p("v_add_u32 v%d, v14, v15" % vPO)
        p("s_mul_i32 %s, s2, %d" % (sPO, O_PITCH)); p("s_add_u32 %s, %s, %d" % (sPO, sPO, O_BASE))
        p("v_lshrrev_b32 v13, 5, v0"); p("v_lshlrev_b32 v%d, 5, v13" % vLWR)
        p("v_lshlrev_b32 v%d, 4, v1" % vMLS); p("v_add_u32 v%d, 4096, v%d" % (vMLS, vMLS))
    def gather_addresses():
        p("v_lshrrev_b32 v12, 3, v1"); p("v_mul_u32_u24 v%d, %d, v12" % (vG0, O_PITCH))
        p("v_and_b32 v13, 7, v1"); p("v_lshlrev_b32 v13, 4, v13"); p("v_add_u32 v%d, v%d, v13" % (vG1, vG0))
        p("s_lshr_b32 %s, %s, 5" % (sA, sRB)); p("s_mul_i32 %s, %s, %d" % (sA, sA, 64*O_PITCH)); p("s_add_u32 %s, %s, %d" % (sA, sA, O_BASE))
        p("s_bfe_u32 %s, %s, 0x30002" % (sB, sRB))
        p("s_lshl_b32 %s, %s, 4" % (sD, sB)); p("s_add_u32 %s, %s, %s" % (sGM, sA, sD)); p("s_add_u32 %s, %s, 4096" % (sGM, sGM))
        p("s_and_b32 %s, %s, 31" % (sB, sRB)); p("s_lshl_b32 %s, %s, 7" % (sB, sB))
        p("s_add_u32 %s, %s, %s" % (sB, sB, sA))
        p("s_mul_i32 %s, %s, %d" % (sD, sW, 16*O_PITCH))
        p("s_add_u32 %s, %s, %s" % (sGV, sB, sD)); p("s_add_u32 %s, %s, %s" % (sGA, sGM, sD))
    def tail_addresses_b(NH):
        p("v_bfe_u32 v12, v1, 2, 2"); p("v_lshlrev_b32 v12, 14, v12")
        p("v_and_b32 v13, 3, v1"); p("v_lshlrev_b32 v13, 5, v13"); p("v_add_u32 v12, v12, v13")
        p("v_bfe_u32 v13, v1, 4, 1"); p("v_lshlrev_b32 v13, 4, v13"); p("v_add_u32 v%d, v12, v13" % vPC)
        if NH == 2: p("s_lshl_b32 %s, %s, 17" % (sA, sW))
        else: p("s_lshl_b32 %s, %s, 18" % (sA, sCH)); p("s_lshl_b32 %s, %s, 16" % (sD, sW)); p("s_add_u32 %s, %s, %s" % (sA, sA, sD))
        p("s_lshl_b32 %s, %s, 7" % (sD, sRB)); p("s_add_u32 %s, %s, %s" % (sA, sA, sD))
        p("s_add_u32 %s, %s, %d" % (sPB, sA, BB_BASE)); p("s_add_u32 %s, %s, %d" % (sPS, sA, S_BASE))
        p("v_lshrrev_b32 v12, 4, v1"); p("v_and_b32 v13, 1, v12"); p("v_lshlrev_b32 v13, 1, v13"); p("v_lshrrev_b32 v12, 1, v12"); p("v_or_b32 v12, v12, v13")
        if not ocons:
            p("v_lshlrev_b32 v12, 5, v12"); p("v_and_b32 v13, 7, v1"); p("v_lshlrev_b32 v13, 2, v13"); p("v_add_u32 v12, v12, v13")
        else:
            p("v_lshlrev_b32 v12, 3, v12"); p("v_bfe_u32 v13, v1, 2, 1"); p("v_lshlrev_b32 v13, 2, v13"); p("v_add_u32 v12, v12, v13")
            p("v_and_b32 v13, 3, v1"); p("v_lshlrev_b32 v13, 5, v13"); p("v_add_u32 v12, v12, v13")
        p("s_lshl_b32 %s, %s, 7" % (sA, sW)); p("v_add_u32 v%d, %s, v12" % (vCPW, sA))
        p("v_lshrrev_b32 v13, 4, v1"); p("v_lshlrev_b32 v%d, 5, v13" % vCPR)
        p("s_lshl_b32 %s, %s, 3" % (sA, sW)); p("v_mov_b32 v%d, %s" % (vCM, sA)); p("v_mov_b32 v%d, 0" % vZ)
    n_pre = cfg.get("n_pre", 5)
    vMLR = vL0
    def ml_publish_lds():
        allred(p, [vL0], [12], "v_add_f32", [16, 32])
        p("v_mov_b32 v12, v%d" % vMAX); p("v_mov_b32 v13, v%d" % vL0)
        p("v_and_b32 v%d, 7, v1" % vMLR); p("v_lshlrev_b32 v%d, 5, v%d" % (vMLR, vMLR))
        p("s_lshl_b32 %s, %s, 3" % (sA, sW)); p("v_add_u32 v14, %s, v%d" % (sA, vMLR))
        p("s_mov_b32 exec_lo, 0x00ff00ff"); p("s_mov_b32 exec_hi, 0x00ff00ff")
        p("ds_write_b64 v14, v[12:13] offset:%d" % L_LW)
        p("s_mov_b64 exec, -1")
    def o_publish():
        for j in range(8): p("v_xor_b32 v%d, %d, v%d" % (vAW+j, 16*j, vAWB))
        p("s_mov_b32 exec_lo, 0x00ff00ff"); p("s_mov_b32 exec_hi, 0x00ff00ff")
        for j in range(8):
            p("ds_write_b128 v%d, %s" % (vAW+j, vr(ACC+4*j, 4)))
        p("s_mov_b64 exec, -1")
        p("s_waitcnt lgkmcnt(0)")
        p("s_barrier")
        F = PERM + 16
        G_ = 112
        p("ds_read_b128 %s, v%d offset:%d" % (vr(F, 4), vLWR, L_LW)); p("ds_read_b128 %s, v%d offset:%d" % (vr(F+4, 4), vLWR, L_LW+16))
        for i in range(4): p("ds_read_b128 %s, v%d offset:%d" % (vr(PERM+4*i, 4), vRD, L_OP + 4096*i))
        p("ds_read_b128 %s, v%d offset:%d" % (vr(G_, 4), vMLR, L_LW)); p("ds_read_b128 %s, v%d offset:%d" % (vr(G_+4, 4), vMLR, L_LW+16))
        p("s_waitcnt lgkmcnt(6)")
        p("v_max3_f32 v12, v%d, v%d, v%d" % (F, F+2, F+4)); p("v_max_f32 v12, v12, v%d" % (F+6))
        for i in range(4): p("v_sub_f32 v%d, v%d, v12" % (F+2*i, F+2*i))
        for i in range(4): p("v_mul_f32 v%d, %s, v%d" % (F+2*i, sLOG2E, F+2*i))
        for i in range(4): p("v_exp_f32 v%d, v%d" % (F+2*i, F+2*i))
        for i in range(4): p("v_mov_b32 v%d, v%d" % (F+2*i+1, F+2*i))
        p("s_waitcnt lgkmcnt(5)")
        for r in range(0, 4, 2): p("v_pk_mul_f32 %s, %s, %s" % (vr(PERM+r, 2), vr(F, 2), vr(PERM+r, 2)))
        for i in range(1, 4):
            p("s_waitcnt lgkmcnt(%d)" % (5-i))
            for r in range(0, 4, 2): p("v_pk_fma_f32 %s, %s, %s, %s" % (vr(PERM+r, 2), vr(F+2*i, 2), vr(PERM+4*i+r, 2), vr(PERM+r, 2)))
        for r in range(4): p("v_bfi_b32 v%d, %s, v%d, v%d" % (PERM+r, sFF, vTAG, PERM+r))
        p.vmem("buffer_store_dwordx4 %s, v%d, %s, %s offen%s" % (vr(PERM, 4), vPO, SWS, sPO, HS), "PUBO")
        SKIP4 = p.label("ml")
        p("s_cmp_lg_u32 %s, 0" % sW); p("s_cbranch_scc1 %s" % SKIP4)
        p("s_waitcnt lgkmcnt(0)")
        p("v_max3_f32 v12, v%d, v%d, v%d" % (G_, G_+2, G_+4)); p("v_max_f32 v12, v12, v%d" % (G_+6))
        for i in range(4): p("v_sub_f32 v%d, v%d, v12" % (G_+2*i, G_+2*i))
        for i in range(4): p("v_mul_f32 v%d, %s, v%d" % (G_+2*i, sLOG2E, G_+2*i))
        for i in range(4): p("v_exp_f32 v%d, v%d" % (G_+2*i, G_+2*i))
        p("v_mul_f32 v13, v%d, v%d" % (G_, G_+1))
        for i in range(1, 4): p("v_fmac_f32 v13, v%d, v%d" % (G_+2*i, G_+2*i+1))
        p("v_bfi_b32 v%d, %s, v%d, v12" % (F, sFF, vTAG)); p("v_bfi_b32 v%d, %s, v%d, v13" % (F+1, sFF, vTAG))
        p("v_mov_b32 v%d, %s" % (F+2, sE)); p("v_mov_b32 v%d, %s" % (F+3, sE))
        p("s_mov_b32 exec_lo, 0xff"); p("s_mov_b32 exec_hi, 0")
        p.vmem("buffer_store_dwordx4 %s, v%d, %s, %s offen%s" % (vr(F, 4), vMLS, SWS, sPO, HS), "PUBML", cond=True)
        p("s_mov_b64 exec, -1")
        p("%s:" % SKIP4)
        p("s_waitcnt lgkmcnt(0)")
    sROLE = "s68"
    claim_at = cfg.get("claim_at", 2)
    def claim():
        SK = p.label("noclaim")
        p("s_cmp_lg_u32 %s, 0" % sW); p("s_cbranch_scc1 %s" % SK)
        p("s_lshl_b32 %s, %s, 9" % (sA, sG)); p("s_add_u32 %s, %s, %d" % (sA, sA, CNT_BASE))
        p("s_add_u32 s82, s44, %s" % sA); p("s_addc_u32 s83, s45, 0")
        p("s_mov_b32 %s, 1" % sROLE)
        p("s_atomic_add %s, s[82:83], 0 glc" % sROLE)
        p("%s:" % SK)
    def claim_broadcast():
        SK = p.label("nobc")
        p("s_cmp_lg_u32 %s, 0" % sW); p("s_cbranch_scc1 %s" % SK)
        p("s_waitcnt lgkmcnt(0)")
        p("v_mov_b32 v12, %s" % sROLE); p("v_mov_b32 v13, 0")
        p("ds_write_b32 v13, v12 offset:%d" % L_ROLE)
        p("%s:" % SK)
        p("s_waitcnt lgkmcnt(0)")
        p("s_barrier")
        p("v_mov_b32 v13, 0")
        p("ds_read_b32 v12, v13 offset:%d" % L_ROLE)
        p("s_waitcnt lgkmcnt(0)")
        p("v_readfirstlane_b32 %s, v12" % sRB)
    pv(0); loadV(4)
    if claim_at == 0: claim()
    pv(1); loadV(5)
    if claim_at == 1: claim()
    pv(2); loadV(6)
    if claim_at == 2: claim()
    pv(3); loadV(7)
    if claim_at == 3: claim()
    claim_broadcast()
    NOROLE = p.label("norole"); FINAL = p.label("final"); HALF = p.label("half"); FIN = p.label("fin")
    dedic = cfg.get("dedic", 0)
    sF = "s75"
    N2 = cfg.get("n2", 32); N1 = 64 - 2*N2
    def role_path(NH, npre):
        p("; ==== role path: rows 32rb.. of wo and 28rb.. of w2 ====")
        h_issue()
        late_addresses(NH)
        del late[:]; late.extend(W2_loads(NH) + O_loads(NH)); floor_[0] = len(late) - npre
        pv(4, True); tl(1); producer_addresses(); tl(1); pv(5, True); tl(1); gather_addresses(); ml_publish_lds(); tl(1); pv(6, True)
        while len(late) > floor_[0]: tl(1)
        pv(7)
        stamp("pv_done")
        o_publish()
        stamp("o_pub")
        floor_[0] = 0
        DD0, DD1 = 124, 116
        def pub_cols(sb, name):
            for D in (DD0, DD1)[:NH]:
                for r in range(4): p("v_bfi_b32 v%d, %s, v%d, v%d" % (D+r, sFF, vTAG, D+r))
            p("s_add_u32 %s, %s, %d" % (sT0, sb, 4*16384))
            p("s_mov_b32 exec_hi, 0")
            p.vmem("buffer_store_dwordx4 %s, v%d, %s, %s offen%s" % (vr(DD0, 4), vPC, SWS, sb, HS), name)
            if NH == 2: p.vmem("buffer_store_dwordx4 %s, v%d, %s, %s offen%s" % (vr(DD1, 4), vPC, SWS, sT0, HS), name)
            p("s_mov_b64 exec, -1")
        def diag_mult(src, n, b0, b1):
            for t in range(n+1):
                if t < n:
                    A = PERM + 4*(t % 4)
                    for jj in range(4): p("v_and_b32 v%d, v%d, v%d" % (A+jj, src+t, vMASK+jj))
                if t >= 1:
                    tt = t-1; AA = PERM + 4*(tt % 4)
                    p("v_mfma_f32_16x16x32_bf16 %s, %s, %s, %s" % (vr(DD0, 4), vr(AA, 4), ar(b0+4*tt, 4), "0" if tt == 0 else vr(DD0, 4)))
                    if NH == 2: p("v_mfma_f32_16x16x32_bf16 %s, %s, %s, %s" % (vr(DD1, 4), vr(AA, 4), ar(b1+4*tt, 4), "0" if tt == 0 else vr(DD1, 4)))
        def g2_loads(R, nm):
            f = (lambda t: p.vmem(t, nm)) if nm else p
            f("buffer_load_dwordx4 %s, v%d, %s, %s offen%s" % (vr(R, 4), vG1, SWS, sGV, HL))
            f("buffer_load_dwordx4 %s, v%d, %s, %s offen%s" % (vr(R+8, 4), vG0, SWS, sGA, HL))
            p("s_add_u32 %s, %s, %d" % (sT0, sGV, 8*O_PITCH))
            f("buffer_load_dwordx4 %s, v%d, %s, %s offen%s" % (vr(R+4, 4), vG1, SWS, sT0, HL))
            p("s_add_u32 %s, %s, %d" % (sT0, sGA, 8*O_PITCH))
            f("buffer_load_dwordx4 %s, v%d, %s, %s offen%s" % (vr(R+12, 4), vG0, SWS, sT0, HL))
        def g2_check():
            p("v_xor_b32 v14, %s, v106" % sE)
            for r in (107, 110, 111): p("v_bitop3_b32 v14, v%d, %s, v14 bitop3:0xbe" % (r, sE))
            regs = list(range(96, 106)) + [108, 109]
            p("v_xor_b32 v15, %s, v%d" % (sTAG, regs[0]))
            for r in regs[1:]: p("v_bitop3_b32 v15, v%d, %s, v15 bitop3:0xbe" % (r, sTAG))
            p("v_and_or_b32 v15, v15, %s, v14" % sFF)
            p("v_cmp_ne_u32 vcc, 0, v15")
            if cfg.get("nodep"): p("s_mov_b64 vcc, 0")
        tl(100)
        g2_loads(96, "G2A")
        tail_addresses_b(NH)
        h_compute()
        p("v_lshrrev_b32 v13, 4, v1"); p("v_lshlrev_b32 v13, 5, v13")
        p("s_waitcnt lgkmcnt(0)")
        p("ds_read_b128 v[16:19], v13 offset:%d" % L_HL); p("ds_read_b128 v[20:23], v13 offset:%d" % (L_HL+16))
        p("s_waitcnt lgkmcnt(0)")
        p.wait("W2")
        diag_mult(16, 7, AW2, AW2+28)
        pub_cols(sPB, "PUBB2")
        stamp("b_pub")
        p.wait("G2A")
        stamp("g2_first")
        retry_block(g2_check, lambda: g2_loads(96, None), "g2")
        stamp("g2_ok")
        if stamps: p("s_mov_b32 s3, %s" % sRETRY)
        p("v_and_b32 v104, 0xffffff00, v104"); p("v_and_b32 v108, 0xffffff00, v108")
        p("v_max_f32 v120, v104, v108")
        allred(p, [120], [121], "v_max_f32", [8, 16, 32])
        p("v_sub_f32 v104, v104, v120"); p("v_sub_f32 v108, v108, v120")
        p("v_mul_f32 v104, %s, v104" % sLOG2E); p("v_mul_f32 v108, %s, v108" % sLOG2E)
        p("v_exp_f32 v104, v104"); p("v_exp_f32 v108, v108")
        for r in range(4): p("v_mul_f32 v%d, v104, v%d" % (96+r, 96+r))
        p("v_mul_f32 v105, v104, v105")
        for r in range(4): p("v_fmac_f32 v%d, v108, v%d" % (96+r, 100+r))
        p("v_fmac_f32 v105, v108, v109")
        allred(p, [105], [121], "v_add_f32", [32, 16, 8])
        red4(p, [96, 97, 98, 99])
        p("v_mov_b32 v121, v105")
        p("ds_write_b32 v%d, v96 offset:%d" % (vCPW, L_CP))
        p("ds_write_b64 v%d, v[120:121] offset:%d" % (vCM, L_CM))
        p("s_waitcnt lgkmcnt(0)")
        p("s_barrier")
        p("ds_read_b128 v[100:103], v%d offset:%d" % (vZ, L_CM)); p("ds_read_b128 v[104:107], v%d offset:%d" % (vZ, L_CM+16))
        for w_ in range(4):
            p("ds_read_b128 %s, v%d offset:%d" % (vr(32+8*w_, 4), vCPR, L_CP + 128*w_)); p("ds_read_b128 %s, v%d offset:%d" % (vr(36+8*w_, 4), vCPR, L_CP + 128*w_ + 16))
        p("s_waitcnt lgkmcnt(8)")
        p("v_max3_f32 v120, v100, v102, v104"); p("v_max_f32 v120, v120, v106")
        for i in range(4): p("v_sub_f32 v%d, v%d, v120" % (100+2*i, 100+2*i))
        for i in range(4): p("v_mul_f32 v%d, %s, v%d" % (100+2*i, sLOG2E, 100+2*i))
        for i in range(4): p("v_exp_f32 v%d, v%d" % (100+2*i, 100+2*i))
        p("v_mul_f32 v121, v100, v101"); p("v_fmac_f32 v121, v102, v103"); p("v_fmac_f32 v121, v104, v105"); p("v_fmac_f32 v121, v106, v107")
        p("v_rcp_f32 v121, v121")
        for i in range(4): p("v_mul_f32 v%d, v%d, v121" % (100+2*i, 100+2*i))
        for i in range(4): p("v_mov_b32 v%d, v%d" % (101+2*i, 100+2*i))
        p("s_waitcnt lgkmcnt(6)")
        for r in range(0, 8, 2): p("v_pk_mul_f32 %s, v[100:101], %s" % (vr(32+r, 2), vr(32+r, 2)))
        p("s_waitcnt lgkmcnt(4)")
        for r in range(0, 8, 2): p("v_pk_fma_f32 %s, v[102:103], %s, %s" % (vr(32+r, 2), vr(40+r, 2), vr(32+r, 2)))
        p("s_waitcnt lgkmcnt(2)")
        for r in range(0, 8, 2): p("v_pk_fma_f32 %s, v[104:105], %s, %s" % (vr(32+r, 2), vr(48+r, 2), vr(32+r, 2)))
        p("s_waitcnt lgkmcnt(0)")
        for r in range(0, 8, 2): p("v_pk_fma_f32 %s, v[106:107], %s, %s" % (vr(32+r, 2), vr(56+r, 2), vr(32+r, 2)))
        for r in range(8): p("v_cvt_pk_bf16_f32 v%d, v%d, v%d" % (16+r, 32+r, 32+r))
        p.wait("O")
        diag_mult(16, 8, AWO, AWO+32)
        pub_cols(sPS, "PUBS")
        stamp("s_pub")
        p("s_branch %s" % (FIN if dedic else FINAL))

    vm_role = list(p.vm)
    p("s_cmp_ge_u32 %s, %d" % (sRB, N2 + N1)); p("s_cbranch_scc1 %s" % NOROLE)
    if N1:
        p("s_cmp_ge_u32 %s, %d" % (sRB, N2)); p("s_cbranch_scc1 %s" % HALF)
    if N2:
        if stamps: p("s_mov_b32 s101, 2")
        p("s_lshl_b32 %s, %s, 5" % (sA, sG)); p("s_add_u32 %s, %s, %s" % (sRB, sRB, sA))
        role_path(2, n_pre)
    if N1:
        p("%s:" % HALF)
        p.vm = list(vm_role)
        if stamps: p("s_mov_b32 s101, 1")
        p("s_sub_u32 %s, %s, %d" % (sRB, sRB, N2)); p("s_and_b32 %s, %s, 1" % (sCH, sRB)); p("s_lshr_b32 %s, %s, 1" % (sRB, sRB)); p("s_add_u32 %s, %s, %d" % (sRB, sRB, N2))
        p("s_lshl_b32 %s, %s, 5" % (sA, sG)); p("s_add_u32 %s, %s, %s" % (sRB, sRB, sA))
        role_path(1, cfg.get("n_pre1", n_pre))
    p("%s:" % NOROLE)
    p.vm = list(vm_role)
    if stamps: p("s_mov_b32 s101, 0")
    pv(4); producer_addresses(); pv(5); ml_publish_lds(); pv(6)
    pv(7)
    stamp("pv_done")
    o_publish()
    stamp("o_pub")
    p("%s:" % FINAL)
    p.vm = []
    sFB, sFS, sFX = "s69", "s70", "s74"
    vXF, vFW, vFR = 181, 182, 183
    def fl(sb):
        def f(R, nm):
            g = (lambda t: p.vmem(t, nm)) if nm else p
            for u in range(4):
                g("buffer_load_dwordx4 %s, v%d, %s, %s offen offset:%d%s" % (vr(R+4*u, 4), vL16, SWS, sb, 1024*u, HL))
        return f
    def fin_reduce(R, dst):
        for r in range(0, 4, 2):
            p("v_pk_add_f32 %s, %s, %s" % (vr(R+r, 2), vr(R+r, 2), vr(R+4+r, 2))); p("v_pk_add_f32 %s, %s, %s" % (vr(R+8+r, 2), vr(R+8+r, 2), vr(R+12+r, 2)))
        for r in range(0, 4, 2): p("v_pk_add_f32 %s, %s, %s" % (vr(R+r, 2), vr(R+r, 2), vr(R+8+r, 2)))
        red4(p, [R, R+1, R+2, R+3])
        p("ds_write_b32 v%d, v%d offset:%d" % (vFW, R, dst))
        p("s_waitcnt lgkmcnt(0)")
        p("s_barrier")
        for w_ in range(4): p("ds_read_b32 v%d, v%d offset:%d" % (R+w_, vFR, dst + 128*w_))
        p("s_waitcnt lgkmcnt(0)")
        p("v_add_f32 v%d, v%d, v%d" % (R, R, R+1)); p("v_add_f32 v%d, v%d, v%d" % (R+2, R+2, R+3)); p("v_add_f32 v%d, v%d, v%d" % (R, R, R+2))
        p("v_cvt_pk_bf16_f32 v%d, v%d, v%d" % (R, R, R)); p("v_lshlrev_b32 v%d, 16, v%d" % (R, R))
    if dedic:
        p("s_sub_u32 %s, %s, %d" % (sF, sRB, N2 + N1)); p("s_cmp_ge_u32 %s, 8" % sF); p("s_cbranch_scc1 %s" % FIN)
        p("s_lshl_b32 %s, %s, 3" % (sA, sG)); p("s_add_u32 %s, %s, %s" % (sF, sF, sA))
    else:
        p("s_mov_b32 %s, s2" % sF)
        p("s_cmp_ge_u32 s2, 32"); p("s_cbranch_scc1 %s" % FIN)
    p("s_lshl_b32 %s, %s, 14" % (sA, sF)); p("s_lshl_b32 %s, %s, 12" % (sD, sW)); p("s_add_u32 %s, %s, %s" % (sA, sA, sD))
    p("s_add_u32 %s, %s, %d" % (sFS, sA, S_BASE)); p("s_add_u32 %s, %s, %d" % (sFB, sA, BB_BASE))
    p("v_lshrrev_b32 v12, 4, v1"); p("v_and_b32 v13, 1, v12"); p("v_lshlrev_b32 v13, 1, v13"); p("v_lshrrev_b32 v12, 1, v12"); p("v_or_b32 v12, v12, v13")
    p("v_and_b32 v14, 7, v1"); p("v_lshlrev_b32 v14, 2, v14"); p("v_add_u32 v14, v14, v12")
    p("v_lshlrev_b32 v179, 1, v14"); p("s_lshl_b32 %s, %s, 6" % (sFX, sF))
    p("v_lshlrev_b32 v%d, 2, v14" % vFR); p("s_lshl_b32 %s, %s, 7" % (sD, sW)); p("v_add_u32 v%d, %s, v%d" % (vFW, sD, vFR))
    p.vmem("buffer_load_ushort v%d, v179, %s, %s offen" % (vXF, SX, sFX), "XF")
    fl(sFB)(128, "FB")
    p.wait("FB")
    def rlb():
        if cfg.get("fbsleep", 2): p("s_sleep %d" % cfg.get("fbsleep", 2))
        fl(sFB)(128, None)
    retry_block(lambda: tagcheck(list(range(128, 144)), 15), rlb, "fb")
    fl(sFS)(144, "FS0")
    fin_reduce(128, L_FP)
    silu(128, 32, 40, 1)
    p("v_cvt_pk_bf16_f32 v32, v32, v32"); p("v_lshlrev_b32 v32, 16, v32")
    p("v_lshlrev_b32 v44, 16, v%d" % vXF)
    stamp("g_done")
    p.wait("FS0")
    retry_block(lambda: tagcheck(list(range(144, 160)), 15), lambda: fl(sFS)(144, None), "fs")
    stamp("fs_ok")
    fin_reduce(144, L_FP + 512)
    p("v_mul_f32 v36, v144, v32")
    p("v_cvt_pk_bf16_f32 v36, v36, v36"); p("v_lshlrev_b32 v36, 16, v36")
    p("v_add_f32 v36, v36, v44")
    p("v_cvt_pk_bf16_f32 v40, v36, v36")
    SK5 = p.label("out")
    p("s_cmp_lg_u32 %s, 0" % sW); p("s_cbranch_scc1 %s" % SK5)
    p("s_mov_b32 exec_lo, 0x00ff00ff"); p("s_mov_b32 exec_hi, 0x00ff00ff")
    p.vmem("buffer_store_short v40, v179, %s, %s offen" % (SOUT, sFX), "OUT", cond=True)
    p("s_cmp_lg_u32 %s, 0" % sF); p("s_cbranch_scc1 %s" % SK5)
    p("v_mov_b32 v12, %d" % EPOCH); p("v_mov_b32 v13, %s" % sE)
    p("s_mov_b32 exec_lo, 1"); p("s_mov_b32 exec_hi, 0")
    p.vmem("buffer_store_dword v13, v12, %s, 0 offen%s" % (SWS, HS), "EPO", cond=True)
    p("%s:" % SK5)
    p("s_mov_b64 exec, -1")
    p("%s:" % FIN)
    if stamps:
        stamp("end")
        p("s_getreg_b32 %s, hwreg(HW_REG_XCC_ID)" % sA)
        p("s_waitcnt lgkmcnt(0)")
        for k in range(16):
            p("v_mov_b32 v%d, %s" % (32+k, ("s%d" % (ST0+2*k)) if k < nst[0] else "0"))
        p("v_mov_b32 v48, %s" % sA); p("v_mov_b32 v49, s3"); p("s_getreg_b32 %s, hwreg(HW_REG_HW_ID)" % sD); p("v_mov_b32 v50, %s" % sD); p("v_mov_b32 v51, s101")
        p("s_lshl_b32 %s, s2, 2" % sB); p("s_add_u32 %s, %s, %s" % (sB, sB, sW)); p("s_lshl_b32 %s, %s, 7" % (sB, sB)); p("s_add_u32 %s, %s, %d" % (sB, sB, STAMP))
        p("v_mov_b32 v12, 0")
        p("s_mov_b32 exec_lo, 1"); p("s_mov_b32 exec_hi, 0")
        if not cfg.get("dbg"):
            for i in range(4): p("buffer_store_dwordx4 %s, v12, %s, %s offen offset:%d" % (vr(32+4*i, 4), SWS, sB, 16*i))
            p("buffer_store_dwordx4 v[48:51], v12, %s, %s offen offset:64" % (SWS, sB))
        p("s_mov_b64 exec, -1")
    if stamps and cfg.get("dbg"):
        NODBG = p.label("nodbg")
        p("s_cmp_ge_u32 s2, 32"); p("s_cbranch_scc1 %s" % NODBG)
        p("s_cmp_lg_u32 %s, 0" % sW); p("s_cbranch_scc1 %s" % NODBG)
        p("v_mov_b32 v60, 0")
        for k in range(min(8, nst[0])):
            p("v_cmp_eq_u32 vcc, %d, v1" % k); p("v_mov_b32 v61, s%d" % (78+2*k)); p("v_cndmask_b32 v60, v60, v61, vcc")
            p("v_cmp_eq_u32 vcc, %d, v1" % (8+k)); p("v_not_b32 v61, v61"); p("v_cndmask_b32 v60, v60, v61, vcc")
        p("v_lshlrev_b32 v62, 2, v1")
        p("s_mov_b32 exec_lo, 0xffff"); p("s_mov_b32 exec_hi, 0")
        p("buffer_atomic_umax v60, v62, %s, 0 offen" % SDBG)
        p("s_mov_b64 exec, -1")
        p("%s:" % NODBG)
    p("%s:" % END)
    p("s_endpgm")
    return p, names

HEADER = """; Fused decode step:  out = x + (softmax(q K^T / sqrt(128)) V . wo) * silu((silu(xn w1) * (xn w3)) . w2),  xn = layernorm(x), q = xn . wq
; Workgroup j: kv head j>>6, 1024 keys; wave w streams 256 keys (K into AGPRs, V through a VGPR ring), all loads full 128-byte lines, nt.
;   early : q partials (+ one flag line per workgroup), gate/up partials
; @launch grid=(256,1,1) block=(256,1,1) lds=%d
"""
def wrap(body, name=NAME, lds=LDS_BYTES, header=True):
    s = (HEADER % lds) if header else ""
    if header: s += '.amdgcn_target "amdgcn-amd-amdhsa--gfx950"\n'
    s += ".text\n.globl %s\n.p2align 8\n.type %s,@function\n%s:\n" % (name, name, name)
    s += body
    s += '.section .rodata,"a"\n.p2align 6\n.amdhsa_kernel %s\n' % name
    s += "  .amdhsa_next_free_vgpr 512\n  .amdhsa_next_free_sgpr 102\n  .amdhsa_accum_offset 256\n"
    s += "  .amdhsa_group_segment_fixed_size 0\n  .amdhsa_kernarg_size 96\n  .amdhsa_user_sgpr_count 2\n"
    s += "  .amdhsa_user_sgpr_kernarg_segment_ptr 1\n  .amdhsa_system_sgpr_workgroup_id_x 1\n"
    s += "  .amdhsa_float_denorm_mode_32 3\n"
    s += ".end_amdhsa_kernel\n"
    return s

if __name__ == "__main__":
    cfg = json.loads(sys.argv[2]) if len(sys.argv) > 2 else {}
    p, names = build(cfg)
    open(sys.argv[1], "w").write(wrap(p.text()))
    print("wrote", sys.argv[1], "stamps:", names)
```

```python
import sys, json
from sched import Prog

NAME = "recurrent_scan__gqa_block_cached__glu_gated_swiglu__decode_kernel"

EPOCH   = 0
Q_BASE  = 0x1000
FLAG_BASE = 0x14000
CNT_BASE = 0x1C000
BP_BASE = 0x20000
O_BASE  = 0x80000
O_PITCH = 4224
S_BASE  = 0x200000
BB_BASE = 0x280000
STAMP   = 0x400000
L_XN = 0
L_QP = 4096
L_BP = 6144
L_QL = 10240
L_HL = 12544
L_MX = 12800
L_LW = 13056
L_CP = 13312
L_FP = 13824
L_CM = 14848
L_ROLE = 14912
L_OP = 16384
LDS_BYTES = 32768

SX, SK, SV, SWQ, SWO, SW1, SW3, SW2, SOUT, SDBG, SWS = [ "s[%d:%d]" % (4*i+4, 4*i+7) for i in range(11)]
sW, sG, sC, sT0, sKV = "s48", "s49", "s50", "s51", "s52"
sSELLO, sSELHI, sE, sTAG, sFF, sLOG2E, sSCALE, sHI = "s53", "s54", "s55", "s56", "s57", "s58", "s59", "s60"
sRETRY = "s61"
sA, sB, sCc, sD = "s62", "s63", "s64", "s65"
sRB, sCH = "s66", "s67"
sKC = "s68"
sCB1, sCB3, sW3B = "s69", "s70", "s71"
sVC, sROT = "s72", "s73"
sPOOL, sX = "s81", "s82"
sCL = "s80"
sPAR = "s77"
vTID, vLANE, vOFFK, vL16 = 0, 1, 2, 3
vMASK = 4
vTAG, vMAX, vL0, vL1 = 8, 9, 10, 11
vT = 12
QF, SP, PERM, ACC, RING = 16, 32, 64, 96, 128

def vr(b, n=1): return "v%d" % b if n == 1 else "v[%d:%d]" % (b, b+n-1)
def ar(b, n=1): return "a%d" % b if n == 1 else "a[%d:%d]" % (b, b+n-1)

DPP = " row_mask:0xf bank_mask:0xf"
def allred(p, regs, tmps, op, steps):
    for s in steps:
        if s in (1, 2, 4, 8):
            for r in regs: p("%s_dpp v%d, v%d, v%d row_ror:%d%s" % (op, r, r, r, s, DPP))
        else:
            for r, t in zip(regs, tmps): p("v_mov_b32 v%d, v%d" % (t, r))
            for r, t in zip(regs, tmps): p("v_permlane%d_swap_b32 v%d, v%d" % (s, r, t))
            for r, t in zip(regs, tmps): p("%s v%d, v%d, v%d" % (op, r, r, t))

def red4(p, a):
    p("v_permlane32_swap_b32 v%d, v%d" % (a[0], a[1])); p("v_permlane32_swap_b32 v%d, v%d" % (a[2], a[3]))
    p("v_add_f32 v%d, v%d, v%d" % (a[0], a[0], a[1])); p("v_add_f32 v%d, v%d, v%d" % (a[2], a[2], a[3]))
    p("v_permlane16_swap_b32 v%d, v%d" % (a[0], a[2]))
    p("v_add_f32 v%d, v%d, v%d" % (a[0], a[0], a[2]))
    p("v_add_f32_dpp v%d, v%d, v%d row_ror:8%s" % (a[0], a[0], a[0], DPP))

def build(cfg):
    pat = cfg.get("pat", "lin")
    nt = " nt" if cfg.get("nt", True) else ""
    ntw = " nt" if cfg.get("ntw", True) else ""
    stamps = cfg.get("stamps", False)
    poll_after = cfg.get("poll_after", 6)
    HS = cfg.get("hs", " sc1")
    HL = cfg.get("hl", " sc1")
    RETRIES = cfg.get("retries", 40000)
    R_ = cfg.get("R", 1)
    stride = {"lin": 1024, "str8": 8192, "w4": 4096 * R_, "glob": 262144}[pat]
    rot = cfg.get("rot", 0)
    dyn = cfg.get("dyn", False)
    NS = cfg.get("ns", 6 if dyn == 2 else 7) if dyn else 8
    ST0 = 84
    if dyn: assert pat == "w4" and R_ == 1 and not rot
    p = Prog()
    nst = [0]
    names = []
    def stamp(name):
        if not stamps or name in cfg.get("nostamp", []): return
        if name in names:
            k = names.index(name)
        else:
            k = nst[0]; nst[0] += 1; names.append(name)
        assert ST0 + 2*k + 1 <= 99
        p("s_memrealtime s[%d:%d]" % (ST0+2*k, ST0+1+2*k))

    depth = cfg.get("depth", 0); dstep = cfg.get("dstep", 2); depth0 = cfg.get("depth0", depth)
    cnt = [0]
    thr = cfg.get("thr_even", 0); thr_par = cfg.get("thr_par", 0)
    def svmem(text, name, early=False):
        d = depth0 if early else depth
        if d and cnt[0] % dstep == 0: p("s_waitcnt vmcnt(%d)" % (d - dstep))
        if thr and not early and cnt[0] % dstep == 0 and name[0] in "KV":
            L = p.label("thr")
            p("s_cmp_eq_u32 %s, %d" % (sPAR, thr_par)); p("s_cbranch_scc0 %s" % L); p("s_waitcnt vmcnt(%d)" % (thr - dstep)); p("%s:" % L)
        cnt[0] += 1
        p.vmem(text, name)
    END = p.label("end")
    p("s_cmp_ge_u32 s2, 256")
    p("s_cbranch_scc1 %s" % END)
    stamp("start")
    if cfg.get("pf", 0):
        NPF = p.label("nopf")
        p("s_cmp_ge_u32 s2, %d" % cfg["pf"]); p("s_cbranch_scc1 %s" % NPF)
        p("v_cmp_gt_u32 vcc, 64, v0"); p("s_cbranch_vccz %s" % NPF)
        PFB = p.label("pfbase")
        p("s_getpc_b64 s[48:49]")
        p("%s:" % PFB)
        p("v_lshlrev_b32 v12, 7, v0")
        for i in range(cfg.get("pfn", 3)):
            p("v_min_u32 v13, %s-%s-4, v12" % (END, PFB))
            p.vmem("global_load_dword v%d, v13, s[48:49]" % (236+i), "PF", cond=True)
            p("v_add_u32 v12, 0x2000, v12")
        p("%s:" % NPF)
    for i, off in enumerate([0, 8, 16, 24, 32, 48, 56, 64, 72, 80, 88]):
        p("s_load_dwordx2 s[%d:%d], s[0:1], %d" % (4*i+4, 4*i+5, off))
    sizes = [2048, 1<<26, 1<<26, 1<<23, 1<<23, 1024*3584*2, 1024*3584*2, 1024*3584*2, 2048, 256, 1<<28]
    for i, sz in enumerate(sizes):
        p("s_mov_b32 s%d, 0x%x" % (4*i+6, sz)); p("s_mov_b32 s%d, 0x20000" % (4*i+7))
    p("s_cmp_lt_u32 s2, 224")
    p("s_cselect_b32 s26, s26, 0")
    p("s_cselect_b32 s30, s30, 0")
    p("v_lshrrev_b32 v12, 6, v0")
    p("v_and_b32 v1, 63, v0")
    p("v_readfirstlane_b32 %s, v12" % sW)
    if cfg.get("thr_even", 0): p("s_getreg_b32 %s, hwreg(HW_REG_XCC_ID)" % sPAR); p("s_and_b32 %s, %s, 1" % (sPAR, sPAR))
    p("s_lshr_b32 %s, s2, 6" % sG)
    p("s_and_b32 %s, s2, 63" % sC)
    p("s_mov_b32 %s, 0x05040100" % sSELLO); p("s_mov_b32 %s, 0x07060302" % sSELHI)
    p("s_mov_b32 %s, 0xff" % sFF); p("s_mov_b32 %s, 0x3fb8aa3b" % sLOG2E)
    p("s_mov_b32 %s, 0x3db504f3" % sSCALE); p("s_mov_b32 %s, 0xffff0000" % sHI)
    p("s_lshr_b32 %s, s2, 1" % sRB); p("s_and_b32 %s, s2, 1" % sCH)
    p("v_lshlrev_b32 v3, 4, v1")
    p("v_lshlrev_b32 v13, 5, v1")
    p("s_lshl_b32 %s, %s, 9" % (sA, sW))
    p("v_lshlrev_b32 v14, 3, v1")
    p("v_lshrrev_b32 v15, 3, v1"); p("v_lshlrev_b32 v15, 13, v15")
    p("v_and_b32 v16, 7, v1"); p("v_lshlrev_b32 v16, 4, v16"); p("v_add_u32 v15, v15, v16")
    p("v_lshrrev_b32 v17, 4, v1"); p("v_mul_u32_u24 v17, 7168, v17")
    p("v_and_b32 v18, 15, v1"); p("v_lshlrev_b32 v18, 4, v18"); p("v_add_u32 v17, v17, v18")
    p("s_and_b32 %s, %s, 3" % (sB, sC)); p("s_lshl_b32 %s, %s, 21" % (sB, sB))
    p("s_lshl_b32 %s, %s, 19" % (sCc, sW)); p("s_add_u32 %s, %s, %s" % (sB, sB, sCc))
    p("s_lshl_b32 %s, %s, 11" % (sCc, sG)); p("s_add_u32 %s, %s, %s" % (sB, sB, sCc))
    p("s_lshr_b32 %s, %s, 2" % (sCc, sC)); p("s_lshl_b32 %s, %s, 7" % (sCc, sCc)); p("s_add_u32 %s, %s, %s" % (sB, sB, sCc))
    p("s_and_b32 %s, s2, 7" % sCc); p("s_lshl_b32 %s, %s, 7" % (sCc, sCc))
    p("s_lshl_b32 %s, %s, 5" % (sD, sW)); p("s_add_u32 %s, %s, %s" % (sCc, sCc, sD)); p("s_mul_i32 %s, %s, 7168" % (sCc, sCc))
    r1, r3 = cfg.get("r1", 1), cfg.get("r3", 2)
    for dst, rr in ((sCB1, r1), (sCB3, r3)):
        p("s_lshr_b32 %s, s2, 3" % dst); p("s_add_u32 %s, %s, %d" % (dst, dst, rr))
        p("s_sub_u32 %s, %s, 28" % (sD, dst)); p("s_cselect_b32 %s, %s, %s" % (dst, dst, sD))
    p("s_lshl_b32 %s, %s, 8" % (sD, sCB3)); p("s_add_u32 %s, %s, %s" % (sW3B, sCc, sD))
    p("s_lshl_b32 %s, %s, 8" % (sD, sCB1)); p("s_add_u32 %s, %s, %s" % (sCc, sCc, sD))
    p("s_waitcnt lgkmcnt(0)")
    stamp("karg")
    p("s_load_dword %s, s[44:45], %d" % (sE, EPOCH))
    ntx = " nt" if cfg.get("ntx", False) else ""
    p.vmem("buffer_load_dwordx4 v[224:227], v13, %s, 0 offen%s" % (SX, ntx), "XA0")
    p.vmem("buffer_load_dwordx4 v[228:231], v13, %s, 0 offen offset:16%s" % (SX, ntx), "XA1")
    p.vmem("buffer_load_dwordx2 v[232:233], v14, %s, %s offen%s" % (SX, sA, ntx), "XB")
    if cfg.get("pbar", 1) >= 1: p("s_barrier")
    for t in range(8):
        p("s_add_u32 %s, %s, %d" % (sT0, sB, t*8*8192))
        svmem("buffer_load_dwordx4 %s, v15, %s, %s offen%s" % (vr(128+4*t, 4), SWQ, sT0, ntw), "Q%d" % t, True)
    if cfg.get("pbar", 1) >= 2: p("s_barrier")
    for t in range(8):
        p("s_add_u32 %s, %s, %d" % (sT0, sCc, t*4*7168))
        svmem("buffer_load_dwordx4 %s, v17, %s, %s offen%s" % (vr(160+4*t, 4), SW1, sT0, ntw), "W1_%d" % t, True)
    stamp("w1_issued")
    if pat == "lin":
        p("s_lshl_b32 %s, s2, 18" % sKV); p("s_lshl_b32 %s, %s, 16" % (sD, sW)); p("s_add_u32 %s, %s, %s" % (sKV, sKV, sD))
    elif pat == "str8":
        p("s_lshl_b32 %s, %s, 24" % (sKV, sG))
        p("s_lshr_b32 %s, %s, 3" % (sD, sC)); p("s_lshl_b32 %s, %s, 21" % (sD, sD)); p("s_add_u32 %s, %s, %s" % (sKV, sKV, sD))
        p("s_lshl_b32 %s, %s, 19" % (sD, sW)); p("s_add_u32 %s, %s, %s" % (sKV, sKV, sD))
        p("s_and_b32 %s, %s, 7" % (sD, sC)); p("s_lshl_b32 %s, %s, 10" % (sD, sD)); p("s_add_u32 %s, %s, %s" % (sKV, sKV, sD))
    elif pat == "w4" and dyn:
        p("s_lshl_b32 %s, %s, 24" % (sKV, sG)); p("s_lshl_b32 %s, %s, 10" % (sD, sW)); p("s_add_u32 %s, %s, %s" % (sKV, sKV, sD))
        p("s_add_u32 %s, %s, %d" % (sPOOL, sKV, 64*NS*32768))
        if cfg.get("dynlin"):
            p("s_mul_i32 %s, %s, %d" % (sD, sW, 7*1024)); p("s_add_u32 %s, %s, %s" % (sPOOL, sPOOL, sD))
        p("s_mul_i32 %s, %s, %d" % (sD, sC, NS*32768)); p("s_add_u32 %s, %s, %s" % (sKV, sKV, sD))
    elif pat == "w4":
        lg = R_.bit_length() - 1
        p("s_lshl_b32 %s, %s, 24" % (sKV, sG))
        p("s_lshr_b32 %s, %s, %d" % (sD, sC, lg)); p("s_lshl_b32 %s, %s, %d" % (sD, sD, 18 + lg)); p("s_add_u32 %s, %s, %s" % (sKV, sKV, sD))
        p("s_and_b32 %s, %s, %d" % (sD, sC, R_ - 1)); p("s_lshl_b32 %s, %s, 12" % (sD, sD)); p("s_add_u32 %s, %s, %s" % (sKV, sKV, sD))
        p("s_lshl_b32 %s, %s, 10" % (sD, sW)); p("s_add_u32 %s, %s, %s" % (sKV, sKV, sD))
    elif pat == "glob":
        p("s_lshl_b32 %s, %s, 24" % (sKV, sG))
        p("s_lshl_b32 %s, %s, 12" % (sD, sC)); p("s_add_u32 %s, %s, %s" % (sKV, sKV, sD))
        p("s_lshl_b32 %s, %s, 10" % (sD, sW)); p("s_add_u32 %s, %s, %s" % (sKV, sKV, sD))
    if rot == 1: p("s_and_b32 %s, %s, 7" % (sROT, sC))
    if rot == 2: p("s_lshr_b32 %s, %s, 3" % (sROT, sC))
    if rot == 3: p("s_lshr_b32 %s, %s, 3" % (sROT, sC)); p("s_add_u32 %s, %s, %s" % (sROT, sROT, sC))
    p("v_and_b32 v12, 3, v1"); p("v_lshlrev_b32 v12, %d, v12" % (stride.bit_length()-1))
    p("v_bfe_u32 v2, v1, 2, 1"); p("v_lshlrev_b32 v2, 8, v2"); p("v_add_u32 v2, v2, v12")
    p("v_bfe_u32 v12, v1, 3, 1"); p("v_lshlrev_b32 v12, 6, v12"); p("v_add_u32 v2, v2, v12")
    p("v_lshrrev_b32 v12, 4, v1"); p("v_lshlrev_b32 v12, 4, v12"); p("v_add_u32 v2, v2, v12")
    p("v_and_b32 v12, 1, v1"); p("v_lshlrev_b32 v12, 4, v12"); p("v_mov_b32 v13, 0xffff"); p("v_lshlrev_b32 v13, v12, v13")
    p("v_bfe_u32 v12, v1, 1, 2")
    for jj in range(4):
        p("v_cmp_eq_u32 vcc, %d, v12" % jj); p("v_cndmask_b32 v%d, 0, v13, vcc" % (vMASK+jj))
    def grp_base(dst, t, dynbase=False):
        if dynbase:
            p("s_mov_b32 %s, %s" % (dst, sX))
        elif not rot:
            p("s_add_u32 %s, %s, %d" % (dst, sKV, 8*t*stride))
        else:
            p("s_add_u32 %s, %s, %d" % (dst, sROT, t)); p("s_and_b32 %s, %s, 7" % (dst, dst))
            p("s_mul_i32 %s, %s, %d" % (dst, dst, 8*stride)); p("s_add_u32 %s, %s, %s" % (dst, dst, sKV))
    vOFFK2 = 56
    def K_loads(t, slot=None, name=None):
        L = []
        db = slot is not None
        st_ = 1024 if (db and cfg.get("dynlin")) else stride
        vo = vOFFK2 if (db and cfg.get("dynlin")) else vOFFK
        sl = slot if db else t
        name = name or "K%d" % t
        for h in range(2):
            for a_ in range(2):
                for lam in range(2):
                    def f(h=h, a_=a_, lam=lam):
                        if a_ == 0 and lam == 0:
                            if h == 0: grp_base(sKC, t, db)
                            else: p("s_add_u32 %s, %s, %d" % (sKC, sKC, 4*st_))
                        svmem("buffer_load_dwordx4 %s, v%d, %s, %s offen offset:%d%s" % (ar(32*sl+16*h+8*a_+4*lam, 4), vo, SK, sKC, 512*a_+128*lam, nt), name)
                    L.append(f)
        return L
    def V_loads(t, db=False, name=None):
        base = RING + 32*(t % 4)
        name = name or "V%d" % t
        st_ = 1024 if (db and cfg.get("dynlin")) else stride
        L = []
        for i in range(8):
            def f(i=i):
                if i == 0: grp_base(sVC, t, db)
                else: p("s_add_u32 %s, %s, %d" % (sVC, sVC, st_))
                svmem("buffer_load_dwordx4 %s, v%d, %s, %s offen%s" % (vr(base+4*i, 4), vL16, SV, sVC, nt), name)
            L.append(f)
        return L
    def loadK(t):
        for f in K_loads(t): f()
    def loadV(t):
        for f in V_loads(t): f()
    def tagcheck(regs, acc):
        p("v_xor_b32 v%d, %s, v%d" % (acc, sTAG, regs[0]))
        for r in regs[1:]: p("v_bitop3_b32 v%d, v%d, %s, v%d bitop3:0xbe" % (acc, r, sTAG, acc))
        p("v_and_b32 v%d, 0xff, v%d" % (acc, acc))
        p("v_cmp_ne_u32 vcc, 0, v%d" % acc)
        if cfg.get("nodep"): p("s_mov_b64 vcc, 0")
    p.wait("XA1")
    stamp("x_landed")
    for i in range(8):
        p("v_lshlrev_b32 v%d, 16, v%d" % (32+2*i, 224+i)); p("v_and_b32 v%d, 0xffff0000, v%d" % (33+2*i, 224+i))
    for i in range(8): p("v_add_f32 v%d, v%d, v%d" % (48+i, 32+2*i, 33+2*i))
    p("v_add_f32 v48, v48, v49"); p("v_add_f32 v50, v50, v51"); p("v_add_f32 v52, v52, v53"); p("v_add_f32 v54, v54, v55")
    p("v_add_f32 v48, v48, v50"); p("v_add_f32 v52, v52, v54"); p("v_add_f32 v48, v48, v52")
    allred(p, [48], [49], "v_add_f32", [8, 4, 2, 1, 16, 32])
    p("v_mul_f32 v49, 0x3a800000, v48")
    for i in range(16): p("v_sub_f32 v%d, v%d, v49" % (32+i, 32+i))
    for i in range(4): p("v_mul_f32 v%d, v%d, v%d" % (50+i, 32+i, 32+i))
    for i in range(4, 16): p("v_fmac_f32 v%d, v%d, v%d" % (50+(i % 4), 32+i, 32+i))
    p("v_add_f32 v50, v50, v51"); p("v_add_f32 v52, v52, v53"); p("v_add_f32 v50, v50, v52")
    allred(p, [50], [51], "v_add_f32", [8, 4, 2, 1, 16, 32])
    p("v_mul_f32 v50, 0x3a800000, v50")
    p("v_cvt_pk_bf16_f32 v51, v49, v50")
    p("v_lshlrev_b32 v52, 16, v51")
    p("v_and_b32 v53, 0xffff0000, v51")
    p("v_add_f32 v53, 0x3727c5ac, v53")
    p("v_cvt_pk_bf16_f32 v53, v53, v53"); p("v_lshlrev_b32 v53, 16, v53")
    p("v_sqrt_f32 v53, v53")
    p("v_cvt_pk_bf16_f32 v53, v53, v53"); p("v_lshlrev_b32 v53, 16, v53")
    p("v_rcp_f32 v54, v53")
    p.wait("XB")
    p("v_lshlrev_b32 v32, 16, v232"); p("v_and_b32 v33, 0xffff0000, v232")
    p("v_lshlrev_b32 v34, 16, v233"); p("v_and_b32 v35, 0xffff0000, v233")
    for i in range(4): p("v_sub_f32 v%d, v%d, v52" % (32+i, 32+i))
    p("v_cvt_pk_bf16_f32 v36, v32, v33"); p("v_cvt_pk_bf16_f32 v37, v34, v35")
    p("v_lshlrev_b32 v32, 16, v36"); p("v_and_b32 v33, 0xffff0000, v36")
    p("v_lshlrev_b32 v34, 16, v37"); p("v_and_b32 v35, 0xffff0000, v37")
    for i in range(4): p("v_mul_f32 v%d, v%d, v54" % (40+i, 32+i))
    for i in range(4): p("v_fma_f32 v%d, -v%d, v53, v%d" % (44+i, 40+i, 32+i))
    for i in range(4): p("v_fma_f32 v%d, v%d, v54, v%d" % (40+i, 44+i, 40+i))
    for i in range(4): p("v_cvt_pk_bf16_f32 v%d, v%d, v%d" % (36+i, 40+i, 40+i))
    p("v_lshlrev_b32 v12, 4, v0")
    p("ds_write_b128 v12, v[36:39] offset:%d" % L_XN)
    p("s_waitcnt lgkmcnt(0)")
    p("s_barrier")
    stamp("ln_done")
    p("s_add_u32 %s, %s, 1" % (sE, sE)); p("s_and_b32 %s, %s, 0xff" % (sTAG, sE)); p("v_mov_b32 v%d, %s" % (vTAG, sTAG))
    p("s_and_b32 %s, %s, 3" % (sA, sC)); p("s_lshl_b32 %s, %s, 8" % (sA, sA)); p("s_lshl_b32 %s, %s, 6" % (sD, sW)); p("s_add_u32 %s, %s, %s" % (sA, sA, sD))
    p("v_lshrrev_b32 v12, 3, v1"); p("v_add_u32 v12, %s, v12" % sA); p("v_lshlrev_b32 v12, 2, v12")
    p("s_and_b32 %s, s2, 7" % sA); p("s_lshl_b32 %s, %s, 7" % (sA, sA)); p("s_lshl_b32 %s, %s, 5" % (sD, sW)); p("s_add_u32 %s, %s, %s" % (sA, sA, sD))
    p("v_lshrrev_b32 v13, 4, v1"); p("v_add_u32 v13, %s, v13" % sA); p("v_lshlrev_b32 v13, 2, v13")
    for t in range(0, 8, 2):
        p("ds_read2_b32 v[%d:%d], v12 offset0:%d offset1:%d" % (96+t, 97+t, 8*t, 8*t+8))
    for t in range(0, 8, 2):
        p("ds_read2_b32 v[%d:%d], v13 offset0:%d offset1:%d" % (104+t, 105+t, 4*t, 4*t+4))
    for t in range(8):
        p("s_add_u32 %s, %s, %d" % (sT0, sW3B, t*4*7168))
        svmem("buffer_load_dwordx4 %s, v17, %s, %s offen%s" % (vr(192+4*t, 4), SW3, sT0, ntw), "W3_%d" % t, True)
    p("s_waitcnt lgkmcnt(0)")
    for t in range(8):
        A = 48 + 4*(t % 2)
        for jj in range(4): p("v_and_b32 v%d, v%d, v%d" % (A+jj, 96+t, vMASK+jj))
        if t == 0: p.wait("Q7")
        p("v_mfma_f32_16x16x32_bf16 v[56:59], %s, %s, %s" % (vr(A, 4), vr(128+4*t, 4), "0" if t == 0 else "v[56:59]"))
    for t in range(8):
        for jj in range(4): p("v_and_b32 v%d, v%d, v%d" % (PERM+4*t+jj, 104+t, vMASK+jj))
    p("v_and_b32 v12, 7, v1"); p("v_lshlrev_b32 v12, 5, v12")
    p("v_bfe_u32 v13, v1, 4, 1"); p("v_lshlrev_b32 v13, 4, v13"); p("v_add_u32 v12, v12, v13")
    p("v_lshrrev_b32 v13, 5, v1"); p("v_lshlrev_b32 v13, 8, v13"); p("v_add_u32 v12, v12, v13")
    p("s_lshl_b32 %s, %s, 9" % (sA, sW)); p("v_add_u32 v12, %s, v12" % sA)
    p("s_mov_b32 exec_lo, 0x00ff00ff"); p("s_mov_b32 exec_hi, 0xff00ff00")
    p("ds_write_b128 v12, v[56:59] offset:%d" % L_QP)
    p("s_mov_b64 exec, -1")
    p("s_waitcnt lgkmcnt(0)")
    p("s_barrier")
    stamp("q_gemv")
    SKIP0 = p.label("pubq")
    p("s_cmp_lg_u32 %s, 0" % sW); p("s_cbranch_scc1 %s" % SKIP0)
    p("v_lshlrev_b32 v12, 4, v1")
    for i in range(8): p("ds_read_b128 %s, v12 offset:%d" % (vr(32+4*i, 4) if i < 4 else vr(112+4*(i-4), 4), L_QP + 256*i))
    p("s_lshl_b32 %s, %s, 2" % (sB, sG)); p("s_and_b32 %s, %s, 3" % (sD, sC)); p("s_add_u32 %s, %s, %s" % (sB, sB, sD)); p("s_lshl_b32 %s, %s, 12" % (sB, sB))
    p("s_lshr_b32 %s, %s, 2" % (sD, sC)); p("s_lshl_b32 %s, %s, 8" % (sD, sD)); p("s_add_u32 %s, %s, %s" % (sB, sB, sD))
    p("s_add_u32 %s, %s, %d" % (sB, sB, Q_BASE))
    p("s_waitcnt lgkmcnt(0)")
    for r in range(4):
        p("v_add_f32 v%d, v%d, v%d" % (32+r, 32+r, 36+r)); p("v_add_f32 v%d, v%d, v%d" % (40+r, 40+r, 44+r))
        p("v_add_f32 v%d, v%d, v%d" % (112+r, 112+r, 116+r)); p("v_add_f32 v%d, v%d, v%d" % (120+r, 120+r, 124+r))
    for r in range(4):
        p("v_add_f32 v%d, v%d, v%d" % (32+r, 32+r, 40+r)); p("v_add_f32 v%d, v%d, v%d" % (112+r, 112+r, 120+r))
    for r in range(4): p("v_add_f32 v%d, v%d, v%d" % (32+r, 32+r, 112+r))
    if True:
        NOZ = p.label("nozero")
        p("s_cmp_lg_u32 %s, 0" % sC); p("s_cbranch_scc1 %s" % NOZ)
        for r in range(4): p("v_mov_b32 v%d, 0" % (36+r))
        p("s_lshl_b32 %s, %s, 9" % (sD, sG)); p("s_add_u32 %s, %s, %d" % (sD, sD, CNT_BASE))
        p("s_mov_b32 exec_hi, 0")
        p.vmem("buffer_store_dwordx4 v[36:39], v12, %s, %s offen%s" % (SWS, sD, HS), "ZCNT", cond=True)
        p("s_mov_b64 exec, -1")
        p("%s:" % NOZ)
    p("s_mov_b32 exec_lo, 0xffff"); p("s_mov_b32 exec_hi, 0")
    p.vmem("buffer_store_dwordx4 v[32:35], v12, %s, %s offen%s" % (SWS, sB, HS), "PUBQ", cond=True)
    p("s_mov_b64 exec, -1")
    p("%s:" % SKIP0)
    loadK(0)
    p.wait("W1_7")
    stamp("w1_landed")
    for t in range(8):
        p("v_mfma_f32_16x16x32_bf16 v[60:63], %s, %s, %s" % (vr(PERM+4*t, 4), vr(160+4*t, 4), "0" if t == 0 else "v[60:63]"))
    loadK(1)
    p.wait("W3_7")
    stamp("w3_landed")
    for t in range(8):
        p("v_mfma_f32_16x16x32_bf16 v[96:99], %s, %s, %s" % (vr(PERM+4*t, 4), vr(192+4*t, 4), "0" if t == 0 else "v[96:99]"))
    SKIP2 = p.label("flag")
    p("s_cmp_lg_u32 %s, 0" % sW); p("s_cbranch_scc1 %s" % SKIP2)
    p("v_lshlrev_b32 v12, 2, v1"); p("v_mov_b32 v13, %s" % sE)
    p("s_lshl_b32 %s, s2, 7" % sA); p("s_add_u32 %s, %s, %d" % (sA, sA, FLAG_BASE))
    p.wait("PUBQ")
    p("s_mov_b32 exec_hi, 0")
    p.vmem("buffer_store_dword v13, v12, %s, %s offen%s" % (SWS, sA, HS), "FLAG", cond=True)
    p("s_mov_b64 exec, -1")
    p("%s:" % SKIP2)
    stamp("flag")
    p("v_and_b32 v12, 15, v1"); p("v_lshlrev_b32 v12, 5, v12")
    p("v_bfe_u32 v13, v1, 4, 1"); p("v_lshlrev_b32 v13, 4, v13"); p("v_add_u32 v12, v12, v13")
    p("s_lshl_b32 %s, %s, 10" % (sA, sW)); p("v_add_u32 v12, %s, v12" % sA)
    p("s_mov_b32 exec_hi, 0")
    p("ds_write_b128 v12, v[60:63] offset:%d" % L_BP)
    p("ds_write_b128 v12, v[96:99] offset:%d" % (L_BP+512))
    p("s_mov_b64 exec, -1")
    loadK(2)
    p("s_waitcnt lgkmcnt(0)")
    p("s_barrier")
    stamp("b_gemv")
    SKIP1 = p.label("pub1")
    p("s_cmp_lg_u32 %s, 1" % sW); p("s_cbranch_scc1 %s" % SKIP1)
    p("s_cmp_ge_u32 s2, 224"); p("s_cbranch_scc1 %s" % SKIP1)
    p("v_lshlrev_b32 v12, 4, v1")
    for i in range(4): p("ds_read_b128 %s, v12 offset:%d" % (vr(32+4*i, 4), L_BP + 1024*i))
    p("s_and_b32 %s, s2, 7" % sA); p("s_mul_i32 %s, %s, %d" % (sA, sA, 3584*4)); p("s_add_u32 %s, %s, %d" % (sA, sA, BP_BASE))
    p("s_lshl_b32 %s, %s, 9" % (sD, sCB1)); p("s_lshl_b32 %s, %s, 9" % (sB, sCB3)); p("s_add_u32 %s, %s, %d" % (sB, sB, 8*3584*4))
    p("v_mov_b32 v13, %s" % sD); p("v_mov_b32 v14, %s" % sB); p("v_cmp_gt_u32 vcc, 32, v1"); p("v_cndmask_b32 v13, v14, v13, vcc")
    p("v_and_b32 v14, 31, v1"); p("v_lshlrev_b32 v14, 4, v14"); p("v_add_u32 v13, v13, v14")
    p("s_waitcnt lgkmcnt(0)")
    for r in range(4):
        p("v_add_f32 v%d, v%d, v%d" % (32+r, 32+r, 36+r)); p("v_add_f32 v%d, v%d, v%d" % (40+r, 40+r, 44+r))
    for r in range(4): p("v_add_f32 v%d, v%d, v%d" % (32+r, 32+r, 40+r))
    for r in range(4): p("v_bfi_b32 v%d, %s, v%d, v%d" % (32+r, sFF, vTAG, 32+r))
    p.vmem("buffer_store_dwordx4 v[32:35], v13, %s, %s offen%s" % (SWS, sA, HS), "PUBB", cond=True)
    p("%s:" % SKIP1)
    for t in range(3, poll_after): loadK(t)
    SKIPP = p.label("nopoll")
    p("v_lshlrev_b32 v14, 7, v1")
    p("s_lshl_b32 %s, %s, 13" % (sB, sG)); p("s_add_u32 %s, %s, %d" % (sB, sB, FLAG_BASE))
    p("s_cmp_lg_u32 %s, 0" % sW); p("s_cbranch_scc1 %s" % SKIPP)
    p.vmem("buffer_load_dword v15, v14, %s, %s offen%s" % (SWS, sB, HL), "POLL", cond=True)
    p("%s:" % SKIPP)
    pend = []
    for t in range(poll_after, NS): pend += K_loads(t)
    for t in range(4): pend += V_loads(t)
    def tr(n):
        for _ in range(min(n, len(pend))): pend.pop(0)()
    tr(cfg.get("n_after_poll", 16))
    OKP = p.label("okpoll")
    p("s_cmp_lg_u32 %s, 0" % sW); p("s_cbranch_scc1 %s" % OKP)
    p.wait("POLL")
    p("s_mov_b32 %s, %d" % (sRETRY, RETRIES))
    RP = p.label("rpoll")
    p("%s:" % RP)
    p("v_cmp_ne_u32 vcc, %s, v15" % sE)
    if cfg.get("nodep"): p("s_branch %s" % OKP)
    p("s_cbranch_vccz %s" % OKP)
    p("s_sub_u32 %s, %s, 1" % (sRETRY, sRETRY)); p("s_cbranch_scc1 %s" % OKP)
    p("s_sleep %d" % cfg.get("sleep", 8))
    p("buffer_load_dword v15, v14, %s, %s offen%s" % (SWS, sB, HL))
    p("s_waitcnt vmcnt(0)")
    p("s_branch %s" % RP)
    p("%s:" % OKP)
    p("s_barrier")
    stamp("poll_ok")
    p("s_lshl_b32 %s, %s, 14" % (sA, sG)); p("s_lshl_b32 %s, %s, 10" % (sD, sW)); p("s_add_u32 %s, %s, %s" % (sA, sA, sD)); p("s_add_u32 %s, %s, %d" % (sA, sA, Q_BASE))
    for kq in range(4):
        p("s_add_u32 %s, %s, %d" % (sT0, sA, kq*4096))
        p.vmem("buffer_load_dwordx4 %s, v%d, %s, %s offen%s" % (vr(96+4*kq, 4), vL16, SWS, sT0, HL), "QG")
    tr(cfg.get("n_after_qg", 16))
    p("v_lshrrev_b32 v12, 5, v1"); p("s_lshl_b32 %s, %s, 1" % (sA, sW)); p("v_add_u32 v12, %s, v12" % sA); p("v_mul_u32_u24 v12, 272, v12")
    p("v_and_b32 v13, 31, v1"); p("v_lshlrev_b32 v13, 3, v13"); p("v_add_u32 v12, v12, v13")
    p("v_and_b32 v14, 7, v1"); p("v_mul_u32_u24 v14, 272, v14"); p("v_lshrrev_b32 v13, 4, v1"); p("v_lshlrev_b32 v13, 4, v13"); p("v_add_u32 v14, v14, v13")
    p("v_bfe_u32 v13, v1, 3, 1"); p("v_lshlrev_b32 v13, 6, v13"); p("v_add_u32 v14, v14, v13")
    p("v_mov_b32 v%d, 0xff800000" % vMAX)
    p.wait("QG")
    for r in range(4):
        p("v_add_f32 v%d, v%d, v%d" % (96+r, 96+r, 100+r)); p("v_add_f32 v%d, v%d, v%d" % (104+r, 104+r, 108+r))
    for r in range(4): p("v_add_f32 v%d, v%d, v%d" % (96+r, 96+r, 104+r))
    p("v_cvt_pk_bf16_f32 v96, v96, v97"); p("v_cvt_pk_bf16_f32 v97, v98, v99")
    p("ds_write_b64 v12, v[96:97] offset:%d" % L_QL)
    p("s_waitcnt lgkmcnt(0)")
    p("s_barrier")
    stamp("q_ready")
    for lam in range(2): p("ds_read_b128 %s, v14 offset:%d" % (vr(QF+4*lam, 4), L_QL + 128*lam))
    tr(1)
    p("s_waitcnt lgkmcnt(0)")
    p("; ---- scores: full-line K loads give 8 keys x 64 dims per MFMA; columns = (half, head); halves merged by permlane/DPP ----")
    def qk_mfma(t):
        D = PERM + 16*(t % 2)
        p.wait("K%d" % t)
        for lam in range(2):
            for h in range(2):
                for a_ in range(2):
                    d = D + 8*h + 4*a_
                    p("v_mfma_f32_16x16x32_bf16 %s, %s, %s, %s" % (vr(d, 4), ar(32*t+16*h+8*a_+4*lam, 4), vr(QF+4*lam, 4), "0" if lam == 0 else vr(d, 4)))
    def qk_post(t):
        D = PERM + 16*(t % 2); T = QF + 8
        for h in range(2):
            for r in range(4): p("v_permlane32_swap_b32 v%d, v%d" % (D+8*h+r, D+8*h+4+r))
        for h in range(2):
            for r in range(4): p("v_add_f32_dpp v%d, v%d, v%d row_ror:8%s" % (D+8*h+r, D+8*h+4+r, D+8*h+r, DPP))
        tr(1)
        src = [D+0, D+1, D+2, D+3, D+8, D+9, D+10, D+11]
        pk = [D+4, D+5, D+6, D+7]
        for i in range(4): p("v_cvt_pk_bf16_f32 v%d, v%d, v%d" % (pk[i], src[2*i], src[2*i+1]))
        for i in range(4):
            p("v_lshlrev_b32 v%d, 16, v%d" % (T+2*i, pk[i])); p("v_and_b32 v%d, 0xffff0000, v%d" % (T+2*i+1, pk[i]))
        for i in range(8): p("v_mul_f32 v%d, %s, v%d" % (T+i, sSCALE, T+i))
        tr(1)
        for i in range(4):
            p("v_cvt_pk_bf16_f32 v%d, v%d, v%d" % (SP+4*t+i, T+2*i, T+2*i+1))
            p("v_max3_f32 v%d, v%d, v%d, v%d" % (vMAX, vMAX, T+2*i, T+2*i+1))
    qk_mfma(0)
    for t in range(1, NS):
        qk_mfma(t)
        qk_post(t-1)
    qk_post(NS-1)
    allred(p, [vMAX], [12], "v_max_f32", [16, 32])
    p("v_cvt_pk_bf16_f32 v12, v%d, v%d" % (vMAX, vMAX)); p("v_lshlrev_b32 v%d, 16, v12" % vMAX)
    p("v_mul_f32 v14, %s, v%d" % (sLOG2E, vMAX)); p("v_sub_f32 v14, 0, v14")
    stamp("qk_done")
    p("v_mov_b32 v%d, 0" % vL0); p("v_mov_b32 v%d, 0" % vL1)
    for b_ in range(NS):
        T = PERM + 8*(b_ % 2)
        for i in range(4):
            p("v_lshlrev_b32 v%d, 16, v%d" % (T+2*i, SP+4*b_+i)); p("v_and_b32 v%d, 0xffff0000, v%d" % (T+2*i+1, SP+4*b_+i))
        for i in range(8): p("v_fma_f32 v%d, v%d, %s, v14" % (T+i, T+i, sLOG2E))
        for i in range(8): p("v_exp_f32 v%d, v%d" % (T+i, T+i))
        for i in range(4):
            p("v_cvt_pk_bf16_f32 v%d, v%d, v%d" % (SP+4*b_+i, T+2*i, T+2*i+1))
            p("v_add_f32 v%d, v%d, v%d" % (vL0, vL0, T+2*i)); p("v_add_f32 v%d, v%d, v%d" % (vL1, vL1, T+2*i+1))
        tr(1)
    tr(100)
    p("v_add_f32 v%d, v%d, v%d" % (vL0, vL0, vL1))
    stamp("p_done")
    def silu(src, dst, tmp, n):
        for r in range(n): p("v_mul_f32 v%d, %s, v%d" % (tmp+r, sLOG2E, src+r))
        for r in range(n): p("v_exp_f32 v%d, -v%d" % (tmp+r, tmp+r))
        for r in range(n): p("v_add_f32 v%d, 1.0, v%d" % (tmp+r, tmp+r))
        for r in range(n): p("v_rcp_f32 v%d, v%d" % (tmp+r, tmp+r))
        for r in range(n): p("v_mul_f32 v%d, v%d, v%d" % (dst+r, src+r, tmp+r))
    def unpack2(dst, src):
        p("v_lshlrev_b32 v%d, 16, v%d" % (dst, src)); p("v_and_b32 v%d, 0xffff0000, v%d" % (dst+1, src))
    def retry_block(check, reload, base):
        R = p.label("r" + base); OK = p.label("ok" + base)
        p("s_mov_b32 %s, %d" % (sRETRY, RETRIES))
        p("%s:" % R)
        check()
        p("s_cbranch_vccz %s" % OK)
        p("s_sub_u32 %s, %s, 1" % (sRETRY, sRETRY)); p("s_cbranch_scc1 %s" % OK)
        if cfg.get("maskretry", 0): p("s_mov_b64 exec, vcc")
        reload()
        if cfg.get("maskretry", 0): p("s_mov_b64 exec, -1")
        p("s_waitcnt vmcnt(0)")
        p("s_branch %s" % R)
        p("%s:" % OK)
    sH0, sH1 = "s69", "s70"
    vHG = 47
    def h_issue():
        p("v_lshrrev_b32 v%d, 3, v1" % vHG); p("v_mul_u32_u24 v%d, 14336, v%d" % (vHG, vHG)); p("v_and_b32 v13, 7, v1"); p("v_min_u32 v13, 6, v13"); p("v_lshlrev_b32 v13, 4, v13"); p("v_add_u32 v%d, v%d, v13" % (vHG, vHG))
        p("s_mul_i32 %s, %s, 112" % (sH0, sRB)); p("s_add_u32 %s, %s, %d" % (sH0, sH0, BP_BASE)); p("s_add_u32 %s, %s, %d" % (sH1, sH0, 8*14336))
        p.vmem("buffer_load_dwordx4 v[32:35], v%d, %s, %s offen%s" % (vHG, SWS, sH0, HL), "HG")
        p.vmem("buffer_load_dwordx4 v[36:39], v%d, %s, %s offen%s" % (vHG, SWS, sH1, HL), "HG")
    def h_compute():
        p.wait("HG")
        def rl():
            p("s_sleep %d" % cfg.get("sleep", 8))
            p("buffer_load_dwordx4 v[32:35], v%d, %s, %s offen%s" % (vHG, SWS, sH0, HL))
            p("buffer_load_dwordx4 v[36:39], v%d, %s, %s offen%s" % (vHG, SWS, sH1, HL))
        retry_block(lambda: tagcheck(list(range(32, 40)), 14), rl, "h")
        red4(p, [32, 33, 34, 35]); red4(p, [36, 37, 38, 39])
        p("v_cvt_pk_bf16_f32 v40, v32, v36")
        unpack2(32, 40)
        silu(32, 32, 40, 1)
        p("v_cvt_pk_bf16_f32 v40, v32, v32"); p("v_lshlrev_b32 v32, 16, v40")
        p("v_mul_f32 v32, v32, v33")
        p("v_cvt_pk_bf16_f32 v32, v32, v32")
        p("v_lshrrev_b32 v12, 4, v1"); p("v_and_b32 v13, 1, v12"); p("v_lshlrev_b32 v13, 1, v13"); p("v_lshrrev_b32 v12, 1, v12"); p("v_or_b32 v12, v12, v13")
        p("v_lshlrev_b32 v12, 5, v12"); p("v_and_b32 v13, 7, v1"); p("v_lshlrev_b32 v13, 2, v13"); p("v_add_u32 v13, v13, v12")
        p("ds_write_b32 v13, v32 offset:%d" % L_HL)
    sOB = "s77"
    late = []
    floor_ = [0]
    def tl(n=1):
        for _ in range(min(n, max(0, len(late) - floor_[0]))): late.pop(0)()
    def pv(t, trickle=False):
        base = RING + 32*(t % 4)
        p.wait("V%d" % t)
        def perm(j):
            c, h = j >> 1, j & 1
            for tt in range(4):
                p("v_perm_b32 v%d, v%d, v%d, %s" % (PERM+4*j+tt, base+4*(2*tt+1)+c, base+4*(2*tt)+c, sSELHI if h else sSELLO))
        def mm(j):
            p("v_mfma_f32_16x16x32_bf16 %s, %s, %s, %s" % (vr(ACC+4*j, 4), vr(PERM+4*j, 4), vr(SP+4*t, 4), "0" if t == 0 else vr(ACC+4*j, 4)))
        perm(0)
        for j in range(1, 8):
            perm(j); mm(j-1)
            if trickle and j in (2, 5): tl(1)
        mm(7)
    vW2O, vOO = 31, 11
    ocons = cfg.get("ocons", 0)
    sW2B = "s3"
    AW2, AWO = 0, 64
    def late_addresses(NH):
        p("v_lshrrev_b32 v12, 4, v1"); p("v_and_b32 v13, 15, v1"); p("v_lshlrev_b32 v13, 4, v13")
        p("v_lshlrev_b32 v%d, 11, v12" % vW2O); p("v_add_u32 v%d, v%d, v13" % (vW2O, vW2O))
        p("v_lshlrev_b32 v%d, %d, v12" % (vOO, 11 if ocons else 14)); p("v_add_u32 v%d, v%d, v13" % (vOO, vOO))
        if NH == 2: p("s_lshl_b32 %s, %s, 9" % (sD, sW))
        else: p("s_lshl_b32 %s, %s, 10" % (sD, sCH)); p("s_lshl_b32 %s, %s, 8" % (sA, sW)); p("s_add_u32 %s, %s, %s" % (sD, sD, sA))
        p("s_mul_i32 %s, %s, %d" % (sW2B, sRB, 28*2048)); p("s_add_u32 %s, %s, %s" % (sW2B, sW2B, sD))
        p("s_lshl_b32 %s, %s, 16" % (sOB, sRB)); p("s_add_u32 %s, %s, %s" % (sOB, sOB, sD))
    def W2_loads(NH):
        L = []
        for t in range(7):
            for hc in range(NH):
                def f(t=t, hc=hc):
                    if hc == 0: p("s_add_u32 %s, %s, %d" % (sT0, sW2B, t*4*2048))
                    svmem("buffer_load_dwordx4 %s, v%d, %s, %s offen offset:%d%s" % (ar(AW2+28*hc+4*t, 4), vW2O, SW2, sT0, 256*hc, ntw), "W2")
                L.append(f)
        return L
    def O_loads(NH):
        L = []
        for t in range(8):
            for hc in range(NH):
                def f(t=t, hc=hc):
                    if hc == 0: p("s_add_u32 %s, %s, %d" % (sT0, sOB, t*(4*2048 if ocons else 2048)))
                    svmem("buffer_load_dwordx4 %s, v%d, %s, %s offen offset:%d%s" % (ar(AWO+32*hc+4*t, 4), vOO, SWO, sT0, 256*hc, ntw), "O")
                L.append(f)
        return L
    vAWB, vRD, vPO, vLWR, vMLS, vG0, vG1 = 24, 25, 26, 27, 28, 29, 30
    vPC, vCM, vCPW, vCPR, vZ = 160, 161, 162, 163, 165
    vAW = PERM + 24
    sPO, sPB, sPS, sGV, sGM, sGA = "s71", "s72", "s73", "s74", "s75", "s76"
    def producer_addresses():
        p("v_and_b32 v12, 7, v1"); p("v_lshlrev_b32 v13, 9, v12"); p("v_lshlrev_b32 v12, 4, v12"); p("v_add_u32 v12, v12, v13")
        p("v_lshrrev_b32 v13, 4, v1"); p("v_lshlrev_b32 v13, 7, v13"); p("v_add_u32 v12, v12, v13")
        p("s_lshl_b32 %s, %s, 12" % (sA, sW)); p("s_add_u32 %s, %s, %d" % (sA, sA, L_OP)); p("v_add_u32 v%d, %s, v12" % (vAWB, sA))
        p("v_lshlrev_b32 v%d, 4, v0" % vRD)
        p("v_lshrrev_b32 v14, 5, v0"); p("v_and_b32 v15, 7, v0"); p("v_xor_b32 v14, v14, v15"); p("v_lshlrev_b32 v14, 4, v14")
        p("v_lshrrev_b32 v15, 3, v0"); p("v_lshlrev_b32 v15, 7, v15"); p("v_add_u32 v%d, v14, v15" % vPO)
        p("s_mul_i32 %s, s2, %d" % (sPO, O_PITCH)); p("s_add_u32 %s, %s, %d" % (sPO, sPO, O_BASE))
        p("v_lshrrev_b32 v13, 5, v0"); p("v_lshlrev_b32 v%d, 5, v13" % vLWR)
        p("v_lshlrev_b32 v%d, 4, v1" % vMLS); p("v_add_u32 v%d, 4096, v%d" % (vMLS, vMLS))
    def gather_addresses():
        p("v_lshrrev_b32 v12, 3, v1"); p("v_mul_u32_u24 v%d, %d, v12" % (vG0, O_PITCH))
        p("v_and_b32 v13, 7, v1"); p("v_lshlrev_b32 v13, 4, v13"); p("v_add_u32 v%d, v%d, v13" % (vG1, vG0))
        p("s_lshr_b32 %s, %s, 5" % (sA, sRB)); p("s_mul_i32 %s, %s, %d" % (sA, sA, 64*O_PITCH)); p("s_add_u32 %s, %s, %d" % (sA, sA, O_BASE))
        p("s_bfe_u32 %s, %s, 0x30002" % (sB, sRB))
        p("s_lshl_b32 %s, %s, 4" % (sD, sB)); p("s_add_u32 %s, %s, %s" % (sGM, sA, sD)); p("s_add_u32 %s, %s, 4096" % (sGM, sGM))
        p("s_and_b32 %s, %s, 31" % (sB, sRB)); p("s_lshl_b32 %s, %s, 7" % (sB, sB))
        p("s_add_u32 %s, %s, %s" % (sB, sB, sA))
        p("s_mul_i32 %s, %s, %d" % (sD, sW, 16*O_PITCH))
        p("s_add_u32 %s, %s, %s" % (sGV, sB, sD)); p("s_add_u32 %s, %s, %s" % (sGA, sGM, sD))
    def tail_addresses_b(NH):
        p("v_bfe_u32 v12, v1, 2, 2"); p("v_lshlrev_b32 v12, 14, v12")
        p("v_and_b32 v13, 3, v1"); p("v_lshlrev_b32 v13, 5, v13"); p("v_add_u32 v12, v12, v13")
        p("v_bfe_u32 v13, v1, 4, 1"); p("v_lshlrev_b32 v13, 4, v13"); p("v_add_u32 v%d, v12, v13" % vPC)
        if NH == 2: p("s_lshl_b32 %s, %s, 17" % (sA, sW))
        else: p("s_lshl_b32 %s, %s, 18" % (sA, sCH)); p("s_lshl_b32 %s, %s, 16" % (sD, sW)); p("s_add_u32 %s, %s, %s" % (sA, sA, sD))
        p("s_lshl_b32 %s, %s, 7" % (sD, sRB)); p("s_add_u32 %s, %s, %s" % (sA, sA, sD))
        p("s_add_u32 %s, %s, %d" % (sPB, sA, BB_BASE)); p("s_add_u32 %s, %s, %d" % (sPS, sA, S_BASE))
        p("v_lshrrev_b32 v12, 4, v1"); p("v_and_b32 v13, 1, v12"); p("v_lshlrev_b32 v13, 1, v13"); p("v_lshrrev_b32 v12, 1, v12"); p("v_or_b32 v12, v12, v13")
        if not ocons:
            p("v_lshlrev_b32 v12, 5, v12"); p("v_and_b32 v13, 7, v1"); p("v_lshlrev_b32 v13, 2, v13"); p("v_add_u32 v12, v12, v13")
        else:
            p("v_lshlrev_b32 v12, 3, v12"); p("v_bfe_u32 v13, v1, 2, 1"); p("v_lshlrev_b32 v13, 2, v13"); p("v_add_u32 v12, v12, v13")
            p("v_and_b32 v13, 3, v1"); p("v_lshlrev_b32 v13, 5, v13"); p("v_add_u32 v12, v12, v13")
        p("s_lshl_b32 %s, %s, 7" % (sA, sW)); p("v_add_u32 v%d, %s, v12" % (vCPW, sA))
        p("v_lshrrev_b32 v13, 4, v1"); p("v_lshlrev_b32 v%d, 5, v13" % vCPR)
        p("s_lshl_b32 %s, %s, 3" % (sA, sW)); p("v_mov_b32 v%d, %s" % (vCM, sA)); p("v_mov_b32 v%d, 0" % vZ)
    n_pre = cfg.get("n_pre", 5)
    vMLR = vL0
    def ml_publish_lds():
        allred(p, [vL0], [12], "v_add_f32", [16, 32])
        p("v_mov_b32 v12, v%d" % vMAX); p("v_mov_b32 v13, v%d" % vL0)
        p("v_and_b32 v%d, 7, v1" % vMLR); p("v_lshlrev_b32 v%d, 5, v%d" % (vMLR, vMLR))
        p("s_lshl_b32 %s, %s, 3" % (sA, sW)); p("v_add_u32 v14, %s, v%d" % (sA, vMLR))
        p("s_mov_b32 exec_lo, 0x00ff00ff"); p("s_mov_b32 exec_hi, 0x00ff00ff")
        p("ds_write_b64 v14, v[12:13] offset:%d" % L_LW)
        p("s_mov_b64 exec, -1")
    def o_publish():
        for j in range(8): p("v_xor_b32 v%d, %d, v%d" % (vAW+j, 16*j, vAWB))
        p("s_mov_b32 exec_lo, 0x00ff00ff"); p("s_mov_b32 exec_hi, 0x00ff00ff")
        for j in range(8):
            p("ds_write_b128 v%d, %s" % (vAW+j, vr(ACC+4*j, 4)))
        p("s_mov_b64 exec, -1")
        p("s_waitcnt lgkmcnt(0)")
        p("s_barrier")
        F = PERM + 16
        G_ = 112
        p("ds_read_b128 %s, v%d offset:%d" % (vr(F, 4), vLWR, L_LW)); p("ds_read_b128 %s, v%d offset:%d" % (vr(F+4, 4), vLWR, L_LW+16))
        for i in range(4): p("ds_read_b128 %s, v%d offset:%d" % (vr(PERM+4*i, 4), vRD, L_OP + 4096*i))
        p("ds_read_b128 %s, v%d offset:%d" % (vr(G_, 4), vMLR, L_LW)); p("ds_read_b128 %s, v%d offset:%d" % (vr(G_+4, 4), vMLR, L_LW+16))
        p("s_waitcnt lgkmcnt(6)")
        p("v_max3_f32 v12, v%d, v%d, v%d" % (F, F+2, F+4)); p("v_max_f32 v12, v12, v%d" % (F+6))
        for i in range(4): p("v_sub_f32 v%d, v%d, v12" % (F+2*i, F+2*i))
        for i in range(4): p("v_mul_f32 v%d, %s, v%d" % (F+2*i, sLOG2E, F+2*i))
        for i in range(4): p("v_exp_f32 v%d, v%d" % (F+2*i, F+2*i))
        for i in range(4): p("v_mov_b32 v%d, v%d" % (F+2*i+1, F+2*i))
        p("s_waitcnt lgkmcnt(5)")
        for r in range(0, 4, 2): p("v_pk_mul_f32 %s, %s, %s" % (vr(PERM+r, 2), vr(F, 2), vr(PERM+r, 2)))
        for i in range(1, 4):
            p("s_waitcnt lgkmcnt(%d)" % (5-i))
            for r in range(0, 4, 2): p("v_pk_fma_f32 %s, %s, %s, %s" % (vr(PERM+r, 2), vr(F+2*i, 2), vr(PERM+4*i+r, 2), vr(PERM+r, 2)))
        for r in range(4): p("v_bfi_b32 v%d, %s, v%d, v%d" % (PERM+r, sFF, vTAG, PERM+r))
        p.vmem("buffer_store_dwordx4 %s, v%d, %s, %s offen%s" % (vr(PERM, 4), vPO, SWS, sPO, HS), "PUBO")
        SKIP4 = p.label("ml")
        p("s_cmp_lg_u32 %s, 0" % sW); p("s_cbranch_scc1 %s" % SKIP4)
        p("s_waitcnt lgkmcnt(0)")
        p("v_max3_f32 v12, v%d, v%d, v%d" % (G_, G_+2, G_+4)); p("v_max_f32 v12, v12, v%d" % (G_+6))
        for i in range(4): p("v_sub_f32 v%d, v%d, v12" % (G_+2*i, G_+2*i))
        for i in range(4): p("v_mul_f32 v%d, %s, v%d" % (G_+2*i, sLOG2E, G_+2*i))
        for i in range(4): p("v_exp_f32 v%d, v%d" % (G_+2*i, G_+2*i))
        p("v_mul_f32 v13, v%d, v%d" % (G_, G_+1))
        for i in range(1, 4): p("v_fmac_f32 v13, v%d, v%d" % (G_+2*i, G_+2*i+1))
        p("v_bfi_b32 v%d, %s, v%d, v12" % (F, sFF, vTAG)); p("v_bfi_b32 v%d, %s, v%d, v13" % (F+1, sFF, vTAG))
        p("v_mov_b32 v%d, %s" % (F+2, sE)); p("v_mov_b32 v%d, %s" % (F+3, sE))
        p("s_mov_b32 exec_lo, 0xff"); p("s_mov_b32 exec_hi, 0")
        p.vmem("buffer_store_dwordx4 %s, v%d, %s, %s offen%s" % (vr(F, 4), vMLS, SWS, sPO, HS), "PUBML", cond=True)
        p("s_mov_b64 exec, -1")
        p("%s:" % SKIP4)
        p("s_waitcnt lgkmcnt(0)")
    sROLE = "s68"
    claim_at = cfg.get("claim_at", 2)
    def claim():
        SK = p.label("noclaim")
        p("s_cmp_lg_u32 %s, 0" % sW); p("s_cbranch_scc1 %s" % SK)
        p("s_lshl_b32 %s, %s, 9" % (sA, sG)); p("s_add_u32 %s, %s, %d" % (sA, sA, CNT_BASE))
        p("s_add_u32 s82, s44, %s" % sA); p("s_addc_u32 s83, s45, 0")
        p("s_mov_b32 %s, 1" % sROLE)
        p("s_atomic_add %s, s[82:83], 0 glc" % sROLE)
        p("%s:" % SK)
    def claim_broadcast():
        SK = p.label("nobc")
        p("s_cmp_lg_u32 %s, 0" % sW); p("s_cbranch_scc1 %s" % SK)
        p("s_waitcnt lgkmcnt(0)")
        p("v_mov_b32 v12, %s" % sROLE); p("v_mov_b32 v13, 0")
        p("ds_write_b32 v13, v12 offset:%d" % L_ROLE)
        p("%s:" % SK)
        p("s_waitcnt lgkmcnt(0)")
        p("s_barrier")
        p("v_mov_b32 v13, 0")
        p("ds_read_b32 v12, v13 offset:%d" % L_ROLE)
        p("s_waitcnt lgkmcnt(0)")
        p("v_readfirstlane_b32 %s, v12" % sRB)
    pv(0); loadV(4)
    if claim_at == 0: claim()
    pv(1); loadV(5)
    if claim_at == 1: claim()
    pv(2); loadV(6)
    if claim_at == 2: claim()
    pv(3); loadV(7)
    if claim_at == 3: claim()
    claim_broadcast()
    NOROLE = p.label("norole"); FINAL = p.label("final"); HALF = p.label("half"); FIN = p.label("fin")
    dedic = cfg.get("dedic", 0)
    sF = "s75"
    N2 = cfg.get("n2", 32); N1 = 64 - 2*N2
    def role_path(NH, npre):
        p("; ==== role path: rows 32rb.. of wo and 28rb.. of w2 ====")
        h_issue()
        late_addresses(NH)
        del late[:]; late.extend(W2_loads(NH) + O_loads(NH)); floor_[0] = len(late) - npre
        pv(4, True); tl(1); producer_addresses(); tl(1); pv(5, True); tl(1); gather_addresses(); ml_publish_lds(); tl(1); pv(6, True)
        while len(late) > floor_[0]: tl(1)
        pv(7)
        stamp("pv_done")
        o_publish()
        stamp("o_pub")
        floor_[0] = 0
        DD0, DD1 = 124, 116
        def pub_cols(sb, name):
            for D in (DD0, DD1)[:NH]:
                for r in range(4): p("v_bfi_b32 v%d, %s, v%d, v%d" % (D+r, sFF, vTAG, D+r))
            p("s_add_u32 %s, %s, %d" % (sT0, sb, 4*16384))
            p("s_mov_b32 exec_hi, 0")
            p.vmem("buffer_store_dwordx4 %s, v%d, %s, %s offen%s" % (vr(DD0, 4), vPC, SWS, sb, HS), name)
            if NH == 2: p.vmem("buffer_store_dwordx4 %s, v%d, %s, %s offen%s" % (vr(DD1, 4), vPC, SWS, sT0, HS), name)
            p("s_mov_b64 exec, -1")
        def diag_mult(src, n, b0, b1):
            for t in range(n+1):
                if t < n:
                    A = PERM + 4*(t % 4)
                    for jj in range(4): p("v_and_b32 v%d, v%d, v%d" % (A+jj, src+t, vMASK+jj))
                if t >= 1:
                    tt = t-1; AA = PERM + 4*(tt % 4)
                    p("v_mfma_f32_16x16x32_bf16 %s, %s, %s, %s" % (vr(DD0, 4), vr(AA, 4), ar(b0+4*tt, 4), "0" if tt == 0 else vr(DD0, 4)))
                    if NH == 2: p("v_mfma_f32_16x16x32_bf16 %s, %s, %s, %s" % (vr(DD1, 4), vr(AA, 4), ar(b1+4*tt, 4), "0" if tt == 0 else vr(DD1, 4)))
        def g2_loads(R, nm):
            f = (lambda t: p.vmem(t, nm)) if nm else p
            f("buffer_load_dwordx4 %s, v%d, %s, %s offen%s" % (vr(R, 4), vG1, SWS, sGV, HL))
            f("buffer_load_dwordx4 %s, v%d, %s, %s offen%s" % (vr(R+8, 4), vG0, SWS, sGA, HL))
            p("s_add_u32 %s, %s, %d" % (sT0, sGV, 8*O_PITCH))
            f("buffer_load_dwordx4 %s, v%d, %s, %s offen%s" % (vr(R+4, 4), vG1, SWS, sT0, HL))
            p("s_add_u32 %s, %s, %d" % (sT0, sGA, 8*O_PITCH))
            f("buffer_load_dwordx4 %s, v%d, %s, %s offen%s" % (vr(R+12, 4), vG0, SWS, sT0, HL))
        def g2_check():
            p("v_xor_b32 v14, %s, v106" % sE)
            for r in (107, 110, 111): p("v_bitop3_b32 v14, v%d, %s, v14 bitop3:0xbe" % (r, sE))
            regs = list(range(96, 106)) + [108, 109]
            p("v_xor_b32 v15, %s, v%d" % (sTAG, regs[0]))
            for r in regs[1:]: p("v_bitop3_b32 v15, v%d, %s, v15 bitop3:0xbe" % (r, sTAG))
            p("v_and_or_b32 v15, v15, %s, v14" % sFF)
            p("v_cmp_ne_u32 vcc, 0, v15")
            if cfg.get("nodep"): p("s_mov_b64 vcc, 0")
        tl(100)
        if not cfg.get("g2pos", 0): g2_loads(96, "G2A")
        tail_addresses_b(NH)
        h_compute()
        p("v_lshrrev_b32 v13, 4, v1"); p("v_lshlrev_b32 v13, 5, v13")
        p("s_waitcnt lgkmcnt(0)")
        p("ds_read_b128 v[16:19], v13 offset:%d" % L_HL); p("ds_read_b128 v[20:23], v13 offset:%d" % (L_HL+16))
        p("s_waitcnt lgkmcnt(0)")
        p.wait("W2")
        diag_mult(16, 7, AW2, AW2+28)
        if cfg.get("g2pos", 0) == 1: g2_loads(96, "G2A")
        pub_cols(sPB, "PUBB2")
        stamp("b_pub")
        p.wait("G2A")
        stamp("g2_first")
        retry_block(g2_check, lambda: g2_loads(96, None), "g2")
        stamp("g2_ok")
        if stamps: p("s_mov_b32 s3, %s" % sRETRY)
        p("v_and_b32 v104, 0xffffff00, v104"); p("v_and_b32 v108, 0xffffff00, v108")
        p("v_max_f32 v120, v104, v108")
        allred(p, [120], [121], "v_max_f32", [8, 16, 32])
        p("v_sub_f32 v104, v104, v120"); p("v_sub_f32 v108, v108, v120")
        p("v_mul_f32 v104, %s, v104" % sLOG2E); p("v_mul_f32 v108, %s, v108" % sLOG2E)
        p("v_exp_f32 v104, v104"); p("v_exp_f32 v108, v108")
        for r in range(4): p("v_mul_f32 v%d, v104, v%d" % (96+r, 96+r))
        p("v_mul_f32 v105, v104, v105")
        for r in range(4): p("v_fmac_f32 v%d, v108, v%d" % (96+r, 100+r))
        p("v_fmac_f32 v105, v108, v109")
        allred(p, [105], [121], "v_add_f32", [32, 16, 8])
        red4(p, [96, 97, 98, 99])
        p("v_mov_b32 v121, v105")
        p("ds_write_b32 v%d, v96 offset:%d" % (vCPW, L_CP))
        p("ds_write_b64 v%d, v[120:121] offset:%d" % (vCM, L_CM))
        p("s_waitcnt lgkmcnt(0)")
        p("s_barrier")
        p("ds_read_b128 v[100:103], v%d offset:%d" % (vZ, L_CM)); p("ds_read_b128 v[104:107], v%d offset:%d" % (vZ, L_CM+16))
        for w_ in range(4):
            p("ds_read_b128 %s, v%d offset:%d" % (vr(32+8*w_, 4), vCPR, L_CP + 128*w_)); p("ds_read_b128 %s, v%d offset:%d" % (vr(36+8*w_, 4), vCPR, L_CP + 128*w_ + 16))
        p("s_waitcnt lgkmcnt(8)")
        p("v_max3_f32 v120, v100, v102, v104"); p("v_max_f32 v120, v120, v106")
        for i in range(4): p("v_sub_f32 v%d, v%d, v120" % (100+2*i, 100+2*i))
        for i in range(4): p("v_mul_f32 v%d, %s, v%d" % (100+2*i, sLOG2E, 100+2*i))
        for i in range(4): p("v_exp_f32 v%d, v%d" % (100+2*i, 100+2*i))
        p("v_mul_f32 v121, v100, v101"); p("v_fmac_f32 v121, v102, v103"); p("v_fmac_f32 v121, v104, v105"); p("v_fmac_f32 v121, v106, v107")
        p("v_rcp_f32 v121, v121")
        for i in range(4): p("v_mul_f32 v%d, v%d, v121" % (100+2*i, 100+2*i))
        for i in range(4): p("v_mov_b32 v%d, v%d" % (101+2*i, 100+2*i))
        p("s_waitcnt lgkmcnt(6)")
        for r in range(0, 8, 2): p("v_pk_mul_f32 %s, v[100:101], %s" % (vr(32+r, 2), vr(32+r, 2)))
        p("s_waitcnt lgkmcnt(4)")
        for r in range(0, 8, 2): p("v_pk_fma_f32 %s, v[102:103], %s, %s" % (vr(32+r, 2), vr(40+r, 2), vr(32+r, 2)))
        p("s_waitcnt lgkmcnt(2)")
        for r in range(0, 8, 2): p("v_pk_fma_f32 %s, v[104:105], %s, %s" % (vr(32+r, 2), vr(48+r, 2), vr(32+r, 2)))
        p("s_waitcnt lgkmcnt(0)")
        for r in range(0, 8, 2): p("v_pk_fma_f32 %s, v[106:107], %s, %s" % (vr(32+r, 2), vr(56+r, 2), vr(32+r, 2)))
        for r in range(8): p("v_cvt_pk_bf16_f32 v%d, v%d, v%d" % (16+r, 32+r, 32+r))
        p.wait("O")
        diag_mult(16, 8, AWO, AWO+32)
        pub_cols(sPS, "PUBS")
        stamp("s_pub")
        p("s_branch %s" % (FIN if dedic else FINAL))

    vm_role = list(p.vm)
    p("s_cmp_ge_u32 %s, %d" % (sRB, N2 + N1)); p("s_cbranch_scc1 %s" % NOROLE)
    if N1:
        p("s_cmp_ge_u32 %s, %d" % (sRB, N2)); p("s_cbranch_scc1 %s" % HALF)
    if N2:
        if stamps: p("s_mov_b32 s101, 2")
        p("s_lshl_b32 %s, %s, 5" % (sA, sG)); p("s_add_u32 %s, %s, %s" % (sRB, sRB, sA))
        role_path(2, n_pre)
    if N1:
        p("%s:" % HALF)
        p.vm = list(vm_role)
        if stamps: p("s_mov_b32 s101, 1")
        p("s_sub_u32 %s, %s, %d" % (sRB, sRB, N2)); p("s_and_b32 %s, %s, 1" % (sCH, sRB)); p("s_lshr_b32 %s, %s, 1" % (sRB, sRB)); p("s_add_u32 %s, %s, %d" % (sRB, sRB, N2))
        p("s_lshl_b32 %s, %s, 5" % (sA, sG)); p("s_add_u32 %s, %s, %s" % (sRB, sRB, sA))
        role_path(1, cfg.get("n_pre1", n_pre))
    p("%s:" % NOROLE)
    p.vm = list(vm_role)
    if stamps: p("s_mov_b32 s101, 0")
    pv(4); producer_addresses(); pv(5); ml_publish_lds(); pv(6)
    pv(7)
    stamp("pv_done")
    o_publish()
    stamp("o_pub")
    p("%s:" % FINAL)
    p.vm = []
    sFB, sFS, sFX = "s69", "s70", "s74"
    vXF, vFW, vFR = 181, 182, 183
    def fl(sb):
        def f(R, nm):
            g = (lambda t: p.vmem(t, nm)) if nm else p
            for u in range(4):
                g("buffer_load_dwordx4 %s, v%d, %s, %s offen offset:%d%s" % (vr(R+4*u, 4), vL16, SWS, sb, 1024*u, HL))
        return f
    def fin_reduce(R, dst):
        for r in range(0, 4, 2):
            p("v_pk_add_f32 %s, %s, %s" % (vr(R+r, 2), vr(R+r, 2), vr(R+4+r, 2))); p("v_pk_add_f32 %s, %s, %s" % (vr(R+8+r, 2), vr(R+8+r, 2), vr(R+12+r, 2)))
        for r in range(0, 4, 2): p("v_pk_add_f32 %s, %s, %s" % (vr(R+r, 2), vr(R+r, 2), vr(R+8+r, 2)))
        red4(p, [R, R+1, R+2, R+3])
        p("ds_write_b32 v%d, v%d offset:%d" % (vFW, R, dst))
        p("s_waitcnt lgkmcnt(0)")
        p("s_barrier")
        for w_ in range(4): p("ds_read_b32 v%d, v%d offset:%d" % (R+w_, vFR, dst + 128*w_))
        p("s_waitcnt lgkmcnt(0)")
        p("v_add_f32 v%d, v%d, v%d" % (R, R, R+1)); p("v_add_f32 v%d, v%d, v%d" % (R+2, R+2, R+3)); p("v_add_f32 v%d, v%d, v%d" % (R, R, R+2))
        p("v_cvt_pk_bf16_f32 v%d, v%d, v%d" % (R, R, R)); p("v_lshlrev_b32 v%d, 16, v%d" % (R, R))
    if dedic:
        p("s_sub_u32 %s, %s, %d" % (sF, sRB, N2 + N1)); p("s_cmp_ge_u32 %s, 8" % sF); p("s_cbranch_scc1 %s" % FIN)
        p("s_lshl_b32 %s, %s, 3" % (sA, sG)); p("s_add_u32 %s, %s, %s" % (sF, sF, sA))
    else:
        p("s_mov_b32 %s, s2" % sF)
        p("s_cmp_ge_u32 s2, 32"); p("s_cbranch_scc1 %s" % FIN)
    p("s_lshl_b32 %s, %s, 14" % (sA, sF)); p("s_lshl_b32 %s, %s, 12" % (sD, sW)); p("s_add_u32 %s, %s, %s" % (sA, sA, sD))
    p("s_add_u32 %s, %s, %d" % (sFS, sA, S_BASE)); p("s_add_u32 %s, %s, %d" % (sFB, sA, BB_BASE))
    p("v_lshrrev_b32 v12, 4, v1"); p("v_and_b32 v13, 1, v12"); p("v_lshlrev_b32 v13, 1, v13"); p("v_lshrrev_b32 v12, 1, v12"); p("v_or_b32 v12, v12, v13")
    p("v_and_b32 v14, 7, v1"); p("v_lshlrev_b32 v14, 2, v14"); p("v_add_u32 v14, v14, v12")
    p("v_lshlrev_b32 v179, 1, v14"); p("s_lshl_b32 %s, %s, 6" % (sFX, sF))
    p("v_lshlrev_b32 v%d, 2, v14" % vFR); p("s_lshl_b32 %s, %s, 7" % (sD, sW)); p("v_add_u32 v%d, %s, v%d" % (vFW, sD, vFR))
    p.vmem("buffer_load_ushort v%d, v179, %s, %s offen" % (vXF, SX, sFX), "XF")
    fl(sFB)(128, "FB")
    p.wait("FB")
    def rlb():
        if cfg.get("fbsleep", 2): p("s_sleep %d" % cfg.get("fbsleep", 2))
        fl(sFB)(128, None)
    retry_block(lambda: tagcheck(list(range(128, 144)), 15), rlb, "fb")
    fl(sFS)(144, "FS0")
    fin_reduce(128, L_FP)
    silu(128, 32, 40, 1)
    p("v_cvt_pk_bf16_f32 v32, v32, v32"); p("v_lshlrev_b32 v32, 16, v32")
    p("v_lshlrev_b32 v44, 16, v%d" % vXF)
    stamp("g_done")
    if not cfg.get("fs2", 0):
        p.wait("FS0")
        retry_block(lambda: tagcheck(list(range(144, 160)), 15), lambda: fl(sFS)(144, None), "fs")
    else:
        RA, RB, nregs, nloads = 144, 184, 16, 4
        loads = fl(sFS)
        L = p.label("pfs"); DA = p.label("dafs"); DB = p.label("dbfs")
        p("s_mov_b32 %s, %d" % (sRETRY, RETRIES))
        p("%s:" % L)
        loads(RB, None)
        p("s_waitcnt vmcnt(%d)" % nloads)
        tagcheck(list(range(RA, RA+nregs)), 15)
        p("s_cbranch_vccz %s" % DA)
        loads(RA, None)
        p("s_waitcnt vmcnt(%d)" % nloads)
        tagcheck(list(range(RB, RB+nregs)), 15)
        p("s_cbranch_vccz %s" % DB)
        p("s_sub_u32 %s, %s, 1" % (sRETRY, sRETRY)); p("s_cbranch_scc0 %s" % L)
        p("%s:" % DB)
        p("s_waitcnt vmcnt(0)")
        for r in range(nregs): p("v_mov_b32 v%d, v%d" % (RA+r, RB+r))
        p("%s:" % DA)
    stamp("fs_ok")
    fin_reduce(144, L_FP + 512)
    p("v_mul_f32 v36, v144, v32")
    p("v_cvt_pk_bf16_f32 v36, v36, v36"); p("v_lshlrev_b32 v36, 16, v36")
    p("v_add_f32 v36, v36, v44")
    p("v_cvt_pk_bf16_f32 v40, v36, v36")
    SK5 = p.label("out")
    p("s_cmp_lg_u32 %s, 0" % sW); p("s_cbranch_scc1 %s" % SK5)
    p("s_mov_b32 exec_lo, 0x00ff00ff"); p("s_mov_b32 exec_hi, 0x00ff00ff")
    p.vmem("buffer_store_short v40, v179, %s, %s offen" % (SOUT, sFX), "OUT", cond=True)
    p("s_cmp_lg_u32 %s, 0" % sF); p("s_cbranch_scc1 %s" % SK5)
    p("v_mov_b32 v12, %d" % EPOCH); p("v_mov_b32 v13, %s" % sE)
    p("s_mov_b32 exec_lo, 1"); p("s_mov_b32 exec_hi, 0")
    p.vmem("buffer_store_dword v13, v12, %s, 0 offen%s" % (SWS, HS), "EPO", cond=True)
    p("%s:" % SK5)
    p("s_mov_b64 exec, -1")
    p("%s:" % FIN)
    if stamps:
        stamp("end")
        p("s_getreg_b32 %s, hwreg(HW_REG_XCC_ID)" % sA)
        p("s_waitcnt lgkmcnt(0)")
        for k in range(16):
            p("v_mov_b32 v%d, %s" % (32+k, ("s%d" % (ST0+2*k)) if k < nst[0] else "0"))
        p("v_mov_b32 v48, %s" % sA); p("v_mov_b32 v49, s3"); p("s_getreg_b32 %s, hwreg(HW_REG_HW_ID)" % sD); p("v_mov_b32 v50, %s" % sD); p("v_mov_b32 v51, s101")
        p("s_lshl_b32 %s, s2, 2" % sB); p("s_add_u32 %s, %s, %s" % (sB, sB, sW)); p("s_lshl_b32 %s, %s, 7" % (sB, sB)); p("s_add_u32 %s, %s, %d" % (sB, sB, STAMP))
        p("v_mov_b32 v12, 0")
        p("s_mov_b32 exec_lo, 1"); p("s_mov_b32 exec_hi, 0")
        if not cfg.get("dbg"):
            for i in range(4): p("buffer_store_dwordx4 %s, v12, %s, %s offen offset:%d" % (vr(32+4*i, 4), SWS, sB, 16*i))
            p("buffer_store_dwordx4 v[48:51], v12, %s, %s offen offset:64" % (SWS, sB))
        p("s_mov_b64 exec, -1")
    if stamps and cfg.get("dbg"):
        NODBG = p.label("nodbg")
        p("s_cmp_ge_u32 s2, 32"); p("s_cbranch_scc1 %s" % NODBG)
        p("s_cmp_lg_u32 %s, 0" % sW); p("s_cbranch_scc1 %s" % NODBG)
        p("v_mov_b32 v60, 0")
        for k in range(min(8, nst[0])):
            p("v_cmp_eq_u32 vcc, %d, v1" % k); p("v_mov_b32 v61, s%d" % (78+2*k)); p("v_cndmask_b32 v60, v60, v61, vcc")
            p("v_cmp_eq_u32 vcc, %d, v1" % (8+k)); p("v_not_b32 v61, v61"); p("v_cndmask_b32 v60, v60, v61, vcc")
        p("v_lshlrev_b32 v62, 2, v1")
        p("s_mov_b32 exec_lo, 0xffff"); p("s_mov_b32 exec_hi, 0")
        p("buffer_atomic_umax v60, v62, %s, 0 offen" % SDBG)
        p("s_mov_b64 exec, -1")
        p("%s:" % NODBG)
    p("%s:" % END)
    p("s_endpgm")
    return p, names

HEADER = """; Fused decode step:  out = x + (softmax(q K^T / sqrt(128)) V . wo) * silu((silu(xn w1) * (xn w3)) . w2),  xn = layernorm(x), q = xn . wq
; Workgroup j: kv head j>>6, 1024 keys; wave w streams 256 keys (K into AGPRs, V through a VGPR ring), all loads full 128-byte lines, nt.
;   early : q partials (+ one flag line per workgroup), gate/up partials
; @launch grid=(256,1,1) block=(256,1,1) lds=%d
"""
def wrap(body, name=NAME, lds=LDS_BYTES, header=True):
    s = (HEADER % lds) if header else ""
    if header: s += '.amdgcn_target "amdgcn-amd-amdhsa--gfx950"\n'
    s += ".text\n.globl %s\n.p2align 8\n.type %s,@function\n%s:\n" % (name, name, name)
    s += body
    s += '.section .rodata,"a"\n.p2align 6\n.amdhsa_kernel %s\n' % name
    s += "  .amdhsa_next_free_vgpr 512\n  .amdhsa_next_free_sgpr 102\n  .amdhsa_accum_offset 256\n"
    s += "  .amdhsa_group_segment_fixed_size 0\n  .amdhsa_kernarg_size 96\n  .amdhsa_user_sgpr_count 2\n"
    s += "  .amdhsa_user_sgpr_kernarg_segment_ptr 1\n  .amdhsa_system_sgpr_workgroup_id_x 1\n"
    s += "  .amdhsa_float_denorm_mode_32 3\n"
    s += ".end_amdhsa_kernel\n"
    return s

if __name__ == "__main__":
    cfg = json.loads(sys.argv[2]) if len(sys.argv) > 2 else {}
    p, names = build(cfg)
    open(sys.argv[1], "w").write(wrap(p.text()))
    print("wrote", sys.argv[1], "stamps:", names)
```

```python
import sys, json
from sched import Prog

NAME = "recurrent_scan__gqa_block_cached__glu_gated_swiglu__decode_kernel"

EPOCH   = 0
Q_BASE  = 0x1000
FLAG_BASE = 0x14000
CNT_BASE = 0x1C000
BP_BASE = 0x20000
O_BASE  = 0x80000
O_PITCH = 4224
S_BASE  = 0x200000
BB_BASE = 0x280000
STAMP   = 0x400000
L_XN = 0
L_QP = 4096
L_BP = 6144
L_QL = 10240
L_HL = 12544
L_MX = 12800
L_LW = 13056
L_CP = 13312
L_FP = 13824
L_CM = 14848
L_ROLE = 14912
L_OP = 16384
LDS_BYTES = 32768

SX, SK, SV, SWQ, SWO, SW1, SW3, SW2, SOUT, SDBG, SWS = [ "s[%d:%d]" % (4*i+4, 4*i+7) for i in range(11)]
sW, sG, sC, sT0, sKV = "s48", "s49", "s50", "s51", "s52"
sSELLO, sSELHI, sE, sTAG, sFF, sLOG2E, sSCALE, sHI = "s53", "s54", "s55", "s56", "s57", "s58", "s59", "s60"
sRETRY = "s61"
sA, sB, sCc, sD = "s62", "s63", "s64", "s65"
sRB, sCH = "s66", "s67"
sKC = "s68"
sCB1, sCB3, sW3B = "s69", "s70", "s71"
sVC, sROT = "s72", "s73"
sPOOL, sX = "s81", "s82"
sCL = "s80"
sPAR = "s77"
vTID, vLANE, vOFFK, vL16 = 0, 1, 2, 3
vMASK = 4
vTAG, vMAX, vL0, vL1 = 8, 9, 10, 11
vT = 12
QF, SP, PERM, ACC, RING = 16, 32, 64, 96, 128

def vr(b, n=1): return "v%d" % b if n == 1 else "v[%d:%d]" % (b, b+n-1)
def ar(b, n=1): return "a%d" % b if n == 1 else "a[%d:%d]" % (b, b+n-1)

DPP = " row_mask:0xf bank_mask:0xf"
def allred(p, regs, tmps, op, steps):
    for s in steps:
        if s in (1, 2, 4, 8):
            for r in regs: p("%s_dpp v%d, v%d, v%d row_ror:%d%s" % (op, r, r, r, s, DPP))
        else:
            for r, t in zip(regs, tmps): p("v_mov_b32 v%d, v%d" % (t, r))
            for r, t in zip(regs, tmps): p("v_permlane%d_swap_b32 v%d, v%d" % (s, r, t))
            for r, t in zip(regs, tmps): p("%s v%d, v%d, v%d" % (op, r, r, t))

def red4(p, a):
    p("v_permlane32_swap_b32 v%d, v%d" % (a[0], a[1])); p("v_permlane32_swap_b32 v%d, v%d" % (a[2], a[3]))
    p("v_add_f32 v%d, v%d, v%d" % (a[0], a[0], a[1])); p("v_add_f32 v%d, v%d, v%d" % (a[2], a[2], a[3]))
    p("v_permlane16_swap_b32 v%d, v%d" % (a[0], a[2]))
    p("v_add_f32 v%d, v%d, v%d" % (a[0], a[0], a[2]))
    p("v_add_f32_dpp v%d, v%d, v%d row_ror:8%s" % (a[0], a[0], a[0], DPP))

def build(cfg):
    pat = cfg.get("pat", "lin")
    nt = " nt" if cfg.get("nt", True) else ""
    ntw = " nt" if cfg.get("ntw", True) else ""
    stamps = cfg.get("stamps", False)
    poll_after = cfg.get("poll_after", 6)
    HS = cfg.get("hs", " sc1")
    HL = cfg.get("hl", " sc1")
    RETRIES = cfg.get("retries", 40000)
    R_ = cfg.get("R", 1)
    stride = {"lin": 1024, "str8": 8192, "w4": 4096 * R_, "glob": 262144}[pat]
    rot = cfg.get("rot", 0)
    dyn = cfg.get("dyn", False)
    NS = cfg.get("ns", 6 if dyn == 2 else 7) if dyn else 8
    ST0 = 84
    if dyn: assert pat == "w4" and R_ == 1 and not rot
    p = Prog()
    nst = [0]
    names = []
    def stamp(name):
        if not stamps or name in cfg.get("nostamp", []): return
        if name in names:
            k = names.index(name)
        else:
            k = nst[0]; nst[0] += 1; names.append(name)
        assert ST0 + 2*k + 1 <= 99
        p("s_memrealtime s[%d:%d]" % (ST0+2*k, ST0+1+2*k))

    depth = cfg.get("depth", 0); dstep = cfg.get("dstep", 2); depth0 = cfg.get("depth0", depth)
    cnt = [0]
    thr = cfg.get("thr_even", 0); thr_par = cfg.get("thr_par", 0)
    def svmem(text, name, early=False):
        d = depth0 if early else depth
        if d and cnt[0] % dstep == 0: p("s_waitcnt vmcnt(%d)" % (d - dstep))
        if thr and not early and cnt[0] % dstep == 0 and name[0] in "KV":
            L = p.label("thr")
            p("s_cmp_eq_u32 %s, %d" % (sPAR, thr_par)); p("s_cbranch_scc0 %s" % L); p("s_waitcnt vmcnt(%d)" % (thr - dstep)); p("%s:" % L)
        cnt[0] += 1
        p.vmem(text, name)
    END = p.label("end")
    p("s_cmp_ge_u32 s2, 256")
    p("s_cbranch_scc1 %s" % END)
    stamp("start")
    if cfg.get("pf", 0):
        NPF = p.label("nopf")
        p("s_cmp_ge_u32 s2, %d" % cfg["pf"]); p("s_cbranch_scc1 %s" % NPF)
        p("v_cmp_gt_u32 vcc, 64, v0"); p("s_cbranch_vccz %s" % NPF)
        PFB = p.label("pfbase")
        p("s_getpc_b64 s[48:49]")
        p("%s:" % PFB)
        p("v_lshlrev_b32 v12, 7, v0")
        for i in range(cfg.get("pfn", 3)):
            p("v_min_u32 v13, %s-%s-4, v12" % (END, PFB))
            p.vmem("global_load_dword v%d, v13, s[48:49]" % (236+i), "PF", cond=True)
            p("v_add_u32 v12, 0x2000, v12")
        p("%s:" % NPF)
    for i, off in enumerate([0, 8, 16, 24, 32, 48, 56, 64, 72, 80, 88]):
        p("s_load_dwordx2 s[%d:%d], s[0:1], %d" % (4*i+4, 4*i+5, off))
    sizes = [2048, 1<<26, 1<<26, 1<<23, 1<<23, 1024*3584*2, 1024*3584*2, 1024*3584*2, 2048, 256, 1<<28]
    for i, sz in enumerate(sizes):
        p("s_mov_b32 s%d, 0x%x" % (4*i+6, sz)); p("s_mov_b32 s%d, 0x20000" % (4*i+7))
    p("s_cmp_lt_u32 s2, 224")
    p("s_cselect_b32 s26, s26, 0")
    p("s_cselect_b32 s30, s30, 0")
    p("v_lshrrev_b32 v12, 6, v0")
    p("v_and_b32 v1, 63, v0")
    p("v_readfirstlane_b32 %s, v12" % sW)
    if cfg.get("thr_even", 0): p("s_getreg_b32 %s, hwreg(HW_REG_XCC_ID)" % sPAR); p("s_and_b32 %s, %s, 1" % (sPAR, sPAR))
    p("s_lshr_b32 %s, s2, 6" % sG)
    p("s_and_b32 %s, s2, 63" % sC)
    p("s_mov_b32 %s, 0x05040100" % sSELLO); p("s_mov_b32 %s, 0x07060302" % sSELHI)
    p("s_mov_b32 %s, 0xff" % sFF); p("s_mov_b32 %s, 0x3fb8aa3b" % sLOG2E)
    p("s_mov_b32 %s, 0x3db504f3" % sSCALE); p("s_mov_b32 %s, 0xffff0000" % sHI)
    p("s_lshr_b32 %s, s2, 1" % sRB); p("s_and_b32 %s, s2, 1" % sCH)
    p("v_lshlrev_b32 v3, 4, v1")
    p("v_lshlrev_b32 v13, 5, v1")
    p("s_lshl_b32 %s, %s, 9" % (sA, sW))
    p("v_lshlrev_b32 v14, 3, v1")
    p("v_lshrrev_b32 v15, 3, v1"); p("v_lshlrev_b32 v15, 13, v15")
    p("v_and_b32 v16, 7, v1"); p("v_lshlrev_b32 v16, 4, v16"); p("v_add_u32 v15, v15, v16")
    p("v_lshrrev_b32 v17, 4, v1"); p("v_mul_u32_u24 v17, 7168, v17")
    p("v_and_b32 v18, 15, v1"); p("v_lshlrev_b32 v18, 4, v18"); p("v_add_u32 v17, v17, v18")
    p("s_and_b32 %s, %s, 3" % (sB, sC)); p("s_lshl_b32 %s, %s, 21" % (sB, sB))
    p("s_lshl_b32 %s, %s, 19" % (sCc, sW)); p("s_add_u32 %s, %s, %s" % (sB, sB, sCc))
    p("s_lshl_b32 %s, %s, 11" % (sCc, sG)); p("s_add_u32 %s, %s, %s" % (sB, sB, sCc))
    p("s_lshr_b32 %s, %s, 2" % (sCc, sC)); p("s_lshl_b32 %s, %s, 7" % (sCc, sCc)); p("s_add_u32 %s, %s, %s" % (sB, sB, sCc))
    p("s_and_b32 %s, s2, 7" % sCc); p("s_lshl_b32 %s, %s, 7" % (sCc, sCc))
    p("s_lshl_b32 %s, %s, 5" % (sD, sW)); p("s_add_u32 %s, %s, %s" % (sCc, sCc, sD)); p("s_mul_i32 %s, %s, 7168" % (sCc, sCc))
    r1, r3 = cfg.get("r1", 1), cfg.get("r3", 2)
    for dst, rr in ((sCB1, r1), (sCB3, r3)):
        p("s_lshr_b32 %s, s2, 3" % dst); p("s_add_u32 %s, %s, %d" % (dst, dst, rr))
        p("s_sub_u32 %s, %s, 28" % (sD, dst)); p("s_cselect_b32 %s, %s, %s" % (dst, dst, sD))
    p("s_lshl_b32 %s, %s, 8" % (sD, sCB3)); p("s_add_u32 %s, %s, %s" % (sW3B, sCc, sD))
    p("s_lshl_b32 %s, %s, 8" % (sD, sCB1)); p("s_add_u32 %s, %s, %s" % (sCc, sCc, sD))
    p("s_waitcnt lgkmcnt(0)")
    stamp("karg")
    p("s_load_dword %s, s[44:45], %d" % (sE, EPOCH))
    ntx = " nt" if cfg.get("ntx", False) else ""
    if cfg.get("pretouch", 0) == 2:
        T1 = p.label("pt1"); T2 = p.label("pt2"); T3 = p.label("pt3"); TE = p.label("pte")
        p("v_mov_b32 v19, 0"); p("s_mov_b32 exec_lo, 1"); p("s_mov_b32 exec_hi, 0")
        p("s_cmp_eq_u32 %s, 1" % sW); p("s_cbranch_scc1 %s" % T1)
        p("s_cmp_eq_u32 %s, 2" % sW); p("s_cbranch_scc1 %s" % T2)
        p("s_cmp_eq_u32 %s, 3" % sW); p("s_cbranch_scc1 %s" % T3)
        p.vmem("buffer_load_dword v240, v19, %s, %s offen nt" % (SWQ, sB), "PT", cond=True)
        p("s_branch %s" % TE)
        p("%s:" % T1); p.vmem("buffer_load_dword v240, v19, %s, %s offen nt" % (SW1, sCc), "PT", cond=True)
        p("s_branch %s" % TE)
        p("%s:" % T2); p.vmem("buffer_load_dword v240, v19, %s, %s offen nt" % (SW3, sW3B), "PT", cond=True)
        p("s_branch %s" % TE)
        p("%s:" % T3)
        p("s_lshl_b32 %s, s2, 18" % sT0)
        p.vmem("buffer_load_dword v240, v19, %s, %s offen nt" % (SK, sT0), "PT", cond=True)
        p("%s:" % TE)
        p("s_mov_b64 exec, -1")
    p.vmem("buffer_load_dwordx4 v[224:227], v13, %s, 0 offen%s" % (SX, ntx), "XA0")
    p.vmem("buffer_load_dwordx4 v[228:231], v13, %s, 0 offen offset:16%s" % (SX, ntx), "XA1")
    p.vmem("buffer_load_dwordx2 v[232:233], v14, %s, %s offen%s" % (SX, sA, ntx), "XB")
    if cfg.get("pbar", 1) >= 1: p("s_barrier")
    for t in range(8):
        p("s_add_u32 %s, %s, %d" % (sT0, sB, t*8*8192))
        svmem("buffer_load_dwordx4 %s, v15, %s, %s offen%s" % (vr(128+4*t, 4), SWQ, sT0, ntw), "Q%d" % t, True)
    if cfg.get("pbar", 1) >= 2: p("s_barrier")
    for t in range(8):
        p("s_add_u32 %s, %s, %d" % (sT0, sCc, t*4*7168))
        svmem("buffer_load_dwordx4 %s, v17, %s, %s offen%s" % (vr(160+4*t, 4), SW1, sT0, ntw), "W1_%d" % t, True)
    stamp("w1_issued")
    if pat == "lin":
        p("s_lshl_b32 %s, s2, 18" % sKV); p("s_lshl_b32 %s, %s, 16" % (sD, sW)); p("s_add_u32 %s, %s, %s" % (sKV, sKV, sD))
    elif pat == "str8":
        p("s_lshl_b32 %s, %s, 24" % (sKV, sG))
        p("s_lshr_b32 %s, %s, 3" % (sD, sC)); p("s_lshl_b32 %s, %s, 21" % (sD, sD)); p("s_add_u32 %s, %s, %s" % (sKV, sKV, sD))
        p("s_lshl_b32 %s, %s, 19" % (sD, sW)); p("s_add_u32 %s, %s, %s" % (sKV, sKV, sD))
        p("s_and_b32 %s, %s, 7" % (sD, sC)); p("s_lshl_b32 %s, %s, 10" % (sD, sD)); p("s_add_u32 %s, %s, %s" % (sKV, sKV, sD))
    elif pat == "w4" and dyn:
        p("s_lshl_b32 %s, %s, 24" % (sKV, sG)); p("s_lshl_b32 %s, %s, 10" % (sD, sW)); p("s_add_u32 %s, %s, %s" % (sKV, sKV, sD))
        p("s_add_u32 %s, %s, %d" % (sPOOL, sKV, 64*NS*32768))
        if cfg.get("dynlin"):
            p("s_mul_i32 %s, %s, %d" % (sD, sW, 7*1024)); p("s_add_u32 %s, %s, %s" % (sPOOL, sPOOL, sD))
        p("s_mul_i32 %s, %s, %d" % (sD, sC, NS*32768)); p("s_add_u32 %s, %s, %s" % (sKV, sKV, sD))
    elif pat == "w4":
        lg = R_.bit_length() - 1
        p("s_lshl_b32 %s, %s, 24" % (sKV, sG))
        if cfg.get("xmap", 0):
            assert R_ == 1
            p("s_and_b32 %s, %s, 7" % (sD, sC)); p("s_lshl_b32 %s, %s, 21" % (sD, sD)); p("s_add_u32 %s, %s, %s" % (sKV, sKV, sD))
            p("s_lshr_b32 %s, %s, 3" % (sD, sC)); p("s_lshl_b32 %s, %s, 18" % (sD, sD)); p("s_add_u32 %s, %s, %s" % (sKV, sKV, sD))
        else:
            p("s_lshr_b32 %s, %s, %d" % (sD, sC, lg)); p("s_lshl_b32 %s, %s, %d" % (sD, sD, 18 + lg)); p("s_add_u32 %s, %s, %s" % (sKV, sKV, sD))
            p("s_and_b32 %s, %s, %d" % (sD, sC, R_ - 1)); p("s_lshl_b32 %s, %s, 12" % (sD, sD)); p("s_add_u32 %s, %s, %s" % (sKV, sKV, sD))
        p("s_lshl_b32 %s, %s, 10" % (sD, sW)); p("s_add_u32 %s, %s, %s" % (sKV, sKV, sD))
    elif pat == "glob":
        p("s_lshl_b32 %s, %s, 24" % (sKV, sG))
        p("s_lshl_b32 %s, %s, 12" % (sD, sC)); p("s_add_u32 %s, %s, %s" % (sKV, sKV, sD))
        p("s_lshl_b32 %s, %s, 10" % (sD, sW)); p("s_add_u32 %s, %s, %s" % (sKV, sKV, sD))
    if rot == 1: p("s_and_b32 %s, %s, 7" % (sROT, sC))
    if rot == 2: p("s_lshr_b32 %s, %s, 3" % (sROT, sC))
    if rot == 3: p("s_lshr_b32 %s, %s, 3" % (sROT, sC)); p("s_add_u32 %s, %s, %s" % (sROT, sROT, sC))
    p("v_and_b32 v12, 3, v1"); p("v_lshlrev_b32 v12, %d, v12" % (stride.bit_length()-1))
    p("v_bfe_u32 v2, v1, 2, 1"); p("v_lshlrev_b32 v2, 8, v2"); p("v_add_u32 v2, v2, v12")
    p("v_bfe_u32 v12, v1, 3, 1"); p("v_lshlrev_b32 v12, 6, v12"); p("v_add_u32 v2, v2, v12")
    p("v_lshrrev_b32 v12, 4, v1"); p("v_lshlrev_b32 v12, 4, v12"); p("v_add_u32 v2, v2, v12")
    p("v_and_b32 v12, 1, v1"); p("v_lshlrev_b32 v12, 4, v12"); p("v_mov_b32 v13, 0xffff"); p("v_lshlrev_b32 v13, v12, v13")
    p("v_bfe_u32 v12, v1, 1, 2")
    for jj in range(4):
        p("v_cmp_eq_u32 vcc, %d, v12" % jj); p("v_cndmask_b32 v%d, 0, v13, vcc" % (vMASK+jj))
    def grp_base(dst, t, dynbase=False):
        if dynbase:
            p("s_mov_b32 %s, %s" % (dst, sX))
        elif not rot:
            p("s_add_u32 %s, %s, %d" % (dst, sKV, 8*t*stride))
        else:
            p("s_add_u32 %s, %s, %d" % (dst, sROT, t)); p("s_and_b32 %s, %s, 7" % (dst, dst))
            p("s_mul_i32 %s, %s, %d" % (dst, dst, 8*stride)); p("s_add_u32 %s, %s, %s" % (dst, dst, sKV))
    vOFFK2 = 56
    def K_loads(t, slot=None, name=None):
        L = []
        db = slot is not None
        st_ = 1024 if (db and cfg.get("dynlin")) else stride
        vo = vOFFK2 if (db and cfg.get("dynlin")) else vOFFK
        sl = slot if db else t
        name = name or "K%d" % t
        for h in range(2):
            for a_ in range(2):
                for lam in range(2):
                    def f(h=h, a_=a_, lam=lam):
                        if a_ == 0 and lam == 0:
                            if h == 0: grp_base(sKC, t, db)
                            else: p("s_add_u32 %s, %s, %d" % (sKC, sKC, 4*st_))
                        svmem("buffer_load_dwordx4 %s, v%d, %s, %s offen offset:%d%s" % (ar(32*sl+16*h+8*a_+4*lam, 4), vo, SK, sKC, 512*a_+128*lam, nt), name)
                    L.append(f)
        return L
    def V_loads(t, db=False, name=None):
        base = RING + 32*(t % 4)
        name = name or "V%d" % t
        st_ = 1024 if (db and cfg.get("dynlin")) else stride
        L = []
        for i in range(8):
            def f(i=i):
                if i == 0: grp_base(sVC, t, db)
                else: p("s_add_u32 %s, %s, %d" % (sVC, sVC, st_))
                svmem("buffer_load_dwordx4 %s, v%d, %s, %s offen%s" % (vr(base+4*i, 4), vL16, SV, sVC, nt), name)
            L.append(f)
        return L
    def loadK(t):
        for f in K_loads(t): f()
    def loadV(t):
        for f in V_loads(t): f()
    def tagcheck(regs, acc):
        p("v_xor_b32 v%d, %s, v%d" % (acc, sTAG, regs[0]))
        for r in regs[1:]: p("v_bitop3_b32 v%d, v%d, %s, v%d bitop3:0xbe" % (acc, r, sTAG, acc))
        p("v_and_b32 v%d, 0xff, v%d" % (acc, acc))
        p("v_cmp_ne_u32 vcc, 0, v%d" % acc)
        if cfg.get("nodep"): p("s_mov_b64 vcc, 0")
    p.wait("XA1")
    stamp("x_landed")
    for i in range(8):
        p("v_lshlrev_b32 v%d, 16, v%d" % (32+2*i, 224+i)); p("v_and_b32 v%d, 0xffff0000, v%d" % (33+2*i, 224+i))
    for i in range(8): p("v_add_f32 v%d, v%d, v%d" % (48+i, 32+2*i, 33+2*i))
    p("v_add_f32 v48, v48, v49"); p("v_add_f32 v50, v50, v51"); p("v_add_f32 v52, v52, v53"); p("v_add_f32 v54, v54, v55")
    p("v_add_f32 v48, v48, v50"); p("v_add_f32 v52, v52, v54"); p("v_add_f32 v48, v48, v52")
    allred(p, [48], [49], "v_add_f32", [8, 4, 2, 1, 16, 32])
    p("v_mul_f32 v49, 0x3a800000, v48")
    for i in range(16): p("v_sub_f32 v%d, v%d, v49" % (32+i, 32+i))
    for i in range(4): p("v_mul_f32 v%d, v%d, v%d" % (50+i, 32+i, 32+i))
    for i in range(4, 16): p("v_fmac_f32 v%d, v%d, v%d" % (50+(i % 4), 32+i, 32+i))
    p("v_add_f32 v50, v50, v51"); p("v_add_f32 v52, v52, v53"); p("v_add_f32 v50, v50, v52")
    allred(p, [50], [51], "v_add_f32", [8, 4, 2, 1, 16, 32])
    p("v_mul_f32 v50, 0x3a800000, v50")
    p("v_cvt_pk_bf16_f32 v51, v49, v50")
    p("v_lshlrev_b32 v52, 16, v51")
    p("v_and_b32 v53, 0xffff0000, v51")
    p("v_add_f32 v53, 0x3727c5ac, v53")
    p("v_cvt_pk_bf16_f32 v53, v53, v53"); p("v_lshlrev_b32 v53, 16, v53")
    p("v_sqrt_f32 v53, v53")
    p("v_cvt_pk_bf16_f32 v53, v53, v53"); p("v_lshlrev_b32 v53, 16, v53")
    p("v_rcp_f32 v54, v53")
    p.wait("XB")
    p("v_lshlrev_b32 v32, 16, v232"); p("v_and_b32 v33, 0xffff0000, v232")
    p("v_lshlrev_b32 v34, 16, v233"); p("v_and_b32 v35, 0xffff0000, v233")
    for i in range(4): p("v_sub_f32 v%d, v%d, v52" % (32+i, 32+i))
    p("v_cvt_pk_bf16_f32 v36, v32, v33"); p("v_cvt_pk_bf16_f32 v37, v34, v35")
    p("v_lshlrev_b32 v32, 16, v36"); p("v_and_b32 v33, 0xffff0000, v36")
    p("v_lshlrev_b32 v34, 16, v37"); p("v_and_b32 v35, 0xffff0000, v37")
    for i in range(4): p("v_mul_f32 v%d, v%d, v54" % (40+i, 32+i))
    for i in range(4): p("v_fma_f32 v%d, -v%d, v53, v%d" % (44+i, 40+i, 32+i))
    for i in range(4): p("v_fma_f32 v%d, v%d, v54, v%d" % (40+i, 44+i, 40+i))
    for i in range(4): p("v_cvt_pk_bf16_f32 v%d, v%d, v%d" % (36+i, 40+i, 40+i))
    p("v_lshlrev_b32 v12, 4, v0")
    p("ds_write_b128 v12, v[36:39] offset:%d" % L_XN)
    p("s_waitcnt lgkmcnt(0)")
    p("s_barrier")
    stamp("ln_done")
    p("s_add_u32 %s, %s, 1" % (sE, sE)); p("s_and_b32 %s, %s, 0xff" % (sTAG, sE)); p("v_mov_b32 v%d, %s" % (vTAG, sTAG))
    p("s_and_b32 %s, %s, 3" % (sA, sC)); p("s_lshl_b32 %s, %s, 8" % (sA, sA)); p("s_lshl_b32 %s, %s, 6" % (sD, sW)); p("s_add_u32 %s, %s, %s" % (sA, sA, sD))
    p("v_lshrrev_b32 v12, 3, v1"); p("v_add_u32 v12, %s, v12" % sA); p("v_lshlrev_b32 v12, 2, v12")
    p("s_and_b32 %s, s2, 7" % sA); p("s_lshl_b32 %s, %s, 7" % (sA, sA)); p("s_lshl_b32 %s, %s, 5" % (sD, sW)); p("s_add_u32 %s, %s, %s" % (sA, sA, sD))
    p("v_lshrrev_b32 v13, 4, v1"); p("v_add_u32 v13, %s, v13" % sA); p("v_lshlrev_b32 v13, 2, v13")
    for t in range(0, 8, 2):
        p("ds_read2_b32 v[%d:%d], v12 offset0:%d offset1:%d" % (96+t, 97+t, 8*t, 8*t+8))
    for t in range(0, 8, 2):
        p("ds_read2_b32 v[%d:%d], v13 offset0:%d offset1:%d" % (104+t, 105+t, 4*t, 4*t+4))
    for t in range(8):
        p("s_add_u32 %s, %s, %d" % (sT0, sW3B, t*4*7168))
        svmem("buffer_load_dwordx4 %s, v17, %s, %s offen%s" % (vr(192+4*t, 4), SW3, sT0, ntw), "W3_%d" % t, True)
    p("s_waitcnt lgkmcnt(0)")
    for t in range(8):
        A = 48 + 4*(t % 2)
        for jj in range(4): p("v_and_b32 v%d, v%d, v%d" % (A+jj, 96+t, vMASK+jj))
        if t == 0: p.wait("Q7")
        p("v_mfma_f32_16x16x32_bf16 v[56:59], %s, %s, %s" % (vr(A, 4), vr(128+4*t, 4), "0" if t == 0 else "v[56:59]"))
    for t in range(8):
        for jj in range(4): p("v_and_b32 v%d, v%d, v%d" % (PERM+4*t+jj, 104+t, vMASK+jj))
    p("v_and_b32 v12, 7, v1"); p("v_lshlrev_b32 v12, 5, v12")
    p("v_bfe_u32 v13, v1, 4, 1"); p("v_lshlrev_b32 v13, 4, v13"); p("v_add_u32 v12, v12, v13")
    p("v_lshrrev_b32 v13, 5, v1"); p("v_lshlrev_b32 v13, 8, v13"); p("v_add_u32 v12, v12, v13")
    p("s_lshl_b32 %s, %s, 9" % (sA, sW)); p("v_add_u32 v12, %s, v12" % sA)
    p("s_mov_b32 exec_lo, 0x00ff00ff"); p("s_mov_b32 exec_hi, 0xff00ff00")
    p("ds_write_b128 v12, v[56:59] offset:%d" % L_QP)
    p("s_mov_b64 exec, -1")
    p("s_waitcnt lgkmcnt(0)")
    p("s_barrier")
    stamp("q_gemv")
    SKIP0 = p.label("pubq")
    p("s_cmp_lg_u32 %s, 0" % sW); p("s_cbranch_scc1 %s" % SKIP0)
    p("v_lshlrev_b32 v12, 4, v1")
    for i in range(8): p("ds_read_b128 %s, v12 offset:%d" % (vr(32+4*i, 4) if i < 4 else vr(112+4*(i-4), 4), L_QP + 256*i))
    p("s_lshl_b32 %s, %s, 2" % (sB, sG)); p("s_and_b32 %s, %s, 3" % (sD, sC)); p("s_add_u32 %s, %s, %s" % (sB, sB, sD)); p("s_lshl_b32 %s, %s, 12" % (sB, sB))
    p("s_lshr_b32 %s, %s, 2" % (sD, sC)); p("s_lshl_b32 %s, %s, 8" % (sD, sD)); p("s_add_u32 %s, %s, %s" % (sB, sB, sD))
    p("s_add_u32 %s, %s, %d" % (sB, sB, Q_BASE))
    p("s_waitcnt lgkmcnt(0)")
    for r in range(4):
        p("v_add_f32 v%d, v%d, v%d" % (32+r, 32+r, 36+r)); p("v_add_f32 v%d, v%d, v%d" % (40+r, 40+r, 44+r))
        p("v_add_f32 v%d, v%d, v%d" % (112+r, 112+r, 116+r)); p("v_add_f32 v%d, v%d, v%d" % (120+r, 120+r, 124+r))
    for r in range(4):
        p("v_add_f32 v%d, v%d, v%d" % (32+r, 32+r, 40+r)); p("v_add_f32 v%d, v%d, v%d" % (112+r, 112+r, 120+r))
    for r in range(4): p("v_add_f32 v%d, v%d, v%d" % (32+r, 32+r, 112+r))
    if True:
        NOZ = p.label("nozero")
        p("s_cmp_lg_u32 %s, 0" % sC); p("s_cbranch_scc1 %s" % NOZ)
        for r in range(4): p("v_mov_b32 v%d, 0" % (36+r))
        p("s_lshl_b32 %s, %s, 9" % (sD, sG)); p("s_add_u32 %s, %s, %d" % (sD, sD, CNT_BASE))
        p("s_mov_b32 exec_hi, 0")
        p.vmem("buffer_store_dwordx4 v[36:39], v12, %s, %s offen%s" % (SWS, sD, HS), "ZCNT", cond=True)
        p("s_mov_b64 exec, -1")
        p("%s:" % NOZ)
    p("s_mov_b32 exec_lo, 0xffff"); p("s_mov_b32 exec_hi, 0")
    p.vmem("buffer_store_dwordx4 v[32:35], v12, %s, %s offen%s" % (SWS, sB, HS), "PUBQ", cond=True)
    p("s_mov_b64 exec, -1")
    p("%s:" % SKIP0)
    loadK(0)
    p.wait("W1_7")
    stamp("w1_landed")
    for t in range(8):
        p("v_mfma_f32_16x16x32_bf16 v[60:63], %s, %s, %s" % (vr(PERM+4*t, 4), vr(160+4*t, 4), "0" if t == 0 else "v[60:63]"))
    loadK(1)
    p.wait("W3_7")
    stamp("w3_landed")
    for t in range(8):
        p("v_mfma_f32_16x16x32_bf16 v[96:99], %s, %s, %s" % (vr(PERM+4*t, 4), vr(192+4*t, 4), "0" if t == 0 else "v[96:99]"))
    SKIP2 = p.label("flag")
    p("s_cmp_lg_u32 %s, 0" % sW); p("s_cbranch_scc1 %s" % SKIP2)
    p("v_lshlrev_b32 v12, 2, v1"); p("v_mov_b32 v13, %s" % sE)
    p("s_lshl_b32 %s, s2, 7" % sA); p("s_add_u32 %s, %s, %d" % (sA, sA, FLAG_BASE))
    p.wait("PUBQ")
    p("s_mov_b32 exec_hi, 0")
    p.vmem("buffer_store_dword v13, v12, %s, %s offen%s" % (SWS, sA, HS), "FLAG", cond=True)
    p("s_mov_b64 exec, -1")
    p("%s:" % SKIP2)
    stamp("flag")
    p("v_and_b32 v12, 15, v1"); p("v_lshlrev_b32 v12, 5, v12")
    p("v_bfe_u32 v13, v1, 4, 1"); p("v_lshlrev_b32 v13, 4, v13"); p("v_add_u32 v12, v12, v13")
    p("s_lshl_b32 %s, %s, 10" % (sA, sW)); p("v_add_u32 v12, %s, v12" % sA)
    p("s_mov_b32 exec_hi, 0")
    p("ds_write_b128 v12, v[60:63] offset:%d" % L_BP)
    p("ds_write_b128 v12, v[96:99] offset:%d" % (L_BP+512))
    p("s_mov_b64 exec, -1")
    loadK(2)
    p("s_waitcnt lgkmcnt(0)")
    p("s_barrier")
    stamp("b_gemv")
    SKIP1 = p.label("pub1")
    p("s_cmp_lg_u32 %s, 1" % sW); p("s_cbranch_scc1 %s" % SKIP1)
    p("s_cmp_ge_u32 s2, 224"); p("s_cbranch_scc1 %s" % SKIP1)
    p("v_lshlrev_b32 v12, 4, v1")
    for i in range(4): p("ds_read_b128 %s, v12 offset:%d" % (vr(32+4*i, 4), L_BP + 1024*i))
    p("s_and_b32 %s, s2, 7" % sA); p("s_mul_i32 %s, %s, %d" % (sA, sA, 3584*4)); p("s_add_u32 %s, %s, %d" % (sA, sA, BP_BASE))
    p("s_lshl_b32 %s, %s, 9" % (sD, sCB1)); p("s_lshl_b32 %s, %s, 9" % (sB, sCB3)); p("s_add_u32 %s, %s, %d" % (sB, sB, 8*3584*4))
    p("v_mov_b32 v13, %s" % sD); p("v_mov_b32 v14, %s" % sB); p("v_cmp_gt_u32 vcc, 32, v1"); p("v_cndmask_b32 v13, v14, v13, vcc")
    p("v_and_b32 v14, 31, v1"); p("v_lshlrev_b32 v14, 4, v14"); p("v_add_u32 v13, v13, v14")
    p("s_waitcnt lgkmcnt(0)")
    for r in range(4):
        p("v_add_f32 v%d, v%d, v%d" % (32+r, 32+r, 36+r)); p("v_add_f32 v%d, v%d, v%d" % (40+r, 40+r, 44+r))
    for r in range(4): p("v_add_f32 v%d, v%d, v%d" % (32+r, 32+r, 40+r))
    for r in range(4): p("v_bfi_b32 v%d, %s, v%d, v%d" % (32+r, sFF, vTAG, 32+r))
    p.vmem("buffer_store_dwordx4 v[32:35], v13, %s, %s offen%s" % (SWS, sA, HS), "PUBB", cond=True)
    p("%s:" % SKIP1)
    for t in range(3, poll_after): loadK(t)
    SKIPP = p.label("nopoll")
    p("v_lshlrev_b32 v14, 7, v1")
    p("s_lshl_b32 %s, %s, 13" % (sB, sG)); p("s_add_u32 %s, %s, %d" % (sB, sB, FLAG_BASE))
    p("s_cmp_lg_u32 %s, 0" % sW); p("s_cbranch_scc1 %s" % SKIPP)
    p.vmem("buffer_load_dword v15, v14, %s, %s offen%s" % (SWS, sB, HL), "POLL", cond=True)
    p("%s:" % SKIPP)
    pend = []
    for t in range(poll_after, NS): pend += K_loads(t)
    for t in range(4): pend += V_loads(t)
    def tr(n):
        for _ in range(min(n, len(pend))): pend.pop(0)()
    tr(cfg.get("n_after_poll", 16))
    OKP = p.label("okpoll")
    p("s_cmp_lg_u32 %s, 0" % sW); p("s_cbranch_scc1 %s" % OKP)
    p.wait("POLL")
    p("s_mov_b32 %s, %d" % (sRETRY, RETRIES))
    RP = p.label("rpoll")
    p("%s:" % RP)
    p("v_cmp_ne_u32 vcc, %s, v15" % sE)
    if cfg.get("nodep"): p("s_branch %s" % OKP)
    p("s_cbranch_vccz %s" % OKP)
    p("s_sub_u32 %s, %s, 1" % (sRETRY, sRETRY)); p("s_cbranch_scc1 %s" % OKP)
    p("s_sleep %d" % cfg.get("sleep", 8))
    p("buffer_load_dword v15, v14, %s, %s offen%s" % (SWS, sB, HL))
    p("s_waitcnt vmcnt(0)")
    p("s_branch %s" % RP)
    p("%s:" % OKP)
    p("s_barrier")
    stamp("poll_ok")
    p("s_lshl_b32 %s, %s, 14" % (sA, sG)); p("s_lshl_b32 %s, %s, 10" % (sD, sW)); p("s_add_u32 %s, %s, %s" % (sA, sA, sD)); p("s_add_u32 %s, %s, %d" % (sA, sA, Q_BASE))
    for kq in range(4):
        p("s_add_u32 %s, %s, %d" % (sT0, sA, kq*4096))
        p.vmem("buffer_load_dwordx4 %s, v%d, %s, %s offen%s" % (vr(96+4*kq, 4), vL16, SWS, sT0, HL), "QG")
    tr(cfg.get("n_after_qg", 16))
    p("v_lshrrev_b32 v12, 5, v1"); p("s_lshl_b32 %s, %s, 1" % (sA, sW)); p("v_add_u32 v12, %s, v12" % sA); p("v_mul_u32_u24 v12, 272, v12")
    p("v_and_b32 v13, 31, v1"); p("v_lshlrev_b32 v13, 3, v13"); p("v_add_u32 v12, v12, v13")
    p("v_and_b32 v14, 7, v1"); p("v_mul_u32_u24 v14, 272, v14"); p("v_lshrrev_b32 v13, 4, v1"); p("v_lshlrev_b32 v13, 4, v13"); p("v_add_u32 v14, v14, v13")
    p("v_bfe_u32 v13, v1, 3, 1"); p("v_lshlrev_b32 v13, 6, v13"); p("v_add_u32 v14, v14, v13")
    p("v_mov_b32 v%d, 0xff800000" % vMAX)
    p.wait("QG")
    for r in range(4):
        p("v_add_f32 v%d, v%d, v%d" % (96+r, 96+r, 100+r)); p("v_add_f32 v%d, v%d, v%d" % (104+r, 104+r, 108+r))
    for r in range(4): p("v_add_f32 v%d, v%d, v%d" % (96+r, 96+r, 104+r))
    p("v_cvt_pk_bf16_f32 v96, v96, v97"); p("v_cvt_pk_bf16_f32 v97, v98, v99")
    p("ds_write_b64 v12, v[96:97] offset:%d" % L_QL)
    p("s_waitcnt lgkmcnt(0)")
    p("s_barrier")
    stamp("q_ready")
    for lam in range(2): p("ds_read_b128 %s, v14 offset:%d" % (vr(QF+4*lam, 4), L_QL + 128*lam))
    tr(1)
    p("s_waitcnt lgkmcnt(0)")
    p("; ---- scores: full-line K loads give 8 keys x 64 dims per MFMA; columns = (half, head); halves merged by permlane/DPP ----")
    def qk_mfma(t):
        D = PERM + 16*(t % 2)
        p.wait("K%d" % t)
        for lam in range(2):
            for h in range(2):
                for a_ in range(2):
                    d = D + 8*h + 4*a_
                    p("v_mfma_f32_16x16x32_bf16 %s, %s, %s, %s" % (vr(d, 4), ar(32*t+16*h+8*a_+4*lam, 4), vr(QF+4*lam, 4), "0" if lam == 0 else vr(d, 4)))
    def qk_post(t):
        D = PERM + 16*(t % 2); T = QF + 8
        for h in range(2):
            for r in range(4): p("v_permlane32_swap_b32 v%d, v%d" % (D+8*h+r, D+8*h+4+r))
        for h in range(2):
            for r in range(4): p("v_add_f32_dpp v%d, v%d, v%d row_ror:8%s" % (D+8*h+r, D+8*h+4+r, D+8*h+r, DPP))
        tr(1)
        src = [D+0, D+1, D+2, D+3, D+8, D+9, D+10, D+11]
        pk = [D+4, D+5, D+6, D+7]
        for i in range(4): p("v_cvt_pk_bf16_f32 v%d, v%d, v%d" % (pk[i], src[2*i], src[2*i+1]))
        for i in range(4):
            p("v_lshlrev_b32 v%d, 16, v%d" % (T+2*i, pk[i])); p("v_and_b32 v%d, 0xffff0000, v%d" % (T+2*i+1, pk[i]))
        for i in range(8): p("v_mul_f32 v%d, %s, v%d" % (T+i, sSCALE, T+i))
        tr(1)
        for i in range(4):
            p("v_cvt_pk_bf16_f32 v%d, v%d, v%d" % (SP+4*t+i, T+2*i, T+2*i+1))
            p("v_max3_f32 v%d, v%d, v%d, v%d" % (vMAX, vMAX, T+2*i, T+2*i+1))
    qk_mfma(0)
    for t in range(1, NS):
        qk_mfma(t)
        qk_post(t-1)
    qk_post(NS-1)
    allred(p, [vMAX], [12], "v_max_f32", [16, 32])
    p("v_cvt_pk_bf16_f32 v12, v%d, v%d" % (vMAX, vMAX)); p("v_lshlrev_b32 v%d, 16, v12" % vMAX)
    p("v_mul_f32 v14, %s, v%d" % (sLOG2E, vMAX)); p("v_sub_f32 v14, 0, v14")
    stamp("qk_done")
    p("v_mov_b32 v%d, 0" % vL0); p("v_mov_b32 v%d, 0" % vL1)
    for b_ in range(NS):
        T = PERM + 8*(b_ % 2)
        for i in range(4):
            p("v_lshlrev_b32 v%d, 16, v%d" % (T+2*i, SP+4*b_+i)); p("v_and_b32 v%d, 0xffff0000, v%d" % (T+2*i+1, SP+4*b_+i))
        for i in range(8): p("v_fma_f32 v%d, v%d, %s, v14" % (T+i, T+i, sLOG2E))
        for i in range(8): p("v_exp_f32 v%d, v%d" % (T+i, T+i))
        for i in range(4):
            p("v_cvt_pk_bf16_f32 v%d, v%d, v%d" % (SP+4*b_+i, T+2*i, T+2*i+1))
            p("v_add_f32 v%d, v%d, v%d" % (vL0, vL0, T+2*i)); p("v_add_f32 v%d, v%d, v%d" % (vL1, vL1, T+2*i+1))
        tr(1)
    tr(100)
    p("v_add_f32 v%d, v%d, v%d" % (vL0, vL0, vL1))
    stamp("p_done")
    def silu(src, dst, tmp, n):
        for r in range(n): p("v_mul_f32 v%d, %s, v%d" % (tmp+r, sLOG2E, src+r))
        for r in range(n): p("v_exp_f32 v%d, -v%d" % (tmp+r, tmp+r))
        for r in range(n): p("v_add_f32 v%d, 1.0, v%d" % (tmp+r, tmp+r))
        for r in range(n): p("v_rcp_f32 v%d, v%d" % (tmp+r, tmp+r))
        for r in range(n): p("v_mul_f32 v%d, v%d, v%d" % (dst+r, src+r, tmp+r))
    def unpack2(dst, src):
        p("v_lshlrev_b32 v%d, 16, v%d" % (dst, src)); p("v_and_b32 v%d, 0xffff0000, v%d" % (dst+1, src))
    def retry_block(check, reload, base):
        R = p.label("r" + base); OK = p.label("ok" + base)
        p("s_mov_b32 %s, %d" % (sRETRY, RETRIES))
        p("%s:" % R)
        check()
        p("s_cbranch_vccz %s" % OK)
        p("s_sub_u32 %s, %s, 1" % (sRETRY, sRETRY)); p("s_cbranch_scc1 %s" % OK)
        if cfg.get("maskretry", 0): p("s_mov_b64 exec, vcc")
        reload()
        if cfg.get("maskretry", 0): p("s_mov_b64 exec, -1")
        p("s_waitcnt vmcnt(0)")
        p("s_branch %s" % R)
        p("%s:" % OK)
    sH0, sH1 = "s69", "s70"
    vHG = 47
    def h_issue():
        p("v_lshrrev_b32 v%d, 3, v1" % vHG); p("v_mul_u32_u24 v%d, 14336, v%d" % (vHG, vHG)); p("v_and_b32 v13, 7, v1"); p("v_min_u32 v13, 6, v13"); p("v_lshlrev_b32 v13, 4, v13"); p("v_add_u32 v%d, v%d, v13" % (vHG, vHG))
        p("s_mul_i32 %s, %s, 112" % (sH0, sRB)); p("s_add_u32 %s, %s, %d" % (sH0, sH0, BP_BASE)); p("s_add_u32 %s, %s, %d" % (sH1, sH0, 8*14336))
        p.vmem("buffer_load_dwordx4 v[32:35], v%d, %s, %s offen%s" % (vHG, SWS, sH0, HL), "HG")
        p.vmem("buffer_load_dwordx4 v[36:39], v%d, %s, %s offen%s" % (vHG, SWS, sH1, HL), "HG")
    def h_compute():
        p.wait("HG")
        def rl():
            p("s_sleep %d" % cfg.get("sleep", 8))
            p("buffer_load_dwordx4 v[32:35], v%d, %s, %s offen%s" % (vHG, SWS, sH0, HL))
            p("buffer_load_dwordx4 v[36:39], v%d, %s, %s offen%s" % (vHG, SWS, sH1, HL))
        retry_block(lambda: tagcheck(list(range(32, 40)), 14), rl, "h")
        red4(p, [32, 33, 34, 35]); red4(p, [36, 37, 38, 39])
        p("v_cvt_pk_bf16_f32 v40, v32, v36")
        unpack2(32, 40)
        silu(32, 32, 40, 1)
        p("v_cvt_pk_bf16_f32 v40, v32, v32"); p("v_lshlrev_b32 v32, 16, v40")
        p("v_mul_f32 v32, v32, v33")
        p("v_cvt_pk_bf16_f32 v32, v32, v32")
        p("v_lshrrev_b32 v12, 4, v1"); p("v_and_b32 v13, 1, v12"); p("v_lshlrev_b32 v13, 1, v13"); p("v_lshrrev_b32 v12, 1, v12"); p("v_or_b32 v12, v12, v13")
        p("v_lshlrev_b32 v12, 5, v12"); p("v_and_b32 v13, 7, v1"); p("v_lshlrev_b32 v13, 2, v13"); p("v_add_u32 v13, v13, v12")
        p("ds_write_b32 v13, v32 offset:%d" % L_HL)
    sOB = "s77"
    late = []
    floor_ = [0]
    def tl(n=1):
        for _ in range(min(n, max(0, len(late) - floor_[0]))): late.pop(0)()
    def pv(t, trickle=False):
        base = RING + 32*(t % 4)
        p.wait("V%d" % t)
        def perm(j):
            c, h = j >> 1, j & 1
            for tt in range(4):
                p("v_perm_b32 v%d, v%d, v%d, %s" % (PERM+4*j+tt, base+4*(2*tt+1)+c, base+4*(2*tt)+c, sSELHI if h else sSELLO))
        def mm(j):
            p("v_mfma_f32_16x16x32_bf16 %s, %s, %s, %s" % (vr(ACC+4*j, 4), vr(PERM+4*j, 4), vr(SP+4*t, 4), "0" if t == 0 else vr(ACC+4*j, 4)))
        perm(0)
        for j in range(1, 8):
            perm(j); mm(j-1)
            if trickle and j in (2, 5): tl(1)
        mm(7)
    vW2O, vOO = 31, 11
    ocons = cfg.get("ocons", 0)
    sW2B = "s3"
    AW2, AWO = 0, 64
    def late_addresses(NH):
        p("v_lshrrev_b32 v12, 4, v1"); p("v_and_b32 v13, 15, v1"); p("v_lshlrev_b32 v13, 4, v13")
        p("v_lshlrev_b32 v%d, 11, v12" % vW2O); p("v_add_u32 v%d, v%d, v13" % (vW2O, vW2O))
        p("v_lshlrev_b32 v%d, %d, v12" % (vOO, 11 if ocons else 14)); p("v_add_u32 v%d, v%d, v13" % (vOO, vOO))
        if NH == 2: p("s_lshl_b32 %s, %s, 9" % (sD, sW))
        else: p("s_lshl_b32 %s, %s, 10" % (sD, sCH)); p("s_lshl_b32 %s, %s, 8" % (sA, sW)); p("s_add_u32 %s, %s, %s" % (sD, sD, sA))
        p("s_mul_i32 %s, %s, %d" % (sW2B, sRB, 28*2048)); p("s_add_u32 %s, %s, %s" % (sW2B, sW2B, sD))
        p("s_lshl_b32 %s, %s, 16" % (sOB, sRB)); p("s_add_u32 %s, %s, %s" % (sOB, sOB, sD))
    def W2_loads(NH):
        L = []
        for t in range(7):
            for hc in range(NH):
                def f(t=t, hc=hc):
                    if hc == 0: p("s_add_u32 %s, %s, %d" % (sT0, sW2B, t*4*2048))
                    svmem("buffer_load_dwordx4 %s, v%d, %s, %s offen offset:%d%s" % (ar(AW2+28*hc+4*t, 4), vW2O, SW2, sT0, 256*hc, ntw), "W2")
                L.append(f)
        return L
    def O_loads(NH):
        L = []
        for t in range(8):
            for hc in range(NH):
                def f(t=t, hc=hc):
                    if hc == 0: p("s_add_u32 %s, %s, %d" % (sT0, sOB, t*(4*2048 if ocons else 2048)))
                    svmem("buffer_load_dwordx4 %s, v%d, %s, %s offen offset:%d%s" % (ar(AWO+32*hc+4*t, 4), vOO, SWO, sT0, 256*hc, ntw), "O")
                L.append(f)
        return L
    vAWB, vRD, vPO, vLWR, vMLS, vG0, vG1 = 24, 25, 26, 27, 28, 29, 30
    vPC, vCM, vCPW, vCPR, vZ = 160, 161, 162, 163, 165
    vAW = PERM + 24
    sPO, sPB, sPS, sGV, sGM, sGA = "s71", "s72", "s73", "s74", "s75", "s76"
    def producer_addresses():
        p("v_and_b32 v12, 7, v1"); p("v_lshlrev_b32 v13, 9, v12"); p("v_lshlrev_b32 v12, 4, v12"); p("v_add_u32 v12, v12, v13")
        p("v_lshrrev_b32 v13, 4, v1"); p("v_lshlrev_b32 v13, 7, v13"); p("v_add_u32 v12, v12, v13")
        p("s_lshl_b32 %s, %s, 12" % (sA, sW)); p("s_add_u32 %s, %s, %d" % (sA, sA, L_OP)); p("v_add_u32 v%d, %s, v12" % (vAWB, sA))
        p("v_lshlrev_b32 v%d, 4, v0" % vRD)
        p("v_lshrrev_b32 v14, 5, v0"); p("v_and_b32 v15, 7, v0"); p("v_xor_b32 v14, v14, v15"); p("v_lshlrev_b32 v14, 4, v14")
        p("v_lshrrev_b32 v15, 3, v0"); p("v_lshlrev_b32 v15, 7, v15"); p("v_add_u32 v%d, v14, v15" % vPO)
        p("s_mul_i32 %s, s2, %d" % (sPO, O_PITCH)); p("s_add_u32 %s, %s, %d" % (sPO, sPO, O_BASE))
        p("v_lshrrev_b32 v13, 5, v0"); p("v_lshlrev_b32 v%d, 5, v13" % vLWR)
        p("v_lshlrev_b32 v%d, 4, v1" % vMLS); p("v_add_u32 v%d, 4096, v%d" % (vMLS, vMLS))
    def gather_addresses():
        p("v_lshrrev_b32 v12, 3, v1"); p("v_mul_u32_u24 v%d, %d, v12" % (vG0, O_PITCH))
        p("v_and_b32 v13, 7, v1"); p("v_lshlrev_b32 v13, 4, v13"); p("v_add_u32 v%d, v%d, v13" % (vG1, vG0))
        p("s_lshr_b32 %s, %s, 5" % (sA, sRB)); p("s_mul_i32 %s, %s, %d" % (sA, sA, 64*O_PITCH)); p("s_add_u32 %s, %s, %d" % (sA, sA, O_BASE))
        p("s_bfe_u32 %s, %s, 0x30002" % (sB, sRB))
        p("s_lshl_b32 %s, %s, 4" % (sD, sB)); p("s_add_u32 %s, %s, %s" % (sGM, sA, sD)); p("s_add_u32 %s, %s, 4096" % (sGM, sGM))
        p("s_and_b32 %s, %s, 31" % (sB, sRB)); p("s_lshl_b32 %s, %s, 7" % (sB, sB))
        p("s_add_u32 %s, %s, %s" % (sB, sB, sA))
        p("s_mul_i32 %s, %s, %d" % (sD, sW, 16*O_PITCH))
        p("s_add_u32 %s, %s, %s" % (sGV, sB, sD)); p("s_add_u32 %s, %s, %s" % (sGA, sGM, sD))
    def tail_addresses_b(NH):
        p("v_bfe_u32 v12, v1, 2, 2"); p("v_lshlrev_b32 v12, 14, v12")
        p("v_and_b32 v13, 3, v1"); p("v_lshlrev_b32 v13, 5, v13"); p("v_add_u32 v12, v12, v13")
        p("v_bfe_u32 v13, v1, 4, 1"); p("v_lshlrev_b32 v13, 4, v13"); p("v_add_u32 v%d, v12, v13" % vPC)
        if NH == 2: p("s_lshl_b32 %s, %s, 17" % (sA, sW))
        else: p("s_lshl_b32 %s, %s, 18" % (sA, sCH)); p("s_lshl_b32 %s, %s, 16" % (sD, sW)); p("s_add_u32 %s, %s, %s" % (sA, sA, sD))
        p("s_lshl_b32 %s, %s, 7" % (sD, sRB)); p("s_add_u32 %s, %s, %s" % (sA, sA, sD))
        p("s_add_u32 %s, %s, %d" % (sPB, sA, BB_BASE)); p("s_add_u32 %s, %s, %d" % (sPS, sA, S_BASE))
        p("v_lshrrev_b32 v12, 4, v1"); p("v_and_b32 v13, 1, v12"); p("v_lshlrev_b32 v13, 1, v13"); p("v_lshrrev_b32 v12, 1, v12"); p("v_or_b32 v12, v12, v13")
        if not ocons:
            p("v_lshlrev_b32 v12, 5, v12"); p("v_and_b32 v13, 7, v1"); p("v_lshlrev_b32 v13, 2, v13"); p("v_add_u32 v12, v12, v13")
        else:
            p("v_lshlrev_b32 v12, 3, v12"); p("v_bfe_u32 v13, v1, 2, 1"); p("v_lshlrev_b32 v13, 2, v13"); p("v_add_u32 v12, v12, v13")
            p("v_and_b32 v13, 3, v1"); p("v_lshlrev_b32 v13, 5, v13"); p("v_add_u32 v12, v12, v13")
        p("s_lshl_b32 %s, %s, 7" % (sA, sW)); p("v_add_u32 v%d, %s, v12" % (vCPW, sA))
        p("v_lshrrev_b32 v13, 4, v1"); p("v_lshlrev_b32 v%d, 5, v13" % vCPR)
        p("s_lshl_b32 %s, %s, 3" % (sA, sW)); p("v_mov_b32 v%d, %s" % (vCM, sA)); p("v_mov_b32 v%d, 0" % vZ)
    n_pre = cfg.get("n_pre", 5)
    vMLR = vL0
    def ml_publish_lds():
        allred(p, [vL0], [12], "v_add_f32", [16, 32])
        p("v_mov_b32 v12, v%d" % vMAX); p("v_mov_b32 v13, v%d" % vL0)
        p("v_and_b32 v%d, 7, v1" % vMLR); p("v_lshlrev_b32 v%d, 5, v%d" % (vMLR, vMLR))
        p("s_lshl_b32 %s, %s, 3" % (sA, sW)); p("v_add_u32 v14, %s, v%d" % (sA, vMLR))
        p("s_mov_b32 exec_lo, 0x00ff00ff"); p("s_mov_b32 exec_hi, 0x00ff00ff")
        p("ds_write_b64 v14, v[12:13] offset:%d" % L_LW)
        p("s_mov_b64 exec, -1")
    earlyml = cfg.get("earlyml", 0)
    FP_ = 16
    def ml_stage():
        F = PERM + 16; G_ = PERM
        p("ds_read_b128 %s, v%d offset:%d" % (vr(F, 4), vLWR, L_LW)); p("ds_read_b128 %s, v%d offset:%d" % (vr(F+4, 4), vLWR, L_LW+16))
        p("ds_read_b128 %s, v%d offset:%d" % (vr(G_, 4), vMLR, L_LW)); p("ds_read_b128 %s, v%d offset:%d" % (vr(G_+4, 4), vMLR, L_LW+16))
        p("s_waitcnt lgkmcnt(2)")
        p("v_max3_f32 v12, v%d, v%d, v%d" % (F, F+2, F+4)); p("v_max_f32 v12, v12, v%d" % (F+6))
        for i in range(4): p("v_sub_f32 v%d, v%d, v12" % (F+2*i, F+2*i))
        for i in range(4): p("v_mul_f32 v%d, %s, v%d" % (F+2*i, sLOG2E, F+2*i))
        for i in range(4): p("v_exp_f32 v%d, v%d" % (FP_+2*i, F+2*i))
        for i in range(4): p("v_mov_b32 v%d, v%d" % (FP_+2*i+1, FP_+2*i))
        SK = p.label("ml")
        p("s_waitcnt lgkmcnt(0)")
        p("s_cmp_lg_u32 %s, 0" % sW); p("s_cbranch_scc1 %s" % SK)
        p("v_max3_f32 v12, v%d, v%d, v%d" % (G_, G_+2, G_+4)); p("v_max_f32 v12, v12, v%d" % (G_+6))
        for i in range(4): p("v_sub_f32 v%d, v%d, v12" % (G_+2*i, G_+2*i))
        for i in range(4): p("v_mul_f32 v%d, %s, v%d" % (G_+2*i, sLOG2E, G_+2*i))
        for i in range(4): p("v_exp_f32 v%d, v%d" % (G_+2*i, G_+2*i))
        p("v_mul_f32 v13, v%d, v%d" % (G_, G_+1))
        for i in range(1, 4): p("v_fmac_f32 v13, v%d, v%d" % (G_+2*i, G_+2*i+1))
        p("v_bfi_b32 v%d, %s, v%d, v12" % (F, sFF, vTAG)); p("v_bfi_b32 v%d, %s, v%d, v13" % (F+1, sFF, vTAG))
        p("v_mov_b32 v%d, %s" % (F+2, sE)); p("v_mov_b32 v%d, %s" % (F+3, sE))
        p("s_mov_b32 exec_lo, 0xff"); p("s_mov_b32 exec_hi, 0")
        p.vmem("buffer_store_dwordx4 %s, v%d, %s, %s offen%s" % (vr(F, 4), vMLS, SWS, sPO, HS), "PUBML", cond=True)
        p("s_mov_b64 exec, -1")
        p("%s:" % SK)
    def o_publish_early():
        for j in range(8): p("v_xor_b32 v%d, %d, v%d" % (vAW+j, 16*j, vAWB))
        p("s_mov_b32 exec_lo, 0x00ff00ff"); p("s_mov_b32 exec_hi, 0x00ff00ff")
        for j in range(8):
            p("ds_write_b128 v%d, %s" % (vAW+j, vr(ACC+4*j, 4)))
        p("s_mov_b64 exec, -1")
        p("s_waitcnt lgkmcnt(0)")
        p("s_barrier")
        for i in range(4): p("ds_read_b128 %s, v%d offset:%d" % (vr(PERM+4*i, 4), vRD, L_OP + 4096*i))
        p("s_waitcnt lgkmcnt(3)")
        for r in range(0, 4, 2): p("v_pk_mul_f32 %s, %s, %s" % (vr(PERM+r, 2), vr(FP_, 2), vr(PERM+r, 2)))
        for i in range(1, 4):
            p("s_waitcnt lgkmcnt(%d)" % (3-i))
            for r in range(0, 4, 2): p("v_pk_fma_f32 %s, %s, %s, %s" % (vr(PERM+r, 2), vr(FP_+2*i, 2), vr(PERM+4*i+r, 2), vr(PERM+r, 2)))
        for r in range(4): p("v_bfi_b32 v%d, %s, v%d, v%d" % (PERM+r, sFF, vTAG, PERM+r))
        p.vmem("buffer_store_dwordx4 %s, v%d, %s, %s offen%s" % (vr(PERM, 4), vPO, SWS, sPO, HS), "PUBO")
    def o_publish_late():
        for j in range(8): p("v_xor_b32 v%d, %d, v%d" % (vAW+j, 16*j, vAWB))
        p("s_mov_b32 exec_lo, 0x00ff00ff"); p("s_mov_b32 exec_hi, 0x00ff00ff")
        for j in range(8):
            p("ds_write_b128 v%d, %s" % (vAW+j, vr(ACC+4*j, 4)))
        p("s_mov_b64 exec, -1")
        p("s_waitcnt lgkmcnt(0)")
        p("s_barrier")
        F = PERM + 16
        G_ = 112
        p("ds_read_b128 %s, v%d offset:%d" % (vr(F, 4), vLWR, L_LW)); p("ds_read_b128 %s, v%d offset:%d" % (vr(F+4, 4), vLWR, L_LW+16))
        for i in range(4): p("ds_read_b128 %s, v%d offset:%d" % (vr(PERM+4*i, 4), vRD, L_OP + 4096*i))
        p("ds_read_b128 %s, v%d offset:%d" % (vr(G_, 4), vMLR, L_LW)); p("ds_read_b128 %s, v%d offset:%d" % (vr(G_+4, 4), vMLR, L_LW+16))
        p("s_waitcnt lgkmcnt(6)")
        p("v_max3_f32 v12, v%d, v%d, v%d" % (F, F+2, F+4)); p("v_max_f32 v12, v12, v%d" % (F+6))
        for i in range(4): p("v_sub_f32 v%d, v%d, v12" % (F+2*i, F+2*i))
        for i in range(4): p("v_mul_f32 v%d, %s, v%d" % (F+2*i, sLOG2E, F+2*i))
        for i in range(4): p("v_exp_f32 v%d, v%d" % (F+2*i, F+2*i))
        for i in range(4): p("v_mov_b32 v%d, v%d" % (F+2*i+1, F+2*i))
        p("s_waitcnt lgkmcnt(5)")
        for r in range(0, 4, 2): p("v_pk_mul_f32 %s, %s, %s" % (vr(PERM+r, 2), vr(F, 2), vr(PERM+r, 2)))
        for i in range(1, 4):
            p("s_waitcnt lgkmcnt(%d)" % (5-i))
            for r in range(0, 4, 2): p("v_pk_fma_f32 %s, %s, %s, %s" % (vr(PERM+r, 2), vr(F+2*i, 2), vr(PERM+4*i+r, 2), vr(PERM+r, 2)))
        for r in range(4): p("v_bfi_b32 v%d, %s, v%d, v%d" % (PERM+r, sFF, vTAG, PERM+r))
        p.vmem("buffer_store_dwordx4 %s, v%d, %s, %s offen%s" % (vr(PERM, 4), vPO, SWS, sPO, HS), "PUBO")
        SKIP4 = p.label("ml")
        p("s_cmp_lg_u32 %s, 0" % sW); p("s_cbranch_scc1 %s" % SKIP4)
        p("s_waitcnt lgkmcnt(0)")
        p("v_max3_f32 v12, v%d, v%d, v%d" % (G_, G_+2, G_+4)); p("v_max_f32 v12, v12, v%d" % (G_+6))
        for i in range(4): p("v_sub_f32 v%d, v%d, v12" % (G_+2*i, G_+2*i))
        for i in range(4): p("v_mul_f32 v%d, %s, v%d" % (G_+2*i, sLOG2E, G_+2*i))
        for i in range(4): p("v_exp_f32 v%d, v%d" % (G_+2*i, G_+2*i))
        p("v_mul_f32 v13, v%d, v%d" % (G_, G_+1))
        for i in range(1, 4): p("v_fmac_f32 v13, v%d, v%d" % (G_+2*i, G_+2*i+1))
        p("v_bfi_b32 v%d, %s, v%d, v12" % (F, sFF, vTAG)); p("v_bfi_b32 v%d, %s, v%d, v13" % (F+1, sFF, vTAG))
        p("v_mov_b32 v%d, %s" % (F+2, sE)); p("v_mov_b32 v%d, %s" % (F+3, sE))
        p("s_mov_b32 exec_lo, 0xff"); p("s_mov_b32 exec_hi, 0")
        p.vmem("buffer_store_dwordx4 %s, v%d, %s, %s offen%s" % (vr(F, 4), vMLS, SWS, sPO, HS), "PUBML", cond=True)
        p("s_mov_b64 exec, -1")
        p("%s:" % SKIP4)
        p("s_waitcnt lgkmcnt(0)")
    def o_publish():
        if earlyml: o_publish_early()
        else: o_publish_late()
    sROLE = "s68"
    claim_at = cfg.get("claim_at", 2)
    def claim():
        SK = p.label("noclaim")
        p("s_cmp_lg_u32 %s, 0" % sW); p("s_cbranch_scc1 %s" % SK)
        p("s_lshl_b32 %s, %s, 9" % (sA, sG)); p("s_add_u32 %s, %s, %d" % (sA, sA, CNT_BASE))
        p("s_add_u32 s82, s44, %s" % sA); p("s_addc_u32 s83, s45, 0")
        p("s_mov_b32 %s, 1" % sROLE)
        p("s_atomic_add %s, s[82:83], 0 glc" % sROLE)
        p("%s:" % SK)
    def claim_broadcast():
        SK = p.label("nobc")
        p("s_cmp_lg_u32 %s, 0" % sW); p("s_cbranch_scc1 %s" % SK)
        p("s_waitcnt lgkmcnt(0)")
        p("v_mov_b32 v12, %s" % sROLE); p("v_mov_b32 v13, 0")
        p("ds_write_b32 v13, v12 offset:%d" % L_ROLE)
        p("%s:" % SK)
        p("s_waitcnt lgkmcnt(0)")
        p("s_barrier")
        p("v_mov_b32 v13, 0")
        p("ds_read_b32 v12, v13 offset:%d" % L_ROLE)
        p("s_waitcnt lgkmcnt(0)")
        p("v_readfirstlane_b32 %s, v12" % sRB)
    if earlyml: ml_publish_lds()
    pv(0); loadV(4)
    if claim_at == 0: claim()
    pv(1); loadV(5)
    if claim_at == 1: claim()
    pv(2); loadV(6)
    if claim_at == 2: claim()
    pv(3); loadV(7)
    if claim_at == 3: claim()
    if earlyml: producer_addresses()
    claim_broadcast()
    if earlyml: ml_stage()
    NOROLE = p.label("norole"); FINAL = p.label("final"); HALF = p.label("half"); FIN = p.label("fin")
    dedic = cfg.get("dedic", 0)
    sF = "s75"
    N2 = cfg.get("n2", 32); N1 = 64 - 2*N2
    def role_path(NH, npre, doO=True, doW=True):
        p("; ==== role path: rows 32rb.. of wo%s and 28rb.. of w2%s ====" % ("" if doO else " (not here)", "" if doW else " (not here)"))
        if doW: h_issue()
        late_addresses(NH)
        del late[:]; late.extend((W2_loads(NH) if doW else []) + (O_loads(NH) if doO else [])); floor_[0] = max(0, len(late) - npre)
        pv(4, True); tl(1)
        if not earlyml: producer_addresses()
        tl(1); pv(5, True); tl(1)
        if doO: gather_addresses()
        if not earlyml: ml_publish_lds()
        tl(1); pv(6, True)
        while len(late) > floor_[0]: tl(1)
        pv(7)
        stamp("pv_done")
        o_publish()
        stamp("o_pub")
        floor_[0] = 0
        DD0, DD1 = 124, 116
        def pub_cols(sb, name):
            for D in (DD0, DD1)[:NH]:
                for r in range(4): p("v_bfi_b32 v%d, %s, v%d, v%d" % (D+r, sFF, vTAG, D+r))
            p("s_add_u32 %s, %s, %d" % (sT0, sb, 4*16384))
            p("s_mov_b32 exec_hi, 0")
            p.vmem("buffer_store_dwordx4 %s, v%d, %s, %s offen%s" % (vr(DD0, 4), vPC, SWS, sb, HS), name)
            if NH == 2: p.vmem("buffer_store_dwordx4 %s, v%d, %s, %s offen%s" % (vr(DD1, 4), vPC, SWS, sT0, HS), name)
            p("s_mov_b64 exec, -1")
        def diag_mult(src, n, b0, b1):
            for t in range(n+1):
                if t < n:
                    A = PERM + 4*(t % 4)
                    for jj in range(4): p("v_and_b32 v%d, v%d, v%d" % (A+jj, src+t, vMASK+jj))
                if t >= 1:
                    tt = t-1; AA = PERM + 4*(tt % 4)
                    p("v_mfma_f32_16x16x32_bf16 %s, %s, %s, %s" % (vr(DD0, 4), vr(AA, 4), ar(b0+4*tt, 4), "0" if tt == 0 else vr(DD0, 4)))
                    if NH == 2: p("v_mfma_f32_16x16x32_bf16 %s, %s, %s, %s" % (vr(DD1, 4), vr(AA, 4), ar(b1+4*tt, 4), "0" if tt == 0 else vr(DD1, 4)))
        def g2_loads(R, nm):
            f = (lambda t: p.vmem(t, nm)) if nm else p
            f("buffer_load_dwordx4 %s, v%d, %s, %s offen%s" % (vr(R, 4), vG1, SWS, sGV, HL))
            f("buffer_load_dwordx4 %s, v%d, %s, %s offen%s" % (vr(R+8, 4), vG0, SWS, sGA, HL))
            p("s_add_u32 %s, %s, %d" % (sT0, sGV, 8*O_PITCH))
            f("buffer_load_dwordx4 %s, v%d, %s, %s offen%s" % (vr(R+4, 4), vG1, SWS, sT0, HL))
            p("s_add_u32 %s, %s, %d" % (sT0, sGA, 8*O_PITCH))
            f("buffer_load_dwordx4 %s, v%d, %s, %s offen%s" % (vr(R+12, 4), vG0, SWS, sT0, HL))
        def g2_check():
            p("v_xor_b32 v14, %s, v106" % sE)
            for r in (107, 110, 111): p("v_bitop3_b32 v14, v%d, %s, v14 bitop3:0xbe" % (r, sE))
            regs = list(range(96, 106)) + [108, 109]
            p("v_xor_b32 v15, %s, v%d" % (sTAG, regs[0]))
            for r in regs[1:]: p("v_bitop3_b32 v15, v%d, %s, v15 bitop3:0xbe" % (r, sTAG))
            p("v_and_or_b32 v15, v15, %s, v14" % sFF)
            p("v_cmp_ne_u32 vcc, 0, v15")
            if cfg.get("nodep"): p("s_mov_b64 vcc, 0")
        tl(100)
        if doO and (not doW or not cfg.get("g2pos", 0)): g2_loads(96, "G2A")
        tail_addresses_b(NH)
        if doW:
            h_compute()
            p("v_lshrrev_b32 v13, 4, v1"); p("v_lshlrev_b32 v13, 5, v13")
            p("s_waitcnt lgkmcnt(0)")
            p("ds_read_b128 v[16:19], v13 offset:%d" % L_HL); p("ds_read_b128 v[20:23], v13 offset:%d" % (L_HL+16))
            p("s_waitcnt lgkmcnt(0)")
            p.wait("W2")
            diag_mult(16, 7, AW2, AW2+28)
            if doO and cfg.get("g2pos", 0) == 1: g2_loads(96, "G2A")
            pub_cols(sPB, "PUBB2")
            stamp("b_pub")
        if not doO:
            p("s_branch %s" % (FIN if dedic else FINAL))
            return
        p.wait("G2A")
        stamp("g2_first")
        retry_block(g2_check, lambda: g2_loads(96, None), "g2")
        stamp("g2_ok")
        if stamps: p("s_mov_b32 s3, %s" % sRETRY)
        p("v_and_b32 v104, 0xffffff00, v104"); p("v_and_b32 v108, 0xffffff00, v108")
        p("v_max_f32 v120, v104, v108")
        allred(p, [120], [121], "v_max_f32", [8, 16, 32])
        p("v_sub_f32 v104, v104, v120"); p("v_sub_f32 v108, v108, v120")
        p("v_mul_f32 v104, %s, v104" % sLOG2E); p("v_mul_f32 v108, %s, v108" % sLOG2E)
        p("v_exp_f32 v104, v104"); p("v_exp_f32 v108, v108")
        for r in range(4): p("v_mul_f32 v%d, v104, v%d" % (96+r, 96+r))
        p("v_mul_f32 v105, v104, v105")
        for r in range(4): p("v_fmac_f32 v%d, v108, v%d" % (96+r, 100+r))
        p("v_fmac_f32 v105, v108, v109")
        allred(p, [105], [121], "v_add_f32", [32, 16, 8])
        red4(p, [96, 97, 98, 99])
        p("v_mov_b32 v121, v105")
        p("ds_write_b32 v%d, v96 offset:%d" % (vCPW, L_CP))
        p("ds_write_b64 v%d, v[120:121] offset:%d" % (vCM, L_CM))
        p("s_waitcnt lgkmcnt(0)")
        p("s_barrier")
        p("ds_read_b128 v[100:103], v%d offset:%d" % (vZ, L_CM)); p("ds_read_b128 v[104:107], v%d offset:%d" % (vZ, L_CM+16))
        for w_ in range(4):
            p("ds_read_b128 %s, v%d offset:%d" % (vr(32+8*w_, 4), vCPR, L_CP + 128*w_)); p("ds_read_b128 %s, v%d offset:%d" % (vr(36+8*w_, 4), vCPR, L_CP + 128*w_ + 16))
        p("s_waitcnt lgkmcnt(8)")
        p("v_max3_f32 v120, v100, v102, v104"); p("v_max_f32 v120, v120, v106")
        for i in range(4): p("v_sub_f32 v%d, v%d, v120" % (100+2*i, 100+2*i))
        for i in range(4): p("v_mul_f32 v%d, %s, v%d" % (100+2*i, sLOG2E, 100+2*i))
        for i in range(4): p("v_exp_f32 v%d, v%d" % (100+2*i, 100+2*i))
        p("v_mul_f32 v121, v100, v101"); p("v_fmac_f32 v121, v102, v103"); p("v_fmac_f32 v121, v104, v105"); p("v_fmac_f32 v121, v106, v107")
        p("v_rcp_f32 v121, v121")
        for i in range(4): p("v_mul_f32 v%d, v%d, v121" % (100+2*i, 100+2*i))
        for i in range(4): p("v_mov_b32 v%d, v%d" % (101+2*i, 100+2*i))
        p("s_waitcnt lgkmcnt(6)")
        for r in range(0, 8, 2): p("v_pk_mul_f32 %s, v[100:101], %s" % (vr(32+r, 2), vr(32+r, 2)))
        p("s_waitcnt lgkmcnt(4)")
        for r in range(0, 8, 2): p("v_pk_fma_f32 %s, v[102:103], %s, %s" % (vr(32+r, 2), vr(40+r, 2), vr(32+r, 2)))
        p("s_waitcnt lgkmcnt(2)")
        for r in range(0, 8, 2): p("v_pk_fma_f32 %s, v[104:105], %s, %s" % (vr(32+r, 2), vr(48+r, 2), vr(32+r, 2)))
        p("s_waitcnt lgkmcnt(0)")
        for r in range(0, 8, 2): p("v_pk_fma_f32 %s, v[106:107], %s, %s" % (vr(32+r, 2), vr(56+r, 2), vr(32+r, 2)))
        for r in range(8): p("v_cvt_pk_bf16_f32 v%d, v%d, v%d" % (16+r, 32+r, 32+r))
        p.wait("O")
        diag_mult(16, 8, AWO, AWO+32)
        pub_cols(sPS, "PUBS")
        stamp("s_pub")
        p("s_branch %s" % (FIN if dedic else FINAL))

    vm_role = list(p.vm)
    NB = cfg.get("nb", 32)
    if NB < 32:
        assert N2 == 32 and not dedic
        OONLY = p.label("oonly"); WONLY = p.label("wonly")
        p("s_cmp_ge_u32 %s, %d" % (sRB, 64 - NB)); p("s_cbranch_scc1 %s" % NOROLE)
        p("s_cmp_ge_u32 %s, 32" % sRB); p("s_cbranch_scc1 %s" % WONLY)
        p("s_cmp_ge_u32 %s, %d" % (sRB, NB)); p("s_cbranch_scc1 %s" % OONLY)
        p("s_lshl_b32 %s, %s, 5" % (sA, sG)); p("s_add_u32 %s, %s, %s" % (sRB, sRB, sA))
        role_path(2, n_pre)
        p("%s:" % OONLY); p.vm = list(vm_role)
        p("s_lshl_b32 %s, %s, 5" % (sA, sG)); p("s_add_u32 %s, %s, %s" % (sRB, sRB, sA))
        role_path(2, cfg.get("n_preO", 8), True, False)
        p("%s:" % WONLY); p.vm = list(vm_role)
        p("s_sub_u32 %s, %s, %d" % (sRB, sRB, 32 - NB))
        p("s_lshl_b32 %s, %s, 5" % (sA, sG)); p("s_add_u32 %s, %s, %s" % (sRB, sRB, sA))
        role_path(2, cfg.get("n_preW", 3), False, True)
    else:
        p("s_cmp_ge_u32 %s, %d" % (sRB, N2 + N1)); p("s_cbranch_scc1 %s" % NOROLE)
        if N1:
            p("s_cmp_ge_u32 %s, %d" % (sRB, N2)); p("s_cbranch_scc1 %s" % HALF)
        if N2:
            if stamps: p("s_mov_b32 s101, 2")
            p("s_lshl_b32 %s, %s, 5" % (sA, sG)); p("s_add_u32 %s, %s, %s" % (sRB, sRB, sA))
            role_path(2, n_pre)
        if N1:
            p("%s:" % HALF)
            p.vm = list(vm_role)
            if stamps: p("s_mov_b32 s101, 1")
            p("s_sub_u32 %s, %s, %d" % (sRB, sRB, N2)); p("s_and_b32 %s, %s, 1" % (sCH, sRB)); p("s_lshr_b32 %s, %s, 1" % (sRB, sRB)); p("s_add_u32 %s, %s, %d" % (sRB, sRB, N2))
            p("s_lshl_b32 %s, %s, 5" % (sA, sG)); p("s_add_u32 %s, %s, %s" % (sRB, sRB, sA))
            role_path(1, cfg.get("n_pre1", n_pre))
    p("%s:" % NOROLE)
    p.vm = list(vm_role)
    if stamps: p("s_mov_b32 s101, 0")
    pv(4)
    if not earlyml: producer_addresses()
    pv(5)
    if not earlyml: ml_publish_lds()
    pv(6)
    pv(7)
    stamp("pv_done")
    o_publish()
    stamp("o_pub")
    p("%s:" % FINAL)
    p.vm = []
    sFB, sFS, sFX = "s69", "s70", "s74"
    vXF, vFW, vFR = 181, 182, 183
    def fl(sb):
        def f(R, nm):
            g = (lambda t: p.vmem(t, nm)) if nm else p
            for u in range(4):
                g("buffer_load_dwordx4 %s, v%d, %s, %s offen offset:%d%s" % (vr(R+4*u, 4), vL16, SWS, sb, 1024*u, HL))
        return f
    def fin_reduce(R, dst):
        for r in range(0, 4, 2):
            p("v_pk_add_f32 %s, %s, %s" % (vr(R+r, 2), vr(R+r, 2), vr(R+4+r, 2))); p("v_pk_add_f32 %s, %s, %s" % (vr(R+8+r, 2), vr(R+8+r, 2), vr(R+12+r, 2)))
        for r in range(0, 4, 2): p("v_pk_add_f32 %s, %s, %s" % (vr(R+r, 2), vr(R+r, 2), vr(R+8+r, 2)))
        red4(p, [R, R+1, R+2, R+3])
        p("ds_write_b32 v%d, v%d offset:%d" % (vFW, R, dst))
        p("s_waitcnt lgkmcnt(0)")
        p("s_barrier")
        for w_ in range(4): p("ds_read_b32 v%d, v%d offset:%d" % (R+w_, vFR, dst + 128*w_))
        p("s_waitcnt lgkmcnt(0)")
        p("v_add_f32 v%d, v%d, v%d" % (R, R, R+1)); p("v_add_f32 v%d, v%d, v%d" % (R+2, R+2, R+3)); p("v_add_f32 v%d, v%d, v%d" % (R, R, R+2))
        p("v_cvt_pk_bf16_f32 v%d, v%d, v%d" % (R, R, R)); p("v_lshlrev_b32 v%d, 16, v%d" % (R, R))
    if dedic:
        p("s_sub_u32 %s, %s, %d" % (sF, sRB, N2 + N1)); p("s_cmp_ge_u32 %s, 8" % sF); p("s_cbranch_scc1 %s" % FIN)
        p("s_lshl_b32 %s, %s, 3" % (sA, sG)); p("s_add_u32 %s, %s, %s" % (sF, sF, sA))
    else:
        p("s_mov_b32 %s, s2" % sF)
        p("s_cmp_ge_u32 s2, 32"); p("s_cbranch_scc1 %s" % FIN)
    p("s_lshl_b32 %s, %s, 14" % (sA, sF)); p("s_lshl_b32 %s, %s, 12" % (sD, sW)); p("s_add_u32 %s, %s, %s" % (sA, sA, sD))
    p("s_add_u32 %s, %s, %d" % (sFS, sA, S_BASE)); p("s_add_u32 %s, %s, %d" % (sFB, sA, BB_BASE))
    p("v_lshrrev_b32 v12, 4, v1"); p("v_and_b32 v13, 1, v12"); p("v_lshlrev_b32 v13, 1, v13"); p("v_lshrrev_b32 v12, 1, v12"); p("v_or_b32 v12, v12, v13")
    p("v_and_b32 v14, 7, v1"); p("v_lshlrev_b32 v14, 2, v14"); p("v_add_u32 v14, v14, v12")
    p("v_lshlrev_b32 v179, 1, v14"); p("s_lshl_b32 %s, %s, 6" % (sFX, sF))
    p("v_lshlrev_b32 v%d, 2, v14" % vFR); p("s_lshl_b32 %s, %s, 7" % (sD, sW)); p("v_add_u32 v%d, %s, v%d" % (vFW, sD, vFR))
    p.vmem("buffer_load_ushort v%d, v179, %s, %s offen" % (vXF, SX, sFX), "XF")
    fl(sFB)(128, "FB")
    p.wait("FB")
    def rlb():
        if cfg.get("fbsleep", 2): p("s_sleep %d" % cfg.get("fbsleep", 2))
        fl(sFB)(128, None)
    retry_block(lambda: tagcheck(list(range(128, 144)), 15), rlb, "fb")
    fl(sFS)(144, "FS0")
    fin_reduce(128, L_FP)
    silu(128, 32, 40, 1)
    p("v_cvt_pk_bf16_f32 v32, v32, v32"); p("v_lshlrev_b32 v32, 16, v32")
    p("v_lshlrev_b32 v44, 16, v%d" % vXF)
    stamp("g_done")
    if not cfg.get("fs2", 0):
        p.wait("FS0")
        retry_block(lambda: tagcheck(list(range(144, 160)), 15), lambda: fl(sFS)(144, None), "fs")
    else:
        RA, RB, nregs, nloads = 144, 184, 16, 4
        loads = fl(sFS)
        L = p.label("pfs"); DA = p.label("dafs"); DB = p.label("dbfs")
        p("s_mov_b32 %s, %d" % (sRETRY, RETRIES))
        p("%s:" % L)
        loads(RB, None)
        p("s_waitcnt vmcnt(%d)" % nloads)
        tagcheck(list(range(RA, RA+nregs)), 15)
        p("s_cbranch_vccz %s" % DA)
        loads(RA, None)
        p("s_waitcnt vmcnt(%d)" % nloads)
        tagcheck(list(range(RB, RB+nregs)), 15)
        p("s_cbranch_vccz %s" % DB)
        p("s_sub_u32 %s, %s, 1" % (sRETRY, sRETRY)); p("s_cbranch_scc0 %s" % L)
        p("%s:" % DB)
        p("s_waitcnt vmcnt(0)")
        for r in range(nregs): p("v_mov_b32 v%d, v%d" % (RA+r, RB+r))
        p("%s:" % DA)
    stamp("fs_ok")
    fin_reduce(144, L_FP + 512)
    p("v_mul_f32 v36, v144, v32")
    p("v_cvt_pk_bf16_f32 v36, v36, v36"); p("v_lshlrev_b32 v36, 16, v36")
    p("v_add_f32 v36, v36, v44")
    p("v_cvt_pk_bf16_f32 v40, v36, v36")
    SK5 = p.label("out")
    p("s_cmp_lg_u32 %s, 0" % sW); p("s_cbranch_scc1 %s" % SK5)
    p("s_mov_b32 exec_lo, 0x00ff00ff"); p("s_mov_b32 exec_hi, 0x00ff00ff")
    p.vmem("buffer_store_short v40, v179, %s, %s offen" % (SOUT, sFX), "OUT", cond=True)
    p("s_cmp_lg_u32 %s, 0" % sF); p("s_cbranch_scc1 %s" % SK5)
    p("v_mov_b32 v12, %d" % EPOCH); p("v_mov_b32 v13, %s" % sE)
    p("s_mov_b32 exec_lo, 1"); p("s_mov_b32 exec_hi, 0")
    p.vmem("buffer_store_dword v13, v12, %s, 0 offen%s" % (SWS, HS), "EPO", cond=True)
    p("%s:" % SK5)
    p("s_mov_b64 exec, -1")
    p("%s:" % FIN)
    if stamps:
        stamp("end")
        p("s_getreg_b32 %s, hwreg(HW_REG_XCC_ID)" % sA)
        p("s_waitcnt lgkmcnt(0)")
        for k in range(16):
            p("v_mov_b32 v%d, %s" % (32+k, ("s%d" % (ST0+2*k)) if k < nst[0] else "0"))
        p("v_mov_b32 v48, %s" % sA); p("v_mov_b32 v49, s3"); p("s_getreg_b32 %s, hwreg(HW_REG_HW_ID)" % sD); p("v_mov_b32 v50, %s" % sD); p("v_mov_b32 v51, s101")
        p("s_lshl_b32 %s, s2, 2" % sB); p("s_add_u32 %s, %s, %s" % (sB, sB, sW)); p("s_lshl_b32 %s, %s, 7" % (sB, sB)); p("s_add_u32 %s, %s, %d" % (sB, sB, STAMP))
        p("v_mov_b32 v12, 0")
        p("s_mov_b32 exec_lo, 1"); p("s_mov_b32 exec_hi, 0")
        if not cfg.get("dbg"):
            for i in range(4): p("buffer_store_dwordx4 %s, v12, %s, %s offen offset:%d" % (vr(32+4*i, 4), SWS, sB, 16*i))
            p("buffer_store_dwordx4 v[48:51], v12, %s, %s offen offset:64" % (SWS, sB))
        p("s_mov_b64 exec, -1")
    if stamps and cfg.get("dbg"):
        NODBG = p.label("nodbg")
        p("s_cmp_ge_u32 s2, 32"); p("s_cbranch_scc1 %s" % NODBG)
        p("s_cmp_lg_u32 %s, 0" % sW); p("s_cbranch_scc1 %s" % NODBG)
        p("v_mov_b32 v60, 0")
        for k in range(min(8, nst[0])):
            p("v_cmp_eq_u32 vcc, %d, v1" % k); p("v_mov_b32 v61, s%d" % (78+2*k)); p("v_cndmask_b32 v60, v60, v61, vcc")
            p("v_cmp_eq_u32 vcc, %d, v1" % (8+k)); p("v_not_b32 v61, v61"); p("v_cndmask_b32 v60, v60, v61, vcc")
        p("v_lshlrev_b32 v62, 2, v1")
        p("s_mov_b32 exec_lo, 0xffff"); p("s_mov_b32 exec_hi, 0")
        p("buffer_atomic_umax v60, v62, %s, 0 offen" % SDBG)
        p("s_mov_b64 exec, -1")
        p("%s:" % NODBG)
    p("%s:" % END)
    p("s_endpgm")
    return p, names

HEADER = """; Fused decode step:  out = x + (softmax(q K^T / sqrt(128)) V . wo) * silu((silu(xn w1) * (xn w3)) . w2),  xn = layernorm(x), q = xn . wq
; Workgroup j: kv head j>>6, 1024 keys; wave w streams 256 keys (K into AGPRs, V through a VGPR ring), all loads full 128-byte lines, nt.
;   early : q partials (+ one flag line per workgroup), gate/up partials
; @launch grid=(256,1,1) block=(256,1,1) lds=%d
"""
def wrap(body, name=NAME, lds=LDS_BYTES, header=True):
    s = (HEADER % lds) if header else ""
    if header: s += '.amdgcn_target "amdgcn-amd-amdhsa--gfx950"\n'
    s += ".text\n.globl %s\n.p2align 8\n.type %s,@function\n%s:\n" % (name, name, name)
    s += body
    s += '.section .rodata,"a"\n.p2align 6\n.amdhsa_kernel %s\n' % name
    s += "  .amdhsa_next_free_vgpr 512\n  .amdhsa_next_free_sgpr 102\n  .amdhsa_accum_offset 256\n"
    s += "  .amdhsa_group_segment_fixed_size 0\n  .amdhsa_kernarg_size 96\n  .amdhsa_user_sgpr_count 2\n"
    s += "  .amdhsa_user_sgpr_kernarg_segment_ptr 1\n  .amdhsa_system_sgpr_workgroup_id_x 1\n"
    s += "  .amdhsa_float_denorm_mode_32 3\n"
    s += ".end_amdhsa_kernel\n"
    return s

if __name__ == "__main__":
    cfg = json.loads(sys.argv[2]) if len(sys.argv) > 2 else {}
    p, names = build(cfg)
    open(sys.argv[1], "w").write(wrap(p.text()))
    print("wrote", sys.argv[1], "stamps:", names)
```
